```python
import torch

def _softmax(x, axis=-1):
    return torch.softmax(x, dim=axis)
def _gelu(x):
    return torch.nn.functional.gelu(x, approximate="tanh")
def _silu(x):
    return torch.nn.functional.silu(x)
def _sigmoid(x):
    return torch.sigmoid(x)
def _layernorm(x, axis=-1, eps=1e-5):
    m = x.mean(dim=axis, keepdim=True)
    v = x.var(dim=axis, keepdim=True, unbiased=False)
    return (x - m) / torch.sqrt(v + eps)
def _scatter_add(tgt, idx, src, axis=0):
    return tgt.clone().index_add_(axis, idx, src)
def _segment_sum(src, seg, n):
    out = torch.zeros((n,) + src.shape[1:], dtype=src.dtype)
    return out.index_add_(0, seg, src)
def _pad(x, pw):
    flat = tuple(v for pair in reversed(pw) for v in pair)
    return torch.nn.functional.pad(x, flat)

kernel_name = 'gated_mix__sliding_block__mixer_s_mlp__prompt'

def setup_inputs():

    _w = (lambda a: (lambda t: t.to(torch.bfloat16) if t.is_floating_point() else t)(torch.as_tensor(a)))
    def _A_setup():
        B, S, D = 1, 2048, 512
        return {
            "x": _w((lambda *s: torch.randn(*s, dtype=torch.bfloat16) * 0.05)(B, S, D)),
            "wqkv": _w((lambda *s: torch.randn(*s, dtype=torch.bfloat16) * 1.6)(D, 3 * D)),
            "wo": _w((lambda *s: torch.randn(*s, dtype=torch.bfloat16) * 0.4)(D, D)),
        }
    _A_in = _A_setup()

    def _B_setup():
        B, S, D, F = 1, 2048, 512, 1376
        return {
            "x":  _w((lambda *s: torch.randn(*s, dtype=torch.bfloat16) * 0.05)(B, S, D)),
            "w1": _w((lambda *s: torch.randn(*s, dtype=torch.bfloat16) * 3.2)(D, D) * (D ** -0.5)),
            "w2": _w((lambda *s: torch.randn(*s, dtype=torch.bfloat16) * 3.2)(D, D) * (D ** -0.5)),
            "w3": _w((lambda *s: torch.randn(*s, dtype=torch.bfloat16) * 3.2)(D, F) * (D ** -0.5)),
            "w4": _w((lambda *s: torch.randn(*s, dtype=torch.bfloat16) * 3.2)(F, D) * (F ** -0.5)),
        }
    _B_in = _B_setup()

    return {
        "A_x": _A_in["x"],
        "A_wqkv": _A_in["wqkv"],
        "A_wo": _A_in["wo"],
        "B_x": _B_in["x"],
        "B_w1": _B_in["w1"],
        "B_w2": _B_in["w2"],
        "B_w3": _B_in["w3"],
        "B_w4": _B_in["w4"],
        "gate_w": _w((lambda *s: torch.randn(*s, dtype=torch.bfloat16) * 0.05)(512) * 16.0),
    }

def reference(A_x, A_wqkv, A_wo, B_x, B_w1, B_w2, B_w3, B_w4, gate_w):
    def _A_ref(x, wqkv, wo):
        B, S, D = x.shape
        H = 32; Dh = D // H; W = 256
        qkv = (lambda x, *d: x.permute(*d))((x @ wqkv).reshape(B, S, 3, H, Dh), 2, 0, 3, 1, 4)
        q, k, v = qkv[0], qkv[1], qkv[2]
        scores = torch.einsum("bhqd,bhkd->bhqk", q, k) * (Dh ** -0.5)
        idx = torch.arange(S)
        mask = (idx[:, None] - idx[None, :] >= 0) & (idx[:, None] - idx[None, :] < W)
        scores = torch.where(mask[None, None], scores, -1e9)
        p = _softmax(scores, axis=-1)
        o = torch.einsum("bhqk,bhkd->bhqd", p, v)
        return (lambda x, *d: x.permute(*d))(o, 0, 2, 1, 3).reshape(B, S, D) @ wo

    def _B_ref(x, w1, w2, w3, w4):
        B, S, D = x.shape
        h = _gelu(_layernorm(x, axis=-1) @ w1)
        c = D // 4
        g0 = _pad(h[:, :, 0*c:1*c], ((0, 0), (1, 0), (0, 0)))[:, :S, :]
        g1 = _pad(h[:, :, 1*c:2*c], ((0, 0), (0, 1), (0, 0)))[:, 1:, :]
        g2 = _pad(h[:, :, 2*c:3*c], ((0, 0), (2, 0), (0, 0)))[:, :S, :]
        g3 = _pad(h[:, :, 3*c:   ], ((0, 0), (0, 2), (0, 0)))[:, 2:, :]
        hs = torch.concatenate([g0, g1, g2, g3], axis=-1) @ w2
        x1 = x + hs
        h2 = _gelu(_layernorm(x1, axis=-1) @ w3) @ w4
        return x1 + h2

    x = A_x
    g = _sigmoid((x * gate_w).sum(-1, keepdims=True))
    a = _A_ref(x, A_wqkv, A_wo)
    b = _B_ref(x, B_w1, B_w2, B_w3, B_w4)
    return g * a + (1 - g) * b
```

```python
import re

TRANS = ('v_exp_f32', 'v_log_f32', 'v_rcp_f32', 'v_rsq_f32', 'v_sqrt_f32', 'v_sin_f32', 'v_cos_f32')

def regs_of(tok):
    tok = tok.strip()
    tok = tok.lstrip('-')
    if tok.startswith('abs(') or tok.startswith('|'):
        tok = tok.replace('abs(', '').replace(')', '').replace('|', '')
    m = re.fullmatch(r'([vsa])\[(\d+):(\d+)\]', tok)
    if m:
        return [f'{m.group(1)}{i}' for i in range(int(m.group(2)), int(m.group(3)) + 1)]
    m = re.fullmatch(r'([vsa])(\d+)', tok)
    if m:
        return [tok]
    if tok in ('vcc', 'exec', 'm0', 'scc'):
        return [tok]
    if tok in ('vcc_lo', 'vcc_hi'): return ['vcc']
    if tok in ('exec_lo', 'exec_hi'): return ['exec']
    return []

class Ins:
    __slots__ = ('text', 'op', 'dst', 'src', 'kind', 'passes', 'srcC', 'srcAB', 'label', 'wide_store')
    def __init__(self, text):
        self.text = text
        self.label = text.endswith(':')
        self.dst, self.src, self.srcC, self.srcAB = [], [], [], []
        self.passes = 0
        self.wide_store = []
        self.kind = 'other'
        if self.label or text.startswith('.') or text.startswith(';'):
            self.op = ''
            self.kind = 'meta'
            return
        body = text.split(';')[0].strip()
        parts = body.split(None, 1)
        op = parts[0]
        self.op = op
        ops = []
        if len(parts) > 1:
            ops = [o.strip() for o in re.split(r',(?![^\[]*\])', parts[1])]
            if ops:
                last = ops[-1].split()
                ops[-1] = last[0] if last else ''
        base = re.sub(r'_e(32|64)$', '', op)
        R = regs_of
        if base.startswith('v_mfma'):
            self.kind = 'mfma'
            self.dst = R(ops[0]); self.srcAB = R(ops[1]) + R(ops[2]); self.srcC = R(ops[3])
            self.src = self.srcAB + self.srcC
            self.passes = 8 if '32x32x16' in base else 4 if '16x16x32' in base else 2 if '4x4x4' in base else 16
        elif base.startswith('v_'):
            self.kind = 'valu'
            if base.startswith('v_cmp'):
                self.dst = R(ops[0]); self.src = sum((R(o) for o in ops[1:]), [])
            elif base.startswith('v_permlane32_swap') or base.startswith('v_permlane16_swap'):
                self.dst = R(ops[0]) + R(ops[1]); self.src = list(self.dst)
            elif base in ('v_add_co_u32', 'v_addc_co_u32', 'v_sub_co_u32'):
                self.dst = R(ops[0]) + R(ops[1]); self.src = sum((R(o) for o in ops[2:]), [])
            else:
                self.dst = R(ops[0]); self.src = sum((R(o) for o in ops[1:]), [])
                if base in ('v_fmac_f32', 'v_dot2c_f32_bf16'):
                    self.src += self.dst
        elif base.startswith('ds_'):
            self.kind = 'ds'
            if base.startswith('ds_read'):
                self.dst = R(ops[0]); self.src = R(ops[1])
            else:
                self.src = sum((R(o) for o in ops), [])
        elif base.startswith('buffer_') or base.startswith('global_'):
            self.kind = 'vmem'
            if ' lds' in (' ' + body.split(None, 1)[1]) and base.startswith('buffer_load'):
                self.src = sum((R(o) for o in ops), []) + ['m0']
                self.kind = 'dma'
            elif 'load' in base:
                self.dst = R(ops[0]); self.src = sum((R(o) for o in ops[1:]), [])
            elif 'atomic' in base:
                self.src = sum((R(o) for o in ops), [])
                if ' sc0' in body: self.dst = R(ops[0])
            else:
                self.src = sum((R(o) for o in ops), [])
                if base.endswith('x4') or base.endswith('x3'):
                    self.wide_store = R(ops[0]) if base.startswith('buffer_') else R(ops[1])
        elif base.startswith('s_'):
            self.kind = 'salu'
            if base in ('s_nop',):
                self.kind = 'nop'
            elif base.startswith('s_cbranch') or base in ('s_branch', 's_call_b64', 's_setpc_b64', 's_swappc_b64', 's_endpgm'):
                self.kind = 'branch'
            elif base.startswith('s_cmp') or base in ('s_waitcnt', 's_barrier', 's_sleep', 's_setprio'):
                self.src = sum((R(o) for o in ops), [])
            else:
                self.dst = R(ops[0]) if ops else []
                self.src = sum((R(o) for o in ops[1:]), [])
    def states(self):
        if self.kind == 'meta': return 0
        if self.kind == 'nop':
            return int(self.text.split()[1], 0) + 1
        return 1

def need(p, c):
    n = 0
    pd = set(p.dst)
    isv = lambda r: r[0] in 'va' and r not in ('vcc',)
    cbase = re.sub(r'_e(32|64)$', '', c.op)
    pbase = re.sub(r'_e(32|64)$', '', p.op)
    if p.kind == 'mfma':
        t = {2: 0, 4: 1, 8: 2, 16: 3}[p.passes]
        if c.kind == 'mfma':
            if pd & set(c.srcAB): n = max(n, (5, 8, 12, 20)[t])
            if pd & set(c.srcC):
                if c.srcC == p.dst and c.passes == p.passes: n = max(n, (2, 0, 0, 0)[t])
                else: n = max(n, (4, 6, 10, 18)[t])
            elif pd & set(c.dst):
                n = max(n, (4, 6, 10, 18)[t])
        elif c.kind in ('valu', 'ds', 'vmem', 'dma'):
            if pd & (set(c.src) | set(c.dst)): n = max(n, (5, 8, 12, 20)[t])
        if c.kind in ('valu',) and set(p.srcC) & set(c.dst):
            n = max(n, (1, 3, 7, 15)[t])
        if c.kind in ('ds', 'vmem') and set(p.srcC) & set(c.dst):
            n = max(n, (1, 3, 7, 15)[t])
    if p.kind == 'valu':
        vd = {r for r in pd if isv(r)}
        sd = pd - vd
        if c.kind == 'mfma' and vd & set(c.src): n = max(n, 2)
        if c.kind == 'valu':
            if cbase.startswith('v_permlane') and vd & set(c.src): n = max(n, 2)
            if cbase in ('v_readfirstlane_b32', 'v_readlane_b32') and vd & set(c.src): n = max(n, 1)
            if sd & set(c.src): n = max(n, 2)
            if 'vcc' in sd and cbase == 'v_cndmask_b32': n = max(n, 2)
            if pbase in TRANS and cbase not in TRANS and vd & set(c.src): n = max(n, 1)
            if pbase in TRANS and cbase in TRANS and vd & set(c.src): n = max(n, 1)
            if pbase.startswith('v_dot') and vd & (set(c.src) | set(c.dst)):
                if not (cbase == pbase and not (vd & set(c.src[:2]))): n = max(n, 3)
            if 'dpp' in c.text or 'row_' in c.text or 'quad_perm' in c.text:
                if vd & set(c.src): n = max(n, 2)
        if c.kind in ('vmem', 'dma') and sd & set(c.src): n = max(n, 5)
        if pbase.startswith('v_dot') and c.kind in ('ds', 'vmem', 'mfma') and vd & set(c.src): n = max(n, 3)
        if pbase in TRANS and c.kind in ('ds', 'vmem') and vd & set(c.src): n = max(n, 1)
        if c.kind == 'salu' and sd & set(c.src): n = max(n, 1)
    if p.kind == 'salu':
        if 'm0' in pd and c.kind == 'dma': n = max(n, 1)
    if p.wide_store and c.kind in ('valu', 'ds', 'vmem', 'mfma') and set(p.wide_store) & set(c.dst):
        n = max(n, 2)
    if p.kind == 'ds' and p.op.startswith('ds_write_b128') and c.kind == 'valu' and set(p.src[1:]) & set(c.dst):
        n = max(n, 2)
    return n

class Asm:
    def __init__(self):
        self.ins = []
        self.ool = []
        self.uid = 0
    def __call__(self, text):
        for t in text.split('\n'):
            t = t.strip()
            if t: self.ins.append(Ins(t))
    def new_label(self, p='L'):
        self.uid += 1
        return f'{p}_{self.uid}'
    def pad(self):
        out = []
        nn = 0
        for c in self.ins:
            if c.kind != 'meta':
                dist = 0
                req = 0
                for p in reversed(out):
                    if p.kind == 'meta': continue
                    if p.op in ('s_branch', 's_endpgm', 's_setpc_b64'): break
                    r = need(p, c) - dist
                    req = max(req, r)
                    dist += p.states()
                    if dist >= 20: break
                while req > 0:
                    k = min(req, 16)
                    out.append(Ins(f's_nop {k-1}'))
                    nn += 1
                    req -= k
            out.append(c)
        self.ins = out
        return nn
    def text(self):
        return '\n'.join(('' if i.label else '    ') + i.text for i in self.ins) + '\n'

def vr(b, n=1):
    return f'v{b}' if n == 1 else f'v[{b}:{b+n-1}]'
def sr(b, n=1):
    return f's{b}' if n == 1 else f's[{b}:{b+n-1}]'
```

```python
import sys, struct
from asmlib import *

NAME = 'gated_mix__sliding_block__mixer_s_mlp__prompt'
DEBUG = '--debug' in sys.argv
OUT = [a for a in sys.argv[1:] if not a.startswith('--')]
OUT = OUT[0] if OUT else f'cdna_kernels/{NAME}.s'
def opt(name, default):
    for a in sys.argv:
        if a.startswith(f'--{name}='): return int(a.split('=')[1])
    return default

NA, NW = 8, 11
ABASE, WBASE = 0, 65536
MISC = WBASE + NW * 8192
LDS_BYTES = 163840
GATE = MISC + 1024
FSH = opt('FSH', 12)
WS_FLAG, WS_E = 0, 0x80000
WS_H, WS_KV, WS_X1, WS_O, WS_H3, WS_DBG = 0x100000, 0x300000, 0x700000, 0xA00000, 0xC00000, 0x1200000
X1_STRIDE = 73728
H3_STRIDE = 176 * 1024
WS_REC = 0x1400000
DW = opt('DW', 2)
DA = opt('DA', 2)
PUB_H = opt('PUBH', 24)
PUB_KV = opt('PUBKV', 26)
TIMEOUT = 1 << 17

def f32(x): return '0x%08x' % struct.unpack('<I', struct.pack('<f', x))[0]
LOG2E = 1.4426950408889634
C1 = 2 * 0.7978845608028654 * LOG2E
C2 = C1 * 0.044715
QSCALE = 0.25 * LOG2E

A_X, A_KX, A_VX, A_QX, A_H, A_KV, A_X1, A_ST, A_O, A_H3 = 0, 8, 9, 10, 11, 19, 27, 35, 36, 44
W_1, W_K, W_V, W_Q, W_2, W_3, W_O, W_4 = 0, 8, 16, 24, 32, 40, 64, 72
apos = lambda i: ABASE + (i % NA) * 8192
wpos = lambda i: (i % NW) * 8192

sX, sWQKV, sWO, sW1, sW2, sW3, sW4, sGATE, sOUT, sDBG, sWS = 4, 6, 8, 12, 14, 16, 18, 20, 22, 24, 26
sR, sC, sROT, sWV, sTAG, sTO = 28, 29, 30, 31, 32, 33
sRET = 34
sWSD = 36
sSRD = 40
sFA, sFW0, sFW1 = 44, 45, 46
sT0, sT1, sT2, sT3 = 47, 48, 49, 50
sHI = 52
sVM = 54
sGM = 56
sTT, sCH = 58, 59
sMASK = 60
sE = 92
sST = 94

a = Asm()
ool = Asm()
ool.uid = 100000

class Lgkm:
    def __init__(self): self.n = 0; self.done = 0
    def issue(self, text):
        a(text); self.n += 1; return self.n
    def wait(self, seq):
        if seq <= self.done: return
        k = min(self.n - seq, 15)
        a(f's_waitcnt lgkmcnt({k})')
        self.done = self.n - k
    def all(self): self.wait(self.n)
lg = Lgkm()

nstamp = [0]
stamp_names = []
def stamp(name):
    if not DEBUG: return
    i = nstamp[0]; nstamp[0] += 1
    stamp_names.append(name)
    a(f's_memtime {sr(sST,2)}')
    a('s_waitcnt lgkmcnt(0)')
    lg.done = lg.n
    a(f'v_writelane_b32 v0, s{sST}, {i}')
    a(f'v_writelane_b32 v0, s{sTO}, {32+i}')
    assert i < 32

a(f'''
s_cmp_ge_u32 s2, 256
s_cbranch_scc1 L_end
s_load_dwordx16 s[4:19], s[0:1], 0
s_load_dwordx8 s[20:27], s[0:1], 64
v_lshrrev_b32 v1, 6, v0
v_and_b32 v0, 63, v0
v_readfirstlane_b32 s{sWV}, v1
s_and_b32 s{sT0}, s2, 7
s_lshr_b32 s{sT1}, s2, 3
s_lshr_b32 s{sR}, s{sT0}, 1
s_lshl_b32 s{sR}, s{sR}, 3
s_lshr_b32 s{sT2}, s{sT1}, 2
s_add_u32 s{sR}, s{sR}, s{sT2}
s_and_b32 s{sC}, s{sT0}, 1
s_lshl_b32 s{sC}, s{sC}, 2
s_and_b32 s{sT2}, s{sT1}, 3
s_add_u32 s{sC}, s{sC}, s{sT2}
s_add_u32 s{sROT}, s{sR}, s{sC}
s_and_b32 s{sROT}, s{sROT}, 7
s_mov_b32 s{sTO}, {TIMEOUT}
s_mov_b32 s{sWSD+2}, {WS_REC}
s_mov_b32 s{sWSD+3}, 0x20000
s_mov_b32 s{sSRD+3}, 0x20000
s_cmp_eq_u32 s{sWV}, 4
s_cbranch_scc1 L_aload
s_cmp_eq_u32 s{sWV}, 7
s_cbranch_scc1 L_misc
s_cmp_ge_u32 s{sWV}, 5
s_cbranch_scc1 L_wload
''')

def load_tag():
    a(f'''
    s_mov_b32 s{sWSD}, s{sWS}
    s_mov_b32 s{sWSD+1}, s{sWS+1}
    s_load_dword s{sE}, {sr(sWS,2)}, {WS_E}
    ''')
def make_tag():
    a(f'''
    s_add_u32 s{sE}, s{sE}, 0x9e3779b0
    s_and_b32 s{sTAG}, s{sE}, 0xfffffff0
    s_or_b32 s{sTAG}, s{sTAG}, 1
    ''')

vWn0, vWn1, vWt0, vWt1, vP, vSig, vOne, vFlag, vTag, vKr, vVr, vStV, vStH, vG, vMisc = range(1, 16)
vT = 16
vSel = 20
vWf = 24
vAf = 36
vA0, vA1, vAB = 48, 64, 80
vL = 96
vPan = 128
vKl, vVl, vQl = 96, 104, 120

a('s_barrier')
a(f's_setprio {opt("PC",2)}')
if DEBUG:
    a(f's_memtime {sr(sST,2)}')
a(f'''
s_and_b32 s{sTT}, s{sWV}, 1
s_lshr_b32 s{sCH}, s{sWV}, 1
s_mov_b32 s{sFA}, 0
s_mov_b32 s{sFW0}, 0
s_mov_b32 s{sFW1}, 0
s_mov_b32 s{sHI}, 0
s_mov_b32 s{sHI+1}, -1
s_mov_b32 s{sVM}, 0xffff
s_mov_b32 s{sVM+1}, 0xffff
''')
L, TOK, H, T1, T2, T3, ROW = 'v0', 'v48', 'v49', 'v50', 'v51', 'v52', 'v53'
a(f'''
v_and_b32 {TOK}, 31, {L}
v_lshrrev_b32 {H}, 5, {L}
v_mov_b32 v{vOne}, 1
v_mov_b32 v{vMisc}, {MISC}
''')
a(f'''
v_bfe_u32 {T1}, {L}, 3, 1
v_xor_b32 {T1}, s{sCH}, {T1}
v_lshlrev_b32 {T1}, 6, {T1}
v_bfe_u32 {T2}, {L}, 4, 1
v_lshl_add_u32 {T1}, {T2}, 5, {T1}
v_and_b32 {T2}, 3, {L}
v_lshl_add_u32 {T1}, {T2}, 3, {T1}
v_bfe_u32 {T2}, {L}, 2, 2
v_lshl_add_u32 {T1}, {T2}, 7, {T1}
v_add_u32 {T1}, {WBASE}, {T1}
v_lshl_add_u32 v{vWn0}, {H}, 10, {T1}
v_add_u32 v{vWn1}, 65536, v{vWn0}
v_lshl_add_u32 v{vWt0}, {H}, 9, {T1}
v_add_u32 v{vWt1}, 65536, v{vWt0}
''')
a(f'''
v_lshlrev_b32 {T1}, 4, {TOK}
v_lshl_add_u32 {T1}, {H}, 10, {T1}
s_lshl_b32 s{sT0}, s{sTT}, 9
v_add_u32 v{vP}, s{sT0}, {T1}
s_lshl_b32 s{sT0}, s{sWV}, 11
v_add_u32 v{vKr}, s{sT0}, {T1}
v_and_b32 {T2}, 15, {L}
v_lshlrev_b32 {T2}, 4, {T2}
v_lshl_add_u32 {T2}, {H}, 8, {T2}
v_add_u32 v{vVr}, s{sT0}, {T2}
v_bfe_u32 {T3}, {L}, 4, 1
v_lshl_add_u32 {T2}, {T3}, 11, {T2}
s_lshl_b32 s{sT0}, s{sCH}, 12
s_lshl_b32 s{sT1}, s{sTT}, 10
s_add_u32 s{sT0}, s{sT0}, s{sT1}
v_add_u32 v{vStV}, s{sT0}, {T2}
''')
a(f'''
v_cmp_eq_u32 vcc, 0, {L}
s_lshl_b32 s{sT0}, s{sWV}, 2
s_add_u32 s{sT1}, s{sT0}, {MISC+16}
v_mov_b32 {T1}, s{sT1}
v_lshlrev_b32 {T2}, 2, {L}
v_add_u32 {T2}, {MISC+256}, {T2}
v_cndmask_b32 v{vSig}, {T2}, {T1}, vcc
s_lshl_b32 s{sT1}, s{sR}, {FSH}
s_add_u32 s{sT0}, s{sT0}, s{sT1}
s_lshl_b32 s{sT1}, s{sC}, 4
s_add_u32 s{sT0}, s{sT0}, s{sT1}
v_mov_b32 {T1}, s{sT0}
v_mov_b32 {T2}, 0x80000000
v_cndmask_b32 v{vFlag}, {T2}, {T1}, vcc
''')
sZM = 96
a(f'''
s_lshr_b32 s{sT0}, s{sC}, 2
s_add_u32 s{sT0}, s{sT0}, 1
s_sub_u32 s{sT1}, 0, s{sT0}
s_bitcmp1_b32 s{sC}, 1
s_cselect_b32 s{sT0}, s{sT1}, s{sT0}
s_lshl_b32 s{sT1}, s{sR}, 6
s_add_u32 s{sT0}, s{sT0}, s{sT1}
s_lshl_b32 s{sT1}, s{sTT}, 5
s_add_u32 s{sT0}, s{sT0}, s{sT1}
v_add_u32 {T1}, s{sT0}, {TOK}
v_mov_b32 {T2}, 2047
v_cmp_gt_u32 {sr(sZM,2)}, {T1}, {T2}
v_and_b32 {T1}, {T2}, {T1}
v_lshrrev_b32 {T2}, 6, {T1}
v_and_b32 {T1}, 63, {T1}
v_lshlrev_b32 {T1}, 4, {T1}
v_lshl_add_u32 {T1}, {T2}, 16, {T1}
v_lshl_add_u32 v{vStH}, {H}, 10, {T1}
''')
a(f'''
v_bfe_u32 {T1}, {L}, 4, 1
v_bfe_u32 {T2}, {L}, 2, 1
v_cmp_eq_u32 {sr(sGM,2)}, {T1}, {T2}
v_mov_b32 {T3}, 0x3f803f80
v_cndmask_b32 v{vSel}, 0, {T3}, {sr(sGM,2)}
v_mov_b32 v{vSel+1}, v{vSel}
v_mov_b32 v{vSel+2}, v{vSel}
v_mov_b32 v{vSel+3}, v{vSel}
v_and_b32 {T1}, 3, {L}
v_cmp_eq_u32 vcc, 0, {T1}
v_cndmask_b32 v{vL}, 0, v{vSel}, vcc
v_cmp_eq_u32 vcc, 1, {T1}
s_and_b64 {sr(sGM,2)}, {sr(sGM,2)}, vcc
''')
for i in range(1, 32): a(f'v_mov_b32 v{vL+i}, v{vL}')
vXa, vGa, vRa = 36, 40, 41
a(f'''
s_lshl_b32 s{sT0}, s{sTT}, 5
v_add_u32 {ROW}, s{sT0}, {TOK}
v_bfe_u32 {T1}, {ROW}, 1, 3
v_lshlrev_b32 {ROW}, 7, {ROW}
v_xor_b32 {T2}, {T1}, {H}
''')
for s in range(4):
    a(f'v_xor_b32 {T3}, {2*s}, {T2}')
    a(f'v_lshl_add_u32 v{vXa+s}, {T3}, 4, {ROW}')
a(f'''
v_lshlrev_b32 v{vGa}, 4, {H}
v_add_u32 v{vGa}, {GATE}, v{vGa}
s_sub_u32 s{sT0}, 0, s{sR}
s_and_b32 s{sT0}, s{sT0}, 7
s_lshl_b32 s{sT0}, s{sT0}, 13
v_add_u32 {ROW}, s{sT0}, {ROW}
v_lshl_add_u32 {ROW}, {H}, 3, {ROW}
s_lshl_b32 s{sT0}, s{sCH}, 2
v_xor_b32 {T2}, s{sT0}, {T1}
''')
for j in range(4):
    a(f'v_xor_b32 {T3}, {j}, {T2}')
    a(f'v_lshl_add_u32 v{vRa+j}, {T3}, 4, {ROW}')
a(f'v_lshlrev_b32 {T1}, 2, {H}')
a(f'v_sub_u32 {T1}, {TOK}, {T1}')
for r in range(16):
    kk = (r & 3) + 8 * (r >> 2)
    a(f'v_cmp_gt_i32 {sr(sMASK+2*r,2)}, {kk}, {T1}')
a('s_waitcnt lgkmcnt(0)')
if DEBUG:
    a(f'v_mov_b32 v0, 0')
    a(f'v_writelane_b32 v0, s{sST}, 0'); nstamp[0] = 1; stamp_names.append('start')
a(f'''
s_mov_b32 s{sWSD}, s{sWS}
s_mov_b32 s{sWSD+1}, s{sWS+1}
s_mov_b32 s{sSRD}, s{sOUT}
s_mov_b32 s{sSRD+1}, s{sOUT+1}
s_mov_b32 s{sSRD+2}, {2048*1024}
s_mov_b32 s{sTAG}, 0
''')

def chk(sreg, n):
    l1, l2 = ool.new_label('C'), ool.new_label('S')
    a(f'{l1}:')
    a(f's_cmp_gt_u32 s{sreg}, {n}')
    a(f's_cbranch_scc0 {l2}')
    ool(f'{l2}:')
    ool(f's_call_b64 {sr(sRET,2)}, L_refresh')
    ool(f's_branch {l1}')
def chk_w(i): chk(sFW0 + (i & 1), i >> 1)
def chk_a(i): chk(sFA, i)
def rel_a(n=1):
    for _ in range(n): lg.issue(f'ds_add_u32 v{vSig}, v{vOne}')
def rel_w(n=1):
    for _ in range(n): lg.issue(f'ds_add_u32 v{vSig}, v{vOne} offset:16')
def publish(inc=1):
    a('s_waitcnt vmcnt(0)')
    a(f'v_add_u32 v{vTag}, {inc}, v{vTag}')
    a(f'buffer_store_dword v{vTag}, v{vFlag}, {sr(sWSD,4)}, 0 offen sc1')

class Step:
    def __init__(self, w, s, order, acc, act, aslot=None, aread=None, swap=False, c0=None, pre=None, post=None, lastw=False, lasta=False, cs=None, cs0=False):
        self.__dict__.update(locals())

def run_steps(steps, fill=None, PD=2):
    fill = fill or {}
    seqs = {}
    def reads(n):
        st = steps[n]
        if st.s == 0:
            chk_w(st.w)
            if st.aslot is not None: chk_a(st.aslot)
        if st.pre: st.pre()
        if st.aread == 'x':
            lg.issue(f'ds_read_b128 {vr(st.act,4)}, v{vXa+st.s} offset:{apos(st.aslot)}')
        elif st.aread == 'p':
            lg.issue(f'ds_read_b128 {vr(st.act,4)}, v{vP} offset:{apos(st.aslot)+st.s*2048}')
        off = wpos(st.w) + st.s * 2048
        b0, b1 = (vWn0, vWn1) if st.order == 'n' else (vWt0, vWt1)
        base = b0
        if off >= 65536: off -= 65536; base = b1
        d = 512 if st.order == 'n' else 1024
        f = vWf + (n % 3) * 4
        lg.issue(f'ds_read_b64_tr_b16 {vr(f,2)}, v{base} offset:{off}')
        seqs[n] = lg.issue(f'ds_read_b64_tr_b16 {vr(f+2,2)}, v{base} offset:{off+d}')
    for n in range(min(PD, len(steps))): reads(n)
    for n, st in enumerate(steps):
        if n + PD < len(steps): reads(n + PD)
        lg.wait(seqs[n])
        f = vWf + (n % 3) * 4
        c = st.c0 if st.c0 is not None else vr(st.acc, 16)
        A, B = (vr(f, 4), vr(st.act, 4)) if not st.swap else (vr(st.act, 4), vr(f, 4))
        a(f'v_mfma_f32_32x32x16_bf16 {vr(st.acc,16)}, {A}, {B}, {c}')
        if st.cs is not None:
            a(f'v_mfma_f32_16x16x32_bf16 {vr(st.cs,4)}, {vr(vSel,4)}, {vr(f,4)}, {"0" if st.cs0 else vr(st.cs,4)}')
        if st.post: st.post()
        if st.lastw: rel_w()
        if st.lasta: rel_a()
        for x in fill.get(n, []):
            if callable(x): x()
            elif x.startswith('ds_'): lg.issue(x)
            else: a(x)

def spread(items, start, end):
    d = {}
    n = end - start
    for i, x in enumerate(items):
        d.setdefault(start + i * n // len(items), []).append(x)
    return d
def merge(*ds):
    o = {}
    for d in ds:
        for k, v in d.items(): o.setdefault(k, []).extend(v)
    return o

vCS, vSG, vSQ = 64, 68, 72
steps = []
for n in range(32):
    j, s = divmod(n, 4)
    P = vPan + 4 * n
    G = vL + (j & 1) * 16
    def pre(j=j, s=s, G=G):
        if s == 0:
            a(f's_mov_b64 exec, {sr(sGM,2)}')
            for q in range(4): lg.issue(f'ds_read_b128 {vr(G+4*q,4)}, v{vGa} offset:{(4*j+q)*32}')
            a('s_mov_b64 exec, -1')
    def post(n=n, s=s, P=P, G=G):
        z = n == 0
        a(f'v_mfma_f32_4x4x4_16b_bf16 {vr(vSQ,4)}, {vr(P,2)}, {vr(P,2)}, {"0" if z else vr(vSQ,4)}')
        a(f'v_mfma_f32_16x16x32_bf16 {vr(vSG,4)}, {vr(G+4*s,4)}, {vr(P,4)}, {"0" if z else vr(vSG,4)}')
        a(f'v_mfma_f32_4x4x4_16b_bf16 {vr(vSQ+4,4)}, {vr(P+2,2)}, {vr(P+2,2)}, {"0" if z else vr(vSQ+4,4)}')
    steps.append(Step(W_1 + j, s, 'n', vA0, P, aslot=A_X + j, aread='x', c0='0' if n == 0 else None, pre=pre, post=post, lastw=(s == 3), cs=vCS, cs0=(n == 0)))
stamp('setup')
run_steps(steps, {0: [lambda: stamp('s0')], 15: [lambda: stamp('s15')]})
stamp('B1 loop')
RES = vL + 16
for j in range(4): lg.issue(f'ds_read_b64 {vr(RES+2*j,2)}, v{vRa+j}')

def ln_consts(sum_, sq, vCA, vCB, vIR, vNM, t):
    a(f'''
    v_mul_f32 v{t}, {f32(-1.0/512)}, v{sum_}
    v_mul_f32 v{t+1}, v{t}, v{t}
    v_mov_b32 v{t+2}, {f32(1.0/512)}
    v_fma_f32 v{t+1}, v{sq}, v{t+2}, -v{t+1}
    v_max_f32 v{t+1}, 0, v{t+1}
    v_add_f32 v{t+1}, {f32(1e-5)}, v{t+1}
    v_rsq_f32 v{t+2}, v{t+1}
    v_cvt_pk_bf16_f32 v{vNM}, v{t}, v{t}
    v_mul_f32 v{vIR}, v{t+1}, v{t+2}
    v_mul_f32 v{vCA}, {f32(-C1)}, v{t+2}
    v_mul_f32 v{t+1}, v{t+2}, v{t+2}
    v_mul_f32 v{t+1}, {f32(0.044715)}, v{t+1}
    v_mul_f32 v{vCB}, v{vCA}, v{t+1}
    v_lshlrev_b32 v{t+1}, 16, v{vNM}
    v_sub_f32 v{t+1}, v{t}, v{t+1}
    v_cvt_pk_bf16_f32 v{t+1}, v{t+1}, v{t+1}
    v_cndmask_b32 v{vNM}, v{vNM}, v{t+1}, {sr(sHI,2)}
    v_mov_b32 v{vNM+1}, 0
    v_mov_b32 v{vNM+2}, 0
    v_mov_b32 v{vNM+3}, 0
    ''')
def cs_fix(cs, vCSA, vNM, acc, t):
    return [f'v_cvt_pk_bf16_f32 v{t}, v{cs}, v{cs}',
            f'v_lshlrev_b32 v{t}, 16, v{t}',
            f'v_sub_f32 v{t}, v{cs}, v{t}',
            f'v_cvt_pk_bf16_f32 v{vCSA}, v{cs}, v{t}',
            f'v_mfma_f32_32x32x16_bf16 {vr(acc,16)}, {vr(vCSA,4)}, {vr(vNM,4)}, {vr(acc,16)}']
def gelu_pk(acc, vCA, vCB, vIR, tmp, dst):
    o = []
    for i in range(0, 16, 2): o.append(f'v_pk_mul_f32 {vr(tmp+i,2)}, {vr(acc+i,2)}, {vr(acc+i,2)}')
    for i in range(0, 16, 2): o.append(f'v_pk_fma_f32 {vr(tmp+i,2)}, {vr(tmp+i,2)}, {vr(vCB,2)}, {vr(vCA,2)} op_sel_hi:[1,0,0]')
    for i in range(0, 16, 2): o.append(f'v_pk_mul_f32 {vr(tmp+i,2)}, {vr(tmp+i,2)}, {vr(acc+i,2)}')
    for i in range(16): o.append(f'v_exp_f32 v{tmp+i}, v{tmp+i}')
    for i in range(0, 16, 2): o.append(f'v_pk_fma_f32 {vr(tmp+i,2)}, {vr(tmp+i,2)}, {vr(vIR,2)}, {vr(vIR,2)} op_sel_hi:[1,0,0]')
    for i in range(16): o.append(f'v_rcp_f32 v{tmp+i}, v{tmp+i}')
    for i in range(0, 16, 2): o.append(f'v_pk_mul_f32 {vr(tmp+i,2)}, {vr(tmp+i,2)}, {vr(acc+i,2)}')
    for i in range(0, 16, 2): o.append(f'v_cvt_pk_bf16_f32 v{dst+i//2}, v{tmp+i}, v{tmp+i+1}')
    return o
def gelu_sc(acc, vCA, vCB, vIR, tmp, dst):
    o = []
    for g in range(0, 16, 4):
        for i in range(4): o.append(f'v_mul_f32 v{tmp+i}, v{acc+g+i}, v{acc+g+i}')
        for i in range(4): o.append(f'v_fma_f32 v{tmp+i}, v{tmp+i}, v{vCB}, v{vCA}')
        for i in range(4): o.append(f'v_mul_f32 v{tmp+i}, v{tmp+i}, v{acc+g+i}')
        for i in range(4): o.append(f'v_exp_f32 v{tmp+i}, v{tmp+i}')
        for i in range(4): o.append(f'v_fma_f32 v{tmp+i}, v{tmp+i}, v{vIR}, v{vIR}')
        for i in range(4): o.append(f'v_rcp_f32 v{tmp+i}, v{tmp+i}')
        for i in range(4): o.append(f'v_mul_f32 v{tmp+i}, v{tmp+i}, v{acc+g+i}')
        for i in range(0, 4, 2): o.append(f'v_cvt_pk_bf16_f32 v{dst+(g+i)//2}, v{tmp+i}, v{tmp+i+1}')
    return o

cA, cB, cI, cNM, cCS, cT = vL, vL + 2, vL + 4, vL + 8, vL + 12, vAf + 9
lane = vT
a(f'''
v_mbcnt_lo_u32_b32 v{vT}, -1, 0
v_mbcnt_hi_u32_b32 v{vT}, -1, v{vT}
v_and_b32 v{vT}, 3, v{vT}
''')
for i in range(4): a(f'v_add_f32 v{vSQ+i}, v{vSQ+i}, v{vSQ+4+i}')
for i in range(1, 4):
    a(f'v_cmp_eq_u32 vcc, {i}, v{vT}')
    a(f'v_cndmask_b32 v{vSQ}, v{vSQ}, v{vSQ+i}, vcc')
a(f'''
v_mov_b32 v{vSQ+1}, v{vSQ}
v_permlane32_swap_b32 v{vSQ}, v{vSQ+1}
v_add_f32 v{vSQ}, v{vSQ}, v{vSQ+1}
v_mov_b32 v{cCS+1}, 0
v_mov_b32 v{cCS+2}, 0
v_mov_b32 v{cCS+3}, 0
''')
ln_consts(vSG, vSQ, cA, cB, cI, cNM, cT)
for x in cs_fix(vCS, cCS, cNM, vA0, cT): a(x)
a(f'''
v_mul_f32 v{vG}, {f32(-LOG2E)}, v{vSG+1}
v_exp_f32 v{vG}, v{vG}
s_lshl_b32 s{sT0}, s{sC}, 13
s_lshl_b32 s{sT1}, s{sCH}, 12
v_add_f32 v{vG}, 1.0, v{vG}
v_rcp_f32 v{vG}, v{vG}
s_add_u32 s{sT0}, s{sT0}, s{sT1}
s_add_u32 s{sT1}, s{sT0}, {WS_H}
''')
PK = vAf
for x in gelu_pk(vA0, cA, cB, cI, vA1, PK): a(x)
for i in range(8): a(f'v_cndmask_b32 v{PK+i}, v{PK+i}, 0, {sr(sZM,2)}')
a(f'buffer_store_dwordx4 {vr(PK,4)}, v{vStH}, {sr(sWSD,4)}, s{sT1} offen sc1')
a(f'buffer_store_dwordx4 {vr(PK+4,4)}, v{vStH}, {sr(sWSD,4)}, s{sT1} offen offset:2048 sc1')
lg.all()
for j in range(8):
    a(f'v_lshlrev_b32 v{vAB+2*j}, 16, v{RES+j}')
    a(f'v_and_b32 v{vAB+2*j+1}, 0xffff0000, v{RES+j}')
a(f'v_mov_b32 v{vT}, 8')
lg.issue(f'ds_add_u32 v{vSig}, v{vT}')
chk(sTAG, 0)
a(f'v_mov_b32 v{vTag}, s{sTAG}')
stamp('B1 epi')

sTILE, sKVO, sRB = 98, 99, 100
a(f'''
s_mov_b32 s{sTILE}, s{sT0}
s_lshl_b32 s{sKVO}, s{sR}, 3
s_add_u32 s{sKVO}, s{sKVO}, s{sC}
s_lshl_b32 s{sKVO}, s{sKVO}, 14
s_add_u32 s{sKVO}, s{sKVO}, {WS_KV}
s_lshl_b32 s{sT1}, s{sCH}, 12
s_add_u32 s{sT2}, s{sKVO}, s{sT1}
s_add_u32 s{sT3}, s{sKVO}, 8192
v_add_u32 v{vStH}, s{sT1}, v{vP}
''')
vXw = vStH
a(f'v_mov_b32 v{vT}, 0x3f803f80')
a(f'v_cndmask_b32 v{vVl}, v{vT}, 0, {sr(sVM,2)}')
for i in range(1, 16): a(f'v_mov_b32 v{vVl+i}, v{vVl}')

steps = []
for p, (w0, acc, swap) in enumerate(((W_K, vA0, False), (W_V, vA1, True), (W_Q, vA0, False))):
    for n in range(32):
        j, s = divmod(n, 4)
        steps.append(Step(w0 + j, s, 'n', acc, vPan + 4 * n, swap=swap, c0='0' if n == 0 else None, lastw=(s == 3)))
def pack(acc, dst): return [f'v_cvt_pk_bf16_f32 v{dst+i}, v{acc+2*i}, v{acc+2*i+1}' for i in range(8)]
def xch_signal():
    lg.all()
    lg.issue(f'ds_add_u32 v{vSig}, v{vOne} offset:32')
def xch_wait(n):
    l1, l2 = a.new_label('X'), a.new_label('X')
    a(f's_xor_b32 s{sT0}, s{sWV}, 1')
    a(f's_lshl_b32 s{sT0}, s{sT0}, 2')
    a(f'v_add_u32 v{vT+1}, s{sT0}, v{vMisc}')
    a(f'{l1}:')
    a(f'ds_read_b32 v{vT}, v{vT+1} offset:48')
    a('s_waitcnt lgkmcnt(0)')
    lg.done = lg.n
    a(f'v_readfirstlane_b32 s{sT0}, v{vT}')
    a(f's_cmp_ge_u32 s{sT0}, {n}')
    a(f's_cbranch_scc1 {l2}')
    a(f's_sub_u32 s{sTO}, s{sTO}, 1')
    a(f's_cbranch_scc0 {l1}')
    a('s_endpgm')
    a(f'{l2}:')
kfill = pack(vA0, PK) + [f'buffer_store_dwordx4 {vr(PK,4)}, v{vP}, {sr(sWSD,4)}, s{sT2} offen sc1',
                         f'buffer_store_dwordx4 {vr(PK+4,4)}, v{vP}, {sr(sWSD,4)}, s{sT2} offen offset:2048 sc1']
kx = [f'ds_write_b128 v{vXw}, {vr(PK,4)} offset:{apos(A_KX)}', f'ds_write_b128 v{vXw}, {vr(PK+4,4)} offset:{apos(A_KX)+2048}']
vfill = pack(vA1, PK) + [f'buffer_store_dwordx4 {vr(PK,4)}, v{vStV}, {sr(sWSD,4)}, s{sT3} offen sc1',
                         f'buffer_store_dwordx4 {vr(PK+4,4)}, v{vStV}, {sr(sWSD,4)}, s{sT3} offen offset:512 sc1',
                         f'ds_write_b128 v{vStV}, {vr(PK,4)} offset:{apos(A_VX)}', f'ds_write_b128 v{vStV}, {vr(PK+4,4)} offset:{apos(A_VX)+512}']
fill = merge({PUB_H-1: [lambda: stamp('prepub')], PUB_H+1: [lambda: stamp('postpub')], 31: [lambda: stamp('K')], 63: [lambda: stamp('V')]}, {PUB_H: [publish]}, spread(kfill, 35, 41), {46: kx}, spread(vfill, 67, 74), {64 + PUB_KV: [publish]})
run_steps(steps, fill)
stamp('KVQ')
for i in range(0, 16, 2):
    pass
a(f'v_mov_b32 v{vT}, {f32(QSCALE)}')
for i in range(0, 16, 2): a(f'v_pk_mul_f32 {vr(vA0+i,2)}, {vr(vA0+i,2)}, {vr(vT,2)} op_sel_hi:[1,0]')
for x in pack(vA0, PK): a(x)
lg.issue(f'ds_write_b128 v{vXw}, {vr(PK,4)} offset:{apos(A_QX)}')
lg.issue(f'ds_write_b128 v{vXw}, {vr(PK+4,4)} offset:{apos(A_QX)+2048}')
xch_signal()
xch_wait(1)
for t in range(2):
    lg.issue(f'ds_read_b128 {vr(vKl+4*t,4)}, v{vKr} offset:{apos(A_KX)+512*t}')
    lg.issue(f'ds_read_b128 {vr(vQl+4*t,4)}, v{vKr} offset:{apos(A_QX)+512*t}')
a(f's_mov_b64 exec, {sr(sVM,2)}')
for kb in range(4): lg.issue(f'ds_read_b128 {vr(vVl+4*kb,4)}, v{vVr} offset:{apos(A_VX)+512*kb}')
a('s_mov_b64 exec, -1')
vKrem, vVrem = 128, 160
a(f'v_mov_b32 v{vT}, 0x3f803f80')
a(f'v_cndmask_b32 v{vVrem}, v{vT}, 0, {sr(sVM,2)}')
for i in range(1, 64): a(f'v_mov_b32 v{vVrem+i}, v{vVrem}')
lg.all()
a(f'v_mov_b32 v{vT}, 3')
lg.issue(f'ds_add_u32 v{vSig}, v{vT}')
stamp('xch')

def stream_steps(w0, a0, nsteps, acc, c0=None, phase=0):
    st = []
    for n in range(nsteps):
        j, s = divmod(n, 4)
        last = s == 3 or n == nsteps - 1
        st.append(Step(w0 + j, s, 't', acc, vAf + ((n + phase) % 3) * 4, aslot=a0 + j, aread='p', c0=c0 if n == 0 else None, lastw=last, lasta=last))
    return st
run_steps(stream_steps(W_2, A_H, 32, vAB))
stamp('B2 loop')
a(f'''
s_mul_i32 s{sRB}, s{sR}, {X1_STRIDE}
s_add_u32 s{sRB}, s{sRB}, {WS_X1}
s_add_u32 s{sT1}, s{sRB}, s{sTILE}
s_lshr_b32 s{sT2}, s{sTILE}, 3
s_add_u32 s{sT2}, s{sT2}, s{sRB}
s_add_u32 s{sT2}, s{sT2}, 65536
v_and_b32 v{vT+2}, 1023, v{vP}
v_lshrrev_b32 v{vT+2}, 1, v{vT+2}
v_mov_b32 v{vT+3}, 0x3f803f80
''')
for x in pack(vAB, PK): a(x)
a(f'buffer_store_dwordx4 {vr(PK,4)}, v{vP}, {sr(sWSD,4)}, s{sT1} offen sc1')
a(f'buffer_store_dwordx4 {vr(PK+4,4)}, v{vP}, {sr(sWSD,4)}, s{sT1} offen offset:2048 sc1')
for i in range(8):
    a(f'v_dot2_f32_bf16 v{vT}, v{PK+i}, v{vT+3}, {"0" if i==0 else "v%d"%vT}')
    a(f'v_dot2_f32_bf16 v{vT+1}, v{PK+i}, v{PK+i}, {"0" if i==0 else "v%d"%(vT+1)}')
a(f'''
v_mov_b32 v{vA0}, v{vT}
v_mov_b32 v{vA0+1}, v{vT+1}
v_permlane32_swap_b32 v{vT}, v{vA0}
v_permlane32_swap_b32 v{vT+1}, v{vA0+1}
v_add_f32 v{vA0+2}, v{vT}, v{vA0}
v_add_f32 v{vA0+3}, v{vT+1}, v{vA0+1}
buffer_store_dwordx2 {vr(vA0+2,2)}, v{vT+2}, {sr(sWSD,4)}, s{sT2} offen sc1
''')
stamp('B2 epi')

vCB_, vM8 = 24, 40
vS0, vS1, vMG, vO = 224, 240, 64, 48
a(f'v_mov_b32 v{vT+1}, 0xffff0000')
a(f'v_mov_b32 v{vT+2}, 0xffff')
for i in range(8):
    a(f'v_cndmask_b32 v{vM8+i}, 0, v{vT+2}, {sr(sMASK+4*i,2)}')
    a(f'v_cndmask_b32 v{vT}, 0, v{vT+1}, {sr(sMASK+4*i+2,2)}')
    a(f'v_or_b32 v{vM8+i}, v{vM8+i}, v{vT}')
pub_x1_done = False
for i in range(4):
    chk_a(A_KV + 2 * i + 1)
    for t in range(2): lg.issue(f'ds_read_b128 {vr(vKrem+8*i+4*t,4)}, v{vKr} offset:{apos(A_KV+2*i)+512*t}')
    a(f's_mov_b64 exec, {sr(sVM,2)}')
    for kb in range(4): lg.issue(f'ds_read_b128 {vr(vVrem+16*i+4*kb,4)}, v{vVr} offset:{apos(A_KV+2*i+1)+512*kb}')
    a('s_mov_b64 exec, -1')
lg.all()
a(f'v_mov_b32 v{vT}, 8')
lg.issue(f'ds_add_u32 v{vSig}, v{vT}')
publish()
stamp('KV loaded')
Kf = lambda j: vKrem + 4 * j if j < 8 else vKl + 4 * (j - 8)
Vf = lambda j, b: vVrem + 8 * j + 4 * b if j < 8 else vVl + 8 * (j - 8) + 4 * b
sJV, sNEG = sT3, 101
a(f'''
s_lshl_b32 s{sJV}, s{sR}, 1
s_sub_i32 s{sJV}, 8, s{sJV}
s_max_i32 s{sJV}, s{sJV}, 0
s_mov_b32 s{sNEG}, {f32(-1e30)}
s_lshl_b32 s{sT1}, s{sR}, 16
s_lshl_b32 s{sT2}, s{sC}, 13
s_add_u32 s{sT1}, s{sT1}, s{sT2}
s_add_u32 s{sT1}, s{sT1}, {WS_O}
''')
def set_cb(src, j0):
    a(f's_cmp_le_u32 s{sJV}, {j0}')
    a(f's_cselect_b64 vcc, -1, 0')
    a(f'v_mov_b32 v{vCB_}, s{sNEG}')
    a(f'v_cndmask_b32 v{vCB_}, v{vCB_}, {src}, vcc')
    for i in range(1, 16): a(f'v_mov_b32 v{vCB_+i}, v{vCB_}')
def fix_cb(src, j):
    if j % 2 or j == 0 or j > 8: return
    l1, l2 = ool.new_label('F'), ool.new_label('G')
    a(f's_cmp_eq_u32 s{sJV}, {j}')
    a(f's_cbranch_scc1 {l1}')
    a(f'{l2}:')
    ool(f'{l1}:')
    ool('s_nop 7')
    for i in range(16): ool(f'v_mov_b32 v{vCB_+i}, {src}')
    ool('s_nop 1')
    ool(f's_branch {l2}')
vZ, vMx, vMy = vT + 3, vT, vT + 1
for t in range(2):
    Q = vr(vQl + 4 * t, 4)
    a(f'v_mov_b32 v{vZ}, 0')
    set_cb(f'v{vZ}', t)
    bufs = [vS0, vS1, vO]
    a(f'v_mfma_f32_32x32x16_bf16 {vr(vMG,16)}, {vr(Kf(t),4)}, {Q}, {vr(vCB_,16)}')
    js = list(range(t + 1, t + 9))
    def qk(i):
        fix_cb(f'v{vZ}', js[i])
        a(f'v_mfma_f32_32x32x16_bf16 {vr(bufs[i%3],16)}, {vr(Kf(js[i]),4)}, {Q}, {vr(vCB_,16)}')
    qk(0); qk(1)
    for i in range(8):
        if i + 2 < 8: qk(i + 2)
        b = bufs[i % 3]
        if i == 7:
            for r in range(16): a(f'v_cndmask_b32 v{vMG+r}, v{b+r}, v{vMG+r}, {sr(sMASK+2*r,2)}')
            b = vMG
        for q in range(0, 16, 4):
            if i == 0 and q == 0:
                a(f'v_max_f32 v{vMx}, v{b}, v{b+1}')
                a(f'v_max_f32 v{vMy}, v{b+2}, v{b+3}')
            else:
                a(f'v_max3_f32 v{vMx}, v{b+q}, v{b+q+1}, v{vMx}')
                a(f'v_max3_f32 v{vMy}, v{b+q+2}, v{b+q+3}, v{vMy}')
    a(f'''
    v_max_f32 v{vMx}, v{vMx}, v{vMy}
    v_mov_b32 v{vMy}, v{vMx}
    v_permlane32_swap_b32 v{vMx}, v{vMy}
    v_max_f32 v{vMx}, v{vMx}, v{vMy}
    v_sub_f32 v{vZ}, 0, v{vMx}
    ''')
    set_cb(f'v{vZ}', t + 1)
    bufs = [vS0, vS1]
    full = js[:7]
    def qk2(i):
        if i > 0: fix_cb(f'v{vZ}', full[i])
        a(f'v_mfma_f32_32x32x16_bf16 {vr(bufs[i%2],16)}, {vr(Kf(full[i]),4)}, {Q}, {vr(vCB_,16)}')
    qk2(0)
    for r in range(16): a(f'v_add_f32 v{vMG+r}, v{vMG+r}, v{vZ}')
    for r in range(16): a(f'v_exp_f32 v{vMG+r}, v{vMG+r}')
    for i in range(8): a(f'v_cvt_pk_bf16_f32 v{vMG+i}, v{vMG+2*i}, v{vMG+2*i+1}')
    for i in range(8): a(f'v_and_b32 v{vMG+8+i}, v{vMG+i}, v{vM8+i}')
    pend = [f'v_mfma_f32_32x32x16_bf16 {vr(vO,16)}, {vr(Vf(t,0),4)}, {vr(vMG+8,4)}, 0',
            f'v_mfma_f32_32x32x16_bf16 {vr(vO,16)}, {vr(Vf(t,1),4)}, {vr(vMG+12,4)}, {vr(vO,16)}',
            f'v_mfma_f32_32x32x16_bf16 {vr(vO,16)}, {vr(Vf(t+8,0),4)}, {vr(vMG,4)}, {vr(vO,16)}',
            f'v_mfma_f32_32x32x16_bf16 {vr(vO,16)}, {vr(Vf(t+8,1),4)}, {vr(vMG+4,4)}, {vr(vO,16)}']
    for i in range(8): a(f'v_xor_b32 v{vMG+i}, v{vMG+i}, v{vMG+8+i}')
    for i in range(7):
        b = bufs[i % 2]
        slots = {}
        k = 0
        for x in pend:
            slots.setdefault(1 + 3 * k, []).append(x); k += 1
        for r in range(16):
            a(f'v_exp_f32 v{b+r}, v{b+r}')
            for x in slots.get(r, []): a(x)
            if r == 1 + 3 * k and i + 1 < 7: qk2(i + 1)
        for q in range(8): a(f'v_cvt_pk_bf16_f32 v{b+q}, v{b+2*q}, v{b+2*q+1}')
        pend = [f'v_mfma_f32_32x32x16_bf16 {vr(vO,16)}, {vr(Vf(full[i],0),4)}, {vr(b,4)}, {vr(vO,16)}',
                f'v_mfma_f32_32x32x16_bf16 {vr(vO,16)}, {vr(Vf(full[i],1),4)}, {vr(b+4,4)}, {vr(vO,16)}']
    for x in pend: a(x)
    a(f'v_rcp_f32 v{vO+8}, v{vO+8}')
    for i in range(8): a(f'v_mul_f32 v{vO+i}, v{vO+i}, v{vO+8}')
    for i in range(4): a(f'v_cvt_pk_bf16_f32 v{vO+12+i}, v{vO+2*i}, v{vO+2*i+1}')
    a(f'buffer_store_dwordx4 {vr(vO+12,4)}, v{vKr}, {sr(sWSD,4)}, s{sT1} offen offset:{512*t} sc1')
    stamp(f'attn{t}')

cA, cB, cI, cNM, cCS, cT = 96, 98, 100, 104, 108, 112
csA = [116, 120]
PK3 = 36
a(f'''
s_mul_i32 s{sT1}, s{sR}, {H3_STRIDE}
s_add_u32 s{sT1}, s{sT1}, {WS_H3}
s_add_u32 s{sKVO}, s{sT1}, s{sTILE}
v_mov_b32 v{cCS+1}, 0
v_mov_b32 v{cCS+2}, 0
v_mov_b32 v{cCS+3}, 0
v_and_b32 v124, 1023, v{vP}
v_lshrrev_b32 v124, 1, v124
v_lshrrev_b32 v125, 10, v{vP}
v_lshl_add_u32 v124, v125, 12, v124
''')
def b3_steps(p, acc):
    st = []
    for n in range(32):
        j, s = divmod(n, 4)
        if p == 0:
            st.append(Step(W_3 + j, s, 't', acc, vPan + 4 * n, aslot=A_X1 + j, aread='p', c0='0' if n == 0 else None, lastw=(s == 3), lasta=(s == 3), cs=csA[0], cs0=(n == 0)))
        else:
            st.append(Step(W_3 + 8 * p + j, s, 't', acc, vPan + 4 * n, c0='0' if n == 0 else None, lastw=(s == 3), cs=csA[p & 1], cs0=(n == 0)))
    return st
def stats_load():
    chk_a(A_ST)
    for i in range(8): lg.issue(f'ds_read_b64 {vr(vA1+2*i,2)}, v124 offset:{apos(A_ST)+512*i}')
def stats_fin():
    lg.all()
    rel_a()
    for i in range(1, 8):
        a(f'v_add_f32 v{vA1}, v{vA1}, v{vA1+2*i}')
        a(f'v_add_f32 v{vA1+1}, v{vA1+1}, v{vA1+2*i+1}')
    a(f'''
    v_mov_b32 v{vA1+2}, v{vA1}
    v_mov_b32 v{vA1+3}, v{vA1+1}
    v_permlane32_swap_b32 v{vA1}, v{vA1+2}
    v_permlane32_swap_b32 v{vA1+1}, v{vA1+3}
    v_add_f32 v{vA1}, v{vA1}, v{vA1+2}
    v_add_f32 v{vA1+1}, v{vA1+1}, v{vA1+3}
    ''')
    ln_consts(vA1, vA1 + 1, cA, cB, cI, cNM, cT)
def h3_epi(p, acc, pk, tmp):
    return (cs_fix(csA[p & 1], cCS, cNM, acc, tmp), gelu_sc(acc, cA, cB, cI, tmp, pk),
            [f'buffer_store_dwordx4 {vr(pk,4)}, v{vP}, {sr(sWSD,4)}, s{sKVO} offen sc1',
             f'buffer_store_dwordx4 {vr(pk+4,4)}, v{vP}, {sr(sWSD,4)}, s{sKVO} offen offset:2048 sc1',
             f's_add_u32 s{sKVO}, s{sKVO}, 65536'])
run_steps(b3_steps(0, vA0), {16: [publish]})
stats_load()
stats_fin()
stamp('B3 p0')
f1, f2, f3 = h3_epi(0, vA0, PK3, cT)
run_steps(b3_steps(1, vA1), merge(spread(f1, 0, 2), spread(f2, 5, 29), {30: f3}, {4: [lambda: stamp('p1s4')], 16: [lambda: stamp('p1s16')], 29: [lambda: stamp('p1s29')]}))
stamp('B3 p1')
a(f's_cmp_ge_u32 s{sC}, 6')
a('s_cbranch_scc1 L_skip3')
lg.all()
f1, f2, f3 = h3_epi(1, vA1, PK3, cT)
run_steps(b3_steps(2, vA0), merge(spread(f1, 1, 3), {16: [publish]}, spread(f2, 6, 29), {30: f3}))
lg.all()
for x in cs_fix(csA[0], cCS, cNM, vA0, cT): a(x)
for x in gelu_pk(vA0, cA, cB, cI, vPan, vPan + 16): a(x)
publish()
a(f'buffer_store_dwordx4 {vr(vPan+16,4)}, v{vP}, {sr(sWSD,4)}, s{sKVO} offen sc1')
a(f'buffer_store_dwordx4 {vr(vPan+20,4)}, v{vP}, {sr(sWSD,4)}, s{sKVO} offen offset:2048 sc1')
a('s_branch L_join3')
a('L_skip3:')
a('s_nop 15')
for x in cs_fix(csA[1], cCS, cNM, vA1, cT): a(x)
for x in gelu_pk(vA1, cA, cB, cI, vPan, vPan + 16): a(x)
publish()
a(f'buffer_store_dwordx4 {vr(vPan+16,4)}, v{vP}, {sr(sWSD,4)}, s{sKVO} offen sc1')
a(f'buffer_store_dwordx4 {vr(vPan+20,4)}, v{vP}, {sr(sWSD,4)}, s{sKVO} offen offset:2048 sc1')
a(f'v_add_u32 v{vTag}, 1, v{vTag}')
a(f'v_mov_b32 v{vT}, 8')
a(f'ds_add_u32 v{vSig}, v{vT} offset:16')
a('s_waitcnt lgkmcnt(0)')
a('L_join3:')
stamp('B3 p2')

steps = stream_steps(W_O, A_O, 32, vA1, c0='0') + stream_steps(W_4, A_H3, 86, vAB, phase=32)
run_steps(steps, {opt('PUBH3', 24): [publish], 31: [lambda: stamp('A3')], 63: [lambda: stamp('B40')], 95: [lambda: stamp('B41')]})
stamp('A3B4')
a(f'''
s_lshl_b32 s{sT0}, s{sR}, 16
s_lshl_b32 s{sT1}, s{sTT}, 15
s_add_u32 s{sT0}, s{sT0}, s{sT1}
s_lshr_b32 s{sT1}, s{sTILE}, 6
s_add_u32 s{sT0}, s{sT0}, s{sT1}
v_and_b32 v{vT}, 511, v{vP}
v_lshlrev_b32 v{vT}, 6, v{vT}
v_lshrrev_b32 v{vT+1}, 10, v{vP}
v_lshl_add_u32 v{vT}, v{vT+1}, 4, v{vT}
''')
for i in range(0, 16, 2): a(f'v_pk_add_f32 {vr(vA1+i,2)}, {vr(vA1+i,2)}, {vr(vAB+i,2)} neg_lo:[0,1] neg_hi:[0,1]')
for i in range(0, 16, 2): a(f'v_pk_fma_f32 {vr(vA1+i,2)}, {vr(vA1+i,2)}, {vr(vG,2)}, {vr(vAB+i,2)} op_sel_hi:[1,0,1]')
for x in pack(vA1, PK): a(x)
a(f'''
v_permlane32_swap_b32 v{PK}, v{PK+2}
v_permlane32_swap_b32 v{PK+1}, v{PK+3}
v_permlane32_swap_b32 v{PK+4}, v{PK+6}
v_permlane32_swap_b32 v{PK+5}, v{PK+7}
buffer_store_dwordx4 {vr(PK,4)}, v{vT}, {sr(sSRD,4)}, s{sT0} offen
buffer_store_dwordx4 {vr(PK+4,4)}, v{vT}, {sr(sSRD,4)}, s{sT0} offen offset:32
''')
def dbg_dump():
    if not DEBUG: return
    a('s_waitcnt vmcnt(0)')
    stamp('end')
    a(f'''
    v_mbcnt_lo_u32_b32 v1, -1, 0
    v_mbcnt_hi_u32_b32 v1, -1, v1
    v_lshlrev_b32 v1, 2, v1
    s_lshl_b32 s{sT0}, s2, 3
    s_add_u32 s{sT0}, s{sT0}, s{sWV}
    s_lshl_b32 s{sT0}, s{sT0}, 8
    s_add_u32 s{sT0}, s{sT0}, {WS_DBG}
    buffer_store_dword v0, v1, {sr(sWSD,4)}, s{sT0} offen
    ''')
dbg_dump()
names_compute = list(stamp_names)
a('L_end:')
a('s_endpgm')

a(f'''
L_refresh:
{'s_sleep %d' % opt('SL',0) if opt('SL',0) else ''}
ds_read_b128 {vr(vT,4)}, v{vMisc}
s_sub_u32 s{sTO}, s{sTO}, 1
s_cbranch_scc1 L_end
s_waitcnt lgkmcnt(0)
v_readfirstlane_b32 s{sFA}, v{vT}
v_readfirstlane_b32 s{sFW0}, v{vT+1}
v_readfirstlane_b32 s{sFW1}, v{vT+2}
v_readfirstlane_b32 s{sTAG}, v{vT+3}
s_nop 0
s_setpc_b64 {sr(sRET,2)}
''')
a.ins += ool.ins

sIDX, sM0, sOFF, sSTR, sFREE, sPUBV, sCNT, sB0, sCOL, sS64 = 44, 45, 46, 60, 61, 62, 63, 64, 65, 66
vO0 = 10
vFW = 14
vFR = 15
def slot_sub(name, nring, base, step, D, sc1):
    f = ' sc1' if sc1 else ''
    a(f'''
    {name}:
    s_add_u32 s{sT0}, s{sFREE}, {nring}
    s_cmp_gt_u32 s{sT0}, s{sIDX}
    s_cbranch_scc0 {name}_wait
    {name}_go:
    s_mov_b32 m0, s{sM0}
    s_add_u32 s{sT0}, s{sOFF}, s{sSTR}
    ''')
    for i in range(4): a(f'buffer_load_dwordx4 v{vO0+i}, {sr(sSRD,4)}, s{sOFF} offen offset:{1024*i}{f} lds')
    a(f's_add_u32 m0, m0, 4096')
    a(f's_add_u32 s{sCNT}, s{sCNT}, 1')
    for i in range(4): a(f'buffer_load_dwordx4 v{vO0+i}, {sr(sSRD,4)}, s{sT0} offen offset:{1024*i}{f} lds')
    a(f'''
    s_add_u32 s{sIDX}, s{sIDX}, {step}
    s_add_u32 s{sM0}, s{sM0}, {step*8192}
    s_cmp_ge_u32 s{sM0}, {base + nring*8192}
    s_cselect_b32 s{sT0}, {nring*8192}, 0
    s_sub_u32 s{sM0}, s{sM0}, s{sT0}
    s_sub_i32 s{sT0}, s{sCNT}, {D}
    s_max_i32 s{sPUBV}, s{sPUBV}, s{sT0}
    v_mov_b32 v16, s{sPUBV}
    s_waitcnt vmcnt({8*D})
    ds_write_b32 v{vFW}, v16
    s_setpc_b64 {sr(sRET,2)}
    {name}_wait:
    ds_read_b128 v[20:23], v{vFR}
    s_waitcnt lgkmcnt(0)
    v_min3_u32 v20, v20, v21, v22
    v_min_u32 v20, v20, v23
    s_nop 0
    v_readfirstlane_b32 s{sFREE}, v20
    s_nop 0
    s_add_u32 s{sT0}, s{sFREE}, {nring}
    s_cmp_gt_u32 s{sT0}, s{sIDX}
    s_cbranch_scc1 {name}_go
    s_cmp_ge_u32 s{sPUBV}, s{sCNT}
    s_cbranch_scc1 {name}_idle
    s_mov_b32 s{sPUBV}, s{sCNT}
    v_mov_b32 v16, s{sPUBV}
    s_waitcnt vmcnt(0)
    ds_write_b32 v{vFW}, v16
    s_branch {name}_wait
    {name}_idle:
    s_sleep 1
    s_sub_u32 s{sTO}, s{sTO}, 1
    s_cbranch_scc0 {name}_wait
    s_endpgm
    ''')
def drain(D):
    for k in range(D - 1, -1, -1):
        a(f's_sub_i32 s{sT0}, s{sCNT}, {k}')
        a(f's_max_i32 s{sPUBV}, s{sPUBV}, s{sT0}')
        a(f'v_mov_b32 v16, s{sPUBV}')
        a(f's_waitcnt vmcnt({8*k})')
        a(f'ds_write_b32 v{vFW}, v16')
def full_addr(word_s):
    a(f'''
    v_cmp_eq_u32 vcc, 0, v0
    v_mov_b32 v1, {word_s}
    v_lshlrev_b32 v2, 2, v0
    v_add_u32 v2, {MISC+576}, v2
    v_cndmask_b32 v{vFW}, v2, v1, vcc
    ''')

nstamp[0] = 0; stamp_names.clear()
a('L_wload:')
a(f's_setprio {opt("PL",0)}')
vS = {3072: 24, 1024: 28, 2752: 32}
a(f'''
v_lshrrev_b32 v1, 3, v0
v_bfe_u32 v2, v0, 4, 1
v_lshlrev_b32 v2, 2, v2
v_and_b32 v3, 7, v0
v_xor_b32 v2, v2, v3
v_lshlrev_b32 v2, 4, v2
''')
for st, b in ((1024, 28), (3072, 24), (2752, 32)):
    a(f'v_mul_u32_u24 v3, {st}, v1')
    a(f'v_add_u32 v{b}, v3, v2')
    for i in range(1, 4): a(f'v_add_u32 v{b+i}, {8*st-1024}, v{b+i-1}')
a(f'''
s_sub_u32 s{sIDX}, s{sWV}, 5
s_lshl_b32 s{sM0}, s{sIDX}, 13
s_add_u32 s{sM0}, s{sM0}, {WBASE}
s_lshl_b32 s{sT0}, s{sIDX}, 2
s_add_u32 s{sT0}, s{sT0}, {MISC+4}
s_mov_b32 s{sFREE}, 0
s_mov_b32 s{sPUBV}, 0
s_mov_b32 s{sCNT}, 0
s_add_u32 s{sB0}, s{sROT}, s{sIDX}
s_lshl_b32 s{sCOL}, s{sC}, 7
v_mov_b32 v{vFR}, {MISC+32}
''')
full_addr(f's{sT0}')
if DEBUG: a('v_mov_b32 v0, 0')
a('s_waitcnt lgkmcnt(0)')
def wmat(ptr, size, st):
    a(f's_mov_b32 s{sSRD}, s{ptr}')
    a(f's_mov_b32 s{sSRD+1}, s{ptr+1}')
    a(f's_mov_b32 s{sSRD+2}, {size}')
    a(f's_mov_b32 s{sSTR}, {32*st}')
    a(f's_mov_b32 s{sS64}, {64*st}')
    for i in range(4): a(f'v_mov_b32 v{vO0+i}, v{vS[st]+i}')
def wpass(const_off, first=False):
    for q in range(4):
        a(f's_add_u32 s{sOFF}, s{sB0}, {2*q}')
        a(f's_and_b32 s{sOFF}, s{sOFF}, 7')
        a(f's_mul_i32 s{sOFF}, s{sOFF}, s{sS64}')
        a(f's_add_u32 s{sOFF}, s{sOFF}, s{sCOL}')
        if const_off: a(f's_add_u32 s{sOFF}, s{sOFF}, {const_off}')
        if first and q == 1: a('s_barrier')
        a(f's_call_b64 {sr(sRET,2)}, L_wslot')
wmat(sW1, 512 * 1024, 1024); wpass(0, first=True)
stamp('w1')
wmat(sWQKV, 512 * 3072, 3072); wpass(1024); wpass(2048); wpass(0)
stamp('wqkv')
wmat(sW2, 512 * 1024, 1024); wpass(0)
stamp('w2')
wmat(sW3, 512 * 2752, 2752); wpass(0); wpass(1024)
a(f's_cmp_ge_u32 s{sC}, 6')
a('s_cbranch_scc1 L_wskip')
wpass(2048)
a('s_branch L_wjoin')
a('L_wskip:')
drain(DW)
a(f'''
s_add_u32 s{sIDX}, s{sIDX}, 8
s_add_u32 s{sCNT}, s{sCNT}, 4
s_mov_b32 s{sPUBV}, s{sCNT}
s_add_u32 s{sM0}, s{sM0}, {8*8192}
s_cmp_ge_u32 s{sM0}, {WBASE + NW*8192}
s_cselect_b32 s{sT0}, {NW*8192}, 0
s_sub_u32 s{sM0}, s{sM0}, s{sT0}
L_wjoin:
''')
stamp('w3')
wmat(sWO, 512 * 1024, 1024); wpass(0)
stamp('wo')
wmat(sW4, 1376 * 1024, 1024); wpass(0); wpass(512 * 1024)
a(f's_sub_u32 s{sB0}, s{sWV}, 5')
for q in range(3):
    a(f's_add_u32 s{sOFF}, s{sB0}, {16+2*q}')
    a(f's_lshl_b32 s{sOFF}, s{sOFF}, 16')
    a(f's_add_u32 s{sOFF}, s{sOFF}, s{sCOL}')
    a(f's_call_b64 {sr(sRET,2)}, L_wslot')
drain(DW)
if DEBUG:
    a(f's_mov_b32 s{sWSD}, s{sWS}')
    a(f's_mov_b32 s{sWSD+1}, s{sWS+1}')
dbg_dump()
names_w = list(stamp_names)
a('s_endpgm')
slot_sub('L_wslot', NW, WBASE, 2, DW, False)

nstamp[0] = 0; stamp_names.clear()
a('L_aload:')
a(f's_setprio {opt("PL",0)}')
vF0, vF1, vF2 = 24, 25, 26
a(f'''
v_lshrrev_b32 v1, 3, v0
v_lshlrev_b32 v1, 10, v1
v_lshrrev_b32 v2, 4, v0
v_and_b32 v3, 7, v0
v_xor_b32 v2, v2, v3
v_lshl_add_u32 v{vO0}, v2, 4, v1
v_xor_b32 v2, 4, v2
v_lshl_add_u32 v{vO0+1}, v2, 4, v1
v_add_u32 v{vO0+1}, 7168, v{vO0+1}
v_add_u32 v{vO0+2}, 14336, v{vO0}
v_add_u32 v{vO0+3}, 14336, v{vO0+1}
s_lshl_b32 s{sT0}, s{sROT}, 7
v_lshlrev_b32 v4, 4, v0
v_add_u32 v5, s{sT0}, v4
v_and_b32 v5, 1023, v5
s_mov_b32 s{sIDX}, 0
s_mov_b32 s{sM0}, {ABASE}
s_mov_b32 s{sFREE}, 0
s_mov_b32 s{sPUBV}, 0
s_mov_b32 s{sCNT}, 0
s_mov_b32 s{sSTR}, 32768
s_lshl_b32 s{sB0}, s{sR}, 16
v_mov_b32 v{vFR}, {MISC+16}
''')
full_addr(MISC)
a(f'''
s_waitcnt lgkmcnt(0)
s_mov_b32 s{sSRD}, s{sGATE}
s_mov_b32 s{sSRD+1}, s{sGATE+1}
s_mov_b32 s{sSRD+2}, 1024
s_mov_b32 m0, {GATE}
s_mov_b32 s{sWSD}, s{sWS}
s_mov_b32 s{sWSD+1}, s{sWS+1}
buffer_load_dwordx4 v5, {sr(sSRD,4)}, 0 offen lds
s_mov_b32 s{sSRD}, s{sX}
s_mov_b32 s{sSRD+1}, s{sX+1}
s_mov_b32 s{sSRD+2}, {2048*1024}
''')
def apass(shift, first=False):
    for q in range(8):
        a(f's_add_u32 s{sOFF}, s{sROT}, {q}')
        a(f's_and_b32 s{sOFF}, s{sOFF}, 7')
        a(f's_lshl_b32 s{sOFF}, s{sOFF}, {shift}')
        a(f's_add_u32 s{sOFF}, s{sOFF}, s{sB0}')
        if first and q == 1:
            a('s_barrier')
        a(f's_call_b64 {sr(sRET,2)}, L_aslot')
apass(7, first=True)
a(f'''
v_and_b32 v1, 31, v0
v_lshlrev_b32 v1, 2, v1
s_lshl_b32 s{sT1}, s{sR}, {FSH}
v_add_u32 v{vF0}, s{sT1}, v1
v_lshrrev_b32 v2, 5, v0
v_lshlrev_b32 v2, {FSH+1}, v2
v_add_u32 v{vF1}, v{vF0}, v2
v_subrev_u32 v{vF1}, {1<<FSH}, v{vF1}
v_and_b32 v{vF1}, {(32<<FSH)-1}, v{vF1}
v_bfe_u32 v2, v0, 2, 2
v_sub_u32 v2, s{sR}, v2
v_subrev_u32 v2, 1, v2
v_max_i32 v2, 0, v2
v_lshlrev_b32 v2, {FSH}, v2
v_and_b32 v3, 3, v0
v_lshl_add_u32 v2, v3, 2, v2
s_lshl_b32 s{sT1}, s{sC}, 4
v_add_u32 v{vF2}, s{sT1}, v2
''')
if DEBUG: a('v_mov_b32 v0, 0')
drain(DA)
stamp('x')
a(f'''
v_mov_b32 v21, {MISC}
L_atag:
ds_read_b32 v20, v21 offset:12
s_waitcnt lgkmcnt(0)
v_readfirstlane_b32 s{sTAG}, v20
s_cmp_lg_u32 s{sTAG}, 0
s_cbranch_scc1 L_atag2
s_sub_u32 s{sTO}, s{sTO}, 1
s_cbranch_scc0 L_atag
s_endpgm
L_atag2:
''')
for i in range(4): a(f'v_mov_b32 v{vO0+i}, v4')
a(f'''
s_mov_b32 s{sSRD}, s{sWS}
s_mov_b32 s{sSRD+1}, s{sWS+1}
s_mov_b32 s{sSRD+2}, {WS_REC}
s_mov_b32 s{sSTR}, 4096
''')
def flag_wait(vs, need):
    l1, l2 = a.new_label('P'), a.new_label('P')
    a(f's_add_u32 s{sT1}, s{sTAG}, {need}')
    a(f'{l1}:')
    for i, v in enumerate(vs): a(f'buffer_load_dword v{28+i}, v{v}, {sr(sWSD,4)}, 0 offen sc1')
    a('s_waitcnt vmcnt(0)')
    for i, v in enumerate(vs): a(f'v_subrev_u32 v{28+i}, s{sT1}, v{28+i}')
    for i in range(1, len(vs)): a(f'v_max_u32 v28, v28, v{28+i}')
    a(f'v_cmp_gt_u32 vcc, {8-need}, v28')
    a('s_cmp_eq_u64 vcc, -1')
    a(f's_cbranch_scc1 {l2}')
    if opt('PS', 0): a(f's_sleep {opt("PS", 0)}')
    a(f's_sub_u32 s{sTO}, s{sTO}, 1')
    a(f's_cbranch_scc0 {l1}')
    a('s_endpgm')
    a(f'{l2}:')
a(f'''
s_mov_b32 s{sIDX}, {A_H}
s_mov_b32 s{sCNT}, {A_H}
s_mov_b32 s{sPUBV}, {A_H}
s_mov_b32 s{sM0}, {apos(A_H)}
s_add_u32 s{sB0}, s{sB0}, {WS_H}
''')
flag_wait([vF0, vF1], 1)
stamp('h flag')
apass(13)
drain(DA)
stamp('h')
flag_wait([vF2], 2)
stamp('kv flag')
for i in range(4):
    a(f's_add_i32 s{sT1}, s{sR}, {i-4}')
    a(f's_lshl_b32 s{sOFF}, s{sT1}, 3')
    a(f's_add_u32 s{sOFF}, s{sOFF}, s{sC}')
    a(f's_lshl_b32 s{sOFF}, s{sOFF}, 14')
    a(f's_add_u32 s{sOFF}, s{sOFF}, {WS_KV}')
    a(f's_cmp_lt_i32 s{sT1}, 0')
    a(f's_cselect_b32 s{sOFF}, {WS_REC}, s{sOFF}')
    a(f's_call_b64 {sr(sRET,2)}, L_aslot')
    a(f's_add_u32 s{sOFF}, s{sOFF}, 8192')
    a(f's_call_b64 {sr(sRET,2)}, L_aslot')
drain(DA)
stamp('kv')
a(f's_mul_i32 s{sB0}, s{sR}, {X1_STRIDE}')
a(f's_add_u32 s{sB0}, s{sB0}, {WS_X1}')
flag_wait([vF0], 3)
stamp('x1 flag')
apass(13)
a(f's_add_u32 s{sOFF}, s{sB0}, 65536')
a(f's_call_b64 {sr(sRET,2)}, L_aslot')
drain(DA)
stamp('x1')
a(f's_lshl_b32 s{sB0}, s{sR}, 16')
a(f's_add_u32 s{sB0}, s{sB0}, {WS_O}')
flag_wait([vF0], 4)
stamp('o flag')
apass(13)
drain(DA)
stamp('o')
a(f's_mul_i32 s{sB0}, s{sR}, {H3_STRIDE}')
a(f's_add_u32 s{sB0}, s{sB0}, {WS_H3}')
for b in range(2):
    flag_wait([vF0], 5 + b)
    stamp(f'h3{b} flag')
    apass(13)
    drain(DA)
    a(f's_add_u32 s{sB0}, s{sB0}, 65536')
flag_wait([vF0], 7)
stamp('h32 flag')
for q in range(6):
    a(f's_add_u32 s{sOFF}, s{sB0}, {q*8192}')
    a(f's_call_b64 {sr(sRET,2)}, L_aslot')
drain(DA)
a(f'''
s_cmp_lg_u32 s2, 0
s_cbranch_scc1 L_aend
s_add_u32 s{sT1}, s{sTAG}, 1
L_ebump:
''')
a(f'v_lshrrev_b32 v30, 5, v4')
a(f'v_lshlrev_b32 v30, {FSH}, v30')
a(f'v_and_b32 v31, 16, v4')
a(f'v_lshl_add_u32 v30, v31, 2, v30')
for i in range(4): a(f'buffer_load_dwordx4 v[{32+4*i}:{35+4*i}], v30, {sr(sWSD,4)}, 0 offen offset:{16*i} sc1')
a('s_waitcnt vmcnt(0)')
for i in range(16): a(f'v_subrev_u32 v{32+i}, s{sT1}, v{32+i}')
for i in range(1, 16): a(f'v_max_u32 v32, v32, v{32+i}')
a(f'''
v_cmp_gt_u32 vcc, 7, v32
s_cmp_eq_u64 vcc, -1
s_cbranch_scc1 L_ebump2
s_sub_u32 s{sTO}, s{sTO}, 1
s_cbranch_scc0 L_ebump
s_endpgm
L_ebump2:
v_mov_b32 v1, s{sTAG}
v_mov_b32 v2, {WS_E}
s_mov_b64 exec, 1
buffer_store_dword v1, v2, {sr(sWSD,4)}, 0 offen sc1
s_mov_b64 exec, -1
L_aend:
''')
dbg_dump()
names_a = list(stamp_names)
a('s_endpgm')
slot_sub('L_aslot', NA, ABASE, 1, DA, True)

a(f'''
L_misc:
v_lshlrev_b32 v1, 2, v0
v_add_u32 v1, {MISC}, v1
v_mov_b32 v2, 0
ds_write_b32 v1, v2
s_getpc_b64 s[44:45]
L_pc:
s_sub_u32 s44, s44, L_pc-{NAME}_kernel
s_subb_u32 s45, s45, 0
s_lshr_b32 s46, s2, 3
s_lshl_b32 s46, s46, 11
v_lshlrev_b32 v3, 4, v0
v_add_u32 v3, s46, v3
v_min_u32 v4, L_last-{NAME}_kernel-16, v3
global_load_dwordx4 v[8:11], v4, s[44:45]
v_add_u32 v3, 1024, v3
v_min_u32 v4, L_last-{NAME}_kernel-16, v3
global_load_dwordx4 v[12:15], v4, s[44:45]
s_waitcnt lgkmcnt(0)
''')
load_tag()
a(f'''
s_barrier
s_mov_b32 s{sSRD}, s{sDBG}
s_mov_b32 s{sSRD+1}, s{sDBG+1}
s_mov_b32 s{sSRD+2}, 256
s_waitcnt lgkmcnt(0)
''')
make_tag()
a(f'''
s_mov_b64 exec, 1
v_mov_b32 v5, s{sTAG}
v_mov_b32 v6, {MISC}
ds_write_b32 v6, v5 offset:12
L_mend:
s_endpgm
L_last:
''')

nn = a.pad()
hdr = open(f'cdna_kernels/{NAME}.s.ref').read().split('; Override launch geometry')[0]
txt = hdr + f'''; @launch grid=(256,1,1) block=(512,1,1) lds={LDS_BYTES}
.amdgcn_target "amdgcn-amd-amdhsa--gfx950"
.text
.globl {NAME}_kernel
.p2align 8
.type {NAME}_kernel,@function
{NAME}_kernel:
''' + a.text() + f'''.section .rodata,"a"
.p2align 6
.amdhsa_kernel {NAME}_kernel
  .amdhsa_next_free_vgpr 256
  .amdhsa_next_free_sgpr 102
  .amdhsa_accum_offset 256
  .amdhsa_group_segment_fixed_size 0
  .amdhsa_kernarg_size 96
  .amdhsa_user_sgpr_count 2
  .amdhsa_user_sgpr_kernarg_segment_ptr 1
  .amdhsa_system_sgpr_workgroup_id_x 1
.end_amdhsa_kernel
'''
open(OUT, 'w').write(txt)
import json
json.dump({'c': names_compute, 'w': names_w, 'a': names_a}, open(OUT + '.names.json', 'w'))
print('instructions', sum(1 for i in a.ins if i.kind != 'meta'), 'nops inserted', nn, file=sys.stderr)
```

```python
import sys, struct, json
from asmlib import *

NAME = 'gated_mix__sliding_block__mixer_s_mlp__prompt'
DEBUG = '--debug' in sys.argv
OUT = [x for x in sys.argv[1:] if not x.startswith('--')]
OUT = OUT[0] if OUT else f'cdna_kernels/{NAME}.s'
def opt(name, default):
    for x in sys.argv:
        if x.startswith(f'--{name}='): return int(x.split('=')[1])
    return default

NA, NW = 8, 11
ABASE, WBASE = 0, 65536
GATE = WBASE + NW * 8192
LDS_BYTES = 163840
FSH = 10
WS_E = 0x80000
WS_H, WS_KV, WS_X1, WS_O, WS_H3, WS_DBG = 0x100000, 0x300000, 0x700000, 0xA00000, 0xC00000, 0x1200000
X1_STRIDE = 73728
H3_STRIDE = 176 * 1024
WS_REC = 0x1400000
PD = opt('PD', 3)
TIMEOUT = 1 << 16
KDUP = 0

def f32(x): return '0x%08x' % struct.unpack('<I', struct.pack('<f', x))[0]
LOG2E = 1.4426950408889634
C1 = 2 * 0.7978845608028654 * LOG2E
QSCALE = 0.25 * LOG2E

A_X, A_H, A_KE, A_KO, A_X1, A_ST, A_O, A_H3, A_END = 0, 8, 16, 21, 26, 34, 35, 43, 65
W_1, W_K, W_V, W_Q, W_2, W_3, W_O, W_4, W_END = 0, 8, 16, 24, 32, 40, 64, 72, 94
apos = lambda i: ABASE + (i % NA) * 8192
wpos = lambda i: (i % NW) * 8192

sX, sWQKV, sWO, sW1, sW2, sW3, sW4, sGATE, sOUT, sDBG, sWS = 4, 6, 8, 12, 14, 16, 18, 20, 22, 24, 26
sR, sC, sROT, sWV, sTAG, sTO = 28, 29, 30, 31, 32, 33
sRET = 34
sWSD = 36
sSRD = 40
sT0, sT1, sT2, sT3 = 47, 48, 49, 50
sHI = 52
sVM = 54
sGM = 56
sTT, sCH = 58, 59
sMASK = 60
sE = 92
sST = 94
sQ1, sQ2, sQ3 = 96, 98, 100
sZM = 44

a = Asm()
ool = Asm()
ool.uid = 100000

class Lgkm:
    def __init__(self): self.n = 0; self.done = 0
    def issue(self, text):
        a(text); self.n += 1; return self.n
    def wait(self, seq):
        if seq <= self.done: return
        k = min(self.n - seq, 15)
        a(f's_waitcnt lgkmcnt({k})')
        self.done = self.n - k
    def all(self): self.wait(self.n)
lg = Lgkm()
def emit(x):
    if callable(x): x()
    elif x.startswith('ds_'): lg.issue(x)
    else: a(x)

nstamp = [0]
stamp_names = []
def stamp(name):
    if not DEBUG: return
    i = nstamp[0]; nstamp[0] += 1
    stamp_names.append(name)
    a(f's_memtime {sr(sST,2)}')
    a(f's_memrealtime s[2:3]'.replace('s[2:3]', 's[0:1]'))
    a('s_waitcnt lgkmcnt(0)')
    a(f'v_writelane_b32 v0, s{sST}, {i}')
    a(f'v_writelane_b32 v0, s0, {32+i}')
    assert i < 30
def st(name): return lambda: stamp(name)
def dbg_start():
    if not DEBUG: return
    a(f'v_mov_b32 v0, 0')
    a(f'v_writelane_b32 v0, s{sST}, 0')
    a(f'v_writelane_b32 v0, s{sE}, 62')
    nstamp[0] = 1; stamp_names.clear(); stamp_names.append('start')
def dbg_dump():
    if not DEBUG: return
    a('s_waitcnt vmcnt(0)')
    stamp('end')
    a(f'''
    s_memrealtime {sr(sST,2)}
    s_waitcnt lgkmcnt(0)
    v_writelane_b32 v0, s{sST}, 63
    s_mov_b32 s{sWSD}, s{sWS}
    s_mov_b32 s{sWSD+1}, s{sWS+1}
    v_mbcnt_lo_u32_b32 v1, -1, 0
    v_mbcnt_hi_u32_b32 v1, -1, v1
    v_lshlrev_b32 v1, 2, v1
    s_lshl_b32 s{sT0}, s2, 3
    s_add_u32 s{sT0}, s{sT0}, s{sWV}
    s_lshl_b32 s{sT0}, s{sT0}, 8
    s_add_u32 s{sT0}, s{sT0}, {WS_DBG}
    buffer_store_dword v0, v1, {sr(sWSD,4)}, s{sT0} offen
    ''')

if DEBUG:
    a(f's_memtime {sr(sST,2)}')
    a(f's_memrealtime {sr(sE,2)}')
a(f'''
s_cmp_ge_u32 s2, 256
s_cbranch_scc1 L_end
s_load_dwordx16 s[4:19], s[0:1], 0
s_load_dwordx8 s[20:27], s[0:1], 64
v_lshrrev_b32 v1, 6, v0
v_and_b32 v0, 63, v0
v_readfirstlane_b32 s{sWV}, v1
s_and_b32 s{sT0}, s2, 7
s_lshr_b32 s{sT1}, s2, 3
s_lshr_b32 s{sR}, s{sT0}, 1
s_lshl_b32 s{sR}, s{sR}, 3
s_lshr_b32 s{sT2}, s{sT1}, 2
s_add_u32 s{sR}, s{sR}, s{sT2}
s_and_b32 s{sC}, s{sT0}, 1
s_lshl_b32 s{sC}, s{sC}, 2
s_and_b32 s{sT2}, s{sT1}, 3
s_add_u32 s{sC}, s{sC}, s{sT2}
s_add_u32 s{sROT}, s{sR}, s{sC}
s_and_b32 s{sROT}, s{sROT}, 7
s_mov_b32 s{sTO}, {TIMEOUT}
s_mov_b32 s{sWSD+2}, {WS_REC}
s_mov_b32 s{sWSD+3}, 0x20000
s_mov_b32 s{sSRD+3}, 0x20000
s_cmp_eq_u32 s{sWV}, 6
s_cbranch_scc1 L_aux
s_cmp_eq_u32 s{sWV}, 7
s_cbranch_scc1 L_flag
s_cmp_ge_u32 s{sWV}, 4
s_cbranch_scc1 L_load
''')
def make_tag():
    a(f'''
    s_add_u32 s{sE}, s{sE}, 0x9e3779b0
    s_and_b32 s{sTAG}, s{sE}, 0xfffffff0
    ''')

vWn0, vWn1, vWt0, vWt1, vP, vL16, vKr, vVr, vStV, vStH, vX0, vX1, vX2, vG, vX3 = range(1, 16)
vT = 16
vSel = 20
vWf = 24
vAf = 36
vA0, vA1, vAB = 48, 64, 80
vL = 96
vPan = 128
vQl = 120

a(f's_setprio {opt("PC", 0)}')
a(f'''
s_and_b32 s{sTT}, s{sWV}, 1
s_lshr_b32 s{sCH}, s{sWV}, 1
s_mov_b32 s{sHI}, 0
s_mov_b32 s{sHI+1}, -1
s_mov_b32 s{sVM}, 0xffff
s_mov_b32 s{sVM+1}, 0xffff
''')
L, TOK, H, T1, T2, T3, ROW = 'v0', 'v48', 'v49', 'v50', 'v51', 'v52', 'v53'
a(f'''
v_and_b32 {TOK}, 31, {L}
v_lshrrev_b32 {H}, 5, {L}
v_lshlrev_b32 v{vL16}, 4, {L}
''')
a(f'''
v_bfe_u32 {T1}, {L}, 3, 1
v_xor_b32 {T1}, s{sCH}, {T1}
v_lshlrev_b32 {T1}, 6, {T1}
v_bfe_u32 {T2}, {L}, 4, 1
v_lshl_add_u32 {T1}, {T2}, 5, {T1}
v_and_b32 {T2}, 3, {L}
v_lshl_add_u32 {T1}, {T2}, 3, {T1}
v_bfe_u32 {T2}, {L}, 2, 2
v_lshl_add_u32 {T1}, {T2}, 7, {T1}
v_add_u32 {T1}, {WBASE}, {T1}
v_lshl_add_u32 v{vWn0}, {H}, 10, {T1}
v_add_u32 v{vWn1}, 65536, v{vWn0}
v_lshl_add_u32 v{vWt0}, {H}, 9, {T1}
v_add_u32 v{vWt1}, 65536, v{vWt0}
''')
a(f'''
v_lshlrev_b32 {T1}, 4, {TOK}
v_lshl_add_u32 {T1}, {H}, 10, {T1}
s_lshl_b32 s{sT0}, s{sTT}, 9
v_add_u32 v{vP}, s{sT0}, {T1}
s_lshl_b32 s{sT0}, s{sTT}, 12
s_lshl_b32 s{sT1}, s{sCH}, 10
s_add_u32 s{sT0}, s{sT0}, s{sT1}
v_add_u32 v{vKr}, s{sT0}, v{vL16}
s_add_u32 s{sT0}, s{sT0}, 2048
v_and_b32 {T2}, 15, {L}
v_lshlrev_b32 {T2}, 4, {T2}
v_lshl_add_u32 {T2}, {H}, 8, {T2}
v_add_u32 v{vVr}, s{sT0}, {T2}
v_bfe_u32 {T3}, {L}, 4, 1
v_lshl_add_u32 v{vStV}, {T3}, 13, v{vVr}
''')
a(f'''
s_lshr_b32 s{sT0}, s{sC}, 2
s_add_u32 s{sT0}, s{sT0}, 1
s_sub_u32 s{sT1}, 0, s{sT0}
s_bitcmp1_b32 s{sC}, 1
s_cselect_b32 s{sT0}, s{sT1}, s{sT0}
s_lshl_b32 s{sT1}, s{sR}, 6
s_add_u32 s{sT0}, s{sT0}, s{sT1}
s_lshl_b32 s{sT1}, s{sTT}, 5
s_add_u32 s{sT0}, s{sT0}, s{sT1}
v_add_u32 {T1}, s{sT0}, {TOK}
v_mov_b32 {T2}, 2047
v_cmp_gt_u32 {sr(sZM,2)}, {T1}, {T2}
v_and_b32 {T1}, {T2}, {T1}
v_lshrrev_b32 {T2}, 6, {T1}
v_and_b32 {T1}, 63, {T1}
v_lshlrev_b32 {T1}, 4, {T1}
v_lshl_add_u32 {T1}, {T2}, 16, {T1}
v_lshl_add_u32 v{vStH}, {H}, 10, {T1}
''')
a(f'''
v_bfe_u32 {T1}, {L}, 4, 1
v_bfe_u32 {T2}, {L}, 2, 1
v_cmp_eq_u32 {sr(sGM,2)}, {T1}, {T2}
v_mov_b32 {T3}, 0x3f803f80
v_cndmask_b32 v{vSel}, 0, {T3}, {sr(sGM,2)}
v_mov_b32 v{vSel+1}, v{vSel}
v_mov_b32 v{vSel+2}, v{vSel}
v_mov_b32 v{vSel+3}, v{vSel}
v_and_b32 {T1}, 3, {L}
v_cmp_eq_u32 vcc, 0, {T1}
v_cmp_eq_u32 {sr(sQ1,2)}, 1, {T1}
v_cmp_eq_u32 {sr(sQ2,2)}, 2, {T1}
v_cmp_eq_u32 {sr(sQ3,2)}, 3, {T1}
v_cndmask_b32 v{vL}, 0, v{vSel}, vcc
s_and_b64 {sr(sGM,2)}, {sr(sGM,2)}, {sr(sQ1,2)}
''')
for i in range(1, 32): a(f'v_mov_b32 v{vL+i}, v{vL}')
vXa, vGa, vRa = 36, 40, 41
a(f'''
s_lshl_b32 s{sT0}, s{sTT}, 5
v_add_u32 {ROW}, s{sT0}, {TOK}
v_bfe_u32 {T1}, {ROW}, 1, 3
v_lshlrev_b32 {ROW}, 7, {ROW}
v_xor_b32 {T2}, {T1}, {H}
''')
for s in range(4):
    a(f'v_xor_b32 {T3}, {2*s}, {T2}')
    a(f'v_lshl_add_u32 v{vXa+s}, {T3}, 4, {ROW}')
a(f'''
v_lshlrev_b32 v{vGa}, 4, {H}
v_add_u32 v{vGa}, {GATE}, v{vGa}
s_sub_u32 s{sT0}, 0, s{sR}
s_and_b32 s{sT0}, s{sT0}, 7
s_lshl_b32 s{sT0}, s{sT0}, 13
v_add_u32 {ROW}, s{sT0}, {ROW}
v_lshl_add_u32 {ROW}, {H}, 3, {ROW}
s_lshl_b32 s{sT0}, s{sCH}, 2
v_xor_b32 {T2}, s{sT0}, {T1}
''')
for j in range(4):
    a(f'v_xor_b32 {T3}, {j}, {T2}')
    a(f'v_lshl_add_u32 v{vRa+j}, {T3}, 4, {ROW}')
a(f'v_lshlrev_b32 {T1}, 2, {H}')
a(f'v_sub_u32 {T1}, {TOK}, {T1}')
for r in range(16):
    a(f'v_cmp_gt_i32 {sr(sMASK+2*r,2)}, {(r & 3) + 8 * (r >> 2)}, {T1}')
a('s_waitcnt lgkmcnt(0)')
dbg_start()
sOH, sOK0, sOK1, sOX1, sOST, sOO, sOH3, sOOUT, sJV, sNEG, sTILE = range(4, 15)
a(f'''
s_mov_b32 s{sSRD}, s{sOUT}
s_mov_b32 s{sSRD+1}, s{sOUT+1}
s_mov_b32 s{sSRD+2}, {2048*1024}
s_mov_b32 s{sWSD}, s{sWS}
s_mov_b32 s{sWSD+1}, s{sWS+1}
s_lshl_b32 s{sTILE}, s{sC}, 13
s_lshl_b32 s{sT1}, s{sCH}, 12
s_add_u32 s{sTILE}, s{sTILE}, s{sT1}
s_add_u32 s{sOH}, s{sTILE}, {WS_H}
s_lshl_b32 s{sOK0}, s{sR}, 3
s_add_u32 s{sOK0}, s{sOK0}, s{sC}
s_lshl_b32 s{sOK0}, s{sOK0}, 14
s_add_u32 s{sOK0}, s{sOK0}, {WS_KV}
s_add_u32 s{sOK1}, s{sOK0}, 8192
s_mul_i32 s{sT0}, s{sR}, {X1_STRIDE}
s_add_u32 s{sT0}, s{sT0}, {WS_X1}
s_add_u32 s{sOX1}, s{sT0}, s{sTILE}
s_lshr_b32 s{sOST}, s{sTILE}, 3
s_add_u32 s{sOST}, s{sOST}, s{sT0}
s_add_u32 s{sOST}, s{sOST}, 65536
s_lshl_b32 s{sT0}, s{sR}, 16
s_add_u32 s{sOO}, s{sT0}, s{sTILE}
s_add_u32 s{sOO}, s{sOO}, {WS_O}
s_lshl_b32 s{sT1}, s{sTT}, 15
s_add_u32 s{sOOUT}, s{sT0}, s{sT1}
s_lshr_b32 s{sT1}, s{sTILE}, 6
s_add_u32 s{sOOUT}, s{sOOUT}, s{sT1}
s_mul_i32 s{sOH3}, s{sR}, {H3_STRIDE}
s_add_u32 s{sOH3}, s{sOH3}, s{sTILE}
s_add_u32 s{sOH3}, s{sOH3}, {WS_H3}
s_lshl_b32 s{sJV}, s{sR}, 1
s_add_u32 s{sJV}, s{sJV}, s{sTT}
s_sub_i32 s{sJV}, 8, s{sJV}
s_max_i32 s{sJV}, s{sJV}, 0
s_mov_b32 s{sNEG}, {f32(-1e30)}
''')

ticks = []
last_read = {}
freed = set()
pub_next = [None]
def want_pub(stage): pub_next[0] = stage
def tick(needW=None, needA=None, name='', dur=140):
    pub = pub_next[0]; pub_next[0] = None
    if pub: a('s_waitcnt vmcnt(0)')
    a('s_barrier')
    fr = [k for k, s in last_read.items() if s <= lg.done and k not in freed]
    freed.update(fr)
    ticks.append(dict(needW=needW, needA=needA, free=fr, pub=pub, name=name, dur=dur))

class Step:
    def __init__(self, w, s, order, acc, act, aslot=None, aread=None, swap=False, c0=None, pre=None, post=None, lastw=False, lasta=False, cs=None, cs0=False, xa=None, dur=140):
        self.__dict__.update(locals())

def run_steps(steps, fill=None):
    fill = fill or {}
    seqs = {}
    def reads(n):
        s_ = steps[n]
        if s_.s == 0: tick(s_.w, s_.aslot if s_.xa is None else s_.xa, f'W{s_.w}', s_.dur)
        if s_.pre: s_.pre()
        if s_.aread == 'x':
            lg.issue(f'ds_read_b128 {vr(s_.act,4)}, v{vXa+s_.s} offset:{apos(s_.aslot)}')
        elif s_.aread == 'p':
            lg.issue(f'ds_read_b128 {vr(s_.act,4)}, v{vP} offset:{apos(s_.aslot)+s_.s*2048}')
        off = wpos(s_.w) + s_.s * 2048
        b0, b1 = (vWn0, vWn1) if s_.order == 'n' else (vWt0, vWt1)
        base = b0
        if off >= 65536: off -= 65536; base = b1
        d = 512 if s_.order == 'n' else 1024
        f = vWf + (n % 3) * 4
        lg.issue(f'ds_read_b64_tr_b16 {vr(f,2)}, v{base} offset:{off}')
        seqs[n] = lg.issue(f'ds_read_b64_tr_b16 {vr(f+2,2)}, v{base} offset:{off+d}')
        if s_.lastw: last_read[('W', s_.w)] = seqs[n]
        if s_.lasta: last_read[('A', s_.aslot)] = seqs[n]
    for n in range(min(PD, len(steps))): reads(n)
    for n, s_ in enumerate(steps):
        fl = list(fill.get(n, []))
        lg.wait(seqs[n])
        f = vWf + (n % 3) * 4
        c = s_.c0 if s_.c0 is not None else vr(s_.acc, 16)
        A, B = (vr(f, 4), vr(s_.act, 4)) if not s_.swap else (vr(s_.act, 4), vr(f, 4))
        if s_.post: s_.post()
        if s_.cs is not None:
            a(f'v_mfma_f32_16x16x32_bf16 {vr(s_.cs,4)}, {vr(vSel,4)}, {vr(f,4)}, {"0" if s_.cs0 else vr(s_.cs,4)}')
            for _ in range(2):
                if fl and isinstance(fl[0], str) and fl[0].startswith('v_') and not fl[0].startswith('v_mfma'): emit(fl.pop(0))
        a(f'v_mfma_f32_32x32x16_bf16 {vr(s_.acc,16)}, {A}, {B}, {c}')
        if n + PD < len(steps): reads(n + PD)
        for x in fl: emit(x)

def spread(items, start, end):
    d = {}
    n = end - start
    for i, x in enumerate(items):
        d.setdefault(start + i * n // len(items), []).append(x)
    return d
def merge(*ds):
    o = {}
    for d in ds:
        for k, v in d.items(): o.setdefault(k, []).extend(v)
    return o
def pack(acc, dst): return [f'v_cvt_pk_bf16_f32 v{dst+i}, v{acc+2*i}, v{acc+2*i+1}' for i in range(8)]
def store2(pk, voff, s0, s1=None, d=2048):
    return [f'buffer_store_dwordx4 {vr(pk,4)}, v{voff}, {sr(sWSD,4)}, s{s0} offen sc1',
            f'buffer_store_dwordx4 {vr(pk+4,4)}, v{voff}, {sr(sWSD,4)}, s{s0 if s1 is None else s1} offen offset:{d} sc1']
def pubat(stage): return lambda: want_pub(stage)

def ln_consts(sum_, sq, vCA, vCB, vIR, vNM, t):
    return f'''v_mul_f32 v{t}, {f32(-1.0/512)}, v{sum_}
    v_mul_f32 v{t+1}, v{t}, v{t}
    v_mov_b32 v{t+2}, {f32(1.0/512)}
    v_fma_f32 v{t+1}, v{sq}, v{t+2}, -v{t+1}
    v_max_f32 v{t+1}, 0, v{t+1}
    v_add_f32 v{t+1}, {f32(1e-5)}, v{t+1}
    v_rsq_f32 v{t+2}, v{t+1}
    v_cvt_pk_bf16_f32 v{vNM}, v{t}, v{t}
    v_mul_f32 v{vIR}, v{t+1}, v{t+2}
    v_mul_f32 v{vCA}, {f32(-C1)}, v{t+2}
    v_mul_f32 v{t+1}, v{t+2}, v{t+2}
    v_mul_f32 v{t+1}, {f32(0.044715)}, v{t+1}
    v_mul_f32 v{vCB}, v{vCA}, v{t+1}
    v_lshlrev_b32 v{t+1}, 16, v{vNM}
    v_sub_f32 v{t+1}, v{t}, v{t+1}
    v_cvt_pk_bf16_f32 v{t+1}, v{t+1}, v{t+1}
    v_cndmask_b32 v{vNM}, v{vNM}, v{t+1}, {sr(sHI,2)}'''.replace('    ', '').split('\n')
def cs_fix(cs, vCSA, vNM, acc, t):
    return [f'v_cvt_pk_bf16_f32 v{t}, v{cs}, v{cs}',
            f'v_lshlrev_b32 v{t}, 16, v{t}',
            f'v_sub_f32 v{t}, v{cs}, v{t}',
            f'v_cvt_pk_bf16_f32 v{vCSA}, v{cs}, v{t}',
            f'v_mfma_f32_32x32x16_bf16 {vr(acc,16)}, {vr(vCSA,4)}, {vr(vNM,4)}, {vr(acc,16)}']
def gelu_pk(acc, vCA, vCB, vIR, tmp, dst):
    o = []
    for i in range(0, 16, 2): o.append(f'v_pk_mul_f32 {vr(tmp+i,2)}, {vr(acc+i,2)}, {vr(acc+i,2)}')
    for i in range(0, 16, 2): o.append(f'v_pk_fma_f32 {vr(tmp+i,2)}, {vr(tmp+i,2)}, {vr(vCB,2)}, {vr(vCA,2)} op_sel_hi:[1,0,0]')
    for i in range(0, 16, 2): o.append(f'v_pk_mul_f32 {vr(tmp+i,2)}, {vr(tmp+i,2)}, {vr(acc+i,2)}')
    for i in range(16): o.append(f'v_exp_f32 v{tmp+i}, v{tmp+i}')
    for i in range(0, 16, 2): o.append(f'v_pk_fma_f32 {vr(tmp+i,2)}, {vr(tmp+i,2)}, {vr(vIR,2)}, {vr(vIR,2)} op_sel_hi:[1,0,0]')
    for i in range(16): o.append(f'v_rcp_f32 v{tmp+i}, v{tmp+i}')
    for i in range(0, 16, 2): o.append(f'v_pk_mul_f32 {vr(tmp+i,2)}, {vr(tmp+i,2)}, {vr(acc+i,2)}')
    for i in range(0, 16, 2): o.append(f'v_cvt_pk_bf16_f32 v{dst+i//2}, v{tmp+i}, v{tmp+i+1}')
    return o
def gelu_sc(acc, vCA, vCB, vIR, tmp, dst):
    o = []
    def chain(e, t):
        return [f'v_mul_f32 v{t}, v{acc+e}, v{acc+e}', f'v_fma_f32 v{t}, v{t}, v{vCB}, v{vCA}', f'v_mul_f32 v{t}, v{t}, v{acc+e}',
                f'v_exp_f32 v{t}, v{t}', f'v_fma_f32 v{t}, v{t}, v{vIR}, v{vIR}', f'v_rcp_f32 v{t}, v{t}', f'v_mul_f32 v{t}, v{t}, v{acc+e}']
    for g in range(0, 16, 2):
        t = tmp + (g & 2)
        c0, c1 = chain(g, t), chain(g + 1, t + 1)
        for x, y in zip(c0, c1): o += [x, y]
        o.append(f'v_cvt_pk_bf16_f32 v{dst+g//2}, v{t}, v{t+1}')
    return o

vCS, vSG, vSQ = 64, 68, 72
steps = []
for n in range(32):
    j, s = divmod(n, 4)
    P = vPan + 4 * n
    G = vL + (j & 1) * 16
    def pre(j=j, s=s, G=G):
        if s == 0:
            a(f's_mov_b64 exec, {sr(sGM,2)}')
            for q in range(4): lg.issue(f'ds_read_b128 {vr(G+4*q,4)}, v{vGa} offset:{(4*j+q)*32}')
            a('s_mov_b64 exec, -1')
    def post(n=n, s=s, P=P, G=G):
        z = n == 0
        a(f'v_mfma_f32_4x4x4_16b_bf16 {vr(vSQ,4)}, {vr(P,2)}, {vr(P,2)}, {"0" if z else vr(vSQ,4)}')
        a(f'v_mfma_f32_4x4x4_16b_bf16 {vr(vSQ+4,4)}, {vr(P+2,2)}, {vr(P+2,2)}, {"0" if z else vr(vSQ+4,4)}')
        a(f'v_mfma_f32_16x16x32_bf16 {vr(vSG,4)}, {vr(G+4*s,4)}, {vr(P,4)}, {"0" if z else vr(vSG,4)}')
    steps.append(Step(W_1 + j, s, 'n', vA0, P, aslot=A_X + j, aread='x', c0='0' if n == 0 else None, pre=pre, post=post, lastw=(s == 3), cs=vCS, cs0=(n == 0), dur=opt('DB1', 360)))
stamp('setup')
RES = vAB + 8
cA, cB, cI, cNM, cCS, cT = vL, vL + 2, vL + 4, vL + 8, vL + 12, vAf + 9
def res_reads():
    for j in range(4): q = lg.issue(f'ds_read_b64 {vr(RES+2*j,2)}, v{vRa+j}')
    for j in range(8): last_read[('A', A_X + j)] = q
zer = [f'v_mov_b32 v{r}, 0' for r in (cNM+1, cNM+2, cNM+3, cCS+1, cCS+2, cCS+3)]
run_steps(steps, merge({0: [st('s0')], 15: [st('s15')], 29: [res_reads]}, spread(zer, 29, 32)))
stamp('B1 loop')
for i in range(4): a(f'v_add_f32 v{vSQ+i}, v{vSQ+i}, v{vSQ+4+i}')
for i, m in ((1, sQ1), (2, sQ2), (3, sQ3)): a(f'v_cndmask_b32 v{vSQ}, v{vSQ}, v{vSQ+i}, {sr(m,2)}')
a(f'''
v_mov_b32 v{vSQ+1}, v{vSQ}
v_mul_f32 v{vG}, {f32(-LOG2E)}, v{vSG+1}
v_exp_f32 v{vG}, v{vG}
v_permlane32_swap_b32 v{vSQ}, v{vSQ+1}
v_add_f32 v{vSQ}, v{vSQ}, v{vSQ+1}
''')
lc = ln_consts(vSG, vSQ, cA, cB, cI, cNM, cT)
for x in [lc[0], lc[7]] + [y.replace(f'v{cT+1}', f'v{cT+2}') for y in lc[13:17]]: a(x)
for x in cs_fix(vCS, cCS, cNM, vA0, cT + 2): a(x)
lg.all()
tick(name='B1e', dur=600)
for x in lc[1:7] + [f'v_add_f32 v{vG}, 1.0, v{vG}'] + lc[8:13] + [f'v_rcp_f32 v{vG}, v{vG}']: a(x)
PK = vAf
for x in gelu_pk(vA0, cA, cB, cI, vA1, PK): a(x)
for i in range(8): a(f'v_cndmask_b32 v{PK+i}, v{PK+i}, 0, {sr(sZM,2)}')
for x in store2(PK, vStH, sOH): a(x)
stamp('B1 epi')

steps = []
for p, (w0, acc, swap) in enumerate(((W_K, vA0, False), (W_V, vA1, True), (W_Q, vA0, False))):
    for n in range(32):
        j, s = divmod(n, 4)
        steps.append(Step(w0 + j, s, 'n', acc, vPan + 4 * n, swap=swap, c0='0' if n == 0 else None, lastw=(s == 3)))
unres = []
for j in range(8):
    unres += [f'v_lshlrev_b32 v{vAB+2*j}, 16, v{RES+j}', f'v_and_b32 v{vAB+2*j+1}, 0xffff0000, v{RES+j}']
def stream_steps(w0, a0, nsteps, acc, c0=None, phase=0):
    o = []
    for n in range(nsteps):
        j, s = divmod(n, 4)
        last = s == 3 or n == nsteps - 1
        o.append(Step(w0 + j, s, 't', acc, vAf + ((n + phase) % 3) * 4, aslot=a0 + j, aread='p', c0=c0 if n == 0 else None, lastw=last, lasta=last))
    return o
PKS = vL
vK, vV = 128, 164
vones = [f'v_mov_b32 v{vV+1}, 0x3f803f80', f'v_cndmask_b32 v{vV}, v{vV+1}, 0, {sr(sVM,2)}'] + [f'v_mov_b32 v{vV+i}, v{vV}' for i in range(1, 72)]
qfin = [f'v_mul_f32 v{vA0+i}, {f32(QSCALE)}, v{vA0+i}' for i in range(16)] + pack(vA0, vQl)
sta = [f'v_and_b32 v{vX0}, 1023, v{vP}', f'v_lshrrev_b32 v{vX0}, 1, v{vX0}', f'v_mov_b32 v{vX1}, 0x3f803f80']
steps += stream_steps(W_2, A_H, 32, vAB, phase=96)
fill = merge(spread(unres + sta, 2, 20), {31: [st('K')], 63: [st('V')], 95: [st('Q')]},
             {opt('PUB1', 24): [pubat(1)]},
             spread(pack(vA0, PKS) + store2(PKS, vKr, sOK0, sOK1, 0), 35, 41),
             spread(pack(vA1, PKS) + store2(PKS, vStV, sOK0, None, 512), 67, 73),
             {opt('PUB2', 96): [pubat(2)]},
             spread(qfin, 99, 111), spread(vones[:34], 111, 128))
run_steps(steps, fill)
stamp('B2 loop')
for x in pack(vAB, PK): a(x)
for x in store2(PK, vP, sOX1): a(x)
for i in range(8):
    a(f'v_dot2_f32_bf16 v{vA0}, v{PK+i}, v{vX1}, {"0" if i==0 else "v%d"%vA0}')
    a(f'v_dot2_f32_bf16 v{vA0+1}, v{PK+i}, v{PK+i}, {"0" if i==0 else "v%d"%(vA0+1)}')
a(f'''
v_mov_b32 v{vA0+2}, v{vA0}
v_mov_b32 v{vA0+3}, v{vA0+1}
v_permlane32_swap_b32 v{vA0}, v{vA0+2}
v_permlane32_swap_b32 v{vA0+1}, v{vA0+3}
v_add_f32 v{vA0}, v{vA0}, v{vA0+2}
v_add_f32 v{vA0+1}, v{vA0+1}, v{vA0+3}
buffer_store_dwordx2 {vr(vA0,2)}, v{vX0}, {sr(sWSD,4)}, s{sOST} offen sc1
''')
tick(name='B2e', dur=300)
stamp('B2 epi')

vCB_, vM8 = 24, 40
vS0, vS1, vMG, vO = 236, 96, 64, 48
for x in vones[34:]: a(x)
a(f'v_mov_b32 v{vMG+1}, 0xffff0000')
a(f'v_mov_b32 v{vMG+2}, 0xffff')
for i in range(8):
    a(f'v_cndmask_b32 v{vM8+i}, 0, v{vMG+2}, {sr(sMASK+4*i,2)}')
    a(f'v_cndmask_b32 v{vMG}, 0, v{vMG+1}, {sr(sMASK+4*i+2,2)}')
    a(f'v_or_b32 v{vM8+i}, v{vM8+i}, v{vMG}')
a(f'v_add_u32 v{vX2}, 61440, v{vKr}')
a(f'v_and_b32 v{vX2}, 0xffff, v{vX2}')
a(f'v_add_u32 v{vX3}, 61440, v{vVr}')
a(f'v_and_b32 v{vX3}, 0xffff, v{vX3}')
Kf = lambda j: vK + 4 * j
Vf = lambda j, b: vV + 8 * j + 4 * b
def kv_addr(a0, j, plain, wrapped):
    off = (apos(a0) + 4096 * j) % 65536
    return (wrapped, 0) if off == 61440 else (plain, off)
def kv_load(a0):
    tick(needA=a0 + 4, name=f'KV{a0}', dur=600)
    for j in range(9):
        r_, off = kv_addr(a0, j, vKr, vX2)
        kq = lg.issue(f'ds_read_b128 {vr(Kf(j),4)}, v{r_} offset:{off}')
    a(f's_mov_b64 exec, {sr(sVM,2)}')
    for j in [0, 8] + list(range(1, 8)):
        r_, off = kv_addr(a0, j, vVr, vX3)
        for b in range(2): q = lg.issue(f'ds_read_b128 {vr(Vf(j,b),4)}, v{r_} offset:{off+512*b}')
    a('s_mov_b64 exec, -1')
    for i in range(5): last_read[('A', a0 + i)] = q
    return kq
def set_cb(src, j0):
    a(f's_cmp_le_u32 s{sJV}, {j0}')
    a(f's_cselect_b64 vcc, -1, 0')
    a(f'v_mov_b32 v{vCB_}, s{sNEG}')
    a(f'v_cndmask_b32 v{vCB_}, v{vCB_}, {src}, vcc')
    for i in range(1, 16): a(f'v_mov_b32 v{vCB_+i}, v{vCB_}')
def fix_cb(j):
    l1, l2 = ool.new_label('F'), ool.new_label('G')
    a(f's_cmp_eq_u32 s{sJV}, {j}')
    a(f's_cbranch_scc1 {l1}')
    a(f'{l2}:')
    ool(f'{l1}:')
    ool(f's_call_b64 {sr(sRET,2)}, L_fixcb')
    ool(f's_branch {l2}')
vZ, vMx, vMy = vT + 3, vT, vT + 1
for t in range(2):
    Q = vr(vQl + 4 * t, 4)
    a(f'v_mov_b32 v{vZ}, 0')
    set_cb(f'v{vZ}', 0)
    if t == 0:
        tick(name='P2', dur=700)
        want_pub(3)
        tick(name='P3', dur=300)
    kq = kv_load(A_KE if t == 0 else A_KO)
    stamp(f'kv{t}')
    lg.wait(kq)
    bufs = [vS0, vS1, vO]
    a(f'v_mfma_f32_32x32x16_bf16 {vr(vMG,16)}, {vr(Kf(0),4)}, {Q}, {vr(vCB_,16)}')
    js = list(range(1, 9))
    def qk(i):
        fix_cb(js[i])
        a(f'v_mfma_f32_32x32x16_bf16 {vr(bufs[i%3],16)}, {vr(Kf(js[i]),4)}, {Q}, {vr(vCB_,16)}')
    qk(0); qk(1)
    for i in range(8):
        if i + 2 < 8: qk(i + 2)
        b = bufs[i % 3]
        if i == 7:
            for r in range(16): a(f'v_cndmask_b32 v{vMG+r}, v{b+r}, v{vMG+r}, {sr(sMASK+2*r,2)}')
            b = vMG
        for q in range(0, 16, 4):
            if i == 0 and q == 0:
                a(f'v_max_f32 v{vMx}, v{b}, v{b+1}')
                a(f'v_max_f32 v{vMy}, v{b+2}, v{b+3}')
            else:
                a(f'v_max3_f32 v{vMx}, v{b+q}, v{b+q+1}, v{vMx}')
                a(f'v_max3_f32 v{vMy}, v{b+q+2}, v{b+q+3}, v{vMy}')
    a(f'''
    v_max_f32 v{vMx}, v{vMx}, v{vMy}
    v_mov_b32 v{vMy}, v{vMx}
    ''')
    lg.all()
    tick(name=f'rel{t}', dur=1900)
    a(f'''
    v_permlane32_swap_b32 v{vMx}, v{vMy}
    v_max_f32 v{vMx}, v{vMx}, v{vMy}
    v_sub_f32 v{vZ}, 0, v{vMx}
    ''')
    set_cb(f'v{vZ}', 1)
    bufs = [vS0, vS1]
    full = js[:7]
    def qk2(i):
        if i > 0: fix_cb(full[i])
        a(f'v_mfma_f32_32x32x16_bf16 {vr(bufs[i%2],16)}, {vr(Kf(full[i]),4)}, {Q}, {vr(vCB_,16)}')
    qk2(0)
    for r in range(16): a(f'v_add_f32 v{vMG+r}, v{vMG+r}, v{vZ}')
    for r in range(16): a(f'v_exp_f32 v{vMG+r}, v{vMG+r}')
    for i in range(8): a(f'v_cvt_pk_bf16_f32 v{vMG+i}, v{vMG+2*i}, v{vMG+2*i+1}')
    for i in range(8): a(f'v_and_b32 v{vMG+8+i}, v{vMG+i}, v{vM8+i}')
    pend = [f'v_mfma_f32_32x32x16_bf16 {vr(vO,16)}, {vr(Vf(0,0),4)}, {vr(vMG+8,4)}, 0',
            f'v_mfma_f32_32x32x16_bf16 {vr(vO,16)}, {vr(Vf(0,1),4)}, {vr(vMG+12,4)}, {vr(vO,16)}',
            f'v_mfma_f32_32x32x16_bf16 {vr(vO,16)}, {vr(Vf(8,0),4)}, {vr(vMG,4)}, {vr(vO,16)}',
            f'v_mfma_f32_32x32x16_bf16 {vr(vO,16)}, {vr(Vf(8,1),4)}, {vr(vMG+4,4)}, {vr(vO,16)}']
    for i in range(8): a(f'v_xor_b32 v{vMG+i}, v{vMG+i}, v{vMG+8+i}')
    for i in range(7):
        b = bufs[i % 2]
        slots = {}
        k = 0
        for x in pend:
            slots.setdefault(1 + 3 * k, []).append(x); k += 1
        for r in range(16):
            a(f'v_exp_f32 v{b+r}, v{b+r}')
            for x in slots.get(r, []): a(x)
            if r == 1 + 3 * k and i + 1 < 7: qk2(i + 1)
        for q in range(8): a(f'v_cvt_pk_bf16_f32 v{b+q}, v{b+2*q}, v{b+2*q+1}')
        pend = [f'v_mfma_f32_32x32x16_bf16 {vr(vO,16)}, {vr(Vf(full[i],0),4)}, {vr(b,4)}, {vr(vO,16)}',
                f'v_mfma_f32_32x32x16_bf16 {vr(vO,16)}, {vr(Vf(full[i],1),4)}, {vr(b+4,4)}, {vr(vO,16)}']
    for x in pend: a(x)
    a(f'v_rcp_f32 v{vO+8}, v{vO+8}')
    for i in range(8): a(f'v_mul_f32 v{vO+i}, v{vO+i}, v{vO+8}')
    for i in range(4): a(f'v_cvt_pk_bf16_f32 v{112+4*t+i}, v{vO+2*i}, v{vO+2*i+1}')
    a(f'buffer_store_dwordx4 {vr(112+4*t,4)}, v{vP}, {sr(sWSD,4)}, s{sOO} offen offset:{2048*t} sc1')
    stamp(f'attn{t}')

cA, cB, cI, cNM, cCS, cT = 96, 98, 100, 104, 108, 16
csA = [120, 124]
PK3 = 112
def b3_steps(p, acc):
    o = []
    for n in range(32):
        j, s = divmod(n, 4)
        if p == 0:
            o.append(Step(W_3 + j, s, 't', acc, vPan + 4 * n, aslot=A_X1 + j, aread='p', c0='0' if n == 0 else None, lastw=(s == 3), lasta=(s == 3), cs=csA[0], cs0=(n == 0),
                          xa=A_ST if j == 7 else None, dur=opt('DB3', 220)))
        else:
            o.append(Step(W_3 + 8 * p + j, s, 't', acc, vPan + 4 * n, c0='0' if n == 0 else None, lastw=(s == 3), cs=csA[p & 1], cs0=(n == 0), dur=opt('DB3', 220)))
    return o
setup3 = [f'v_mov_b32 v{r}, 0' for r in (cNM+1, cNM+2, cNM+3, cCS+1, cCS+2, cCS+3)] + \
         [f'v_lshrrev_b32 v{vX1}, 10, v{vP}', f'v_lshl_add_u32 v{vX0}, v{vX1}, 12, v{vX0}']
st_seq = [0]
def stats_load():
    for i in range(8): st_seq[0] = lg.issue(f'ds_read_b64 {vr(vA1+2*i,2)}, v{vX0} offset:{apos(A_ST)+512*i}')
    last_read[('A', A_ST)] = st_seq[0]
sfin = [lambda: lg.wait(st_seq[0])]
for i in range(1, 8):
    sfin += [f'v_add_f32 v{vA1}, v{vA1}, v{vA1+2*i}', f'v_add_f32 v{vA1+1}, v{vA1+1}, v{vA1+2*i+1}']
sfin += [f'v_mov_b32 v{vX2}, v{vA1}', f'v_mov_b32 v{vX3}, v{vA1+1}', f'v_permlane32_swap_b32 v{vA1}, v{vX2}', f'v_permlane32_swap_b32 v{vA1+1}, v{vX3}',
         f'v_add_f32 v{vX2}, v{vA1}, v{vX2}', f'v_add_f32 v{vX3}, v{vA1+1}, v{vX3}']
def h3_epi(p, acc, s0):
    nxt = [f's_add_u32 s{sOH3}, s{sOH3}, 65536']
    if p == 1: nxt += [f's_cmp_ge_u32 s{sC}, 6', f's_cselect_b32 s{sOH3}, {WS_REC}, s{sOH3}']
    return merge(spread(cs_fix(csA[p & 1], cCS, cNM, acc, cT), s0, s0 + 2), spread(gelu_sc(acc, cA, cB, cI, cT, PK3), s0 + 5, s0 + 27),
                 {s0 + 27: store2(PK3, vP, sOH3) + [lambda: a('\n'.join(nxt))]})
run_steps(b3_steps(0, vA0) + b3_steps(1, vA1) + b3_steps(2, vA0),
          merge(spread(setup3, 0, 8), {opt('PUB4', 16): [pubat(4)]}, {25: [stats_load]}, spread(sfin, 27, 32), {31: [st('B3 p0')], 63: [st('B3 p1')]},
                spread(ln_consts(vX2, vX3, cA, cB, cI, cNM, cT), 32, 35), h3_epi(0, vA0, 35), {opt('PUB5', 80): [pubat(5)]}, h3_epi(1, vA1, 65)))
stamp('B3 p2')
for x in cs_fix(csA[0], cCS, cNM, vA0, cT): a(x)
tick(name='B3e', dur=450)
for x in gelu_pk(vA0, cA, cB, cI, vPan, vPan + 16): a(x)
want_pub(6)
tick(name='B3f', dur=50)
for x in store2(vPan + 16, vP, sOH3): a(x)
stamp('B3 epi')
fin = [f'v_and_b32 v{vA0}, 511, v{vP}', f'v_lshlrev_b32 v{vA0}, 6, v{vA0}', f'v_lshrrev_b32 v{vA0+1}, 10, v{vP}', f'v_lshl_add_u32 v{vA0}, v{vA0+1}, 4, v{vA0}',
       f'v_sub_f32 v{vA0+2}, 1.0, v{vG}'] + [f'v_mul_f32 v{vA1+i}, v{vG}, v{vA1+i}' for i in range(16)]
steps = stream_steps(W_O, A_O, 32, vA1, c0='0') + stream_steps(W_4, A_H3, 86, vAB, phase=32)
run_steps(steps, merge({opt('PUB7', 20): [pubat(7)], 31: [st('A3')], 63: [st('B40')], 95: [st('B41')]}, spread(fin, 40, 68)))
stamp('A3B4')
for i in range(0, 16, 2): a(f'v_pk_fma_f32 {vr(vA1+i,2)}, {vr(vAB+i,2)}, {vr(vA0+2,2)}, {vr(vA1+i,2)} op_sel_hi:[1,0,1]')
for x in pack(vA1, PK): a(x)
a(f'''
v_permlane32_swap_b32 v{PK}, v{PK+2}
v_permlane32_swap_b32 v{PK+1}, v{PK+3}
v_permlane32_swap_b32 v{PK+4}, v{PK+6}
v_permlane32_swap_b32 v{PK+5}, v{PK+7}
buffer_store_dwordx4 {vr(PK,4)}, v{vA0}, {sr(sSRD,4)}, s{sOOUT} offen
buffer_store_dwordx4 {vr(PK+4,4)}, v{vA0}, {sr(sSRD,4)}, s{sOOUT} offen offset:32
''')
dbg_dump()
names = {'c': list(stamp_names)}
a('L_end:')
a('s_endpgm')
a('L_fixcb:')
a('s_nop 7')
for i in range(16): a(f'v_mov_b32 v{vCB_+i}, v{vZ}')
a(f's_setpc_b64 {sr(sRET,2)}')
a.ins += ool.ins

NT = len(ticks)
tname = {t['name']: i for i, t in enumerate(ticks)}
def free_tick(kind, idx, ring):
    if idx < ring: return -1
    for i, t in enumerate(ticks):
        if (kind, idx - ring) in t['free']: return i
    raise Exception((kind, idx))
def use_tick(kind, idx):
    for i, t in enumerate(ticks):
        n = t['need' + kind]
        if n is not None and n >= idx: return i
    raise Exception((kind, idx))
pub_tick = {t['pub']: i for i, t in enumerate(ticks) if t['pub']}

grp_first = {A_H: 1, A_KE: 2, A_X1: 3, A_O: 4, A_H3: 5, A_H3 + 8: 6, A_H3 + 16: 7}
gate_tick = {1: use_tick('A', A_H) - opt('LA1', 7), 2: tname['P2'], 3: tname[{0: 'KV21', 1: 'rel1'}[opt('G3', 0)]],
             4: use_tick('A', A_O) - opt('LA4', 12), 5: use_tick('A', A_H3) - opt('LA5', 6),
             6: use_tick('A', A_H3 + 8) - opt('LA6', 6), 7: use_tick('A', A_H3 + 16) - opt('LA7', 6)}
for g, t in gate_tick.items(): assert t > pub_tick[g], (g, t, pub_tick[g])
def stage_of(i):
    st_ = 0
    for f, g in grp_first.items():
        if i >= f: st_ = g
    return st_
tstart = [0]
for t in ticks: tstart.append(tstart[-1] + t['dur'])
cost = lambda k, i: 190 if k == 'W' and W_3 <= i < W_O else 128
LEAD = opt('LEAD', 700)
plan = {}
nxt = {'W': 0, 'A': 0}
END = {'W': W_END, 'A': A_END}
RING = {'W': NW, 'A': NA}
bud = 0
for t in range(-1, NT - 1):
    bud = min(bud, 0) + (opt('B0', 8) * 128 if t < 0 else ticks[t]['dur'] * opt('BUD', 100) // 100)
    while True:
        cands = []
        for k in 'AW':
            i = nxt[k]
            if i >= END[k] or free_tick(k, i, RING[k]) > t: continue
            if k == 'A' and stage_of(i) and gate_tick[stage_of(i)] > t: continue
            cands.append((use_tick(k, i), k, i))
        if not cands: break
        u, k, i = min(cands)
        must = u == t + 1 or (t >= 0 and tstart[u] - tstart[t + 1] < LEAD)
        if bud < cost(k, i) // 2 and not must: break
        plan.setdefault(t, []).append((k, i)); nxt[k] += 1; bud -= cost(k, i)
assert nxt == END, nxt

sOFF, sB3, sHW, sHA, sNEED = 51, 52, 53, 54, 55
sCH8 = 60
sAB = 68
sSRA = 80
a('L_load:')
a(f's_setprio {opt("PL", 3)}')
vS = {3072: 24, 1024: 28, 2752: 32}
vXo, vLin, vKVo = 10, 14, 36
a(f"""
s_sub_u32 s{sHA}, s{sWV}, 4
s_lshl_b32 s{sT0}, s{sHA}, 5
v_lshrrev_b32 v1, 3, v0
v_add_u32 v1, s{sT0}, v1
v_and_b32 v3, 7, v0
v_lshrrev_b32 v2, 4, v0
v_xor_b32 v2, v2, v3
v_lshlrev_b32 v4, 10, v1
v_lshl_add_u32 v{vXo}, v2, 4, v4
v_xor_b32 v2, 4, v2
v_lshl_add_u32 v{vXo+1}, v2, 4, v4
v_add_u32 v{vXo+1}, 7168, v{vXo+1}
v_add_u32 v{vXo+2}, 14336, v{vXo}
v_add_u32 v{vXo+3}, 14336, v{vXo+1}
v_bfe_u32 v2, v0, 4, 1
v_lshlrev_b32 v2, 2, v2
v_xor_b32 v2, v2, v3
v_lshlrev_b32 v2, 4, v2
s_lshl_b32 s{sT0}, s{sC}, 7
v_add_u32 v2, s{sT0}, v2
v_add_u32 v28, v4, v2
v_add_u32 v29, 7168, v28
v_add_u32 v30, 7168, v29
v_add_u32 v31, 7168, v30
s_lshl_b32 s{sHA}, s{sHA}, 12
s_add_u32 s{sHW}, s{sHA}, {WBASE}
s_lshl_b32 s{sAB}, s{sR}, 16
s_mov_b32 s{sSRA+2}, {2048*1024}
s_mov_b32 s{sSRA+3}, 0x20000
s_lshl_b32 s{sT0}, s{sROT}, 7
v_lshlrev_b32 v5, 4, v0
v_add_u32 v6, s{sT0}, v5
v_and_b32 v6, 1023, v6
""")
for q in range(8):
    a(f's_add_u32 s{sCH8+q}, s{sROT}, {q}')
    a(f's_and_b32 s{sCH8+q}, s{sCH8+q}, 7')
a(f"""
s_waitcnt lgkmcnt(0)
s_mov_b32 s{sSRA}, s{sX}
s_mov_b32 s{sSRA+1}, s{sX+1}
s_mov_b32 s{sSRD}, s{sGATE}
s_mov_b32 s{sSRD+1}, s{sGATE+1}
s_mov_b32 s{sSRD+2}, 1024
s_mov_b32 m0, {GATE}
s_mov_b32 s{sWSD}, s{sWS}
s_mov_b32 s{sWSD+1}, s{sWS+1}
buffer_load_dwordx4 v6, {sr(sSRD,4)}, 0 offen lds
""")
def late_setup():
    for st_, b in ((3072, 24), (2752, 32)):
        a(f'v_mul_u32_u24 v3, {st_}, v1')
        a(f'v_add_u32 v{b}, v3, v2')
        for i in range(1, 4): a(f'v_add_u32 v{b+i}, {8*st_-1024}, v{b+i-1}')
    a(f"""
    v_add_u32 v{vLin}, s{sHA}, v5
    s_cmp_ge_u32 s{sC}, 6
    s_cselect_b32 s{sB3}, 0x200000, 0
    s_add_u32 s{sB3}, s{sB3}, 2048
    s_add_u32 s{sAB+1}, s{sAB}, {WS_H}
    s_add_u32 s{sAB+3}, s{sAB}, {WS_O}
    s_mul_i32 s{sAB+2}, s{sR}, {X1_STRIDE}
    s_add_u32 s{sAB+2}, s{sAB+2}, {WS_X1}
    s_mul_i32 s{sAB+4}, s{sR}, {H3_STRIDE}
    s_add_u32 s{sAB+4}, s{sAB+4}, {WS_H3}
    v_and_b32 v7, 512, v5
    v_mov_b32 v8, 0x80000000
    """)
    for i in range(5):
        a(f"""
        s_add_i32 s{sT1}, s{sR}, {i-4}
        s_max_i32 s{sT1}, s{sT1}, 0
        s_lshl_b32 s{sT1}, s{sT1}, 3
        s_add_u32 s{sT1}, s{sT1}, s{sC}
        s_lshl_b32 s{sT1}, s{sT1}, 14
        s_add_u32 s{sAB+5+i}, s{sT1}, {WS_KV}
        """)
        if i < 4:
            a(f"""
            s_cmp_lt_u32 s{sR}, {4-i}
            s_cselect_b64 vcc, -1, 0
            v_cndmask_b32 v{vKVo+2*i}, v{vLin}, v{7 if KDUP else 8}, vcc
            v_cndmask_b32 v{vKVo+2*i+1}, v{vLin}, v8, vcc
            """)
    dbg_start()
wdesc = []
for (ptr, size, st_, co) in ((sW1, 512*1024, 1024, 0), (sWQKV, 512*3072, 3072, 1024), (sWQKV, 512*3072, 3072, 2048), (sWQKV, 512*3072, 3072, 0),
                             (sW2, 512*1024, 1024, 0), (sW3, 512*2752, 2752, 0), (sW3, 512*2752, 2752, 1024), (sW3, 512*2752, 2752, f's{sB3}'),
                             (sWO, 512*1024, 1024, 0), (sW4, 1376*1024, 1024, 0), (sW4, 1376*1024, 1024, 512*1024)):
    for q in range(8): wdesc.append((ptr, size, st_, co, q))
for q in range(6): wdesc.append((sW4, 1376*1024, 1024, (16 + q) * 65536, None))
cur_mat = [None]
def w_issue(idx):
    ptr, size, st_, co, q = wdesc[idx]
    if cur_mat[0] != ptr:
        cur_mat[0] = ptr
        a(f's_mov_b32 s{sSRD}, s{ptr}')
        a(f's_mov_b32 s{sSRD+1}, s{ptr+1}')
        a(f's_mov_b32 s{sSRD+2}, {size}')
    a(f's_add_u32 m0, s{sHW}, {wpos(idx)}')
    if q is None: a(f's_mov_b32 s{sOFF}, {co}')
    else:
        a(f's_mul_i32 s{sOFF}, s{sCH8+q}, {64*st_}')
        if co: a(f's_add_u32 s{sOFF}, s{sOFF}, {co}')
    for i in range(4): a(f'buffer_load_dwordx4 v{vS[st_]+i}, {sr(sSRD,4)}, s{sOFF} offen offset:{1024*i} lds')
    if idx % 8 == 7: stamp(f'w{idx}')
def a_issue(idx):
    a(f's_add_u32 m0, s{sHA}, {apos(idx)}')
    srd, vo = sWSD, [vLin] * 4
    def rot(base, q, extra=0):
        a(f's_lshl_b32 s{sOFF}, s{sCH8+q}, 13')
        a(f's_add_u32 s{sOFF}, s{sOFF}, s{base}')
        if extra: a(f's_add_u32 s{sOFF}, s{sOFF}, {extra}')
    if idx < A_H:
        a(f's_lshl_b32 s{sOFF}, s{sCH8+idx}, 7')
        a(f's_add_u32 s{sOFF}, s{sOFF}, s{sAB}')
        srd, vo = sSRA, [vXo + i for i in range(4)]
    elif idx < A_KE: rot(sAB + 1, idx - A_H)
    elif idx < A_X1:
        p, i = divmod(idx - A_KE, 5)
        a(f's_add_u32 s{sOFF}, s{sAB+5+i}, {8192*p}')
        if i < 4: vo = [vKVo + 2*i] * 2 + [vKVo + 2*i + 1] * 2
    elif idx < A_ST: rot(sAB + 2, idx - A_X1)
    elif idx == A_ST: a(f's_add_u32 s{sOFF}, s{sAB+2}, 65536')
    elif idx < A_H3: rot(sAB + 3, idx - A_O)
    elif idx < A_H3 + 16: rot(sAB + 4, (idx - A_H3) % 8, 65536 * ((idx - A_H3) // 8))
    else: a(f's_add_u32 s{sOFF}, s{sAB+4}, {8192*(idx-A_H3)}')
    for i in range(4): a(f'buffer_load_dwordx4 v{vo[i]}, {sr(srd,4)}, s{sOFF} offen offset:{1024*i} sc1 lds')
    if idx in (15, 20, 25, 33, 42, 50, 58, 64): stamp(f'a{idx}')
issued = []
landed = -1
for t in range(-1, NT - 1):
    for k, i in plan.get(t, []):
        (w_issue if k == 'W' else a_issue)(i); issued.append((k, i))
    if t == -1: late_setup()
    pos = -1
    for k in 'AW':
        need = ticks[t + 1]['need' + k]
        if need is not None: pos = max(pos, issued.index((k, need)))
    if pos > landed:
        kk = min(len(issued) - 1 - pos, 15)
        a(f's_waitcnt vmcnt({kk*4})')
        landed = len(issued) - 1 - kk
    a('s_barrier')
dbg_dump()
names['w'] = list(stamp_names)
a('s_endpgm')

a(f"""
L_aux:
s_getpc_b64 s[56:57]
L_pc:
s_sub_u32 s56, s56, L_pc-{NAME}_kernel
s_subb_u32 s57, s57, 0
s_lshr_b32 s58, s2, 3
s_lshl_b32 s58, s58, 11
v_lshlrev_b32 v4, 4, v0
v_add_u32 v3, s58, v4
v_min_u32 v5, L_last-{NAME}_kernel-16, v3
global_load_dwordx4 v[32:35], v5, s[56:57]
v_add_u32 v3, 1024, v3
v_min_u32 v5, L_last-{NAME}_kernel-16, v3
global_load_dwordx4 v[36:39], v5, s[56:57]
s_endpgm
""")

WS_MB = 0x1300000
sFV, sFK = 68, 84
sMB, sKO = 56, 60
a(f"""
L_flag:
s_setprio {opt("PL", 3)}
s_bitcmp1_b32 s{sC}, 1
s_cselect_b32 s{sT0}, -1, 1
s_add_u32 s{sT0}, s{sT0}, s{sR}
s_and_b32 s{sT0}, s{sT0}, 31
s_lshl_b32 s{sT0}, s{sT0}, 15
s_add_u32 s{sT0}, s{sT0}, {1024 - 8*4096 + (1<<32)}
s_lshl_b32 s{sT1}, s{sR}, 15
v_mov_b32 v1, s{sT0}
v_mov_b32 v2, s{sT1}
v_cmp_gt_u32 vcc, 8, v0
v_cndmask_b32 v1, v1, v2, vcc
v_lshl_add_u32 v7, v0, 12, v1
s_lshl_b32 s{sT2}, s{sC}, 7
s_add_u32 s{sT2}, s{sT2}, {WS_MB}
v_add_u32 v7, s{sT2}, v7
s_lshl_b32 s{sT2}, s{sC}, 12
s_add_u32 s{sT1}, s{sT1}, s{sT2}
s_add_u32 s{sT1}, s{sT1}, {WS_MB}
v_mul_u32_u24 v6, {32768 - 128}, v0
v_add_u32 v6, s{sT1}, v6
v_add_u32 v6, {20*128}, v6
v_lshrrev_b32 v8, 1, v0
v_lshlrev_b32 v8, 15, v8
v_and_b32 v9, 1, v0
v_lshl_add_u32 v8, v9, 9, v8
v_add_u32 v8, {WS_MB}, v8
""")
for i in range(4):
    a(f's_cmp_lt_u32 s{sR}, {4-i}')
    a(f's_cselect_b32 s{sKO+i}, {20-16-i}, 0')
    a(f's_add_u32 s{sKO+i}, s{sKO+i}, {16+i}')
    a(f's_lshl_b32 s{sKO+i}, s{sKO+i}, 7')
a('s_waitcnt lgkmcnt(0)')
dbg_start()
a(f"""
s_load_dword s{sE}, {sr(sWS,2)}, {WS_E}
s_mov_b32 s{sWSD}, s{sWS}
s_mov_b32 s{sWSD+1}, s{sWS+1}
s_add_u32 s{sMB}, s{sWS}, s{sT1}
s_addc_u32 s{sMB+1}, s{sWS+1}, 0
s_waitcnt lgkmcnt(0)
""")
make_tag()
for q in range(20): a(f's_mov_b32 s{sFV+q}, s{sTAG}')
a(f'v_mov_b32 v17, s{sTAG}')
def poll(g):
    if g == 2: return [f's_load_dword s{sFK+i}, {sr(sMB,2)}, s{sKO+i} glc' for i in range(4)]
    return [f's_load_dword s{sFV+q}, {sr(sMB,2)}, {128*q} glc' for q in range(16 if g == 1 else 8)]
def regs(g):
    if g == 2: return [sFK + i for i in range(4)]
    return [sFV + q for q in range(16 if g == 1 else 8)]
PRE = opt('PRE', 900)
gate_at = {t: g for g, t in gate_tick.items()}
assert len(gate_at) == 7
for i, t in enumerate(ticks):
    if i in gate_at:
        g = gate_at[i]
        l1, l2 = a.new_label('P'), a.new_label('P')
        a(f's_add_u32 s{sNEED}, s{sTAG}, {g}')
        a(f'{l1}:')
        for k, sv in enumerate(regs(g)):
            a(f's_sub_u32 s{sT0 + (1 if k else 0)}, s{sv}, s{sNEED}')
            if k: a(f's_max_u32 s{sT0}, s{sT0}, s{sT1}')
        a(f's_cmp_lt_u32 s{sT0}, {8-g}')
        a(f's_cbranch_scc1 {l2}')
        for x in poll(g): a(x)
        a(f"""
        s_sub_u32 s{sTO}, s{sTO}, 1
        s_cbranch_scc1 L_end
        s_waitcnt lgkmcnt(0)
        s_branch {l1}
        {l2}:
        """)
        stamp(f'g{g}')
    if t['pub']:
        a('s_mov_b64 exec, -1')
        a(f'v_add_u32 v17, 1, v17')
        a(f's_mov_b64 exec, {({1: 0xffff, 2: 0x1f}).get(t["pub"], 0xff)}')
    a('s_barrier')
    if t['pub']:
        a(f'buffer_store_dword v17, v{6 if t["pub"] == 2 else 7}, {sr(sWSD,4)}, 0 offen sc1')
        stamp(f'F{t["pub"]}')
    for g, gt in gate_tick.items():
        if pub_tick[g] <= i < gt - 1 and tstart[gt - 1] - tstart[i] <= PRE and (gt - 1 - i) % opt('PEV', 3) == 0:
            for x in poll(g): a(x)
a('s_mov_b64 exec, -1')
a(f"""
s_cmp_lg_u32 s2, 0
s_cbranch_scc1 L_fend
s_add_u32 s{sT1}, s{sTAG}, 1
L_ebump:
buffer_load_dword v32, v8, {sr(sWSD,4)}, 0 offen sc1
buffer_load_dword v33, v8, {sr(sWSD,4)}, 0 offen offset:128 sc1
buffer_load_dword v34, v8, {sr(sWSD,4)}, 0 offen offset:256 sc1
buffer_load_dword v35, v8, {sr(sWSD,4)}, 0 offen offset:384 sc1
s_waitcnt vmcnt(0)
""")
for i in range(4): a(f'v_subrev_u32 v{32+i}, s{sT1}, v{32+i}')
a(f"""
v_max_u32 v32, v32, v33
v_max3_u32 v32, v32, v34, v35
v_cmp_gt_u32 vcc, 7, v32
s_cmp_eq_u64 vcc, -1
s_cbranch_scc1 L_ebump2
s_sub_u32 s{sTO}, s{sTO}, 1
s_cbranch_scc0 L_ebump
s_endpgm
L_ebump2:
v_mov_b32 v1, s{sTAG}
v_mov_b32 v2, {WS_E}
s_mov_b64 exec, 1
buffer_store_dword v1, v2, {sr(sWSD,4)}, 0 offen sc1
s_mov_b64 exec, -1
L_fend:
""")
dbg_dump()
names['s'] = list(stamp_names)
a('s_endpgm')
a('L_last:')

nn = a.pad()
hdr = open(f'cdna_kernels/{NAME}.s.ref').read().split('; Override launch geometry')[0]
txt = hdr + f'''; @launch grid=(256,1,1) block=(512,1,1) lds={LDS_BYTES}
.amdgcn_target "amdgcn-amd-amdhsa--gfx950"
.text
.globl {NAME}_kernel
.p2align 8
.type {NAME}_kernel,@function
{NAME}_kernel:
''' + a.text() + f'''.section .rodata,"a"
.p2align 6
.amdhsa_kernel {NAME}_kernel
  .amdhsa_next_free_vgpr 256
  .amdhsa_next_free_sgpr 102
  .amdhsa_accum_offset 256
  .amdhsa_group_segment_fixed_size 0
  .amdhsa_kernarg_size 96
  .amdhsa_user_sgpr_count 2
  .amdhsa_user_sgpr_kernarg_segment_ptr 1
  .amdhsa_system_sgpr_workgroup_id_x 1
.end_amdhsa_kernel
'''
open(OUT, 'w').write(txt)
json.dump(names, open(OUT + '.names.json', 'w'))
if '--plan' in sys.argv:
    print('start', plan.get(-1))
    for i, t in enumerate(ticks):
        print(i, tstart[i], t['name'], 'needW', t['needW'], 'needA', t['needA'], 'pub', t['pub'], 'gate', gate_at.get(i), '| after:', plan.get(i))
print('instructions', sum(1 for i in a.ins if i.kind != 'meta'), 'nops inserted', nn, 'ticks', NT, file=sys.stderr)
```

```python
import sys, struct, json
from asmlib import *

NAME = 'gated_mix__sliding_block__mixer_s_mlp__prompt'
DEBUG = '--debug' in sys.argv
TRACE = '--trace' in sys.argv
OUT = [x for x in sys.argv[1:] if not x.startswith('--')]
OUT = OUT[0] if OUT else f'cdna_kernels/{NAME}.s'
def opt(name, default):
    for x in sys.argv:
        if x.startswith(f'--{name}='): return int(x.split('=')[1])
    return default

NA, NW = 8, 11
ABASE, WBASE = 0, 65536
GATE = WBASE + NW * 8192
LDS_BYTES = 163840
FSH = 10
WS_E = 0x80000
WS_H, WS_KV, WS_X1, WS_O, WS_H3, WS_DBG = 0x100000, 0x300000, 0x700000, 0xA00000, 0xC00000, 0x1200000
X1_STRIDE = 73728
H3_STRIDE = 176 * 1024
WS_CS = 0x90000
WS_MB = 0x1400000
WS_REC = 0x1440000
VTAB = GATE + 7168
PD = opt('PD', 3)
TIMEOUT = 1 << 16
KDUP = 1
ROT1 = opt('ROT1', 1)

def f32(x): return '0x%08x' % struct.unpack('<I', struct.pack('<f', x))[0]
LOG2E = 1.4426950408889634
C1 = 2 * 0.7978845608028654 * LOG2E
QSCALE = 0.25 * LOG2E

A_X, A_H, A_KE, A_KO, A_ST, A_X1, A_O, A_H3, A_END = 0, 8, 16, 21, 26, 27, 35, 43, 65
W_1, W_K, W_V, W_Q, W_2, W_3, W_O, W_4, W_END = 0, 8, 16, 24, 32, 40, 64, 72, 94
apos = lambda i: ABASE + (i % NA) * 8192
wpos = lambda i: (i % NW) * 8192

sX, sWQKV, sWO, sW1, sW2, sW3, sW4, sGATE, sOUT, sDBG, sWS = 4, 6, 8, 12, 14, 16, 18, 20, 22, 24, 26
sR, sC, sROT, sWV, sTAG, sTO = 28, 29, 30, 31, 32, 33
sRET = 34
sWSD = 36
sSRD = 40
sT0, sT1, sT2, sT3 = 47, 48, 49, 50
sHI = 52
sVM = 54
sGM = 56
sTT, sCH = 58, 59
sMASK = 60
sE = 92
sST = 94
sQ1, sQ2, sQ3 = 96, 98, 100
sZM = 44

a = Asm()
ool = Asm()
ool.uid = 100000

class Lgkm:
    def __init__(self): self.n = 0; self.done = 0
    def issue(self, text):
        a(text); self.n += 1; return self.n
    def wait(self, seq):
        if seq <= self.done: return
        k = min(self.n - seq, 15)
        a(f's_waitcnt lgkmcnt({k})')
        self.done = self.n - k
    def all(self): self.wait(self.n)
lg = Lgkm()
def emit(x):
    if callable(x): x()
    elif x.startswith('ds_'): lg.issue(x)
    else: a(x)

nstamp = [0]
stamp_names = []
def stamp(name):
    if not DEBUG: return
    i = nstamp[0]; nstamp[0] += 1
    stamp_names.append(name)
    a(f's_memtime {sr(sST,2)}')
    a(f's_memrealtime s[2:3]'.replace('s[2:3]', 's[0:1]'))
    a('s_waitcnt lgkmcnt(0)')
    a(f'v_writelane_b32 v0, s{sST}, {i}')
    a(f'v_writelane_b32 v0, s0, {32+i}')
    assert i < 30
def st(name): return lambda: stamp(name)
def dbg_start():
    if not DEBUG: return
    a(f'v_mov_b32 v0, 0')
    a(f'v_writelane_b32 v0, s{sST}, 0')
    a(f'v_writelane_b32 v0, s{sE}, 62')
    nstamp[0] = 1; stamp_names.clear(); stamp_names.append('start')
def dbg_dump():
    if not DEBUG: return
    a('s_waitcnt vmcnt(0)')
    stamp('end')
    a(f'''
    s_memrealtime {sr(sST,2)}
    s_waitcnt lgkmcnt(0)
    v_writelane_b32 v0, s{sST}, 63
    s_mov_b32 s{sWSD}, s{sWS}
    s_mov_b32 s{sWSD+1}, s{sWS+1}
    v_mbcnt_lo_u32_b32 v1, -1, 0
    v_mbcnt_hi_u32_b32 v1, -1, v1
    v_lshlrev_b32 v1, 2, v1
    s_lshl_b32 s{sT0}, s2, 3
    s_add_u32 s{sT0}, s{sT0}, s{sWV}
    s_lshl_b32 s{sT0}, s{sT0}, 8
    s_add_u32 s{sT0}, s{sT0}, {WS_DBG}
    buffer_store_dword v0, v1, {sr(sWSD,4)}, s{sT0} offen
    ''')

if DEBUG or TRACE:
    a(f's_memtime {sr(sST,2)}')
    a(f's_memrealtime {sr(sE,2)}')
a(f'''
s_cmp_ge_u32 s2, 256
s_cbranch_scc1 L_end
s_load_dwordx16 s[4:19], s[0:1], 0
s_load_dwordx8 s[20:27], s[0:1], 64
v_lshrrev_b32 v1, 6, v0
v_and_b32 v0, 63, v0
v_readfirstlane_b32 s{sWV}, v1
s_cmp_eq_u32 s{sWV}, 6
s_cbranch_scc0 L_noaux
s_getpc_b64 s[56:57]
L_pc:
s_sub_u32 s56, s56, L_pc-{NAME}_kernel
s_subb_u32 s57, s57, 0
s_lshr_b32 s58, s2, 3
s_lshl_b32 s58, s58, 11
v_lshlrev_b32 v4, 4, v0
v_add_u32 v3, s58, v4
v_min_u32 v5, L_last-{NAME}_kernel-16, v3
global_load_dwordx4 v[32:35], v5, s[56:57]
v_add_u32 v3, 1024, v3
v_min_u32 v5, L_last-{NAME}_kernel-16, v3
global_load_dwordx4 v[36:39], v5, s[56:57]
L_noaux:
s_and_b32 s{sT0}, s2, 7
s_lshr_b32 s{sT1}, s2, 3
s_lshr_b32 s{sR}, s{sT0}, 1
s_lshl_b32 s{sR}, s{sR}, 3
s_lshr_b32 s{sT2}, s{sT1}, 2
s_add_u32 s{sR}, s{sR}, s{sT2}
s_and_b32 s{sC}, s{sT0}, 1
s_lshl_b32 s{sC}, s{sC}, 2
s_and_b32 s{sT2}, s{sT1}, 3
s_add_u32 s{sC}, s{sC}, s{sT2}
s_add_u32 s{sROT}, s{sR}, s{sC}
s_and_b32 s{sROT}, s{sROT}, 7
s_mov_b32 s{sTO}, {TIMEOUT}
s_mov_b32 s{sWSD+2}, {WS_REC}
s_mov_b32 s{sWSD+3}, 0x20000
s_mov_b32 s{sSRD+3}, 0x20000
s_cmp_lt_u32 s{sWV}, 4
s_cbranch_scc1 L_comp
s_cmp_eq_u32 s{sWV}, 7
s_cbranch_scc1 L_flag
s_cmp_eq_u32 s{sWV}, 6
s_cbranch_scc1 L_aux
''')
sec_pro = a.ins; a.ins = []
a('L_comp:')
def make_tag():
    a(f'''
    s_add_u32 s{sE}, s{sE}, 0x9e3779b0
    s_and_b32 s{sTAG}, s{sE}, 0xfffffff0
    ''')

vWn0, vWn1, vWt0, vWt1, vP, vL16, vKr, vVr, vStV, vStH, vX0, vX1, vX2, vG, vX3 = range(1, 16)
vT = 16
vSel = 20
vWf = 24
vAf = 36
vA0, vA1, vAB = 48, 64, 80
vL = 96
vPan = 128
vQl = 120

a(f's_setprio {opt("PC", 0)}')
a(f'''
s_and_b32 s{sTT}, s{sWV}, 1
s_lshr_b32 s{sCH}, s{sWV}, 1
s_mov_b32 s{sHI}, 0
s_mov_b32 s{sHI+1}, -1
s_mov_b32 s{sVM}, 0xffff
s_mov_b32 s{sVM+1}, 0xffff
''')
L, TOK, H, T1, T2, T3, ROW = 'v0', 'v48', 'v49', 'v50', 'v51', 'v52', 'v53'
a(f'''
v_and_b32 {TOK}, 31, {L}
v_lshrrev_b32 {H}, 5, {L}
v_lshlrev_b32 v{vL16}, 4, {L}
''')
a(f'''
v_bfe_u32 {T1}, {L}, 3, 1
v_xor_b32 {T1}, s{sCH}, {T1}
v_lshlrev_b32 {T1}, 6, {T1}
v_bfe_u32 {T2}, {L}, 4, 1
v_lshl_add_u32 {T1}, {T2}, 5, {T1}
v_and_b32 {T2}, 3, {L}
v_lshl_add_u32 {T1}, {T2}, 3, {T1}
v_bfe_u32 {T2}, {L}, 2, 2
v_lshl_add_u32 {T1}, {T2}, 7, {T1}
v_add_u32 {T1}, {WBASE}, {T1}
v_lshl_add_u32 v{vWn0}, {H}, 10, {T1}
v_add_u32 v{vWn1}, 65536, v{vWn0}
v_lshl_add_u32 v{vWt0}, {H}, 9, {T1}
v_add_u32 v{vWt1}, 65536, v{vWt0}
''')
a(f'''
v_lshlrev_b32 {T1}, 4, {TOK}
v_lshl_add_u32 {T1}, {H}, 10, {T1}
s_lshl_b32 s{sT0}, s{sTT}, 9
v_add_u32 v{vP}, s{sT0}, {T1}
s_lshl_b32 s{sT0}, s{sTT}, 12
s_lshl_b32 s{sT1}, s{sCH}, 10
s_add_u32 s{sT0}, s{sT0}, s{sT1}
v_add_u32 v{vKr}, s{sT0}, v{vL16}
s_add_u32 s{sT0}, s{sT0}, 2048
v_and_b32 {T2}, 15, {L}
v_lshlrev_b32 {T2}, 4, {T2}
v_lshl_add_u32 {T2}, {H}, 8, {T2}
v_add_u32 v{vVr}, s{sT0}, {T2}
v_bfe_u32 {T3}, {L}, 4, 1
v_lshl_add_u32 v{vStV}, {T3}, 13, v{vVr}
s_lshl_b32 s{sT0}, s{sTT}, 4
s_add_u32 s{sT0}, s{sT0}, {VTAB}
v_mov_b32 {T1}, s{sT0}
v_cndmask_b32 v{vVr}, {T1}, v{vVr}, {sr(sVM,2)}
s_lshl_b32 s{sT0}, s{sR}, 1
v_lshlrev_b32 {T1}, 4, {TOK}
v_lshl_add_u32 {T1}, {H}, 9, {T1}
v_add_u32 {T1}, {VTAB}, {T1}
v_add_u32 {T2}, s{sT0}, {TOK}
v_cmp_le_u32 vcc, 8, {T2}
v_mov_b32 {T2}, 0x3f803f80
v_cndmask_b32 v{vL+8}, 0, {T2}, vcc
v_mov_b32 v{vL+9}, v{vL+8}
v_mov_b32 v{vL+10}, v{vL+8}
v_mov_b32 v{vL+11}, v{vL+8}
ds_write_b128 {T1}, {vr(vL+8,4)}
''')
a(f'''
s_lshr_b32 s{sT0}, s{sC}, 2
s_add_u32 s{sT0}, s{sT0}, 1
s_sub_u32 s{sT1}, 0, s{sT0}
s_bitcmp1_b32 s{sC}, 1
s_cselect_b32 s{sT0}, s{sT1}, s{sT0}
s_lshl_b32 s{sT1}, s{sR}, 6
s_add_u32 s{sT0}, s{sT0}, s{sT1}
s_lshl_b32 s{sT1}, s{sTT}, 5
s_add_u32 s{sT0}, s{sT0}, s{sT1}
v_add_u32 {T1}, s{sT0}, {TOK}
v_mov_b32 {T2}, 2047
v_cmp_gt_u32 {sr(sZM,2)}, {T1}, {T2}
v_and_b32 {T1}, {T2}, {T1}
v_lshrrev_b32 {T2}, 6, {T1}
v_and_b32 {T1}, 63, {T1}
v_lshlrev_b32 {T1}, 4, {T1}
v_lshl_add_u32 {T1}, {T2}, 16, {T1}
v_lshl_add_u32 v{vStH}, {H}, 10, {T1}
''')
a(f'''
v_bfe_u32 {T1}, {L}, 4, 1
v_bfe_u32 {T2}, {L}, 2, 1
v_cmp_eq_u32 {sr(sGM,2)}, {T1}, {T2}
v_mov_b32 {T3}, 0x3f803f80
v_cndmask_b32 v{vSel}, 0, {T3}, {sr(sGM,2)}
v_mov_b32 v{vSel+1}, v{vSel}
v_mov_b32 v{vSel+2}, v{vSel}
v_mov_b32 v{vSel+3}, v{vSel}
v_and_b32 {T1}, 3, {L}
v_cmp_eq_u32 vcc, 0, {T1}
v_cmp_eq_u32 {sr(sQ1,2)}, 1, {T1}
v_cmp_eq_u32 {sr(sQ2,2)}, 2, {T1}
v_cmp_eq_u32 {sr(sQ3,2)}, 3, {T1}
s_and_b64 vcc, vcc, {sr(sGM,2)}
s_and_b64 {sr(sGM,2)}, {sr(sGM,2)}, {sr(sQ1,2)}
v_mov_b32 v40, {GATE+2176}
v_mov_b32 {T1}, {GATE+1088}
v_cndmask_b32 v40, v40, {T1}, vcc
v_lshlrev_b32 {T1}, 4, {H}
v_add_u32 {T1}, {GATE}, {T1}
v_cndmask_b32 v40, v40, {T1}, {sr(sGM,2)}
v_add_u32 {T1}, {GATE+1088}, v{vL16}
v_mov_b32 v{vL}, {T3}
v_mov_b32 v{vL+1}, {T3}
v_mov_b32 v{vL+2}, {T3}
v_mov_b32 v{vL+3}, {T3}
v_mov_b32 v{vL+4}, 0
v_mov_b32 v{vL+5}, 0
v_mov_b32 v{vL+6}, 0
v_mov_b32 v{vL+7}, 0
ds_write_b128 {T1}, {vr(vL,4)}
ds_write_b128 {T1}, {vr(vL+4,4)} offset:1088
''')
vXa, vGa, vRa = 36, 40, 41
a(f'''
s_lshl_b32 s{sT0}, s{sTT}, 5
v_add_u32 {ROW}, s{sT0}, {TOK}
v_bfe_u32 {T1}, {ROW}, 1, 3
v_lshlrev_b32 {ROW}, 7, {ROW}
v_xor_b32 {T2}, {T1}, {H}
''')
for s in range(4):
    a(f'v_xor_b32 {T3}, {2*s}, {T2}')
    a(f'v_lshl_add_u32 v{vXa+s}, {T3}, 4, {ROW}')
a(f'''
{f's_sub_u32 s{sT0}, 0, s{sR}' if ROT1 else f's_mov_b32 s{sT0}, s{sC}'}
s_and_b32 s{sT0}, s{sT0}, 7
s_lshl_b32 s{sT0}, s{sT0}, 13
v_add_u32 {ROW}, s{sT0}, {ROW}
v_lshl_add_u32 {ROW}, {H}, 3, {ROW}
s_lshl_b32 s{sT0}, s{sCH}, 2
v_xor_b32 {T2}, s{sT0}, {T1}
''')
for j in range(4):
    a(f'v_xor_b32 {T3}, {j}, {T2}')
    a(f'v_lshl_add_u32 v{vRa+j}, {T3}, 4, {ROW}')
a(f'v_lshlrev_b32 {T1}, 2, {H}')
a(f'v_sub_u32 {T1}, {TOK}, {T1}')
for r in range(16):
    a(f'v_cmp_gt_i32 {sr(sMASK+2*r,2)}, {(r & 3) + 8 * (r >> 2)}, {T1}')
a('s_waitcnt lgkmcnt(0)')
dbg_start()
sOH, sOK0, sOK1, sOX1, sOST, sOO, sOH3, sOOUT, sJV, sNEG, sTILE = range(4, 15)
a(f'''
s_mov_b32 s{sSRD}, s{sOUT}
s_mov_b32 s{sSRD+1}, s{sOUT+1}
s_mov_b32 s{sSRD+2}, {2048*1024}
s_mov_b32 s{sWSD}, s{sWS}
s_mov_b32 s{sWSD+1}, s{sWS+1}
s_lshl_b32 s{sTILE}, s{sC}, 13
s_lshl_b32 s{sT1}, s{sCH}, 12
s_add_u32 s{sTILE}, s{sTILE}, s{sT1}
s_add_u32 s{sOH}, s{sTILE}, {WS_H}
s_lshl_b32 s{sOK0}, s{sR}, 3
s_add_u32 s{sOK0}, s{sOK0}, s{sC}
s_lshl_b32 s{sOK0}, s{sOK0}, 14
s_add_u32 s{sOK0}, s{sOK0}, {WS_KV}
s_add_u32 s{sOK1}, s{sOK0}, 8192
s_mul_i32 s{sT0}, s{sR}, {X1_STRIDE}
s_add_u32 s{sT0}, s{sT0}, {WS_X1}
s_add_u32 s{sOX1}, s{sT0}, s{sTILE}
s_lshr_b32 s{sOST}, s{sTILE}, 3
s_add_u32 s{sOST}, s{sOST}, s{sT0}
s_add_u32 s{sOST}, s{sOST}, 65536
s_lshl_b32 s{sT0}, s{sR}, 16
s_add_u32 s{sOO}, s{sT0}, s{sTILE}
s_add_u32 s{sOO}, s{sOO}, {WS_O}
s_lshl_b32 s{sT1}, s{sTT}, 15
s_add_u32 s{sOOUT}, s{sT0}, s{sT1}
s_lshr_b32 s{sT1}, s{sTILE}, 6
s_add_u32 s{sOOUT}, s{sOOUT}, s{sT1}
s_mul_i32 s{sOH3}, s{sR}, {H3_STRIDE}
s_add_u32 s{sOH3}, s{sOH3}, s{sTILE}
s_add_u32 s{sOH3}, s{sOH3}, {WS_H3}
s_lshl_b32 s{sJV}, s{sR}, 1
s_add_u32 s{sJV}, s{sJV}, s{sTT}
s_sub_i32 s{sJV}, 8, s{sJV}
s_max_i32 s{sJV}, s{sJV}, 0
s_mov_b32 s{sNEG}, {f32(-1e30)}
''')

ticks = []
last_read = {}
freed = set()
pub_next = [None]
def want_pub(stage): pub_next[0] = stage
stage_mark = {}
def nstores(): return sum(1 for i in a.ins if i.op.startswith('buffer_store'))
def mark(stage): return lambda: stage_mark.__setitem__(stage, nstores())
def tick(needW=None, needA=None, name='', dur=140):
    pub = pub_next[0]; pub_next[0] = None
    if pub: a(f's_waitcnt vmcnt({nstores() - stage_mark.get(pub, nstores())})')
    a('s_barrier')
    fr = [k for k, s in last_read.items() if s <= lg.done and k not in freed]
    freed.update(fr)
    ticks.append(dict(needW=needW, needA=needA, free=fr, pub=pub, name=name, dur=dur))

class Step:
    def __init__(self, w, s, order, acc, act, aslot=None, aread=None, swap=False, c0=None, pre=None, post=None, lastw=False, lasta=False, cs=None, cs0=False, xa=None, dur=140):
        self.__dict__.update(locals())

def run_steps(steps, fill=None):
    fill = fill or {}
    seqs = {}
    def reads(n):
        s_ = steps[n]
        if s_.s == 0: tick(s_.w, s_.aslot if s_.xa is None else s_.xa, f'W{s_.w}', s_.dur)
        if s_.pre: s_.pre()
        if s_.aread == 'x':
            lg.issue(f'ds_read_b128 {vr(s_.act,4)}, v{vXa+s_.s} offset:{apos(s_.aslot)}')
        elif s_.aread == 'p':
            lg.issue(f'ds_read_b128 {vr(s_.act,4)}, v{vP} offset:{apos(s_.aslot)+s_.s*2048}')
        off = wpos(s_.w) + s_.s * 2048
        b0, b1 = (vWn0, vWn1) if s_.order == 'n' else (vWt0, vWt1)
        base = b0
        if off >= 65536: off -= 65536; base = b1
        d = 512 if s_.order == 'n' else 1024
        f = vWf + (n % 3) * 4
        lg.issue(f'ds_read_b64_tr_b16 {vr(f,2)}, v{base} offset:{off}')
        seqs[n] = lg.issue(f'ds_read_b64_tr_b16 {vr(f+2,2)}, v{base} offset:{off+d}')
        if s_.lastw: last_read[('W', s_.w)] = seqs[n]
        if s_.lasta: last_read[('A', s_.aslot)] = seqs[n]
    for n in range(min(PD, len(steps))): reads(n)
    for n, s_ in enumerate(steps):
        fl = list(fill.get(n, []))
        lg.wait(seqs[n])
        f = vWf + (n % 3) * 4
        c = s_.c0 if s_.c0 is not None else vr(s_.acc, 16)
        A, B = (vr(f, 4), vr(s_.act, 4)) if not s_.swap else (vr(s_.act, 4), vr(f, 4))
        if s_.post: s_.post()
        if s_.cs is not None:
            a(f'v_mfma_f32_16x16x32_bf16 {vr(s_.cs,4)}, {vr(vSel,4)}, {vr(f,4)}, {"0" if s_.cs0 else vr(s_.cs,4)}')
            for _ in range(2):
                if fl and isinstance(fl[0], str) and fl[0].startswith('v_') and not fl[0].startswith('v_mfma'): emit(fl.pop(0))
        a(f'v_mfma_f32_32x32x16_bf16 {vr(s_.acc,16)}, {A}, {B}, {c}')
        if n + PD < len(steps): reads(n + PD)
        for x in fl: emit(x)

def spread(items, start, end):
    d = {}
    n = end - start
    for i, x in enumerate(items):
        d.setdefault(start + i * n // len(items), []).append(x)
    return d
def merge(*ds):
    o = {}
    for d in ds:
        for k, v in d.items(): o.setdefault(k, []).extend(v)
    return o
def pack(acc, dst): return [f'v_cvt_pk_bf16_f32 v{dst+i}, v{acc+2*i}, v{acc+2*i+1}' for i in range(8)]
def store2(pk, voff, s0, s1=None, d=2048):
    return [f'buffer_store_dwordx4 {vr(pk,4)}, v{voff}, {sr(sWSD,4)}, s{s0} offen sc1',
            f'buffer_store_dwordx4 {vr(pk+4,4)}, v{voff}, {sr(sWSD,4)}, s{s0 if s1 is None else s1} offen offset:{d} sc1']
def pubat(stage): return lambda: want_pub(stage)

def ln_consts(sum_, sq, vCA, vCB, vIR, vNM, t):
    return f'''v_mul_f32 v{t}, {f32(-1.0/512)}, v{sum_}
    v_mul_f32 v{t+1}, v{t}, v{t}
    v_mov_b32 v{t+2}, {f32(1.0/512)}
    v_fma_f32 v{t+1}, v{sq}, v{t+2}, -v{t+1}
    v_max_f32 v{t+1}, 0, v{t+1}
    v_add_f32 v{t+1}, {f32(1e-5)}, v{t+1}
    v_rsq_f32 v{t+2}, v{t+1}
    v_cvt_pk_bf16_f32 v{vNM}, v{t}, v{t}
    v_mul_f32 v{vIR}, v{t+1}, v{t+2}
    v_mul_f32 v{vCA}, {f32(-C1)}, v{t+2}
    v_mul_f32 v{t+1}, v{t+2}, v{t+2}
    v_mul_f32 v{t+1}, {f32(0.044715)}, v{t+1}
    v_mul_f32 v{vCB}, v{vCA}, v{t+1}
    v_lshlrev_b32 v{t+1}, 16, v{vNM}
    v_sub_f32 v{t+1}, v{t}, v{t+1}
    v_cvt_pk_bf16_f32 v{t+1}, v{t+1}, v{t+1}
    v_cndmask_b32 v{vNM}, v{vNM}, v{t+1}, {sr(sHI,2)}'''.replace('    ', '').split('\n')
def cs_fix(cs, vCSA, vNM, acc, t):
    return [f'v_cvt_pk_bf16_f32 v{t}, v{cs}, v{cs}',
            f'v_lshlrev_b32 v{t}, 16, v{t}',
            f'v_sub_f32 v{t}, v{cs}, v{t}',
            f'v_cvt_pk_bf16_f32 v{vCSA}, v{cs}, v{t}',
            f'v_mfma_f32_32x32x16_bf16 {vr(acc,16)}, {vr(vCSA,4)}, {vr(vNM,4)}, {vr(acc,16)}']
def gelu_pk(acc, vCA, vCB, vIR, tmp, dst):
    o = []
    for i in range(0, 16, 2): o.append(f'v_pk_mul_f32 {vr(tmp+i,2)}, {vr(acc+i,2)}, {vr(acc+i,2)}')
    for i in range(0, 16, 2): o.append(f'v_pk_fma_f32 {vr(tmp+i,2)}, {vr(tmp+i,2)}, {vr(vCB,2)}, {vr(vCA,2)} op_sel_hi:[1,0,0]')
    for i in range(0, 16, 2): o.append(f'v_pk_mul_f32 {vr(tmp+i,2)}, {vr(tmp+i,2)}, {vr(acc+i,2)}')
    for i in range(16): o.append(f'v_exp_f32 v{tmp+i}, v{tmp+i}')
    for i in range(0, 16, 2): o.append(f'v_pk_fma_f32 {vr(tmp+i,2)}, {vr(tmp+i,2)}, {vr(vIR,2)}, {vr(vIR,2)} op_sel_hi:[1,0,0]')
    for i in range(16): o.append(f'v_rcp_f32 v{tmp+i}, v{tmp+i}')
    for i in range(0, 16, 2): o.append(f'v_pk_mul_f32 {vr(tmp+i,2)}, {vr(tmp+i,2)}, {vr(acc+i,2)}')
    for i in range(0, 16, 2): o.append(f'v_cvt_pk_bf16_f32 v{dst+i//2}, v{tmp+i}, v{tmp+i+1}')
    return o
def gelu_sc(acc, vCA, vCB, vIR, tmp, dst):
    o = []
    def chain(e, t):
        return [f'v_mul_f32 v{t}, v{acc+e}, v{acc+e}', f'v_fma_f32 v{t}, v{t}, v{vCB}, v{vCA}', f'v_mul_f32 v{t}, v{t}, v{acc+e}',
                f'v_exp_f32 v{t}, v{t}', f'v_fma_f32 v{t}, v{t}, v{vIR}, v{vIR}', f'v_rcp_f32 v{t}, v{t}', f'v_mul_f32 v{t}, v{t}, v{acc+e}']
    for g in range(0, 16, 2):
        t = tmp + (g & 2)
        c0, c1 = chain(g, t), chain(g + 1, t + 1)
        for x, y in zip(c0, c1): o += [x, y]
        o.append(f'v_cvt_pk_bf16_f32 v{dst+g//2}, v{t}, v{t+1}')
    return o

vCS, vSG, vSQ = 64, 68, 72
steps = []
for n in range(32):
    j, s = divmod(n, 4)
    P = vPan + 4 * n
    G = vL + 16 + (n % 3) * 4
    def pre(n=n, G=G):
        lg.issue(f'ds_read_b128 {vr(G,4)}, v{vGa} offset:{n*32}')
    def post(n=n, s=s, P=P, G=G):
        if s == 3:
            for q in range(8):
                sq = vSQ + 4 * (q & 3)
                Pq = P - 12 + 2 * q
                a(f'v_mfma_f32_4x4x4_16b_bf16 {vr(sq,4)}, {vr(Pq,2)}, {vr(Pq,2)}, {"0" if n == 3 and q < 4 else vr(sq,4)}')
        a(f'v_mfma_f32_16x16x32_bf16 {vr(vSG,4)}, {vr(G,4)}, {vr(P,4)}, {"0" if n == 0 else vr(vSG,4)}')
    steps.append(Step(W_1 + j, s, 'n', vA0, P, aslot=A_X + j, aread='x', c0='0' if n == 0 else None, pre=pre, post=post, lastw=(s == 3), cs=vCS, cs0=(n == 0), dur=opt('DB1', 360)))
stamp('setup')
RES = vAB + 8
cA, cB, cI, cNM, cCS, cT = vL, vL + 2, vL + 4, vL + 8, vL + 12, vAf + 9
def res_reads():
    for j in range(4): q = lg.issue(f'ds_read_b64 {vr(RES+2*j,2)}, v{vRa+j}')
    for j in range(8): last_read[('A', A_X + j)] = q
zer = [f'v_mov_b32 v{r}, 0' for r in (cNM+1, cNM+2, cNM+3, cCS+1, cCS+2, cCS+3)]
def h_touch():
    a('s_mov_b32 exec_lo, 0x80000001')
    a('s_mov_b32 exec_hi, 0x80000001')
    a(f'buffer_load_dword v{vX2}, v{vStH}, {sr(sWSD,4)}, s{sOH} offen')
    a(f'buffer_load_dword v{vX3}, v{vStH}, {sr(sWSD,4)}, s{sOH} offen offset:2048')
    a('s_mov_b64 exec, -1')
run_steps(steps, merge({0: [st('s0')], 15: [st('s15')], 29: [res_reads], opt('HT', 18): [h_touch]}, spread(zer, 4, 10)))
stamp('B1 loop')
for i in range(8): a(f'v_add_f32 v{vSQ+i}, v{vSQ+i}, v{vSQ+8+i}')
for i in range(4): a(f'v_add_f32 v{vSQ+i}, v{vSQ+i}, v{vSQ+4+i}')
for i, m in ((1, sQ1), (2, sQ2), (3, sQ3)): a(f'v_cndmask_b32 v{vSQ}, v{vSQ}, v{vSQ+i}, {sr(m,2)}')
a(f'''
v_mov_b32 v{vSQ+1}, v{vSQ}
v_mul_f32 v{vG}, {f32(-LOG2E)}, v{vSG+1}
v_exp_f32 v{vG}, v{vG}
v_permlane32_swap_b32 v{vSQ}, v{vSQ+1}
v_add_f32 v{vSQ}, v{vSQ}, v{vSQ+1}
''')
lc = ln_consts(vSG, vSQ, cA, cB, cI, cNM, cT)
for x in [lc[0], lc[7]] + [y.replace(f'v{cT+1}', f'v{cT+2}') for y in lc[13:17]]: a(x)
for x in cs_fix(vCS, cCS, cNM, vA0, cT + 2): a(x)
lg.all()
tick(name='B1e', dur=600)
for x in lc[1:7] + [f'v_add_f32 v{vG}, 1.0, v{vG}'] + lc[8:13] + [f'v_rcp_f32 v{vG}, v{vG}']: a(x)
PK = vAf
for x in gelu_pk(vA0, cA, cB, cI, vA1, PK): a(x)
for i in range(8): a(f'v_cndmask_b32 v{PK+i}, v{PK+i}, 0, {sr(sZM,2)}')
for x in store2(PK, vStH, sOH): a(x)
mark(1)()
stamp('B1 epi')

steps = []
for p, (w0, acc, swap) in enumerate(((W_K, vA0, False), (W_V, vA1, True), (W_Q, vA0, False))):
    for n in range(32):
        j, s = divmod(n, 4)
        steps.append(Step(w0 + j, s, 'n', acc, vPan + 4 * n, swap=swap, c0='0' if n == 0 else None, lastw=(s == 3)))
unres = []
for j in range(8):
    unres += [f'v_lshlrev_b32 v{vAB+2*j}, 16, v{RES+j}', f'v_and_b32 v{vAB+2*j+1}, 0xffff0000, v{RES+j}']
def stream_steps(w0, a0, nsteps, acc, c0=None, phase=0):
    o = []
    for n in range(nsteps):
        j, s = divmod(n, 4)
        last = s == 3 or n == nsteps - 1
        o.append(Step(w0 + j, s, 't', acc, vAf + ((n + phase) % 3) * 4, aslot=a0 + j, aread='p', c0=c0 if n == 0 else None, lastw=last, lasta=last))
    return o
PKS = vL
vK, vV = 128, 164
M8 = [20, 21, 22, 23, 252, 253, 254, 255]
vVs, vVm, vVa = vWn0, vWn1, vL16
att_pre = [f'v_mov_b32 v{vK+1}, 0xffff0000', f'v_mov_b32 v{vK+2}, 0xffff']
for i in range(8):
    att_pre += [f'v_cndmask_b32 v{M8[i]}, 0, v{vK+2}, {sr(sMASK+4*i,2)}', f'v_cndmask_b32 v{vK}, 0, v{vK+1}, {sr(sMASK+4*i+2,2)}', f'v_or_b32 v{M8[i]}, v{M8[i]}, v{vK}']
att_pre += [f'v_add_u32 v{vX2}, 61440, v{vKr}', f'v_and_b32 v{vX2}, 0xffff, v{vX2}', f'v_mov_b32 v{vK+3}, 4096',
            f'v_cndmask_b32 v{vVs}, 16, v{vK+3}, {sr(sVM,2)}', f'v_cndmask_b32 v{vVm}, -1, v{vK+2}, {sr(sVM,2)}',
            f'v_mov_b32 v{vK+3}, {apos(A_KO)}', f'v_cndmask_b32 v{vX3}, 0, v{vK+3}, {sr(sVM,2)}', f'v_add_u32 v{vX3}, v{vX3}, v{vVr}']
qfin = [f'v_mul_f32 v{vA0+i}, {f32(QSCALE)}, v{vA0+i}' for i in range(16)] + pack(vA0, vQl)
sta = [f'v_and_b32 v{vX0}, 1023, v{vP}', f'v_lshrrev_b32 v{vX0}, 1, v{vX0}', f'v_mov_b32 v{vX1}, 0x3f803f80']
steps += stream_steps(W_2, A_H, 32, vAB, phase=96)
fill = merge(spread(unres + sta, 2, 20), {31: [st('K')], 63: [st('V')], 95: [st('Q')]},
             {opt('PUB1', 24): [pubat(1)]},
             spread(pack(vA0, PKS), 35, 38), dict(zip((38, 42), ([x] for x in store2(PKS, vKr, sOK0, sOK1, 0)))),
             spread(pack(vA1, PKS), 66, 69), dict(zip((68, 70), ([x] for x in store2(PKS, vStV, sOK0, None, 512)))),
             {opt('PUB2', 92): [pubat(2)]},
             spread(qfin, 99, 111), spread(att_pre, 111, 128))
run_steps(steps, fill)
stamp('B2 loop')
for x in pack(vAB, PK): a(x)
for x in store2(PK, vP, sOX1): a(x)
for i in range(8):
    a(f'v_dot2_f32_bf16 v{vA0}, v{PK+i}, v{vX1}, {"0" if i==0 else "v%d"%vA0}')
    a(f'v_dot2_f32_bf16 v{vA0+1}, v{PK+i}, v{PK+i}, {"0" if i==0 else "v%d"%(vA0+1)}')
a(f'''
v_mov_b32 v{vA0+2}, v{vA0}
v_mov_b32 v{vA0+3}, v{vA0+1}
v_permlane32_swap_b32 v{vA0}, v{vA0+2}
v_permlane32_swap_b32 v{vA0+1}, v{vA0+3}
v_add_f32 v{vA0}, v{vA0}, v{vA0+2}
v_add_f32 v{vA0+1}, v{vA0+1}, v{vA0+3}
buffer_store_dwordx2 {vr(vA0,2)}, v{vX0}, {sr(sWSD,4)}, s{sOST} offen sc1
''')
tick(name='B2e', dur=600)
stamp('B2 epi')

vCB_, vM8 = 24, 40
vS0, vS1, vMG, vO = 236, 96, 64, 48
Kf = lambda j: vK + 4 * j
Vf = lambda j, b: vV + 8 * j + 4 * b
MF = lambda d, x, y, c: f'v_mfma_f32_32x32x16_bf16 {vr(d,16)}, {vr(x,4)}, {vr(y,4)}, {c if c == "0" else vr(c,16)}'
def kv_addr(a0, j, plain, wrapped):
    off = (apos(a0) + 4096 * j) % 65536
    return (wrapped, 0) if off == 61440 else (plain, off)
kseq = {}
def k_read(a0, j):
    r_, off = kv_addr(a0, j, vKr, vX2)
    kseq[j] = lg.issue(f'ds_read_b128 {vr(Kf(j),4)}, v{r_} offset:{off}')
def v_read(a0, j, last=False):
    base = vVr if a0 == A_KE else vX3
    ad = base
    if j:
        a(f'v_mad_u32_u24 v{vVa}, v{vVs}, {j}, v{base}')
        ad = vVa
        if apos(a0) + 4096 * (j + 1) >= 65536: a(f'v_and_b32 v{vVa}, v{vVm}, v{vVa}')
    for b in range(2): q = lg.issue(f'ds_read_b128 {vr(Vf(j,b),4)}, v{ad} offset:{512*b}')
    if last:
        for i in range(5): last_read[('A', a0 + i)] = q
def v_reads(a0, js, last=False):
    for j in js: v_read(a0, j, last and j == js[-1])
assert apos(A_KE) == 0
vMx, vMy, vZ = vT, vT + 1, vT + 2
def o_final(t):
    return ([f'v_rcp_f32 v{vO+8}, v{vO+8}'] + [f'v_mul_f32 v{vO+i}, v{vO+i}, v{vO+8}' for i in range(8)] +
            [f'v_cvt_pk_bf16_f32 v{112+4*t+i}, v{vO+2*i}, v{vO+2*i+1}' for i in range(4)] +
            [f'buffer_store_dwordx4 {vr(112+4*t,4)}, v{vP}, {sr(sWSD,4)}, s{sOO} offen offset:{2048*t} sc1'])
tick(needA=A_KE + 4, name='KVE', dur=600)
for j in (1, 2, 3, 4, 5, 6, 7, 0, 8): k_read(A_KE, j)
stamp('kv0')
for t in range(2):
    a0 = A_KE if t == 0 else A_KO
    Q = vQl + 4 * t
    order = [1, 2, 3, 4, 5, 6, 7, 0, 8]
    bufs = [vS1, vCB_, vS0]
    dst = lambda i: vMG if order[i] == 0 else bufs[i % 3]
    def qk(i):
        lg.wait(kseq[order[i]])
        a(MF(dst(i), Kf(order[i]), Q, '0'))
    side = o_final(0) if t == 1 else []
    qk(0); qk(1)
    if t == 0: v_reads(a0, [0, 8, 1])
    else:
        v_reads(a0, [7], last=True)
    for i in range(9):
        if i + 2 < 9: qk(i + 2)
        if t == 0 and i in (0, 1, 2): v_reads(a0, [2 + 2 * i, 3 + 2 * i], last=(i == 2))
        if i == 7: continue
        b = dst(i)
        if i == 8:
            for r in range(16): a(f'v_cndmask_b32 v{vMG+r}, v{b+r}, v{vMG+r}, {sr(sMASK+2*r,2)}')
            b = vMG
        for q in range(0, 16, 4):
            if i == 0 and q == 0:
                a(f'v_max_f32 v{vMx}, v{b}, v{b+1}')
                a(f'v_max_f32 v{vMy}, v{b+2}, v{b+3}')
            else:
                a(f'v_max3_f32 v{vMx}, v{b+q}, v{b+q+1}, v{vMx}')
                a(f'v_max3_f32 v{vMy}, v{b+q+2}, v{b+q+3}, v{vMy}')
        if i == 6:
            for x in side: a(x)
    a(f'v_max_f32 v{vMx}, v{vMx}, v{vMy}')
    a(f'v_mov_b32 v{vMy}, v{vMx}')
    lg.all()
    if t == 0: want_pub(3)
    tick(name=f'rel{t}', dur=1200 if t == 0 else 1800)
    a(f'v_permlane32_swap_b32 v{vMx}, v{vMy}')
    a(f'v_min_f32_e64 v{vCB_}, -v{vMx}, -v{vMy}')
    a(f'v_min_f32_e64 v{vCB_+1}, -v{vMx}, -v{vMy}')
    for i in range(2, 16, 2): a(f'v_mov_b64 {vr(vCB_+i,2)}, {vr(vCB_,2)}')
    for r in range(0, 16, 2): a(f'v_pk_add_f32 {vr(vMG+r,2)}, {vr(vMG+r,2)}, {vr(vCB_,2)}')
    bufs2 = [vS0, vS1]
    def qk2(i): a(MF(bufs2[i % 2], Kf(1 + i), Q, vCB_))
    qk2(0)
    for r in range(16):
        a(f'v_exp_f32 v{vMG+r}, v{vMG+r}')
        if r == 4: qk2(1)
    for i in range(8): a(f'v_cvt_pk_bf16_f32 v{vMG+i}, v{vMG+2*i}, v{vMG+2*i+1}')
    for i in range(8): a(f'v_and_b32 v{vMG+8+i}, v{vMG+i}, v{M8[i]}')
    for i in range(8):
        a(f'v_xor_b32 v{vMG+i}, v{vMG+i}, v{vMG+8+i}')
        if i == 1: a(MF(vO, Vf(0, 0), vMG + 8, '0'))
    pend = [MF(vO, Vf(0, 1), vMG + 12, vO), MF(vO, Vf(8, 0), vMG, vO), MF(vO, Vf(8, 1), vMG + 4, vO)]
    for i in range(7):
        b = bufs2[i % 2]
        slots = {}
        k = 0
        for x in pend:
            slots.setdefault(1 + 4 * k, []).append(x); k += 1
        if t == 0 and i == 5: tick(needA=A_KO + 4, name='KVO', dur=1100)
        for r in range(16):
            a(f'v_exp_f32 v{b+r}, v{b+r}')
            for x in slots.get(r, []): a(x)
            if i > 0 and r == 1 + 4 * k and i + 1 < 7: qk2(i + 1)
            if t == 0 and i == 5 and r in (2, 6, 10, 13): v_read(A_KO, {2: 0, 6: 8, 10: 1, 13: 2}[r])
            if t == 0 and i == 6 and r < 9: k_read(A_KO, order[r])
            if t == 0 and i == 6 and r in (9, 11, 13, 15): v_read(A_KO, 3 + (r - 9) // 2)
        for q in range(8): a(f'v_cvt_pk_bf16_f32 v{b+q}, v{b+2*q}, v{b+2*q+1}')
        pend = [MF(vO, Vf(1 + i, 0), b, vO), MF(vO, Vf(1 + i, 1), b + 4, vO)]
    for x in pend: a(x)
    stamp(f'attn{t}')

cA, cB, cI, cNM, cCS, cT = 96, 98, 100, 104, 108, 16
csA = [120, 124]
PK3 = 112
def b3_steps(p, acc):
    o = []
    for n in range(32):
        j, s = divmod(n, 4)
        if p == 0:
            o.append(Step(W_3 + j, s, 't', acc, vPan + 4 * n, aslot=A_X1 + j, aread='p', c0='0' if n == 0 else None, lastw=(s == 3), lasta=(s == 3),
                          dur=150))
        else:
            o.append(Step(W_3 + 8 * p + j, s, 't', acc, vPan + 4 * n, c0='0' if n == 0 else None, lastw=(s == 3), dur=opt('DB3', 180)))
    return o
CSR = 36
setup3 = [f'v_mov_b32 v{r}, 0' for r in (cNM+2, cNM+3, cCS+2, cCS+3)] + \
         [f'v_lshrrev_b32 v{vX1}, 10, v{vP}', f'v_lshl_add_u32 v{vX0}, v{vX1}, 12, v{vX0}',
          f'v_and_b32 v120, 511, v{vP}', 'v_lshrrev_b32 v120, 2, v120', f'v_lshl_add_u32 v120, v{vX1}, 10, v120',
          f's_lshl_b32 s{sT0}, s{sCH}, 7\ns_add_u32 s{sT0}, s{sT0}, {GATE}\nv_add_u32 v120, s{sT0}, v120', 'v_add_u32 v121, 2048, v120', 'v_add_u32 v122, 4096, v120']
st_seq = [0]
def stats_load():
    for i in range(8): st_seq[0] = lg.issue(f'ds_read_b64 {vr(vA1+2*i,2)}, v{vX0} offset:{apos(A_ST)+512*i}')
    last_read[('A', A_ST)] = st_seq[0]
def cs_load():
    for p in range(3):
        for k in range(2): st_seq[0] = lg.issue(f'ds_read2_b32 {vr(CSR+4*p+2*k,2)}, v{120+p} offset0:{128*k} offset1:{128*k+64}')
sfin = [lambda: lg.wait(st_seq[0])]
for i in range(1, 8):
    sfin += [f'v_add_f32 v{vA1}, v{vA1}, v{vA1+2*i}', f'v_add_f32 v{vA1+1}, v{vA1+1}, v{vA1+2*i+1}']
sfin += [f'v_mov_b32 v{vX2}, v{vA1}', f'v_mov_b32 v{vX3}, v{vA1+1}', f'v_permlane32_swap_b32 v{vA1}, v{vX2}', f'v_permlane32_swap_b32 v{vA1+1}, v{vX3}',
         f'v_add_f32 v{vX2}, v{vA1}, v{vX2}', f'v_add_f32 v{vX3}, v{vA1+1}, v{vX3}']
lc3 = ln_consts(vX2, vX3, cA, cB, cI, cNM, cT)
lc3 = lc3[:15] + [f'v_cvt_pk_bf16_f32 v{cNM+1}, v{cT+1}, v{cT+1}']
def cs3(p, acc):
    c0 = CSR + 4 * p
    o = [f'v_add_f32 v{c0}, v{c0}, v{c0+1}', f'v_add_f32 v{c0+2}, v{c0+2}, v{c0+3}', f'v_add_f32 v{c0}, v{c0}, v{c0+2}']
    f = cs_fix(c0, cCS, cNM, acc, c0 + 1)
    return o + f[:4] + [f'v_mov_b32 v{cCS+1}, v{cCS}', f[4]]
def h3_epi(p, acc, s0, s1):
    nxt = [f's_add_u32 s{sOH3}, s{sOH3}, 65536']
    if p == 1: nxt += [f's_cmp_ge_u32 s{sC}, 6', f's_cselect_b32 s{sOH3}, {WS_REC}, s{sOH3}']
    g = gelu_sc(acc, cA, cB, cI, cT, PK3)
    s2 = store2(PK3, vP, sOH3)
    return spread(g[:60] + [s2[0]] + g[60:] + [s2[1], mark(5 + p), lambda: a('\n'.join(nxt))], s0, s1)
for x in setup3[4:] + o_final(1): a(x)
run_steps(b3_steps(0, vA0) + b3_steps(1, vA1) + b3_steps(2, vA0),
          merge({opt('PUB4', 24): [pubat(4)]}, {0: [stats_load], 2: [cs_load]}, spread(sfin + setup3[:4] + lc3 + cs3(0, vA0), 4, 30), {31: [st('B3 p0')], 63: [st('B3 p1')]},
                h3_epi(0, vA0, 35, 61), spread(cs3(1, vA1), 61, 64), {opt('PUB5', 80): [pubat(5)]}, h3_epi(1, vA1, 67, 93), spread(cs3(2, vA0), 93, 96)))
stamp('B3 p2')
tick(name='B3e', dur=450)
for x in gelu_pk(vA0, cA, cB, cI, vPan, vPan + 16): a(x)
for x in store2(vPan + 16, vP, sOH3): a(x)
if opt('PUB6', -1) < 0: want_pub(6)
stamp('B3 epi')
fin = [f'v_and_b32 v{vA0}, 511, v{vP}', f'v_lshlrev_b32 v{vA0}, 6, v{vA0}', f'v_lshrrev_b32 v{vA0+1}, 10, v{vP}', f'v_lshl_add_u32 v{vA0}, v{vA0+1}, 4, v{vA0}',
       f'v_sub_f32 v{vA0+2}, 1.0, v{vG}'] + [f'v_mul_f32 v{vA1+i}, v{vG}, v{vA1+i}' for i in range(16)]
steps = stream_steps(W_O, A_O, 32, vA1, c0='0') + stream_steps(W_4, A_H3, 86, vAB, phase=32)
run_steps(steps, merge({opt('PUB6', -1): [pubat(6)]}, {opt('PUB7', 20): [pubat(7)], 31: [st('A3')], 63: [st('B40')], 95: [st('B41')]}, spread(fin, 40, 68)))
stamp('A3B4')
for i in range(0, 16, 2): a(f'v_pk_fma_f32 {vr(vA1+i,2)}, {vr(vAB+i,2)}, {vr(vA0+2,2)}, {vr(vA1+i,2)} op_sel_hi:[1,0,1]')
for x in pack(vA1, PK): a(x)
a(f'''
v_permlane32_swap_b32 v{PK}, v{PK+2}
v_permlane32_swap_b32 v{PK+1}, v{PK+3}
v_permlane32_swap_b32 v{PK+4}, v{PK+6}
v_permlane32_swap_b32 v{PK+5}, v{PK+7}
buffer_store_dwordx4 {vr(PK,4)}, v{vA0}, {sr(sSRD,4)}, s{sOOUT} offen
buffer_store_dwordx4 {vr(PK+4,4)}, v{vA0}, {sr(sSRD,4)}, s{sOOUT} offen offset:32
''')
dbg_dump()
names = {'c': list(stamp_names)}
a('s_endpgm')
a.ins += ool.ins
sec_comp = a.ins; a.ins = []

NT = len(ticks)
tname = {t['name']: i for i, t in enumerate(ticks)}
def free_tick(kind, idx, ring):
    if idx < ring: return -1
    for i, t in enumerate(ticks):
        if (kind, idx - ring) in t['free']: return i
    raise Exception((kind, idx))
def use_tick(kind, idx):
    for i, t in enumerate(ticks):
        n = t['need' + kind]
        if n is not None and n >= idx: return i
    raise Exception((kind, idx))
pub_tick = {t['pub']: i for i, t in enumerate(ticks) if t['pub']}

grp_first = {A_H: 1, A_KE: 2, A_ST: 3, A_O: 4, A_H3: 5, A_H3 + 8: 6, A_H3 + 16: 7}
gate_tick = {1: use_tick('A', A_H) - opt('LA1', 5), 2: tname[{0: 'W39', 1: 'B2e', 2: 'W38'}[opt('G2', 0)]], 3: tname[{0: 'KVO', 1: 'rel1'}[opt('G3', 1)]],
             4: use_tick('A', A_O) - opt('LA4', 8), 5: use_tick('A', A_H3) - opt('LA5', 6),
             6: use_tick('A', A_H3 + 8) - opt('LA6', 6), 7: use_tick('A', A_H3 + 16) - opt('LA7', 6)}
for g, t in gate_tick.items(): assert t > pub_tick[g], (g, t, pub_tick[g])
def stage_of(i):
    st_ = 0
    for f, g in grp_first.items():
        if i >= f: st_ = g
    return st_
tstart = [0]
for t in ticks: tstart.append(tstart[-1] + t['dur'])
cost = lambda k, i: opt('CW3', 200) if k == 'W' and W_3 <= i < W_O else 240 if (k, i) == ('A', A_ST) else opt('CS', 140)
LEAD = opt('LEAD', 700)
plan = {}
nxt = {'W': 0, 'A': 0}
END = {'W': W_END, 'A': A_END}
RING = {'W': NW, 'A': NA}
bud = 0
for t in range(-1, NT - 1):
    bud = min(bud, opt('CARRY', 100)) + (opt('B0', 8) * 128 if t < 0 else ticks[t]['dur'] * opt('BUD', 100) // 100)
    while True:
        cands = []
        for k in 'AW':
            i = nxt[k]
            if i >= END[k] or free_tick(k, i, RING[k]) > t: continue
            if k == 'A' and stage_of(i) and gate_tick[stage_of(i)] > t: continue
            cands.append((use_tick(k, i), k, i))
        if not cands: break
        u, k, i = min(cands)
        must = u == t + 1 or (t >= 0 and tstart[u] - tstart[t + 1] < LEAD)
        if bud < cost(k, i) // 2 and not must: break
        plan.setdefault(t, []).append((k, i)); nxt[k] += 1; bud -= cost(k, i)
assert nxt == END, nxt

sOFF, sB3, sHW, sHA, sNEED = 51, 52, 53, 54, 55
sCH8 = 60
sAB = 68
sSRA = 80
a('L_load:')
a(f's_setprio {opt("PL", 3)}')
vS = {3072: 24, 1024: 28, 2752: 32}
vXo, vLin, vKVo = 10, 14, 36
a(f"""
s_sub_u32 s{sHA}, s{sWV}, 4
s_lshl_b32 s{sT0}, s{sHA}, 5
v_lshrrev_b32 v1, 3, v0
v_add_u32 v1, s{sT0}, v1
v_and_b32 v3, 7, v0
v_lshrrev_b32 v2, 4, v0
v_xor_b32 v2, v2, v3
v_lshlrev_b32 v4, 10, v1
v_lshl_add_u32 v{vXo}, v2, 4, v4
v_xor_b32 v2, 4, v2
v_lshl_add_u32 v{vXo+1}, v2, 4, v4
v_add_u32 v{vXo+1}, 7168, v{vXo+1}
v_add_u32 v{vXo+2}, 14336, v{vXo}
v_add_u32 v{vXo+3}, 14336, v{vXo+1}
v_bfe_u32 v2, v0, 4, 1
v_lshlrev_b32 v2, 2, v2
v_xor_b32 v2, v2, v3
v_lshlrev_b32 v2, 4, v2
s_lshl_b32 s{sT0}, s{sC}, 7
v_add_u32 v2, s{sT0}, v2
v_add_u32 v28, v4, v2
v_add_u32 v29, 7168, v28
v_add_u32 v30, 7168, v29
v_add_u32 v31, 7168, v30
s_lshl_b32 s{sHA}, s{sHA}, 12
s_add_u32 s{sHW}, s{sHA}, {WBASE}
s_lshl_b32 s{sAB}, s{sR}, 16
s_mov_b32 s{sSRA+2}, {2048*1024}
s_mov_b32 s{sSRA+3}, 0x20000
{f's_lshl_b32 s{sT0}, s{sROT}, 7' if ROT1 else f's_mov_b32 s{sT0}, 0'}
v_lshlrev_b32 v5, 4, v0
v_add_u32 v6, s{sT0}, v5
v_and_b32 v6, 1023, v6
""")
def chunk_table():
    for q in range(8):
        a(f's_add_u32 s{sCH8+q}, s{sROT}, {q}')
        a(f's_and_b32 s{sCH8+q}, s{sCH8+q}, 7')
if ROT1: chunk_table()
a(f"""
s_waitcnt lgkmcnt(0)
""")
dbg_start()
stamp('karg')
a(f"""
s_mov_b32 s{sSRA}, s{sX}
s_mov_b32 s{sSRA+1}, s{sX+1}
s_mov_b32 s{sSRD}, s{sGATE}
s_mov_b32 s{sSRD+1}, s{sGATE+1}
s_mov_b32 s{sSRD+2}, 1024
s_mov_b32 m0, {GATE}
s_mov_b32 s{sWSD}, s{sWS}
s_mov_b32 s{sWSD+1}, s{sWS+1}
buffer_load_dwordx4 v6, {sr(sSRD,4)}, 0 offen lds
""")
def late_setup():
    if not ROT1: chunk_table()
    for st_, b in ((3072, 24), (2752, 32)):
        a(f'v_mul_u32_u24 v3, {st_}, v1')
        a(f'v_add_u32 v{b}, v3, v2')
        for i in range(1, 4): a(f'v_add_u32 v{b+i}, {8*st_-1024}, v{b+i-1}')
    a(f"""
    v_add_u32 v{vLin}, s{sHA}, v5
    s_cmp_ge_u32 s{sC}, 6
    s_cselect_b32 s{sB3}, 0x200000, 0
    s_add_u32 s{sB3}, s{sB3}, 2048
    s_add_u32 s{sAB+1}, s{sAB}, {WS_H}
    s_add_u32 s{sAB+3}, s{sAB}, {WS_O}
    s_mul_i32 s{sAB+2}, s{sR}, {X1_STRIDE}
    s_add_u32 s{sAB+2}, s{sAB+2}, {WS_X1}
    s_mul_i32 s{sAB+4}, s{sR}, {H3_STRIDE}
    s_add_u32 s{sAB+4}, s{sAB+4}, {WS_H3}
    v_and_b32 v7, 512, v5
    v_mov_b32 v8, 0x80000000
    """)
    for i in range(5):
        a(f"""
        s_add_i32 s{sT1}, s{sR}, {i-4}
        s_max_i32 s{sT1}, s{sT1}, 0
        s_lshl_b32 s{sT1}, s{sT1}, 3
        s_add_u32 s{sT1}, s{sT1}, s{sC}
        s_lshl_b32 s{sT1}, s{sT1}, 14
        s_add_u32 s{sAB+5+i}, s{sT1}, {WS_KV}
        """)
        if i < 4:
            a(f"""
            s_cmp_lt_u32 s{sR}, {4-i}
            s_cselect_b64 vcc, -1, 0
            v_cndmask_b32 v{vKVo+2*i}, v{vLin}, v{7 if KDUP else 8}, vcc
            v_cndmask_b32 v{vKVo+2*i+1}, v{vLin}, v8, vcc
            """)
wdesc = []
for (ptr, size, st_, co) in ((sW1, 512*1024, 1024, 0), (sWQKV, 512*3072, 3072, 1024), (sWQKV, 512*3072, 3072, 2048), (sWQKV, 512*3072, 3072, 0),
                             (sW2, 512*1024, 1024, 0), (sW3, 512*2752, 2752, 0), (sW3, 512*2752, 2752, 1024), (sW3, 512*2752, 2752, f's{sB3}'),
                             (sWO, 512*1024, 1024, 0), (sW4, 1376*1024, 1024, 0), (sW4, 1376*1024, 1024, 512*1024)):
    for q in range(8): wdesc.append((ptr, size, st_, co, q))
for q in range(6): wdesc.append((sW4, 1376*1024, 1024, (16 + q) * 65536, None))
cur_mat = [None]
def w_issue(idx):
    ptr, size, st_, co, q = wdesc[idx]
    if cur_mat[0] != ptr:
        cur_mat[0] = ptr
        a(f's_mov_b32 s{sSRD}, s{ptr}')
        a(f's_mov_b32 s{sSRD+1}, s{ptr+1}')
        a(f's_mov_b32 s{sSRD+2}, {size}')
    a(f's_add_u32 m0, s{sHW}, {wpos(idx)}')
    if q is None: a(f's_mov_b32 s{sOFF}, {co}')
    elif idx < W_2 and not ROT1: a(f's_mov_b32 s{sOFF}, {co + 64*st_*q}')
    else:
        a(f's_mul_i32 s{sOFF}, s{sCH8+q}, {64*st_}')
        if co: a(f's_add_u32 s{sOFF}, s{sOFF}, {co}')
    for i in range(4): a(f'buffer_load_dwordx4 v{vS[st_]+i}, {sr(sSRD,4)}, s{sOFF} offen offset:{1024*i} lds')
    if idx % 8 == 7: stamp(f'w{idx}')
def a_issue(idx):
    a(f's_add_u32 m0, s{sHA}, {apos(idx)}')
    srd, vo = sWSD, [vLin] * 4
    def rot(base, q, extra=0):
        a(f's_lshl_b32 s{sOFF}, s{sCH8+q}, 13')
        a(f's_add_u32 s{sOFF}, s{sOFF}, s{base}')
        if extra: a(f's_add_u32 s{sOFF}, s{sOFF}, {extra}')
    if idx < A_H:
        if ROT1:
            a(f's_lshl_b32 s{sOFF}, s{sCH8+idx}, 7')
            a(f's_add_u32 s{sOFF}, s{sOFF}, s{sAB}')
        else: a(f's_add_u32 s{sOFF}, s{sAB}, {128*idx}')
        srd, vo = sSRA, [vXo + i for i in range(4)]
    elif idx < A_KE: rot(sAB + 1, idx - A_H)
    elif idx < A_ST:
        p, i = divmod(idx - A_KE, 5)
        a(f's_add_u32 s{sOFF}, s{sAB+5+i}, {8192*p}')
        if i < 4: vo = [vKVo + 2*i] * 2 + [vKVo + 2*i + 1] * 2
    elif idx == A_ST: a(f's_add_u32 s{sOFF}, s{sAB+2}, 65536')
    elif idx < A_O: rot(sAB + 2, idx - A_X1)
    elif idx < A_H3: rot(sAB + 3, idx - A_O)
    elif idx < A_H3 + 16: rot(sAB + 4, (idx - A_H3) % 8, 65536 * ((idx - A_H3) // 8))
    else: a(f's_add_u32 s{sOFF}, s{sAB+4}, {8192*(idx-A_H3)}')
    if idx == A_END - 1:
        a(f's_cmp_lg_u32 s{sHA}, 0')
        a(f's_cselect_b32 s{sOFF}, {WS_REC}, s{sOFF}')
    for i in range(4): a(f'buffer_load_dwordx4 v{vo[i]}, {sr(srd,4)}, s{sOFF} offen offset:{1024*i} sc1 lds')
    if idx == A_ST:
        a(f's_lshr_b32 s{sT0}, s{sHA}, 2')
        a(f's_sub_u32 s{sT0}, s{sHA}, s{sT0}')
        a(f's_add_u32 m0, s{sT0}, {GATE}')
        a(f's_lshl_b32 s{sOFF}, s{sC}, 13')
        a(f's_add_u32 s{sOFF}, s{sOFF}, s{sT0}')
        a(f's_add_u32 s{sOFF}, s{sOFF}, {WS_CS}')
        for i in range(3): a(f'buffer_load_dwordx4 v5, {sr(srd,4)}, s{sOFF} offen offset:{1024*i} sc1 lds')
    if idx in (15, 20, 33, 42, 64): stamp(f'a{idx}')
sSRP, sPI = 84, 88
pdesc = {'wqkv': (sWQKV, 512*3072, 3), 'w2': (sW2, 512*1024, 1), 'w3': (sW3, 512*2752, 3), 'wo': (sWO, 512*1024, 1), 'w4': (sW4, 1376*1024, 3)}
def p_issue(nm):
    ptr, size, n = pdesc[nm]
    a(f's_mov_b32 s{sSRP}, s{ptr}')
    a(f's_mov_b32 s{sSRP+1}, s{ptr+1}')
    a(f's_mov_b32 s{sSRP+2}, {size}')
    a(f's_mul_i32 s{sOFF}, s{sPI}, {1024*n}')
    for i in range(n): a(f'buffer_load_dwordx4 v[48:51], v5, {sr(sSRP,4)}, s{sOFF} offen offset:{1024*i}')
    return n
for nm, key, dflt in (('wqkv', 'PQ', 0), ('w2', 'P2', 0), ('w3', 'P3', -2), ('wo', 'PO', tname['rel0']), ('w4', 'P4', tname['rel0'])):
    t = opt(key, dflt)
    if t >= -1: plan.setdefault(t, []).append(('P', nm))
a(f's_mov_b32 s{sSRP+3}, 0x20000')
a(f's_lshl_b32 s{sPI}, s2, 1')
a(f's_add_u32 s{sPI}, s{sPI}, s{sWV}')
a(f's_sub_u32 s{sPI}, s{sPI}, 4')
nops = 0
endpos = {}
landed = 0
for t in range(-1, NT - 1):
    for k, i in plan.get(t, []):
        if k == 'P': nops += p_issue(i)
        else:
            (w_issue if k == 'W' else a_issue)(i); nops += 7 if (k, i) == ('A', A_ST) else 4
            endpos[(k, i)] = nops
    if t == -1: stamp('iss0'); late_setup(); stamp('late')
    pos = 0
    for k in 'AW':
        need = ticks[t + 1]['need' + k]
        if need is not None: pos = max(pos, endpos[(k, need)])
    if pos > landed:
        kk = min(nops - pos, 63)
        a(f's_waitcnt vmcnt({kk})')
        landed = nops - kk
    if t in (-1, 0, 1, 2, 3): stamp(f'rdy{t+1}')
    a('s_barrier')
dbg_dump()
names['w'] = list(stamp_names)
a('L_end:')
a('s_endpgm')

sFV, sFK = 68, 84
sMB = 56
a(f"""
L_flag:
s_setprio {opt("PL", 3)}
s_bitcmp1_b32 s{sC}, 1
s_cselect_b32 s{sT0}, -1, 1
s_add_u32 s{sT0}, s{sT0}, s{sR}
s_and_b32 s{sT0}, s{sT0}, 31
s_lshl_b32 s{sT0}, s{sT0}, 13
s_add_u32 s{sT0}, s{sT0}, {128 - 8*1024 + (1<<32)}
s_lshl_b32 s{sT1}, s{sR}, 13
v_mov_b32 v1, s{sT0}
v_mov_b32 v2, s{sT1}
v_cmp_gt_u32 vcc, 8, v0
v_cndmask_b32 v1, v1, v2, vcc
v_lshl_add_u32 v7, v0, 10, v1
s_lshl_b32 s{sT2}, s{sC}, 2
s_add_u32 s{sT2}, s{sT2}, {WS_MB}
v_add_u32 v7, s{sT2}, v7
s_lshl_b32 s{sT2}, s{sC}, 10
s_add_u32 s{sT2}, s{sT2}, {WS_MB}
s_add_u32 s{sT1}, s{sT1}, s{sT2}
v_mul_u32_u24 v6, {8192 - 4}, v0
v_add_u32 v6, s{sT1}, v6
v_add_u32 v6, {256 + 16}, v6
v_lshlrev_b32 v2, 2, v0
v_add_u32 v2, s{sT1}, v2
v_add_u32 v2, {256 - 32}, v2
v_cmp_gt_u32 vcc, 8, v0
v_cndmask_b32 v6, v2, v6, vcc
s_lshr_b32 s{sT0}, s{sR}, 3
s_lshl_b32 s{sT0}, s{sT0}, 7
s_and_b32 s{sT3}, s{sR}, 7
s_lshl_b32 s{sT3}, s{sT3}, 2
s_add_u32 s{sT0}, s{sT0}, s{sT3}
s_add_u32 s{sT0}, s{sT0}, s{sT2}
s_add_u32 s{sT0}, s{sT0}, {384 - 32*8192 + (1<<32)}
v_lshlrev_b32 v2, 13, v0
v_add_u32 v2, s{sT0}, v2
v_cmp_gt_u32 vcc, 32, v0
v_cndmask_b32 v6, v2, v6, vcc
v_lshrrev_b32 v8, 1, v0
v_lshlrev_b32 v8, 13, v8
v_and_b32 v9, 1, v0
v_lshl_add_u32 v8, v9, 4, v8
v_add_u32 v8, {WS_MB}, v8
s_min_u32 s{sT0}, s{sR}, 4
s_lshr_b32 s64, 15, s{sT0}
s_lshl_b32 s64, s64, 8
s_or_b32 s64, s64, 0x1e
s_mov_b32 s65, 0
s_mov_b32 s66, 0
s_mov_b32 s67, -1
s_waitcnt lgkmcnt(0)
""")
dbg_start()
a(f"""
s_load_dword s{sE}, {sr(sWS,2)}, {WS_E}
s_mov_b32 s{sWSD}, s{sWS}
s_mov_b32 s{sWSD+1}, s{sWS+1}
s_add_u32 s{sMB}, s{sWS}, s{sT1}
s_addc_u32 s{sMB+1}, s{sWS+1}, 0
""")
if opt('MBW', 1):
    for k in range(6): a(f's_load_dword s{4+k}, {sr(sMB,2)}, {128*k} glc')
a('s_waitcnt lgkmcnt(0)')
make_tag()
for q in range(20): a(f's_mov_b32 s{sFV+q}, s{sTAG}')
a(f'v_mov_b32 v17, s{sTAG}')
def poll(g):
    if g == 2: return [f's_load_dwordx4 {sr(sFK,4)}, {sr(sMB,2)}, 256 glc']
    return [f's_load_dwordx8 {sr(sFV+8*k,8)}, {sr(sMB,2)}, {128*k} glc' for k in range(2 if g == 1 else 1)]
def wait_flags(regs, loads, need, block=False):
    l1, l2 = a.new_label('P'), a.new_label('P')
    a(f's_add_u32 s{sNEED}, s{sTAG}, {need}')
    a(f'{l1}:')
    for k, sv in enumerate(regs):
        a(f's_sub_u32 s{sT0 + (1 if k else 0)}, s{sv}, s{sNEED}')
        if k: a(f's_max_u32 s{sT0}, s{sT0}, s{sT1}')
    a(f's_cmp_lt_u32 s{sT0}, {8-need}')
    a(f's_cbranch_scc1 {l2}')
    for x in loads: a(x)
    a(f"""
    s_sub_u32 s{sTO}, s{sTO}, 1
    s_cbranch_scc1 L_end
    {'s_waitcnt lgkmcnt(0)' if block else 's_sleep %d' % opt('PSL', 1)}
    s_branch {l1}
    {l2}:
    """)
PRE = opt('PRE', 900)
PEV = opt('PEV', 2)
gate_at = {t: g for g, t in gate_tick.items()}
assert len(gate_at) == 7
for i, t in enumerate(ticks):
    if t['name'] == 'rel1':
        a('s_waitcnt lgkmcnt(0)')
        cr = [4 + q for q in range(16)] + [sFV + 8 + q for q in range(8)]
        for q in cr: a(f's_mov_b32 s{q}, s{sTAG}')
        wait_flags(cr, [f's_load_dwordx8 {sr(b_,8)}, {sr(sMB,2)}, {384+128*k} glc' for k, b_ in enumerate((4, 12, sFV + 8))], 2, block=True)
    if i in gate_at:
        g = gate_at[i]
        wait_flags([sFK + q for q in range(4)] if g == 2 else [sFV + q for q in range(16 if g == 1 else 8)], poll(g), g)
        stamp(f'g{g}')
    if t['pub']:
        a('s_mov_b64 exec, -1')
        a(f'v_add_u32 v17, 1, v17')
        a(f's_mov_b64 exec, {({1: 0xffff, 2: "s[64:65]"}).get(t["pub"], 0xff)}')
    a('s_barrier')
    if t['pub']:
        a(f'buffer_store_dword v17, v{6 if t["pub"] == 2 else 7}, {sr(sWSD,4)}, 0 offen sc1')
        stamp(f'F{t["pub"]}')
    if t['name'] == 'KVE':
        a('s_mov_b64 exec, s[66:67]')
        a(f'buffer_store_dword v17, v6, {sr(sWSD,4)}, 0 offen sc1')
    for g, gt in gate_tick.items():
        d = gt - 1 - i
        if pub_tick[g] <= i and d > 0 and tstart[gt - 1] - tstart[i] <= PRE and d % PEV == 0:
            for x in poll(g): a(x)
a('s_waitcnt lgkmcnt(0)')
a('s_mov_b64 exec, -1')
a(f"""
s_cmp_lg_u32 s2, 0
s_cbranch_scc1 L_fend
s_add_u32 s{sT1}, s{sTAG}, 1
L_ebump:
buffer_load_dwordx4 v[32:35], v8, {sr(sWSD,4)}, 0 offen sc1
s_waitcnt vmcnt(0)
""")
for i in range(4): a(f'v_subrev_u32 v{32+i}, s{sT1}, v{32+i}')
a(f"""
v_max_u32 v32, v32, v33
v_max3_u32 v32, v32, v34, v35
v_cmp_gt_u32 vcc, 7, v32
s_cmp_eq_u64 vcc, -1
s_cbranch_scc1 L_ebump2
s_sub_u32 s{sTO}, s{sTO}, 1
s_cbranch_scc0 L_ebump
s_endpgm
L_ebump2:
v_mov_b32 v1, s{sTAG}
v_mov_b32 v2, {WS_E}
s_mov_b64 exec, 1
buffer_store_dword v1, v2, {sr(sWSD,4)}, 0 offen sc1
s_mov_b64 exec, -1
L_fend:
""")
dbg_dump()
names['s'] = list(stamp_names)
a('s_endpgm')
a('L_aux:')
if not TRACE:
    a(f's_cmp_ge_u32 s{sR}, 24')
    a('s_cbranch_scc1 L_end')
a(f"""
v_lshrrev_b32 v1, 3, v0
v_mul_u32_u24 v1, 2752, v1
v_and_b32 v2, 7, v0
v_lshl_add_u32 v1, v2, 4, v1
v_lshlrev_b32 v2, 5, v2
v_lshrrev_b32 v3, 5, v0
v_lshl_add_u32 v2, v3, 4, v2
v_bfe_u32 v3, v0, 4, 1
v_lshl_add_u32 v2, v3, 3, v2
s_and_b32 s{sT0}, s{sR}, 7
s_mul_i32 s60, s{sT0}, {64*2752}
s_lshr_b32 s{sT0}, s{sR}, 3
s_lshl_b32 s{sT0}, s{sT0}, 10
s_add_u32 s60, s60, s{sT0}
s_lshl_b32 s{sT0}, s{sC}, 7
s_add_u32 s60, s60, s{sT0}
s_lshl_b32 s61, s{sC}, 13
s_lshl_b32 s{sT0}, s{sR}, 8
s_add_u32 s61, s61, s{sT0}
s_add_u32 s61, s61, {WS_CS}
s_waitcnt lgkmcnt(0)
s_mov_b32 s{sSRD}, s{sW3}
s_mov_b32 s{sSRD+1}, s{sW3+1}
s_mov_b32 s{sSRD+2}, {512*2752}
s_mov_b32 s{sWSD}, s{sWS}
s_mov_b32 s{sWSD+1}, s{sWS+1}
""")
if TRACE:
    a(f'v_writelane_b32 v11, s{sST}, 60')
    a(f'v_writelane_b32 v11, s{sE}, 61')
TC0, TC1 = opt('TC0', 7), opt('TC1', 16)
CSP = tname['KVE']
ld = []
for i in range(8):
    ld += [f'buffer_load_dwordx4 {vr(64+4*i,4)}, v1, {sr(sSRD,4)}, s60 offen', f's_add_u32 s60, s60, {8*2752}']
wk = ['s_waitcnt vmcnt(0)']
for i in range(8):
    for d in range(4):
        src = 64 + 4 * i + d
        if i == 0: wk += [f'v_lshlrev_b32 v{20+2*d}, 16, v{src}', f'v_and_b32 v{21+2*d}, 0xffff0000, v{src}']
        else: wk += [f'v_lshlrev_b32 v28, 16, v{src}', f'v_and_b32 v29, 0xffff0000, v{src}', f'v_add_f32 v{20+2*d}, v{20+2*d}, v28', f'v_add_f32 v{21+2*d}, v{21+2*d}, v29']
for e in (0, 1, 4, 5): wk += [f'v_permlane16_swap_b32 v{20+e}, v{22+e}']
for e in (0, 1, 4, 5): wk += [f'v_add_f32 v{20+e}, v{20+e}, v{22+e}']
for e in (0, 1): wk += [f'v_permlane32_swap_b32 v{20+e}, v{24+e}']
for e in (0, 1): wk += [f'v_add_f32 v{20+e}, v{20+e}, v{24+e}']
for e in (0, 1): wk += [f'v_add_f32_dpp v{22+e}, v{20+e}, v{20+e} row_ror:8 row_mask:0xf bank_mask:0xf']
wk += [f'buffer_store_dwordx2 v[22:23], v2, {sr(sWSD,4)}, s61 offen sc1']
auxp = merge({TC0: ld}, spread(wk, TC1, TC1 + 8))
assert TC1 + 8 < CSP
for i in range(NT if TRACE else CSP + 1):
    if i == CSP: a('s_waitcnt vmcnt(0)')
    a('s_barrier')
    if TRACE:
        a(f's_memtime {sr(sST,2)}')
    for x in auxp.get(i, []): a(x)
    if TRACE:
        a('s_waitcnt lgkmcnt(0)')
        a(f'v_writelane_b32 v{10 + i // 64}, s{sST}, {i % 64}')
if not TRACE: a('s_endpgm')
if TRACE:
    a('s_barrier')
    a(f"""
    s_memtime {sr(sST,2)}
    s_memrealtime {sr(sE,2)}
    s_waitcnt lgkmcnt(0)
    v_writelane_b32 v11, s{sST}, 62
    v_writelane_b32 v11, s{sE}, 63
    s_mov_b32 s{sWSD}, s{sWS}
    s_mov_b32 s{sWSD+1}, s{sWS+1}
    s_mov_b32 s{sWSD+2}, {WS_REC}
    s_mov_b32 s{sWSD+3}, 0x20000
    v_lshlrev_b32 v1, 2, v0
    s_lshl_b32 s{sT0}, s2, 9
    s_add_u32 s{sT0}, s{sT0}, {WS_DBG + 0x80000}
    buffer_store_dword v10, v1, {sr(sWSD,4)}, s{sT0} offen
    buffer_store_dword v11, v1, {sr(sWSD,4)}, s{sT0} offen offset:256
    s_endpgm
    """)
    names['t'] = [t['name'] + (f'(g{gate_at[i]})' if i in gate_at else '') + (f'(p{t["pub"]})' if t['pub'] else '') for i, t in enumerate(ticks)]
    names['plan'] = [''.join(k.lower() for k, _ in plan.get(i, [])) for i in range(NT)]
a.ins = sec_pro + a.ins + sec_comp
a('L_last:')

nn = a.pad()
hdr = open(f'cdna_kernels/{NAME}.s.ref').read().split('; Override launch geometry')[0]
txt = hdr + f'''; @launch grid=(256,1,1) block=(512,1,1) lds={LDS_BYTES}
.amdgcn_target "amdgcn-amd-amdhsa--gfx950"
.text
.globl {NAME}_kernel
.p2align 8
.type {NAME}_kernel,@function
{NAME}_kernel:
''' + a.text() + f'''.section .rodata,"a"
.p2align 6
.amdhsa_kernel {NAME}_kernel
  .amdhsa_next_free_vgpr 256
  .amdhsa_next_free_sgpr 102
  .amdhsa_accum_offset 256
  .amdhsa_group_segment_fixed_size 0
  .amdhsa_kernarg_size 96
  .amdhsa_user_sgpr_count 2
  .amdhsa_user_sgpr_kernarg_segment_ptr 1
  .amdhsa_system_sgpr_workgroup_id_x 1
.end_amdhsa_kernel
'''
open(OUT, 'w').write(txt)
json.dump(names, open(OUT + '.names.json', 'w'))
if '--plan' in sys.argv:
    print('start', plan.get(-1))
    for i, t in enumerate(ticks):
        print(i, tstart[i], t['name'], 'needW', t['needW'], 'needA', t['needA'], 'pub', t['pub'], 'gate', gate_at.get(i), '| after:', plan.get(i))
print('instructions', sum(1 for i in a.ins if i.kind != 'meta'), 'nops inserted', nn, 'ticks', NT, file=sys.stderr)
```

```python
import re

TRANS = ('v_exp_f32', 'v_log_f32', 'v_rcp_f32', 'v_rsq_f32', 'v_sqrt_f32', 'v_sin_f32', 'v_cos_f32')

def regs_of(tok):
    tok = tok.strip()
    tok = tok.lstrip('-')
    if tok.startswith('abs(') or tok.startswith('|'):
        tok = tok.replace('abs(', '').replace(')', '').replace('|', '')
    m = re.fullmatch(r'([vsa])\[(\d+):(\d+)\]', tok)
    if m:
        return [f'{m.group(1)}{i}' for i in range(int(m.group(2)), int(m.group(3)) + 1)]
    m = re.fullmatch(r'([vsa])(\d+)', tok)
    if m:
        return [tok]
    if tok in ('vcc', 'exec', 'm0', 'scc'):
        return [tok]
    if tok in ('vcc_lo', 'vcc_hi'): return ['vcc']
    if tok in ('exec_lo', 'exec_hi'): return ['exec']
    return []

class Ins:
    __slots__ = ('text', 'op', 'dst', 'src', 'kind', 'passes', 'srcC', 'srcAB', 'label', 'wide_store')
    def __init__(self, text):
        self.text = text
        self.label = text.endswith(':')
        self.dst, self.src, self.srcC, self.srcAB = [], [], [], []
        self.passes = 0
        self.wide_store = []
        self.kind = 'other'
        if self.label or text.startswith('.') or text.startswith(';'):
            self.op = ''
            self.kind = 'meta'
            return
        body = text.split(';')[0].strip()
        parts = body.split(None, 1)
        op = parts[0]
        self.op = op
        ops = []
        if len(parts) > 1:
            ops = [o.strip() for o in re.split(r',(?![^\[]*\])', parts[1])]
            if ops:
                last = ops[-1].split()
                ops[-1] = last[0] if last else ''
        base = re.sub(r'_e(32|64)$', '', op)
        R = regs_of
        if base.startswith('v_mfma'):
            self.kind = 'mfma'
            self.dst = R(ops[0]); self.srcAB = R(ops[1]) + R(ops[2]); self.srcC = R(ops[3])
            self.src = self.srcAB + self.srcC
            self.passes = 8 if '32x32x16' in base else 4 if '16x16x32' in base else 2 if '4x4x4' in base else 16
        elif base.startswith('v_'):
            self.kind = 'valu'
            if base.startswith('v_cmp'):
                self.dst = R(ops[0]); self.src = sum((R(o) for o in ops[1:]), [])
            elif base.startswith('v_permlane32_swap') or base.startswith('v_permlane16_swap'):
                self.dst = R(ops[0]) + R(ops[1]); self.src = list(self.dst)
            elif base in ('v_add_co_u32', 'v_addc_co_u32', 'v_sub_co_u32'):
                self.dst = R(ops[0]) + R(ops[1]); self.src = sum((R(o) for o in ops[2:]), [])
            else:
                self.dst = R(ops[0]); self.src = sum((R(o) for o in ops[1:]), [])
                if base in ('v_fmac_f32', 'v_dot2c_f32_bf16'):
                    self.src += self.dst
        elif base.startswith('ds_'):
            self.kind = 'ds'
            if base.startswith('ds_read'):
                self.dst = R(ops[0]); self.src = R(ops[1])
            else:
                self.src = sum((R(o) for o in ops), [])
        elif base.startswith('buffer_') or base.startswith('global_'):
            self.kind = 'vmem'
            if ' lds' in (' ' + body.split(None, 1)[1]) and base.startswith('buffer_load'):
                self.src = sum((R(o) for o in ops), []) + ['m0']
                self.kind = 'dma'
            elif 'load' in base:
                self.dst = R(ops[0]); self.src = sum((R(o) for o in ops[1:]), [])
            elif 'atomic' in base:
                self.src = sum((R(o) for o in ops), [])
                if ' sc0' in body: self.dst = R(ops[0])
            else:
                self.src = sum((R(o) for o in ops), [])
                if base.endswith('x4') or base.endswith('x3'):
                    self.wide_store = R(ops[0]) if base.startswith('buffer_') else R(ops[1])
        elif base.startswith('s_'):
            self.kind = 'salu'
            if base in ('s_nop',):
                self.kind = 'nop'
            elif base.startswith('s_cbranch') or base in ('s_branch', 's_call_b64', 's_setpc_b64', 's_swappc_b64', 's_endpgm'):
                self.kind = 'branch'
            elif base.startswith('s_cmp') or base in ('s_waitcnt', 's_barrier', 's_sleep', 's_setprio', 's_set_gpr_idx_on', 's_set_gpr_idx_off'):
                self.src = sum((R(o) for o in ops), [])
            else:
                self.dst = R(ops[0]) if ops else []
                self.src = sum((R(o) for o in ops[1:]), [])
    def states(self):
        if self.kind == 'meta': return 0
        if self.kind == 'nop':
            return int(self.text.split()[1], 0) + 1
        return 1

def need(p, c):
    n = 0
    pd = set(p.dst)
    isv = lambda r: r[0] in 'va' and r not in ('vcc',)
    cbase = re.sub(r'_e(32|64)$', '', c.op)
    pbase = re.sub(r'_e(32|64)$', '', p.op)
    if p.kind == 'mfma':
        t = {2: 0, 4: 1, 8: 2, 16: 3}[p.passes]
        if c.kind == 'mfma':
            if pd & set(c.srcAB): n = max(n, (5, 8, 12, 20)[t])
            if pd & set(c.srcC):
                if c.srcC == p.dst and c.passes == p.passes: n = max(n, (2, 0, 0, 0)[t])
                else: n = max(n, (4, 6, 10, 18)[t])
            elif pd & set(c.dst):
                n = max(n, (4, 6, 10, 18)[t])
        elif c.kind in ('valu', 'ds', 'vmem', 'dma'):
            if pd & (set(c.src) | set(c.dst)): n = max(n, (5, 8, 12, 20)[t])
        if c.kind in ('valu',) and set(p.srcC) & set(c.dst):
            n = max(n, (1, 3, 7, 15)[t])
        if c.kind in ('ds', 'vmem') and set(p.srcC) & set(c.dst):
            n = max(n, (1, 3, 7, 15)[t])
    if p.kind == 'valu':
        vd = {r for r in pd if isv(r)}
        sd = pd - vd
        if c.kind == 'mfma' and vd & set(c.src): n = max(n, 2)
        if c.kind == 'valu':
            if cbase.startswith('v_permlane') and vd & set(c.src): n = max(n, 2)
            if cbase in ('v_readfirstlane_b32', 'v_readlane_b32') and vd & set(c.src): n = max(n, 1)
            if sd & set(c.src): n = max(n, 2)
            if 'vcc' in sd and cbase == 'v_cndmask_b32': n = max(n, 2)
            if pbase in TRANS and cbase not in TRANS and vd & set(c.src): n = max(n, 1)
            if pbase in TRANS and cbase in TRANS and vd & set(c.src): n = max(n, 1)
            if pbase.startswith('v_dot') and vd & (set(c.src) | set(c.dst)):
                if not (cbase == pbase and not (vd & set(c.src[:2]))): n = max(n, 3)
            if 'dpp' in c.text or 'row_' in c.text or 'quad_perm' in c.text:
                if vd & set(c.src): n = max(n, 2)
        if c.kind in ('vmem', 'dma') and sd & set(c.src): n = max(n, 5)
        if pbase.startswith('v_dot') and c.kind in ('ds', 'vmem', 'mfma') and vd & set(c.src): n = max(n, 3)
        if pbase in TRANS and c.kind in ('ds', 'vmem') and vd & set(c.src): n = max(n, 1)
        if c.kind == 'salu' and sd & set(c.src): n = max(n, 1)
    if p.kind == 'salu':
        if 'm0' in pd and c.kind == 'dma': n = max(n, 1)
    if p.wide_store and c.kind in ('valu', 'ds', 'vmem', 'mfma') and set(p.wide_store) & set(c.dst):
        n = max(n, 2)
    if p.kind == 'ds' and p.op.startswith('ds_write_b128') and c.kind == 'valu' and set(p.src[1:]) & set(c.dst):
        n = max(n, 2)
    return n

class Asm:
    def __init__(self):
        self.ins = []
        self.ool = []
        self.uid = 0
    def __call__(self, text):
        for t in text.split('\n'):
            t = t.strip()
            if t: self.ins.append(Ins(t))
    def new_label(self, p='L'):
        self.uid += 1
        return f'{p}_{self.uid}'
    def pad(self):
        out = []
        nn = 0
        for c in self.ins:
            if c.kind != 'meta':
                dist = 0
                req = 0
                for p in reversed(out):
                    if p.kind == 'meta': continue
                    if p.op in ('s_branch', 's_endpgm', 's_setpc_b64'): break
                    r = need(p, c) - dist
                    req = max(req, r)
                    dist += p.states()
                    if dist >= 20: break
                while req > 0:
                    k = min(req, 16)
                    out.append(Ins(f's_nop {k-1}'))
                    nn += 1
                    req -= k
            out.append(c)
        self.ins = out
        return nn
    def text(self):
        return '\n'.join(('' if i.label else '    ') + i.text for i in self.ins) + '\n'

def vr(b, n=1):
    return f'v{b}' if n == 1 else f'v[{b}:{b+n-1}]'
def sr(b, n=1):
    return f's{b}' if n == 1 else f's[{b}:{b+n-1}]'

import subprocess, tempfile, os
PROMOTE = ('v_mov_b32', 'v_add_f32', 'v_sub_f32', 'v_mul_f32', 'v_max_f32', 'v_min_f32', 'v_exp_f32', 'v_rcp_f32', 'v_rsq_f32',
           'v_and_b32', 'v_or_b32', 'v_xor_b32', 'v_lshlrev_b32', 'v_lshrrev_b32', 'v_add_u32', 'v_sub_u32', 'v_mov_b64')
def sizes_of(asm, prefix, extra=''):
    d = tempfile.mkdtemp()
    body = '\n'.join(i.text for i in asm.ins if not i.text.startswith('.p2align')) + '\n'
    open(d + '/a.s', 'w').write(prefix + body + extra)
    subprocess.check_call(['clang', '-x', 'assembler', '-target', 'amdgcn-amd-amdhsa', '-mcpu=gfx950', '-c', d + '/a.s', '-o', d + '/a.o'])
    out = subprocess.check_output(['llvm-objdump', '-d', '--mcpu=gfx950', d + '/a.o'], text=True)
    sz = []
    for l in out.split('\n'):
        m = re.search(r'// [0-9A-F]{12}: ((?:[0-9A-F]{8} ?)+)', l)
        if m: sz.append(4 * len(m.group(1).split()))
    return sz
def align8(asm, prefix, start_label, min_run=2, nop_run=6, nmark=0, stop_label='L_fb'):
    sz = sizes_of(asm, prefix, ''.join(f'L_pg{m}:\n' for m in range(nmark)))
    real = [i for i in asm.ins if i.kind != 'meta']
    assert len(real) == len(sz), (len(real), len(sz))
    size = {id(i): s for i, s in zip(real, sz)}
    out = []
    off = 0
    active = False
    paged = False
    page = -1
    marks = 0
    np_, nn_ = 0, 0
    for k, c in enumerate(asm.ins):
        if c.kind == 'meta':
            if c.text == start_label + ':': active = True
            if c.text == stop_label + ':': paged = False
            if c.text.startswith('.p2align 12'): off = 0; paged = True; page = -1
            out.append(c); continue
        s = size[id(c)]
        if nmark and paged and off // 4096 != page:
            page = off // 4096
            assert marks < nmark
            q = Ins(f's_cbranch_execz L_pr{marks}'); size[id(q)] = 4
            out.append(Ins(f'L_pg{marks}:')); out.append(q); off += 4; marks += 1
        if active and s == 8 and off % 8 == 4:
            run = 0
            for d in asm.ins[k:]:
                if d.kind == 'meta': continue
                if size[id(d)] != 8: break
                run += 1
            if run >= min_run:
                j = len(out) - 1
                done = False
                while j >= 0 and (out[j].kind == 'meta' or size.get(id(out[j]), 4) == 4):
                    p = out[j]
                    if p.kind == 'valu' and p.op in PROMOTE:
                        q = Ins(p.text.replace(p.op, p.op + '_e64', 1))
                        size[id(q)] = 8
                        out[j] = q; off += 4; done = True; np_ += 1
                        break
                    j -= 1
                if not done and run >= nop_run:
                    q = Ins('s_nop 0'); size[id(q)] = 4
                    out.append(q); off += 4; nn_ += 1
        out.append(c); off += s
    for m in range(marks, nmark):
        for j, x in enumerate(out):
            if x.text == f's_branch L_pg{m}': out[j] = Ins('s_nop 0')
    asm.ins = out
    return np_, nn_, marks
```

```python
import sys, struct, json
from asmlib import *

NAME = 'gated_mix__sliding_block__mixer_s_mlp__prompt'
DEBUG = '--debug' in sys.argv
TRACE = '--trace' in sys.argv
OUT = [x for x in sys.argv[1:] if not x.startswith('--')]
OUT = OUT[0] if OUT else f'cdna_kernels/{NAME}.s'
def opt(name, default):
    for x in sys.argv:
        if x.startswith(f'--{name}='): return int(x.split('=')[1])
    return default

NA, NW = 8, 11
ABASE, WBASE = 0, 65536
GATE = WBASE + NW * 8192
LDS_BYTES = 163840
FSH = 10
WS_E = 0x80000
WS_H, WS_KV, WS_X1, WS_O, WS_H3, WS_DBG = 0x100000, 0x300000, 0x700000, 0xA00000, 0xC00000, 0x1200000
X1_STRIDE = 73728
H3_STRIDE = 176 * 1024
WS_CS = 0x90000
WS_MB = 0x1400000
WS_REC = 0x1440000
VTAB = GATE + 7168
PD = opt('PD', 3)
TIMEOUT = 1 << 16
KDUP = 1
PAGES = opt('PAGES', 1)
ROT1 = opt('ROT1', 1)

def f32(x): return '0x%08x' % struct.unpack('<I', struct.pack('<f', x))[0]
LOG2E = 1.4426950408889634
C1 = 2 * 0.7978845608028654 * LOG2E
QSCALE = 0.25 * LOG2E

A_X, A_H, A_KE, A_KO, A_ST, A_X1, A_O, A_H3, A_END = 0, 8, 16, 21, 26, 27, 35, 43, 65
W_1, W_K, W_V, W_Q, W_2, W_3, W_O, W_4, W_END = 0, 8, 16, 24, 32, 40, 64, 72, 94
apos = lambda i: ABASE + (i % NA) * 8192
wpos = lambda i: (i % NW) * 8192

sX, sWQKV, sWO, sW1, sW2, sW3, sW4, sGATE, sOUT, sDBG, sWS = 4, 6, 8, 12, 14, 16, 18, 20, 22, 24, 26
sR, sC, sROT, sWV, sTAG, sTO = 28, 29, 30, 31, 32, 33
sRET = 34
sWSD = 36
sSRD = 40
sT0, sT1, sT2, sT3 = 47, 48, 49, 50
sHI = 52
sVM = 54
sGM = 56
sTT, sCH = 58, 59
sMASK = 60
sE = 92
sST = 94
sQ1, sQ2, sQ3 = 96, 98, 100
sRT1 = 46
sZM = 44

a = Asm()
ool = Asm()
ool.uid = 100000

class Lgkm:
    def __init__(self): self.n = 0; self.done = 0
    def issue(self, text):
        a(text); self.n += 1; return self.n
    def wait(self, seq):
        if seq <= self.done: return
        k = min(self.n - seq, 15)
        a(f's_waitcnt lgkmcnt({k})')
        self.done = self.n - k
    def all(self): self.wait(self.n)
lg = Lgkm()
def emit(x):
    if callable(x): x()
    elif x.startswith('ds_'): lg.issue(x)
    else: a(x)

nstamp = [0]
stamp_names = []
def stamp(name):
    if not DEBUG: return
    i = nstamp[0]; nstamp[0] += 1
    stamp_names.append(name)
    a(f's_memtime {sr(sST,2)}')
    a(f's_memrealtime s[2:3]'.replace('s[2:3]', 's[0:1]'))
    a('s_waitcnt lgkmcnt(0)')
    a(f'v_writelane_b32 v0, s{sST}, {i}')
    a(f'v_writelane_b32 v0, s0, {32+i}')
    assert i < 30
def st(name): return lambda: stamp(name)
def dbg_start():
    if not DEBUG: return
    a(f'v_mov_b32 v0, 0')
    a(f'v_writelane_b32 v0, s{sST}, 0')
    a(f'v_writelane_b32 v0, s{sE}, 62')
    nstamp[0] = 1; stamp_names.clear(); stamp_names.append('start')
def dbg_dump():
    if not DEBUG: return
    a('s_waitcnt vmcnt(0)')
    stamp('end')
    a(f'''
    s_memrealtime {sr(sST,2)}
    s_waitcnt lgkmcnt(0)
    v_writelane_b32 v0, s{sST}, 63
    s_mov_b32 s{sWSD}, s{sWS}
    s_mov_b32 s{sWSD+1}, s{sWS+1}
    v_mbcnt_lo_u32_b32 v1, -1, 0
    v_mbcnt_hi_u32_b32 v1, -1, v1
    v_lshlrev_b32 v1, 2, v1
    s_lshl_b32 s{sT0}, s2, 3
    s_add_u32 s{sT0}, s{sT0}, s{sWV}
    s_lshl_b32 s{sT0}, s{sT0}, 8
    s_add_u32 s{sT0}, s{sT0}, {WS_DBG}
    buffer_store_dword v0, v1, {sr(sWSD,4)}, s{sT0} offen
    ''')

if DEBUG or TRACE:
    a(f's_memtime {sr(sST,2)}')
    a(f's_memrealtime {sr(sE,2)}')
a(f'''
s_cmp_ge_u32 s2, 256
s_cbranch_scc1 L_end
s_load_dwordx16 s[4:19], s[0:1], 0
s_load_dwordx8 s[20:27], s[0:1], 64
v_lshrrev_b32 v1, 6, v0
v_and_b32 v0, 63, v0
v_readfirstlane_b32 s{sWV}, v1
s_cmp_eq_u32 s{sWV}, 6
s_cbranch_scc0 L_noaux
s_getpc_b64 s[56:57]
L_pc:
s_sub_u32 s56, s56, L_pc-{NAME}_kernel
s_subb_u32 s57, s57, 0
s_lshr_b32 s58, s2, 3
s_lshl_b32 s58, s58, 11
v_lshlrev_b32 v4, 4, v0
v_add_u32 v3, s58, v4
v_min_u32 v5, L_last-{NAME}_kernel-16, v3
global_load_dwordx4 v[32:35], v5, s[56:57]
v_add_u32 v3, 1024, v3
v_min_u32 v5, L_last-{NAME}_kernel-16, v3
global_load_dwordx4 v[36:39], v5, s[56:57]
L_noaux:
s_and_b32 s{sT0}, s2, 7
s_lshr_b32 s{sT1}, s2, 3
s_lshr_b32 s{sR}, s{sT0}, 1
s_lshl_b32 s{sR}, s{sR}, 3
s_lshr_b32 s{sT2}, s{sT1}, 2
s_add_u32 s{sR}, s{sR}, s{sT2}
s_and_b32 s{sC}, s{sT0}, 1
s_lshl_b32 s{sC}, s{sC}, 2
s_and_b32 s{sT2}, s{sT1}, 3
s_add_u32 s{sC}, s{sC}, s{sT2}
s_add_u32 s{sROT}, s{sR}, s{sC}
s_and_b32 s{sROT}, s{sROT}, 7
{ {0: f's_mov_b32 s{sRT1}, 0', 1: f's_mov_b32 s{sRT1}, s{sROT}', 2: f's_and_b32 s{sRT1}, s{sR}, 7',
   3: f's_lshl_b32 s{sRT1}, s{sC}, 2' + chr(10) + f's_add_u32 s{sRT1}, s{sRT1}, s{sR}' + chr(10) + f's_and_b32 s{sRT1}, s{sRT1}, 7',
   4: f's_lshl_b32 s{sRT1}, s{sC}, 1' + chr(10) + f's_add_u32 s{sRT1}, s{sRT1}, s{sR}' + chr(10) + f's_and_b32 s{sRT1}, s{sRT1}, 7'}[ROT1] }
s_mov_b32 s{sTO}, {TIMEOUT}
s_mov_b32 s{sWSD+2}, {WS_REC}
s_mov_b32 s{sWSD+3}, 0x20000
s_mov_b32 s{sSRD+3}, 0x20000
s_cmp_lt_u32 s{sWV}, 4
s_cbranch_scc1 L_comp
s_cmp_eq_u32 s{sWV}, 7
s_cbranch_scc1 L_flag
s_cmp_eq_u32 s{sWV}, 6
s_cbranch_scc1 L_aux
''')
sec_pro = a.ins; a.ins = []
if PAGES: a('.p2align 12')
a('L_comp:')
def make_tag():
    a(f'''
    s_add_u32 s{sE}, s{sE}, 0x9e3779b0
    s_and_b32 s{sTAG}, s{sE}, 0xfffffff0
    ''')

vWn0, vWn1, vWt0, vWt1, vP, vL16, vKr, vVr, vStV, vStH, vX0, vX1, vX2, vG, vX3 = range(1, 16)
vT = 16
vSel = 20
vWf = 24
vAf = 36
vA0, vA1, vAB = 48, 64, 80
vL = 96
vPan = 128
vQl = 120

a(f's_setprio {opt("PC", 0)}')
a(f'''
s_and_b32 s{sTT}, s{sWV}, 1
s_lshr_b32 s{sCH}, s{sWV}, 1
s_mov_b32 s{sHI}, 0
s_mov_b32 s{sHI+1}, -1
s_mov_b32 s{sVM}, 0xffff
s_mov_b32 s{sVM+1}, 0xffff
''')
L, TOK, H, T1, T2, T3, ROW = 'v0', 'v48', 'v49', 'v50', 'v51', 'v52', 'v53'
a(f'''
v_and_b32 {TOK}, 31, {L}
v_lshrrev_b32 {H}, 5, {L}
v_lshlrev_b32 v{vL16}, 4, {L}
''')
a(f'''
v_bfe_u32 {T1}, {L}, 3, 1
v_xor_b32 {T1}, s{sCH}, {T1}
v_lshlrev_b32 {T1}, 6, {T1}
v_bfe_u32 {T2}, {L}, 4, 1
v_lshl_add_u32 {T1}, {T2}, 5, {T1}
v_and_b32 {T2}, 3, {L}
v_lshl_add_u32 {T1}, {T2}, 3, {T1}
v_bfe_u32 {T2}, {L}, 2, 2
v_lshl_add_u32 {T1}, {T2}, 7, {T1}
v_add_u32 {T1}, {WBASE}, {T1}
v_lshl_add_u32 v{vWn0}, {H}, 10, {T1}
v_add_u32 v{vWn1}, 65536, v{vWn0}
v_lshl_add_u32 v{vWt0}, {H}, 9, {T1}
v_add_u32 v{vWt1}, 65536, v{vWt0}
''')
a(f'''
v_lshlrev_b32 {T1}, 4, {TOK}
v_lshl_add_u32 {T1}, {H}, 10, {T1}
s_lshl_b32 s{sT0}, s{sTT}, 9
v_add_u32 v{vP}, s{sT0}, {T1}
s_lshl_b32 s{sT0}, s{sTT}, 12
s_lshl_b32 s{sT1}, s{sCH}, 10
s_add_u32 s{sT0}, s{sT0}, s{sT1}
v_add_u32 v{vKr}, s{sT0}, v{vL16}
s_add_u32 s{sT0}, s{sT0}, 2048
v_and_b32 {T2}, 15, {L}
v_lshlrev_b32 {T2}, 4, {T2}
v_lshl_add_u32 {T2}, {H}, 8, {T2}
v_add_u32 v{vVr}, s{sT0}, {T2}
v_bfe_u32 {T3}, {L}, 4, 1
v_lshl_add_u32 v{vStV}, {T3}, 13, v{vVr}
s_lshl_b32 s{sT0}, s{sTT}, 4
s_add_u32 s{sT0}, s{sT0}, {VTAB}
v_mov_b32 {T1}, s{sT0}
v_cndmask_b32 v{vVr}, {T1}, v{vVr}, {sr(sVM,2)}
s_lshl_b32 s{sT0}, s{sR}, 1
v_lshlrev_b32 {T1}, 4, {TOK}
v_lshl_add_u32 {T1}, {H}, 9, {T1}
v_add_u32 {T1}, {VTAB}, {T1}
v_add_u32 {T2}, s{sT0}, {TOK}
v_cmp_le_u32 vcc, 8, {T2}
v_mov_b32 {T2}, 0x3f803f80
v_cndmask_b32 v{vL+8}, 0, {T2}, vcc
v_mov_b32 v{vL+9}, v{vL+8}
v_mov_b32 v{vL+10}, v{vL+8}
v_mov_b32 v{vL+11}, v{vL+8}
ds_write_b128 {T1}, {vr(vL+8,4)}
''')
a(f'''
s_lshr_b32 s{sT0}, s{sC}, 2
s_add_u32 s{sT0}, s{sT0}, 1
s_sub_u32 s{sT1}, 0, s{sT0}
s_bitcmp1_b32 s{sC}, 1
s_cselect_b32 s{sT0}, s{sT1}, s{sT0}
s_lshl_b32 s{sT1}, s{sR}, 6
s_add_u32 s{sT0}, s{sT0}, s{sT1}
s_lshl_b32 s{sT1}, s{sTT}, 5
s_add_u32 s{sT0}, s{sT0}, s{sT1}
v_add_u32 {T1}, s{sT0}, {TOK}
v_mov_b32 {T2}, 2047
v_cmp_gt_u32 {sr(sZM,2)}, {T1}, {T2}
v_and_b32 {T1}, {T2}, {T1}
v_lshrrev_b32 {T2}, 6, {T1}
v_and_b32 {T1}, 63, {T1}
v_lshlrev_b32 {T1}, 4, {T1}
v_lshl_add_u32 {T1}, {T2}, 16, {T1}
v_lshl_add_u32 v{vStH}, {H}, 10, {T1}
''')
a(f'''
v_bfe_u32 {T1}, {L}, 4, 1
v_bfe_u32 {T2}, {L}, 2, 1
v_cmp_eq_u32 {sr(sGM,2)}, {T1}, {T2}
v_mov_b32 {T3}, 0x3f803f80
v_cndmask_b32 v{vSel}, 0, {T3}, {sr(sGM,2)}
v_mov_b32 v{vSel+1}, v{vSel}
v_mov_b32 v{vSel+2}, v{vSel}
v_mov_b32 v{vSel+3}, v{vSel}
v_and_b32 {T1}, 3, {L}
v_cmp_eq_u32 vcc, 0, {T1}
v_cmp_eq_u32 {sr(sQ1,2)}, 1, {T1}
v_cmp_eq_u32 {sr(sQ2,2)}, 2, {T1}
v_cmp_eq_u32 {sr(sQ3,2)}, 3, {T1}
s_and_b64 vcc, vcc, {sr(sGM,2)}
s_and_b64 {sr(sGM,2)}, {sr(sGM,2)}, {sr(sQ1,2)}
v_mov_b32 v40, {GATE+2176}
v_mov_b32 {T1}, {GATE+1088}
v_cndmask_b32 v40, v40, {T1}, vcc
v_lshlrev_b32 {T1}, 4, {H}
v_add_u32 {T1}, {GATE}, {T1}
v_cndmask_b32 v40, v40, {T1}, {sr(sGM,2)}
v_add_u32 {T1}, {GATE+1088}, v{vL16}
v_mov_b32 v{vL}, {T3}
v_mov_b32 v{vL+1}, {T3}
v_mov_b32 v{vL+2}, {T3}
v_mov_b32 v{vL+3}, {T3}
v_mov_b32 v{vL+4}, 0
v_mov_b32 v{vL+5}, 0
v_mov_b32 v{vL+6}, 0
v_mov_b32 v{vL+7}, 0
ds_write_b128 {T1}, {vr(vL,4)}
ds_write_b128 {T1}, {vr(vL+4,4)} offset:1088
''')
vXa, vGa, vRa = 36, 40, 41
a(f'''
s_lshl_b32 s{sT0}, s{sTT}, 5
v_add_u32 {ROW}, s{sT0}, {TOK}
v_bfe_u32 {T1}, {ROW}, 1, 3
v_lshlrev_b32 {ROW}, 7, {ROW}
v_xor_b32 {T2}, {T1}, {H}
''')
for s in range(4):
    a(f'v_xor_b32 {T3}, {2*s}, {T2}')
    a(f'v_lshl_add_u32 v{vXa+s}, {T3}, 4, {ROW}')
a(f'''
s_sub_u32 s{sT0}, s{sC}, s{sRT1}
s_and_b32 s{sT0}, s{sT0}, 7
s_lshl_b32 s{sT0}, s{sT0}, 13
v_add_u32 {ROW}, s{sT0}, {ROW}
v_lshl_add_u32 {ROW}, {H}, 3, {ROW}
s_lshl_b32 s{sT0}, s{sCH}, 2
v_xor_b32 {T2}, s{sT0}, {T1}
''')
for j in range(4):
    a(f'v_xor_b32 {T3}, {j}, {T2}')
    a(f'v_lshl_add_u32 v{vRa+j}, {T3}, 4, {ROW}')
a(f'v_lshlrev_b32 {T1}, 2, {H}')
a(f'v_sub_u32 {T1}, {TOK}, {T1}')
for r in range(16):
    a(f'v_cmp_gt_i32 {sr(sMASK+2*r,2)}, {(r & 3) + 8 * (r >> 2)}, {T1}')
a('s_waitcnt lgkmcnt(0)')
dbg_start()
sOH, sOK0, sOK1, sOX1, sOST, sOO, sOH3, sOOUT, sJV, sNEG, sTILE = range(4, 15)
a(f'''
s_mov_b32 s{sSRD}, s{sOUT}
s_mov_b32 s{sSRD+1}, s{sOUT+1}
s_mov_b32 s{sSRD+2}, {2048*1024}
s_mov_b32 s{sWSD}, s{sWS}
s_mov_b32 s{sWSD+1}, s{sWS+1}
s_lshl_b32 s{sTILE}, s{sC}, 13
s_lshl_b32 s{sT1}, s{sCH}, 12
s_add_u32 s{sTILE}, s{sTILE}, s{sT1}
s_add_u32 s{sOH}, s{sTILE}, {WS_H}
s_lshl_b32 s{sOK0}, s{sR}, 3
s_add_u32 s{sOK0}, s{sOK0}, s{sC}
s_lshl_b32 s{sOK0}, s{sOK0}, 14
s_add_u32 s{sOK0}, s{sOK0}, {WS_KV}
s_add_u32 s{sOK1}, s{sOK0}, 8192
s_mul_i32 s{sT0}, s{sR}, {X1_STRIDE}
s_add_u32 s{sT0}, s{sT0}, {WS_X1}
s_add_u32 s{sOX1}, s{sT0}, s{sTILE}
s_lshr_b32 s{sOST}, s{sTILE}, 3
s_add_u32 s{sOST}, s{sOST}, s{sT0}
s_add_u32 s{sOST}, s{sOST}, 65536
s_lshl_b32 s{sT0}, s{sR}, 16
s_add_u32 s{sOO}, s{sT0}, s{sTILE}
s_add_u32 s{sOO}, s{sOO}, {WS_O}
s_lshl_b32 s{sT1}, s{sTT}, 15
s_add_u32 s{sOOUT}, s{sT0}, s{sT1}
s_lshr_b32 s{sT1}, s{sTILE}, 6
s_add_u32 s{sOOUT}, s{sOOUT}, s{sT1}
s_mul_i32 s{sOH3}, s{sR}, {H3_STRIDE}
s_add_u32 s{sOH3}, s{sOH3}, s{sTILE}
s_add_u32 s{sOH3}, s{sOH3}, {WS_H3}
s_lshl_b32 s{sJV}, s{sR}, 1
s_add_u32 s{sJV}, s{sJV}, s{sTT}
s_sub_i32 s{sJV}, 8, s{sJV}
s_max_i32 s{sJV}, s{sJV}, 0
s_mov_b32 s{sNEG}, {f32(-1e30)}
''')

ticks = []
last_read = {}
freed = set()
pub_next = [None]
def want_pub(stage): pub_next[0] = stage
stage_mark = {}
def nstores(): return sum(1 for i in a.ins if i.op.startswith('buffer_store'))
def mark(stage): return lambda: stage_mark.__setitem__(stage, nstores())
def tick(needW=None, needA=None, name='', dur=140):
    pub = pub_next[0]; pub_next[0] = None
    if pub: a(f's_waitcnt vmcnt({nstores() - stage_mark.get(pub, nstores())})')
    a('s_barrier')
    fr = [k for k, s in last_read.items() if s <= lg.done and k not in freed]
    freed.update(fr)
    ticks.append(dict(needW=needW, needA=needA, free=fr, pub=pub, name=name, dur=dur))

class Step:
    def __init__(self, w, s, order, acc, act, aslot=None, aread=None, swap=False, c0=None, pre=None, post=None, lastw=False, lasta=False, cs=None, cs0=False, xa=None, dur=140):
        self.__dict__.update(locals())

def run_steps(steps, fill=None):
    fill = fill or {}
    seqs = {}
    def reads(n):
        s_ = steps[n]
        if s_.s == 0: tick(s_.w, s_.aslot if s_.xa is None else s_.xa, f'W{s_.w}', s_.dur)
        if s_.pre: s_.pre()
        if s_.aread == 'x':
            lg.issue(f'ds_read_b128 {vr(s_.act,4)}, v{vXa+s_.s} offset:{apos(s_.aslot)}')
        elif s_.aread == 'p':
            lg.issue(f'ds_read_b128 {vr(s_.act,4)}, v{vP} offset:{apos(s_.aslot)+s_.s*2048}')
        off = wpos(s_.w) + s_.s * 2048
        b0, b1 = (vWn0, vWn1) if s_.order == 'n' else (vWt0, vWt1)
        base = b0
        if off >= 65536: off -= 65536; base = b1
        d = 512 if s_.order == 'n' else 1024
        f = vWf + (n % 3) * 4
        lg.issue(f'ds_read_b64_tr_b16 {vr(f,2)}, v{base} offset:{off}')
        seqs[n] = lg.issue(f'ds_read_b64_tr_b16 {vr(f+2,2)}, v{base} offset:{off+d}')
        if s_.lastw: last_read[('W', s_.w)] = seqs[n]
        if s_.lasta: last_read[('A', s_.aslot)] = seqs[n]
    for n in range(min(PD, len(steps))): reads(n)
    for n, s_ in enumerate(steps):
        fl = list(fill.get(n, []))
        lg.wait(seqs[n])
        f = vWf + (n % 3) * 4
        c = s_.c0 if s_.c0 is not None else vr(s_.acc, 16)
        A, B = (vr(f, 4), vr(s_.act, 4)) if not s_.swap else (vr(s_.act, 4), vr(f, 4))
        if s_.post: s_.post()
        if s_.cs is not None:
            a(f'v_mfma_f32_16x16x32_bf16 {vr(s_.cs,4)}, {vr(vSel,4)}, {vr(f,4)}, {"0" if s_.cs0 else vr(s_.cs,4)}')
            for _ in range(2):
                if fl and isinstance(fl[0], str) and fl[0].startswith('v_') and not fl[0].startswith('v_mfma'): emit(fl.pop(0))
        a(f'v_mfma_f32_32x32x16_bf16 {vr(s_.acc,16)}, {A}, {B}, {c}')
        if n + PD < len(steps): reads(n + PD)
        for x in fl: emit(x)

def spread(items, start, end):
    d = {}
    n = end - start
    for i, x in enumerate(items):
        d.setdefault(start + i * n // len(items), []).append(x)
    return d
def merge(*ds):
    o = {}
    for d in ds:
        for k, v in d.items(): o.setdefault(k, []).extend(v)
    return o
def pack(acc, dst): return [f'v_cvt_pk_bf16_f32 v{dst+i}, v{acc+2*i}, v{acc+2*i+1}' for i in range(8)]
def store2(pk, voff, s0, s1=None, d=2048):
    return [f'buffer_store_dwordx4 {vr(pk,4)}, v{voff}, {sr(sWSD,4)}, s{s0} offen sc1',
            f'buffer_store_dwordx4 {vr(pk+4,4)}, v{voff}, {sr(sWSD,4)}, s{s0 if s1 is None else s1} offen offset:{d} sc1']
def pubat(stage): return lambda: want_pub(stage)

def ln_consts(sum_, sq, vCA, vCB, vIR, vNM, t):
    return f'''v_mul_f32 v{t}, {f32(-1.0/512)}, v{sum_}
    v_mul_f32 v{t+1}, v{t}, v{t}
    v_mov_b32 v{t+2}, {f32(1.0/512)}
    v_fma_f32 v{t+1}, v{sq}, v{t+2}, -v{t+1}
    v_max_f32 v{t+1}, 0, v{t+1}
    v_add_f32 v{t+1}, {f32(1e-5)}, v{t+1}
    v_rsq_f32 v{t+2}, v{t+1}
    v_cvt_pk_bf16_f32 v{vNM}, v{t}, v{t}
    v_mul_f32 v{vIR}, v{t+1}, v{t+2}
    v_mul_f32 v{vCA}, {f32(-C1)}, v{t+2}
    v_mul_f32 v{t+1}, v{t+2}, v{t+2}
    v_mul_f32 v{t+1}, {f32(0.044715)}, v{t+1}
    v_mul_f32 v{vCB}, v{vCA}, v{t+1}
    v_lshlrev_b32 v{t+1}, 16, v{vNM}
    v_sub_f32 v{t+1}, v{t}, v{t+1}
    v_cvt_pk_bf16_f32 v{t+1}, v{t+1}, v{t+1}
    v_cndmask_b32 v{vNM}, v{vNM}, v{t+1}, {sr(sHI,2)}'''.replace('    ', '').split('\n')
def cs_fix(cs, vCSA, vNM, acc, t):
    return [f'v_cvt_pk_bf16_f32 v{t}, v{cs}, v{cs}',
            f'v_lshlrev_b32 v{t}, 16, v{t}',
            f'v_sub_f32 v{t}, v{cs}, v{t}',
            f'v_cvt_pk_bf16_f32 v{vCSA}, v{cs}, v{t}',
            f'v_mfma_f32_32x32x16_bf16 {vr(acc,16)}, {vr(vCSA,4)}, {vr(vNM,4)}, {vr(acc,16)}']
def gelu_pk(acc, vCA, vCB, vIR, tmp, dst):
    o = []
    for i in range(0, 16, 2): o.append(f'v_pk_mul_f32 {vr(tmp+i,2)}, {vr(acc+i,2)}, {vr(acc+i,2)}')
    for i in range(0, 16, 2): o.append(f'v_pk_fma_f32 {vr(tmp+i,2)}, {vr(tmp+i,2)}, {vr(vCB,2)}, {vr(vCA,2)} op_sel_hi:[1,0,0]')
    for i in range(0, 16, 2): o.append(f'v_pk_mul_f32 {vr(tmp+i,2)}, {vr(tmp+i,2)}, {vr(acc+i,2)}')
    for i in range(16): o.append(f'v_exp_f32 v{tmp+i}, v{tmp+i}')
    for i in range(0, 16, 2): o.append(f'v_pk_fma_f32 {vr(tmp+i,2)}, {vr(tmp+i,2)}, {vr(vIR,2)}, {vr(vIR,2)} op_sel_hi:[1,0,0]')
    for i in range(16): o.append(f'v_rcp_f32 v{tmp+i}, v{tmp+i}')
    for i in range(0, 16, 2): o.append(f'v_pk_mul_f32 {vr(tmp+i,2)}, {vr(tmp+i,2)}, {vr(acc+i,2)}')
    for i in range(0, 16, 2): o.append(f'v_cvt_pk_bf16_f32 v{dst+i//2}, v{tmp+i}, v{tmp+i+1}')
    return o
def gelu_sc(acc, vCA, vCB, vIR, tmp, dst):
    o = []
    def chain(e, t):
        return [f'v_mul_f32 v{t}, v{acc+e}, v{acc+e}', f'v_fma_f32 v{t}, v{t}, v{vCB}, v{vCA}', f'v_mul_f32 v{t}, v{t}, v{acc+e}',
                f'v_exp_f32 v{t}, v{t}', f'v_fma_f32 v{t}, v{t}, v{vIR}, v{vIR}', f'v_rcp_f32 v{t}, v{t}', f'v_mul_f32 v{t}, v{t}, v{acc+e}']
    for g in range(0, 16, 2):
        t = tmp + (g & 2)
        c0, c1 = chain(g, t), chain(g + 1, t + 1)
        for x, y in zip(c0, c1): o += [x, y]
        o.append(f'v_cvt_pk_bf16_f32 v{dst+g//2}, v{t}, v{t+1}')
    return o

vCS, vSG, vSQ = 64, 68, 72
steps = []
for n in range(32):
    j, s = divmod(n, 4)
    P = vPan + 4 * n
    G = vL + 16 + (n % 3) * 4
    def pre(n=n, G=G):
        lg.issue(f'ds_read_b128 {vr(G,4)}, v{vGa} offset:{n*32}')
    def post(n=n, s=s, P=P, G=G):
        if s == 3:
            for q in range(8):
                sq = vSQ + 4 * (q & 3)
                Pq = P - 12 + 2 * q
                a(f'v_mfma_f32_4x4x4_16b_bf16 {vr(sq,4)}, {vr(Pq,2)}, {vr(Pq,2)}, {"0" if n == 3 and q < 4 else vr(sq,4)}')
        a(f'v_mfma_f32_16x16x32_bf16 {vr(vSG,4)}, {vr(G,4)}, {vr(P,4)}, {"0" if n == 0 else vr(vSG,4)}')
    steps.append(Step(W_1 + j, s, 'n', vA0, P, aslot=A_X + j, aread='x', c0='0' if n == 0 else None, pre=pre, post=post, lastw=(s == 3), cs=vCS, cs0=(n == 0), dur=opt('DB1', 360)))
stamp('setup')
RES = vAB + 8
cA, cB, cI, cNM, cCS, cT = vL, vL + 2, vL + 4, vL + 8, vL + 12, vAf + 9
def res_reads():
    for j in range(4): q = lg.issue(f'ds_read_b64 {vr(RES+2*j,2)}, v{vRa+j}')
    for j in range(8): last_read[('A', A_X + j)] = q
zer = [f'v_mov_b32 v{r}, 0' for r in (cNM+1, cNM+2, cNM+3, cCS+1, cCS+2, cCS+3)]
def h_touch():
    a('s_mov_b32 exec_lo, 0x80000001')
    a('s_mov_b32 exec_hi, 0x80000001')
    a(f'buffer_load_dword v{vX2}, v{vStH}, {sr(sWSD,4)}, s{sOH} offen')
    a(f'buffer_load_dword v{vX3}, v{vStH}, {sr(sWSD,4)}, s{sOH} offen offset:2048')
    a('s_mov_b64 exec, -1')
run_steps(steps, merge({0: [st('s0')], 15: [st('s15')], 29: [res_reads], opt('HT', -1): [h_touch]}, spread(zer, 4, 10)))
stamp('B1 loop')
for i in range(8): a(f'v_add_f32 v{vSQ+i}, v{vSQ+i}, v{vSQ+8+i}')
for i in range(4): a(f'v_add_f32 v{vSQ+i}, v{vSQ+i}, v{vSQ+4+i}')
for i, m in ((1, sQ1), (2, sQ2), (3, sQ3)): a(f'v_cndmask_b32 v{vSQ}, v{vSQ}, v{vSQ+i}, {sr(m,2)}')
a(f'''
v_mov_b32 v{vSQ+1}, v{vSQ}
v_mul_f32 v{vG}, {f32(-LOG2E)}, v{vSG+1}
v_exp_f32 v{vG}, v{vG}
v_permlane32_swap_b32 v{vSQ}, v{vSQ+1}
v_add_f32 v{vSQ}, v{vSQ}, v{vSQ+1}
''')
lc = ln_consts(vSG, vSQ, cA, cB, cI, cNM, cT)
for x in [lc[0], lc[7]] + [y.replace(f'v{cT+1}', f'v{cT+2}') for y in lc[13:17]]: a(x)
for x in cs_fix(vCS, cCS, cNM, vA0, cT + 2): a(x)
lg.all()
tick(name='B1e', dur=600) if not opt('GI', 16) else None
for x in lc[1:7] + [f'v_add_f32 v{vG}, 1.0, v{vG}'] + lc[8:13] + [f'v_rcp_f32 v{vG}, v{vG}']: a(x)
PK = vAf
GI = opt('GI', 16)
zm = [f'v_cndmask_b32 v{PK+i}, v{PK+i}, 0, {sr(sZM,2)}' for i in range(8)]
hs2 = store2(PK, vStH, sOH)
hfill = {}
if GI:
    g = gelu_sc(vA0, cA, cB, cI, vT, PK)
    hfill = spread(g[:60] + zm[:4] + g[60:] + zm[4:] + ['\n'.join(hs2), mark(1)], 0, GI)
else:
    for x in gelu_pk(vA0, cA, cB, cI, vA1, PK) + zm + hs2: a(x)
    mark(1)()
aK, aV, aQ = (vA1, vA0, vA1) if GI else (vA0, vA1, vA0)
stamp('B1 epi')

steps = []
for p, (w0, acc, swap) in enumerate(((W_K, aK, False), (W_V, aV, True), (W_Q, aQ, False))):
    for n in range(32):
        j, s = divmod(n, 4)
        steps.append(Step(w0 + j, s, 'n', acc, vPan + 4 * n, swap=swap, c0='0' if n == 0 else None, lastw=(s == 3)))
unres = []
for j in range(8):
    unres += [f'v_lshlrev_b32 v{vAB+2*j}, 16, v{RES+j}', f'v_and_b32 v{vAB+2*j+1}, 0xffff0000, v{RES+j}']
def stream_steps(w0, a0, nsteps, acc, c0=None, phase=0):
    o = []
    for n in range(nsteps):
        j, s = divmod(n, 4)
        last = s == 3 or n == nsteps - 1
        o.append(Step(w0 + j, s, 't', acc, vAf + ((n + phase) % 3) * 4, aslot=a0 + j, aread='p', c0=c0 if n == 0 else None, lastw=last, lasta=last))
    return o
PKS = vL + 16
vK, vV = 128, 164
M8 = [20, 21, 22, 23, 252, 253, 254, 255]
vVs, vVm, vVa = vWn0, vWn1, vL16
att_pre = [f'v_mov_b32 v{vK+1}, 0xffff0000', f'v_mov_b32 v{vK+2}, 0xffff']
for i in range(8):
    att_pre += [f'v_cndmask_b32 v{M8[i]}, 0, v{vK+2}, {sr(sMASK+4*i,2)}', f'v_cndmask_b32 v{vK}, 0, v{vK+1}, {sr(sMASK+4*i+2,2)}', f'v_or_b32 v{M8[i]}, v{M8[i]}, v{vK}']
att_pre += [f'v_add_u32 v{vX2}, 61440, v{vKr}', f'v_and_b32 v{vX2}, 0xffff, v{vX2}', f'v_mov_b32 v{vK+3}, 4096',
            f'v_cndmask_b32 v{vVs}, 16, v{vK+3}, {sr(sVM,2)}', f'v_cndmask_b32 v{vVm}, -1, v{vK+2}, {sr(sVM,2)}',
            f'v_mov_b32 v{vK+3}, {apos(A_KO)}', f'v_cndmask_b32 v{vX3}, 0, v{vK+3}, {sr(sVM,2)}', f'v_add_u32 v{vX3}, v{vX3}, v{vVr}']
qfin = [f'v_mul_f32 v{aQ+i}, {f32(QSCALE)}, v{aQ+i}' for i in range(16)] + pack(aQ, vQl)
sta = [f'v_and_b32 v{vX0}, 1023, v{vP}', f'v_lshrrev_b32 v{vX0}, 1, v{vX0}', f'v_mov_b32 v{vX1}, 0x3f803f80']
steps += stream_steps(W_2, A_H, 32, vAB, phase=96)
fill = merge(hfill, spread(unres + sta, 44, 62), {31: [st('K')], 63: [st('V')], 95: [st('Q')]},
             {opt('PUB1', GI + 20): [pubat(1)]},
             spread(pack(aK, vL), 35, 39), {opt('KST', 67): store2(vL, vKr, sOK0, sOK1, 0)},
             spread(pack(aV, PKS), 66, 69), {68: store2(PKS, vStV, sOK0, None, 512)},
             {opt('PUB2', 92): [pubat(2)]},
             spread(qfin, 99, 111), spread(att_pre, 111, 128))
run_steps(steps, fill)
stamp('B2 loop')
for x in pack(vAB, PK): a(x)
for x in store2(PK, vP, sOX1): a(x)
for i in range(8):
    a(f'v_dot2_f32_bf16 v{vA0}, v{PK+i}, v{vX1}, {"0" if i==0 else "v%d"%vA0}')
    a(f'v_dot2_f32_bf16 v{vA0+1}, v{PK+i}, v{PK+i}, {"0" if i==0 else "v%d"%(vA0+1)}')
a(f'''
v_mov_b32 v{vA0+2}, v{vA0}
v_mov_b32 v{vA0+3}, v{vA0+1}
v_permlane32_swap_b32 v{vA0}, v{vA0+2}
v_permlane32_swap_b32 v{vA0+1}, v{vA0+3}
v_add_f32 v{vA0}, v{vA0}, v{vA0+2}
v_add_f32 v{vA0+1}, v{vA0+1}, v{vA0+3}
buffer_store_dwordx2 {vr(vA0,2)}, v{vX0}, {sr(sWSD,4)}, s{sOST} offen sc1
''')
tick(name='B2e', dur=600)
stamp('B2 epi')

vCB_, vM8 = 24, 40
vS0, vS1, vMG, vO = 236, 96, 64, 48
Kf = lambda j: vK + 4 * j
Vf = lambda j, b: vV + 8 * j + 4 * b
MF = lambda d, x, y, c: f'v_mfma_f32_32x32x16_bf16 {vr(d,16)}, {vr(x,4)}, {vr(y,4)}, {c if c == "0" else vr(c,16)}'
def kv_addr(a0, j, plain, wrapped):
    off = (apos(a0) + 4096 * j) % 65536
    return (wrapped, 0) if off == 61440 else (plain, off)
kseq = {}
def k_read(a0, j):
    r_, off = kv_addr(a0, j, vKr, vX2)
    kseq[j] = lg.issue(f'ds_read_b128 {vr(Kf(j),4)}, v{r_} offset:{off}')
vseq = {}
def v_ops(a0, j, last=False):
    base = vVr if a0 == A_KE else vX3
    ad = vVa if j else base
    def r0():
        if j:
            a(f'v_mad_u32_u24 v{vVa}, v{vVs}, {j}, v{base}')
            if apos(a0) + 4096 * (j + 1) >= 65536: a(f'v_and_b32 v{vVa}, v{vVm}, v{vVa}')
        lg.issue(f'ds_read_b128 {vr(Vf(j,0),4)}, v{ad}')
    def r1():
        vseq[j] = lg.issue(f'ds_read_b128 {vr(Vf(j,1),4)}, v{ad} offset:512')
        if last:
            for i in range(5): last_read[('A', a0 + i)] = vseq[j]
    return [r0, r1]
assert apos(A_KE) == 0
vMx, vMy = vT, vT + 1
sFL = [96, 98]
def o_norm(pk):
    return ([f'v_rcp_f32 v{vO+9}, v{vO+8}'] + [f'v_mul_f32 v{vO+i}, v{vO+i}, v{vO+9}' for i in range(8)] +
            [f'v_cvt_pk_bf16_f32 v{pk+i}, v{vO+2*i}, v{vO+2*i+1}' for i in range(4)])
def o_final(t):
    n = o_norm(112 + 4 * t)
    chk = [f'v_subrev_u32 v{vO+10}, {63<<23}, v{vO+8}', f'v_lshrrev_b32 v{vO+10}, 30, v{vO+10}', f'v_cmp_ne_u32 {sr(sFL[t],2)}, 0, v{vO+10}']
    fin = [f'v_add_f32_e64 v{vO+11}, |v{vO}|, |v{vO+1}|'] + [f'v_add_f32_e64 v{vO+11}, v{vO+11}, |v{vO+i}|' for i in range(2, 8)] + \
          [f'v_cmp_class_f32 vcc, v{vO+11}, v{vT+2}', f's_nop 0\ns_or_b64 {sr(sFL[t],2)}, {sr(sFL[t],2)}, vcc']
    return n[:1] + chk + n[1:] + (store2(112, vP, sOO) if t == 1 else []) + fin
rq = []
gap = [0]
mq = []
mgap = [0]
def va(x, cost=4):
    a(x)
    gap[0] += cost; mgap[0] += cost
    if mq and mgap[0] >= 24:
        mq.pop(0)(); mgap[0] = 0
    elif rq and gap[0] >= opt('RG', 16):
        rq.pop(0)(); gap[0] = 0
def flush(q):
    while q: q.pop(0)()
def QK(d, j, t):
    def f():
        lg.wait(kseq[j]); a(MF(d, Kf(j), vQl + 4 * t, '0'))
    return f
def PV(j, b, p, c):
    def f():
        lg.wait(vseq[j]); a(MF(vO, Vf(j, b), p, c))
    return f
a(f'v_mov_b32 v{vT+2}, 0x207')
tick(needA=A_KE + 4, name='KVE', dur=opt('DKVE', 500))
for j in (0, 8, 1, 2): k_read(A_KE, j)
for f in v_ops(A_KE, 0) + v_ops(A_KE, 8): f()
QK(vMG, 0, 0)(); QK(vCB_, 8, 0)(); QK(vS0, 1, 0)()
for j in range(3, 8): k_read(A_KE, j)
for j in range(1, 8): rq += v_ops(A_KE, j, j == 7)
KI = opt('KI', 5)
bufs2 = [vS0, vS1]
pend = []
for t in range(2):
    mq += pend
    if t == 1:
        mq.append(QK(vS0, 1, 1))
        mq.append(lambda: rq.extend(v_ops(A_KO, 7, True)))
    for r in range(16): va(f'v_cndmask_b32 v{vMG+r}, v{vCB_+r}, v{vMG+r}, {sr(sMASK+2*r,2)}')
    mq.append(QK(vS1, 2, t))
    for r in range(16): va(f'v_exp_f32 v{vMG+r}, v{vMG+r}', 8)
    flush(mq)
    if t == 1:
        for x in o_final(0): va(x)
    for i in range(8): va(f'v_cvt_pk_bf16_f32 v{vMG+i}, v{vMG+2*i}, v{vMG+2*i+1}')
    for i in range(8): va(f'v_and_b32 v{vMG+8+i}, v{vMG+i}, v{M8[i]}')
    mq.append(PV(0, 0, vMG + 8, '0'))
    for i in range(8): va(f'v_xor_b32 v{vMG+i}, v{vMG+i}, v{vMG+8+i}')
    flush(mq)
    pend = [PV(0, 1, vMG + 12, vO), PV(8, 0, vMG, vO), PV(8, 1, vMG + 4, vO)]
    kdone, vdone = set(), set()
    for i in range(7):
        b = bufs2[i % 2]
        if i == (1 if t == 0 else 0):
            flush(rq); lg.all()
        if t == 0 and i == opt('PUB3', 1): want_pub(3)
        if t == 0 and i == KI: tick(needA=A_KO + 4, name='KVO', dur=380)
        else: tick(name=f'T{t}{i}', dur=200 if i < 6 else 900 if t == 0 else 400)
        if t == 0 and i >= KI:
            for j in [0, 8] + list(range(1, i + 2)):
                if j not in kdone: kdone.add(j); rq.append(lambda j=j: k_read(A_KO, j))
            for j in [0, 8] + list(range(1, i)):
                if j not in vdone: vdone.add(j); rq += v_ops(A_KO, j)
        mq += pend
        if 0 < i < 6: mq.append(QK(bufs2[(i + 1) % 2], i + 2, t))
        if t == 0 and i == 6:
            mq.append(lambda: rq.extend(v_ops(A_KO, 6)))
            mq += [QK(vMG, 0, 1), QK(vCB_, 8, 1)]
        mgap[0] = 16
        for r in range(16): va(f'v_exp_f32 v{b+r}, v{b+r}', 8)
        flush(mq)
        for q in range(8): va(f'v_cvt_pk_bf16_f32 v{b+q}, v{b+2*q}, v{b+2*q+1}')
        pend = [PV(1 + i, 0, b, vO), PV(1 + i, 1, b + 4, vO)]
    flush(rq)
    mgap[0] = 24
for f in pend: f()

def emit_fallback():
    global a
    keep = a; a = Asm(); a.uid = 500000
    Qf, tk, tv = 40, 44, 45
    a('L_fb:')
    a(f's_mov_b32 s{sT3}, 0')
    a('L_fb_head:')
    a(f"""
    s_cmp_eq_u32 s{sT3}, 0
    s_cselect_b64 vcc, {sr(sFL[0],2)}, {sr(sFL[1],2)}
    s_cmp_eq_u64 vcc, 0
    s_cbranch_scc1 L_fb_next
    s_cmp_eq_u32 s{sT3}, 0
    s_cselect_b64 vcc, -1, 0
    """)
    for i in range(4): a(f'v_cndmask_b32 v{Qf+i}, v{vQl+4+i}, v{vQl+i}, vcc')
    a(f"""
    v_and_b32 v46, 4095, v{vKr}
    v_and_b32 v47, 4095, v{vStV}
    v_mov_b32 v{vT+3}, 0x3f803f80
    """)
    for j in range(9):
        a(f"""
        s_add_u32 s{sT0}, s{sTT}, {j}
        s_lshr_b32 s{sT1}, s{sT0}, 1
        s_lshl_b32 s{sT1}, s{sT1}, 17
        s_and_b32 s{sT0}, s{sT0}, 1
        s_lshl_b32 s{sT0}, s{sT0}, 12
        s_add_u32 s{sT0}, s{sT0}, s{sT1}
        s_add_u32 s{sT0}, s{sT0}, s{sOK0}
        s_sub_u32 s{sT0}, s{sT0}, {4<<17}
        s_lshl_b32 s{sT1}, s{sR}, 17
        s_sub_u32 s{sT1}, s{sOK0}, s{sT1}
        s_cmp_le_u32 s{sJV}, {j}
        s_cselect_b32 s{sT0}, s{sT0}, s{sT1}
        s_cselect_b32 s{sT1}, -1, 0xe00
        s_cselect_b32 s{sT2}, -1, 0
        s_cselect_b64 vcc, -1, 0
        s_add_u32 s{sT0}, s{sT0}, s{sT3}
        v_and_b32 v{tk}, s{sT1}, v46
        v_mov_b32 v{tv}, 0x80000000
        v_cndmask_b32 v{tv}, v{tv}, v47, vcc
        v_and_b32 v{Vf(j,0)}, s{sT2}, v{vT+3}
        """)
        for i in range(1, 8): a(f'v_mov_b32 v{Vf(j,0)+i}, v{Vf(j,0)}')
        a(f"""
        buffer_load_dwordx4 {vr(Kf(j),4)}, v{tk}, {sr(sWSD,4)}, s{sT0} offen sc1
        s_mov_b64 exec, {sr(sVM,2)}
        buffer_load_dwordx4 {vr(Vf(j,0),4)}, v{tv}, {sr(sWSD,4)}, s{sT0} offen sc1
        buffer_load_dwordx4 {vr(Vf(j,1),4)}, v{tv}, {sr(sWSD,4)}, s{sT0} offen offset:512 sc1
        s_mov_b64 exec, -1
        """)
    a('s_waitcnt vmcnt(0)')
    a(MF(vMG, Kf(0), Qf, '0')); a(MF(vS0, Kf(8), Qf, '0'))
    for r in range(16): a(f'v_cndmask_b32 v{vMG+r}, v{vS0+r}, v{vMG+r}, {sr(sMASK+2*r,2)}')
    a(f'v_max_f32 v{vMx}, v{vMG}, v{vMG+1}')
    for q in range(2, 16, 2): a(f'v_max3_f32 v{vMx}, v{vMG+q}, v{vMG+q+1}, v{vMx}')
    for j in range(1, 8):
        a(MF(vS0, Kf(j), Qf, '0'))
        for q in range(0, 16, 2): a(f'v_max3_f32 v{vMx}, v{vS0+q}, v{vS0+q+1}, v{vMx}')
    a(f'v_mov_b32 v{vMy}, v{vMx}')
    a(f'v_permlane32_swap_b32 v{vMx}, v{vMy}')
    a(f'v_min_f32_e64 v{vCB_}, -v{vMx}, -v{vMy}')
    for i in range(1, 16): a(f'v_mov_b32 v{vCB_+i}, v{vCB_}')
    for r in range(16): a(f'v_add_f32 v{vMG+r}, v{vMG+r}, v{vCB_}')
    for r in range(16): a(f'v_exp_f32 v{vMG+r}, v{vMG+r}')
    for i in range(8): a(f'v_cvt_pk_bf16_f32 v{vMG+i}, v{vMG+2*i}, v{vMG+2*i+1}')
    for i in range(8): a(f'v_and_b32 v{vMG+8+i}, v{vMG+i}, v{M8[i]}')
    for i in range(8): a(f'v_xor_b32 v{vMG+i}, v{vMG+i}, v{vMG+8+i}')
    for x in (MF(vO, Vf(0, 0), vMG + 8, '0'), MF(vO, Vf(0, 1), vMG + 12, vO), MF(vO, Vf(8, 0), vMG, vO), MF(vO, Vf(8, 1), vMG + 4, vO)): a(x)
    for j in range(1, 8):
        a(MF(vS0, Kf(j), Qf, vCB_))
        for r in range(16): a(f'v_exp_f32 v{vS0+r}, v{vS0+r}')
        for q in range(8): a(f'v_cvt_pk_bf16_f32 v{vS0+q}, v{vS0+2*q}, v{vS0+2*q+1}')
        a(MF(vO, Vf(j, 0), vS0, vO)); a(MF(vO, Vf(j, 1), vS0 + 4, vO))
    for x in o_norm(vS1): a(x)
    a(f"""
    s_lshr_b32 s{sT0}, s{sT3}, 2
    s_add_u32 s{sT0}, s{sT0}, s{sOO}
    buffer_store_dwordx4 {vr(vS1,4)}, v{vP}, {sr(sWSD,4)}, s{sT0} offen sc1
    s_waitcnt vmcnt(0)
    L_fb_next:
    s_add_u32 s{sT3}, s{sT3}, 8192
    s_cmp_eq_u32 s{sT3}, 8192
    s_cbranch_scc1 L_fb_head
    s_nop 7
    s_branch L_fb_done
    """)
    ool.ins += a.ins
    a = keep
emit_fallback()

cA, cB, cI, cNM, cCS, cT = 96, 98, 100, 104, 108, 16
csA = [120, 124]
PK3 = 112
def b3_steps(p, acc):
    o = []
    for n in range(32):
        j, s = divmod(n, 4)
        if p == 0:
            o.append(Step(W_3 + j, s, 't', acc, vPan + 4 * n, aslot=A_X1 + j, aread='p', c0='0' if n == 0 else None, lastw=(s == 3), lasta=(s == 3),
                          dur=opt('DB30', 200)))
        else:
            o.append(Step(W_3 + 8 * p + j, s, 't', acc, vPan + 4 * n, c0='0' if n == 0 else None, lastw=(s == 3), dur=opt('DB3', 230)))
    return o
CSR = 36
setup3 = [f'v_mov_b32 v{r}, 0' for r in (cNM+2, cNM+3, cCS+2, cCS+3)] + \
         [f'v_lshrrev_b32 v{vX1}, 10, v{vP}', f'v_lshl_add_u32 v{vX0}, v{vX1}, 12, v{vX0}',
          f'v_and_b32 v120, 511, v{vP}', 'v_lshrrev_b32 v120, 2, v120', f'v_lshl_add_u32 v120, v{vX1}, 10, v120',
          f's_lshl_b32 s{sT0}, s{sCH}, 7\ns_add_u32 s{sT0}, s{sT0}, {GATE}\nv_add_u32 v120, s{sT0}, v120', 'v_add_u32 v121, 2048, v120', 'v_add_u32 v122, 4096, v120']
st_seq = [0]
def stats_load():
    for i in range(8): st_seq[0] = lg.issue(f'ds_read_b64 {vr(vA1+2*i,2)}, v{vX0} offset:{apos(A_ST)+512*i}')
    last_read[('A', A_ST)] = st_seq[0]
def cs_load():
    for p in range(3):
        for k in range(2): st_seq[0] = lg.issue(f'ds_read2_b32 {vr(CSR+4*p+2*k,2)}, v{120+p} offset0:{128*k} offset1:{128*k+64}')
sfin = [lambda: lg.wait(st_seq[0])]
for i in range(1, 8):
    sfin += [f'v_add_f32 v{vA1}, v{vA1}, v{vA1+2*i}', f'v_add_f32 v{vA1+1}, v{vA1+1}, v{vA1+2*i+1}']
sfin += [f'v_mov_b32 v{vX2}, v{vA1}', f'v_mov_b32 v{vX3}, v{vA1+1}', f'v_permlane32_swap_b32 v{vA1}, v{vX2}', f'v_permlane32_swap_b32 v{vA1+1}, v{vX3}',
         f'v_add_f32 v{vX2}, v{vA1}, v{vX2}', f'v_add_f32 v{vX3}, v{vA1+1}, v{vX3}']
lc3 = ln_consts(vX2, vX3, cA, cB, cI, cNM, cT)
lc3 = lc3[:15] + [f'v_cvt_pk_bf16_f32 v{cNM+1}, v{cT+1}, v{cT+1}']
def cs3(p, acc):
    c0 = CSR + 4 * p
    o = [f'v_add_f32 v{c0}, v{c0}, v{c0+1}', f'v_add_f32 v{c0+2}, v{c0+2}, v{c0+3}', f'v_add_f32 v{c0}, v{c0}, v{c0+2}']
    f = cs_fix(c0, cCS, cNM, acc, c0 + 1)
    return o + f[:4] + [f'v_mov_b32 v{cCS+1}, v{cCS}', f[4]]
def h3_epi(p, acc, s0, s1):
    nxt = [f's_add_u32 s{sOH3}, s{sOH3}, 65536']
    if p == 1: nxt += [f's_cmp_ge_u32 s{sC}, 6', f's_cselect_b32 s{sOH3}, {WS_REC}, s{sOH3}']
    g = gelu_sc(acc, cA, cB, cI, cT, PK3)
    s2 = store2(PK3, vP, sOH3)
    return spread(g + ['\n'.join(s2), mark(5 + p), lambda: a('\n'.join(nxt))], s0, s1)
for x in setup3[4:6] + o_final(1): a(x)
a(f's_or_b64 vcc, {sr(sFL[0],2)}, {sr(sFL[1],2)}')
a('s_cbranch_scc1 L_fb')
a('L_fb_done:')
for x in setup3[6:]: a(x)
fin = [f'v_and_b32 v{vA0}, 511, v{vP}', f'v_lshlrev_b32 v{vA0}, 6, v{vA0}', f'v_lshrrev_b32 v{vA0+1}, 10, v{vP}', f'v_lshl_add_u32 v{vA0}, v{vA0+1}, 4, v{vA0}',
       f'v_sub_f32 v{vA0+2}, 1.0, v{vG}'] + [f'v_mul_f32 v{vA1+i}, v{vG}, v{vA1+i}' for i in range(16)]
G0, G1, G2 = opt('GL0', 22), opt('GL1', 24), opt('GL2', 24)
a3 = stream_steps(W_O, A_O, 32, vA1, c0='0', phase=96)
for x in a3: x.dur = opt('DA3', 250)
run_steps(b3_steps(0, vA0) + b3_steps(1, vA1) + b3_steps(2, vA0) + a3 + stream_steps(W_4, A_H3, 86, vAB, phase=128),
          merge({opt('PUB4', 20): [pubat(4)]}, {0: [stats_load], 2: [cs_load]}, spread(sfin + setup3[:4] + lc3 + cs3(0, vA0), 4, 30),
                h3_epi(0, vA0, 35, 35 + G0), spread(cs3(1, vA1), 60, 64), {opt('PUB5', 35 + G0 + 16): [pubat(5)]},
                spread(cs3(2, vA0), 64, 67), h3_epi(1, vA1, 67, 67 + G1), {opt('PUB6', 67 + G1 + 14): [pubat(6)]},
                h3_epi(2, vA0, 99, 99 + G2), {opt('PUB7', 99 + G2 + 16): [pubat(7)]}, spread(fin, 136, 164)))
stamp('A3B4')
for i in range(0, 16, 2): a(f'v_pk_fma_f32 {vr(vA1+i,2)}, {vr(vAB+i,2)}, {vr(vA0+2,2)}, {vr(vA1+i,2)} op_sel_hi:[1,0,1]')
for x in pack(vA1, PK): a(x)
a(f'''
v_permlane32_swap_b32 v{PK}, v{PK+2}
v_permlane32_swap_b32 v{PK+1}, v{PK+3}
v_permlane32_swap_b32 v{PK+4}, v{PK+6}
v_permlane32_swap_b32 v{PK+5}, v{PK+7}
buffer_store_dwordx4 {vr(PK,4)}, v{vA0}, {sr(sSRD,4)}, s{sOOUT} offen
buffer_store_dwordx4 {vr(PK+4,4)}, v{vA0}, {sr(sSRD,4)}, s{sOOUT} offen offset:32
''')
dbg_dump()
names = {'c': list(stamp_names)}
a('s_endpgm')
a.ins += ool.ins
sec_comp = a.ins; a.ins = []

NT = len(ticks)
tname = {t['name']: i for i, t in enumerate(ticks)}
def free_tick(kind, idx, ring):
    if idx < ring: return -1
    for i, t in enumerate(ticks):
        if (kind, idx - ring) in t['free']: return i
    raise Exception((kind, idx))
def use_tick(kind, idx):
    for i, t in enumerate(ticks):
        n = t['need' + kind]
        if n is not None and n >= idx: return i
    raise Exception((kind, idx))
pub_tick = {t['pub']: i for i, t in enumerate(ticks) if t['pub']}

grp_first = {A_H: 1, A_KE: 2, A_ST: 3, A_O: 4, A_H3: 5, A_H3 + 8: 6, A_H3 + 16: 7}
gate_tick = {1: use_tick('A', A_H) - opt('LA1', 6), 2: tname[{0: 'W39', 1: 'B2e', 2: 'W38'}[opt('G2', 2)]], 3: tname[f'T1{opt("G3", 0)}'],
             4: use_tick('A', A_O) - opt('LA4', 9), 5: use_tick('A', A_H3) - opt('LA5', 5),
             6: use_tick('A', A_H3 + 8) - opt('LA6', 5), 7: use_tick('A', A_H3 + 16) - opt('LA7', 5)}
for g, t in gate_tick.items(): assert t > pub_tick[g], (g, t, pub_tick[g])
def stage_of(i):
    st_ = 0
    for f, g in grp_first.items():
        if i >= f: st_ = g
    return st_
tstart = [0]
for t in ticks: tstart.append(tstart[-1] + t['dur'])
cost = lambda k, i: opt('CW3', 200) if k == 'W' and W_3 <= i < W_O else 240 if (k, i) == ('A', A_ST) else opt('CS', 140)
LEAD = opt('LEAD', 700)
plan = {}
nxt = {'W': 0, 'A': 0}
END = {'W': W_END, 'A': A_END}
RING = {'W': NW, 'A': NA}
bud = 0
for t in range(-1, NT - 1):
    bud = min(bud, opt('CARRY', 100)) + (opt('B0', 8) * 128 if t < 0 else ticks[t]['dur'] * opt('BUD', 100) // 100)
    while True:
        cands = []
        for k in 'AW':
            i = nxt[k]
            if i >= END[k] or free_tick(k, i, RING[k]) > t: continue
            if k == 'A' and stage_of(i) and gate_tick[stage_of(i)] > t: continue
            cands.append((use_tick(k, i), k, i))
        if not cands: break
        u, k, i = min(cands)
        must = u == t + 1 or (t >= 0 and tstart[u] - tstart[t + 1] < LEAD)
        if bud < cost(k, i) // 2 and not must: break
        plan.setdefault(t, []).append((k, i)); nxt[k] += 1; bud -= cost(k, i)
assert nxt == END, nxt

sOFF, sB3, sHW, sHA, sNEED = 51, 52, 53, 54, 55
sCH8 = 60
sAB = 68
sSRA = 80
a('L_load:')
a(f's_setprio {opt("PL", 3)}')
vS = {3072: 24, 1024: 28, 2752: 32}
vXo, vLin, vKVo = 10, 14, 36
a(f"""
s_sub_u32 s{sHA}, s{sWV}, 4
s_lshl_b32 s{sT0}, s{sHA}, 5
v_lshrrev_b32 v1, 3, v0
v_add_u32 v1, s{sT0}, v1
v_and_b32 v3, 7, v0
v_lshrrev_b32 v2, 4, v0
v_xor_b32 v2, v2, v3
v_lshlrev_b32 v4, 10, v1
v_lshl_add_u32 v{vXo}, v2, 4, v4
v_xor_b32 v2, 4, v2
v_lshl_add_u32 v{vXo+1}, v2, 4, v4
v_add_u32 v{vXo+1}, 7168, v{vXo+1}
v_add_u32 v{vXo+2}, 14336, v{vXo}
v_add_u32 v{vXo+3}, 14336, v{vXo+1}
v_bfe_u32 v2, v0, 4, 1
v_lshlrev_b32 v2, 2, v2
v_xor_b32 v2, v2, v3
v_lshlrev_b32 v2, 4, v2
s_lshl_b32 s{sT0}, s{sC}, 7
v_add_u32 v2, s{sT0}, v2
v_add_u32 v28, v4, v2
v_add_u32 v29, 7168, v28
v_add_u32 v30, 7168, v29
v_add_u32 v31, 7168, v30
s_lshl_b32 s{sHA}, s{sHA}, 12
s_add_u32 s{sHW}, s{sHA}, {WBASE}
s_lshl_b32 s{sAB}, s{sR}, 16
s_mov_b32 s{sSRA+2}, {2048*1024}
s_mov_b32 s{sSRA+3}, 0x20000
s_lshl_b32 s{sT0}, s{sRT1}, 7
v_lshlrev_b32 v5, 4, v0
v_add_u32 v6, s{sT0}, v5
v_and_b32 v6, 1023, v6
""")
sCH1 = 92
def chunk_table(dst, rot, q0=0, q1=8):
    for q in range(q0, q1):
        a(f's_add_u32 s{dst+q}, s{rot}, {q}')
        a(f's_and_b32 s{dst+q}, s{dst+q}, 7')
assert not DEBUG
a(f"""
s_waitcnt lgkmcnt(0)
""")
dbg_start()
stamp('karg')
a(f"""
s_mov_b32 s{sSRA}, s{sX}
s_mov_b32 s{sSRA+1}, s{sX+1}
s_mov_b32 s{sSRD}, s{sGATE}
s_mov_b32 s{sSRD+1}, s{sGATE+1}
s_mov_b32 s{sSRD+2}, 1024
s_mov_b32 m0, {GATE}
s_mov_b32 s{sWSD}, s{sWS}
s_mov_b32 s{sWSD+1}, s{sWS+1}
buffer_load_dwordx4 v6, {sr(sSRD,4)}, 0 offen lds
""")
def late_setup(part):
    st_, b = ((3072, 24), (2752, 32))[part]
    a(f'v_mul_u32_u24 v3, {st_}, v1')
    a(f'v_add_u32 v{b}, v3, v2')
    for i in range(1, 4): a(f'v_add_u32 v{b+i}, {8*st_-1024}, v{b+i-1}')
    if part == 0: return
    chunk_table(sCH8, sROT)
def late_setup2():
    a(f"""
    v_add_u32 v{vLin}, s{sHA}, v5
    s_cmp_ge_u32 s{sC}, 6
    s_cselect_b32 s{sB3}, 0x200000, 0
    s_add_u32 s{sB3}, s{sB3}, 2048
    s_add_u32 s{sAB+1}, s{sAB}, {WS_H}
    s_add_u32 s{sAB+3}, s{sAB}, {WS_O}
    s_mul_i32 s{sAB+2}, s{sR}, {X1_STRIDE}
    s_add_u32 s{sAB+2}, s{sAB+2}, {WS_X1}
    s_mul_i32 s{sAB+4}, s{sR}, {H3_STRIDE}
    s_add_u32 s{sAB+4}, s{sAB+4}, {WS_H3}
    v_and_b32 v7, 512, v5
    v_mov_b32 v8, 0x80000000
    """)
    for i in range(5):
        a(f"""
        s_add_i32 s{sT1}, s{sR}, {i-4}
        s_max_i32 s{sT1}, s{sT1}, 0
        s_lshl_b32 s{sT1}, s{sT1}, 3
        s_add_u32 s{sT1}, s{sT1}, s{sC}
        s_lshl_b32 s{sT1}, s{sT1}, 14
        s_add_u32 s{sAB+5+i}, s{sT1}, {WS_KV}
        """)
        if i < 4:
            a(f"""
            s_cmp_lt_u32 s{sR}, {4-i}
            s_cselect_b64 vcc, -1, 0
            v_cndmask_b32 v{vKVo+2*i}, v{vLin}, v{7 if KDUP else 8}, vcc
            v_cndmask_b32 v{vKVo+2*i+1}, v{vLin}, v8, vcc
            """)
wdesc = []
for (ptr, size, st_, co) in ((sW1, 512*1024, 1024, 0), (sWQKV, 512*3072, 3072, 1024), (sWQKV, 512*3072, 3072, 2048), (sWQKV, 512*3072, 3072, 0),
                             (sW2, 512*1024, 1024, 0), (sW3, 512*2752, 2752, 0), (sW3, 512*2752, 2752, 1024), (sW3, 512*2752, 2752, f's{sB3}'),
                             (sWO, 512*1024, 1024, 0), (sW4, 1376*1024, 1024, 0), (sW4, 1376*1024, 1024, 512*1024)):
    for q in range(8): wdesc.append((ptr, size, st_, co, q))
for q in range(6): wdesc.append((sW4, 1376*1024, 1024, (16 + q) * 65536, None))
cur_mat = [None]
def w_issue(idx):
    ptr, size, st_, co, q = wdesc[idx]
    if cur_mat[0] != ptr:
        cur_mat[0] = ptr
        a(f's_mov_b32 s{sSRD}, s{ptr}')
        a(f's_mov_b32 s{sSRD+1}, s{ptr+1}')
        a(f's_mov_b32 s{sSRD+2}, {size}')
    a(f's_add_u32 m0, s{sHW}, {wpos(idx)}')
    if q is None: a(f's_mov_b32 s{sOFF}, {co}')
    else:
        a(f's_mul_i32 s{sOFF}, s{(sCH1 if idx < W_2 else sCH8)+q}, {64*st_}')
        if co: a(f's_add_u32 s{sOFF}, s{sOFF}, {co}')
    for i in range(4): a(f'buffer_load_dwordx4 v{vS[st_]+i}, {sr(sSRD,4)}, s{sOFF} offen offset:{1024*i} lds')
    if idx % 8 == 7: stamp(f'w{idx}')
def a_issue(idx):
    a(f's_add_u32 m0, s{sHA}, {apos(idx)}')
    srd, vo = sWSD, [vLin] * 4
    def rot(base, q, extra=0):
        a(f's_lshl_b32 s{sOFF}, s{sCH8+q}, 13')
        a(f's_add_u32 s{sOFF}, s{sOFF}, s{base}')
        if extra: a(f's_add_u32 s{sOFF}, s{sOFF}, {extra}')
    if idx < A_H:
        chunk_table(sCH1, sRT1, idx, idx + 1)
        a(f's_lshl_b32 s{sOFF}, s{sCH1+idx}, 7')
        a(f's_add_u32 s{sOFF}, s{sOFF}, s{sAB}')
        srd, vo = sSRA, [vXo + i for i in range(4)]
    elif idx < A_KE: rot(sAB + 1, idx - A_H)
    elif idx < A_ST:
        p, i = divmod(idx - A_KE, 5)
        a(f's_add_u32 s{sOFF}, s{sAB+5+i}, {8192*p}')
        if i < 4: vo = [vKVo + 2*i] * 2 + [vKVo + 2*i + 1] * 2
    elif idx == A_ST: a(f's_add_u32 s{sOFF}, s{sAB+2}, 65536')
    elif idx < A_O: rot(sAB + 2, idx - A_X1)
    elif idx < A_H3: rot(sAB + 3, idx - A_O)
    elif idx < A_H3 + 16: rot(sAB + 4, (idx - A_H3) % 8, 65536 * ((idx - A_H3) // 8))
    else: a(f's_add_u32 s{sOFF}, s{sAB+4}, {8192*(idx-A_H3)}')
    if idx == A_END - 1:
        a(f's_cmp_lg_u32 s{sHA}, 0')
        a(f's_cselect_b32 s{sOFF}, {WS_REC}, s{sOFF}')
    for i in range(4): a(f'buffer_load_dwordx4 v{vo[i]}, {sr(srd,4)}, s{sOFF} offen offset:{1024*i} sc1 lds')
    if idx == A_ST:
        a(f's_lshr_b32 s{sT0}, s{sHA}, 2')
        a(f's_sub_u32 s{sT0}, s{sHA}, s{sT0}')
        a(f's_add_u32 m0, s{sT0}, {GATE}')
        a(f's_lshl_b32 s{sOFF}, s{sC}, 13')
        a(f's_add_u32 s{sOFF}, s{sOFF}, s{sT0}')
        a(f's_add_u32 s{sOFF}, s{sOFF}, {WS_CS}')
        for i in range(3): a(f'buffer_load_dwordx4 v5, {sr(srd,4)}, s{sOFF} offen offset:{1024*i} sc1 lds')
    if idx in (15, 20, 33, 42, 64): stamp(f'a{idx}')
sSRP, sPI = 84, 88
pdesc = {'wqkv': (sWQKV, 512*3072, 3), 'w2': (sW2, 512*1024, 1), 'w3': (sW3, 512*2752, 3), 'wo': (sWO, 512*1024, 1), 'w4': (sW4, 1376*1024, 3)}
def p_issue(nm):
    ptr, size, n = pdesc[nm]
    a(f's_mov_b32 s{sSRP}, s{ptr}')
    a(f's_mov_b32 s{sSRP+1}, s{ptr+1}')
    a(f's_mov_b32 s{sSRP+2}, {size}')
    a(f's_mul_i32 s{sOFF}, s{sPI}, {1024*n}')
    for i in range(n): a(f'buffer_load_dwordx4 v[48:51], v5, {sr(sSRP,4)}, s{sOFF} offen offset:{1024*i}')
    return n
for nm, key, dflt in (('wqkv', 'PQ', 0), ('w2', 'P2', 0), ('w3', 'P3', -2), ('wo', 'PO', tname['T15']), ('w4', 'P4', tname['T15'])):
    t = opt(key, dflt)
    if t >= 1000: t = tname['KVE'] + t - 1000
    if t >= -1: plan.setdefault(t, []).append(('P', nm))
a(f's_mov_b32 s{sSRP+3}, 0x20000')
a(f's_lshl_b32 s{sPI}, s2, 1')
a(f's_add_u32 s{sPI}, s{sPI}, s{sWV}')
a(f's_sub_u32 s{sPI}, s{sPI}, 4')
SP0 = opt('SP0', -1)
def sp_setup(share_code, d):
    return [share_code, f's_mul_i32 s{sT1}, s{sT0}, {11*64}', f's_min_u32 s{sT1}, s{sT1}, {512*1024 - 11*64}',
            f's_add_u32 s{d}, s{sWO}, s{sT1}', f's_addc_u32 s{d+1}, s{sWO+1}, 0',
            f's_mul_i32 s{sT1}, s{sT0}, {29*64}', f's_min_u32 s{sT1}, s{sT1}, {1376*1024 - 29*64}',
            f's_add_u32 s{d+2}, s{sW4}, s{sT1}', f's_addc_u32 s{d+3}, s{sW4+1}, 0']
def sp_load(k, d, dst):
    return f's_load_dword s{dst}, {sr(d,2)}, {64*k}' if k < 11 else f's_load_dword s{dst}, {sr(d+2,2)}, {64*(k-11)}'
SHARE = f's_mul_i32 s{sT0}, s2, 3\ns_add_u32 s{sT0}, s{sT0}, s{sWV}\ns_sub_u32 s{sT0}, s{sT0}, 4'
nops = 0
endpos = {}
landed = 0
for t in range(-1, NT - 1):
    for k, i in plan.get(t, []):
        if k == 'P': nops += p_issue(i)
        else:
            (w_issue if k == 'W' else a_issue)(i); nops += 7 if (k, i) == ('A', A_ST) else 4
            endpos[(k, i)] = nops
    if SP0 >= 0:
        if t == SP0:
            for x in sp_setup(SHARE, 56): a(x)
        if 0 <= t - SP0 < 40: a(sp_load(t - SP0, 56, 100))
    if t == opt('LS0', 0): late_setup(0)
    if t == opt('LS1', 6): late_setup(1)
    if t == opt('LS2', 7): late_setup2()
    if t == 7 and PAGES:
        a('s_branch L_load2')
        a('.p2align 12')
        a('L_load2:')
    pos = 0
    for k in 'AW':
        need = ticks[t + 1]['need' + k]
        if need is not None: pos = max(pos, endpos[(k, need)])
    if pos > landed:
        kk = min(nops - pos, 63)
        a(f's_waitcnt vmcnt({kk})')
        landed = nops - kk
    if t in (-1, 0, 1, 2, 3): stamp(f'rdy{t+1}')
    a('s_barrier')
dbg_dump()
names['w'] = list(stamp_names)
a('L_end:')
a('s_endpgm')

sFV, sFK = 68, 84
sMB, sPB, sCF, sVAL = 56, 58, 60, 62
WS_CF = 0xA0000
a(f"""
L_flag:
s_setprio {opt("PL", 3)}
s_lshl_b32 s{sT1}, s{sR}, 13
s_add_u32 s{sT1}, s{sT1}, {WS_MB}
s_lshl_b32 s{sT2}, s{sC}, 2
s_add_u32 s{sT2}, s{sT2}, s{sT1}
s_lshl_b32 s{sT0}, s{sC}, 10
s_add_u32 s{sT1}, s{sT1}, s{sT0}
s_add_u32 s{sT0}, s{sT0}, {WS_CF}
v_lshrrev_b32 v8, 1, v0
v_lshlrev_b32 v8, 13, v8
v_and_b32 v9, 1, v0
v_lshl_add_u32 v8, v9, 4, v8
v_add_u32 v8, {WS_MB}, v8
s_waitcnt lgkmcnt(0)
s_load_dword s{sE}, {sr(sWS,2)}, {WS_E}
s_mov_b32 s{sWSD}, s{sWS}
s_mov_b32 s{sWSD+1}, s{sWS+1}
s_add_u32 s{sMB}, s{sWS}, s{sT1}
s_addc_u32 s{sMB+1}, s{sWS+1}, 0
s_add_u32 s{sPB}, s{sWS}, s{sT2}
s_addc_u32 s{sPB+1}, s{sWS+1}, 0
s_add_u32 s{sCF}, s{sWS}, s{sT0}
s_addc_u32 s{sCF+1}, s{sWS+1}, 0
s_waitcnt lgkmcnt(0)
""")
if opt('MBW', 1):
    for k in range(3): a(f's_load_dword s{20+k}, {sr(sMB,2)}, {128*k} glc')
make_tag()
for q in range(20): a(f's_mov_b32 s{sFV+q}, s{sTAG}')
def poll(g):
    if g == 2: return [f's_load_dwordx4 {sr(sFK,4)}, {sr(sMB,2)}, 256 glc']
    return [f's_load_dwordx8 {sr(sFV+8*k,8)}, {sr(sMB,2)}, {128*k} glc' for k in range(2 if g == 1 else 1)]
def wait_flags(regs, loads, need, block=False):
    l1, l2 = a.new_label('P'), a.new_label('P')
    a(f's_add_u32 s{sNEED}, s{sTAG}, {need}')
    a(f'{l1}:')
    for k, sv in enumerate(regs):
        a(f's_sub_u32 s{sT0 + (1 if k else 0)}, s{sv}, s{sNEED}')
        if k: a(f's_max_u32 s{sT0}, s{sT0}, s{sT1}')
    a(f's_cmp_lt_u32 s{sT0}, {8-need}')
    a(f's_cbranch_scc1 {l2}')
    for x in loads: a(x)
    a(f"""
    s_sub_u32 s{sTO}, s{sTO}, 1
    s_cbranch_scc1 L_end
    {'s_waitcnt lgkmcnt(0)' if block else 's_sleep %d' % opt('PSL', 1)}
    s_branch {l1}
    {l2}:
    """)
CSP = opt('CSP', 36)
PRE = opt('PRE', 900)
PEV = opt('PEV', 2)
gate_at = {t: g for g, t in gate_tick.items()}
assert len(gate_at) == 7
cr = [4 + q for q in range(16)] + [sFV + 8 + q for q in range(8)]
cpoll = [f's_load_dwordx8 {sr(b_,8)}, {sr(sCF,2)}, {128*k} glc' for k, b_ in enumerate((4, 12, sFV + 8))]
for i, t in enumerate(ticks):
    if gate_at.get(i) == 3: wait_flags(cr, cpoll, 1, block=True)
    if i in gate_at:
        g = gate_at[i]
        wait_flags([sFK + q for q in range(4)] if g == 2 else [sFV + q for q in range(16 if g == 1 else 8)], poll(g), g)
        stamp(f'g{g}')
    if t['pub'] and t['pub'] != 2: a(f's_add_u32 s{sVAL + (t["pub"] & 1)}, s{sTAG}, {t["pub"]}')
    a('s_barrier')
    if t['pub'] and t['pub'] != 2:
        for q in range(8): a(f's_atomic_swap s{sVAL + (t["pub"] & 1)}, {sr(sPB,2)}, {1024*q}')
    if t['name'] == 'T00':
        a('s_waitcnt lgkmcnt(0)')
        for q in cr: a(f's_mov_b32 s{q}, s{sTAG}')
        for x in cpoll: a(x)
    for g, gt in gate_tick.items():
        d = gt - 1 - i
        if pub_tick[g] <= i and d > 0 and tstart[gt - 1] - tstart[i] <= PRE and d % PEV == 0:
            for x in poll(g): a(x)
a('s_waitcnt lgkmcnt(0)')
a('s_mov_b64 exec, -1')
a(f"""
s_cmp_lg_u32 s2, 0
s_cbranch_scc1 L_fend
s_add_u32 s{sT1}, s{sTAG}, 1
L_ebump:
buffer_load_dwordx4 v[32:35], v8, {sr(sWSD,4)}, 0 offen sc1
s_waitcnt vmcnt(0)
""")
for i in range(4): a(f'v_subrev_u32 v{32+i}, s{sT1}, v{32+i}')
a(f"""
v_max_u32 v32, v32, v33
v_max3_u32 v32, v32, v34, v35
v_cmp_gt_u32 vcc, 7, v32
s_cmp_eq_u64 vcc, -1
s_cbranch_scc1 L_ebump2
s_sub_u32 s{sTO}, s{sTO}, 1
s_cbranch_scc0 L_ebump
s_endpgm
L_ebump2:
v_mov_b32 v1, s{sTAG}
v_mov_b32 v2, {WS_E}
s_mov_b64 exec, 1
buffer_store_dword v1, v2, {sr(sWSD,4)}, 0 offen sc1
s_mov_b64 exec, -1
L_fend:
""")
dbg_dump()
names['s'] = list(stamp_names)
a('s_endpgm')
a('L_aux:')
if opt('HS', 1):
    a(f"""
    s_lshl_b32 s62, s{sR}, 16
    s_lshl_b32 s{sT0}, s{sC}, 13
    s_add_u32 s62, s62, s{sT0}
    s_bitcmp1_b32 s{sC}, 1
    s_cselect_b32 s{sT0}, 448, 0
    s_add_u32 s62, s62, s{sT0}
    s_add_u32 s62, s62, {WS_H}
    s_waitcnt lgkmcnt(0)
    s_add_u32 s62, s62, s{sWS}
    s_addc_u32 s63, s{sWS+1}, 0
    """)
    a(f's_load_dword s90, {sr(sWS,2)}, {WS_E}')
    a('s_waitcnt lgkmcnt(0)')


a(f"""
v_lshrrev_b32 v1, 3, v0
v_mul_u32_u24 v1, 2752, v1
v_and_b32 v2, 7, v0
v_lshl_add_u32 v1, v2, 4, v1
v_lshlrev_b32 v2, 5, v2
v_lshrrev_b32 v3, 5, v0
v_lshl_add_u32 v2, v3, 4, v2
v_bfe_u32 v3, v0, 4, 1
v_lshl_add_u32 v2, v3, 3, v2
s_and_b32 s{sT0}, s{sR}, 7
s_mul_i32 s60, s{sT0}, {64*2752}
s_lshr_b32 s{sT0}, s{sR}, 3
s_lshl_b32 s{sT0}, s{sT0}, 10
s_add_u32 s60, s60, s{sT0}
s_lshl_b32 s{sT0}, s{sC}, 7
s_add_u32 s60, s60, s{sT0}
s_lshl_b32 s61, s{sC}, 13
s_lshl_b32 s{sT0}, s{sR}, 8
s_add_u32 s61, s61, s{sT0}
s_add_u32 s61, s61, {WS_CS}
s_cmp_ge_u32 s{sR}, 24
s_cselect_b32 s60, 0x200000, s60
s_cselect_b32 s61, {WS_REC}, s61
{'' if opt('HS', 1) else 's_waitcnt lgkmcnt(0)'}
s_mov_b32 s{sSRD}, s{sW3}
s_mov_b32 s{sSRD+1}, s{sW3+1}
s_mov_b32 s{sSRD+2}, {512*2752}
s_mov_b32 s{sWSD}, s{sWS}
s_mov_b32 s{sWSD+1}, s{sWS+1}
""")
if TRACE:
    a(f'v_writelane_b32 v11, s{sST}, 60')
    a(f'v_writelane_b32 v11, s{sE}, 61')
assert opt('HS', 1)
a(f"""
s_add_u32 s90, s90, 0x9e3779b0
s_and_b32 s90, s90, 0xfffffff0
s_add_u32 s91, s90, 2
s_add_u32 s90, s90, 1
s_bitcmp1_b32 s{sC}, 1
s_cselect_b32 s{sT0}, -1, 1
s_add_u32 s{sT0}, s{sT0}, s{sR}
s_and_b32 s{sT0}, s{sT0}, 31
s_lshl_b32 s{sT0}, s{sT0}, 13
s_lshl_b32 s{sT1}, s{sC}, 2
s_add_u32 s{sT0}, s{sT0}, s{sT1}
s_add_u32 s{sT0}, s{sT0}, {WS_MB + 128}
s_add_u32 s80, s{sWS}, s{sT0}
s_addc_u32 s81, s{sWS+1}, 0
s_lshl_b32 s{sT0}, s{sR}, 13
s_lshl_b32 s{sT1}, s{sC}, 10
s_add_u32 s{sT0}, s{sT0}, s{sT1}
s_add_u32 s{sT0}, s{sT0}, {WS_MB + 256}
s_add_u32 s82, s{sWS}, s{sT0}
s_addc_u32 s83, s{sWS+1}, 0
s_lshr_b32 s{sT0}, s{sR}, 3
s_lshl_b32 s{sT0}, s{sT0}, 7
s_and_b32 s{sT2}, s{sR}, 7
s_lshl_b32 s{sT2}, s{sT2}, 2
s_add_u32 s{sT0}, s{sT0}, s{sT2}
s_add_u32 s{sT0}, s{sT0}, s{sT1}
s_add_u32 s84, s{sT0}, {WS_CF}
""")
for q in range(4):
    a(f's_cmp_lt_u32 s{sR}, {4-q}')
    a(f's_cselect_b32 s{85+q}, {4*q}, 32')
msgs = {pub_tick[1]: [f's_atomic_swap s90, s[80:81], {1024*q}' for q in range(8)],
        pub_tick[2]: [f's_atomic_swap s91, s[82:83], {8192*l + 4*(4-l)}' for l in range(1, 5)] + [f's_cmp_ge_u32 s{sR}, 4', 's_cbranch_scc1 L_kvself'] +
                     [f's_atomic_swap s91, s[82:83], s{85+q}' for q in range(4)] + ['L_kvself:'],
        CSP: [f's_atomic_swap s90, {sr(sWS,2)}, s84']}
TC0, TC1 = opt('TC0', 7), opt('TC1', 16)
ld = []
for i in range(8):
    ld += [f'buffer_load_dwordx4 {vr(64+4*i,4)}, v1, {sr(sSRD,4)}, s60 offen', f's_add_u32 s60, s60, {8*2752}']
wk = ['s_waitcnt vmcnt(0)']
for i in range(8):
    for d in range(4):
        src = 64 + 4 * i + d
        if i == 0: wk += [f'v_lshlrev_b32 v{20+2*d}, 16, v{src}', f'v_and_b32 v{21+2*d}, 0xffff0000, v{src}']
        else: wk += [f'v_lshlrev_b32 v28, 16, v{src}', f'v_and_b32 v29, 0xffff0000, v{src}', f'v_add_f32 v{20+2*d}, v{20+2*d}, v28', f'v_add_f32 v{21+2*d}, v{21+2*d}, v29']
for e in (0, 1, 4, 5): wk += [f'v_permlane16_swap_b32 v{20+e}, v{22+e}']
for e in (0, 1, 4, 5): wk += [f'v_add_f32 v{20+e}, v{20+e}, v{22+e}']
for e in (0, 1): wk += [f'v_permlane32_swap_b32 v{20+e}, v{24+e}']
for e in (0, 1): wk += [f'v_add_f32 v{20+e}, v{20+e}, v{24+e}']
for e in (0, 1): wk += [f'v_add_f32_dpp v{22+e}, v{20+e}, v{20+e} row_ror:8 row_mask:0xf bank_mask:0xf']
wk += [f'buffer_store_dwordx2 v[22:23], v2, {sr(sWSD,4)}, s61 offen sc1']
auxp = merge(msgs, {opt('HS0', 0) + 3 * h_: [f's_load_dword s{64+k}, s[62:63], {512*k}' for k in range(8*h_, 8*h_ + 8)] for h_ in range(2)}, {TC0: ld}, spread(wk, TC1, TC1 + 8))
NMARK = 10
if PAGES:
    vo = opt('VO', 0)
    auxp = merge({vo + k // 2 if k < 14 else 0: ['s_mov_b64 exec, 0', f's_branch L_pg{m}', f'L_pr{m}:', 's_mov_b64 exec, -1'] for k, m in []},
                 *[{vo + k * 7 // NMARK: ['s_mov_b64 exec, 0', f's_branch L_pg{m}', f'L_pr{m}:', 's_mov_b64 exec, -1']} for k, m in enumerate((0, 4, 5, 1, 2, 3, 6, 7, 8, 9))], auxp)
AUXEND = max(CSP, pub_tick[2])
if SP0 >= 0:
    auxp = merge(auxp, {SP0: sp_setup(SHARE, 56)}, {SP0 + k: [sp_load(k, 56, 100)] for k in range(40)})
    AUXEND = max(CSP, SP0 + 40)
assert TC1 + 8 < CSP
for i in range(NT if TRACE else AUXEND + 1):
    if i == CSP: a('s_waitcnt vmcnt(0)')
    a('s_barrier')
    if TRACE:
        if i: a(f'v_writelane_b32 v{10 + (i-1) // 64}, s{sST + 2*((i-1)&1)}, {(i-1) % 64}')
        a(f's_memtime {sr(sST + 2*(i&1),2)}')
    for x in auxp.get(i, []): a(x)
if TRACE:
    a('s_waitcnt lgkmcnt(0)')
    a(f'v_writelane_b32 v{10 + (NT-1) // 64}, s{sST + 2*((NT-1)&1)}, {(NT-1) % 64}')
if not TRACE: a('s_endpgm')
if TRACE:
    a('s_barrier')
    a(f"""
    s_memtime {sr(sST,2)}
    s_memrealtime {sr(sE,2)}
    s_waitcnt lgkmcnt(0)
    v_writelane_b32 v11, s{sST}, 62
    v_writelane_b32 v11, s{sE}, 63
    s_mov_b32 s{sWSD}, s{sWS}
    s_mov_b32 s{sWSD+1}, s{sWS+1}
    s_mov_b32 s{sWSD+2}, {WS_REC}
    s_mov_b32 s{sWSD+3}, 0x20000
    v_lshlrev_b32 v1, 2, v0
    s_lshl_b32 s{sT0}, s2, 9
    s_add_u32 s{sT0}, s{sT0}, {WS_DBG + 0x80000}
    buffer_store_dword v10, v1, {sr(sWSD,4)}, s{sT0} offen
    buffer_store_dword v11, v1, {sr(sWSD,4)}, s{sT0} offen offset:256
    s_endpgm
    """)
    names['t'] = [t['name'] + (f'(g{gate_at[i]})' if i in gate_at else '') + (f'(p{t["pub"]})' if t['pub'] else '') for i, t in enumerate(ticks)]
    names['plan'] = [''.join(k.lower() for k, _ in plan.get(i, [])) for i in range(NT)]
a.ins = sec_pro + a.ins + sec_comp
a('L_last:')

nn = a.pad()
PFX = f'.amdgcn_target "amdgcn-amd-amdhsa--gfx950"\n.text\n{NAME}_kernel:\n'
print('aligned', align8(a, PFX, 'L_comp', opt('ALM', 2) if opt('AL', 1) else 999, opt('ALN', 6), NMARK if PAGES else 0), file=sys.stderr)
hdr = open(f'cdna_kernels/{NAME}.s.ref').read().split('; Override launch geometry')[0]
txt = hdr + f'''; @launch grid=(256,1,1) block=(512,1,1) lds={LDS_BYTES}
.amdgcn_target "amdgcn-amd-amdhsa--gfx950"
.text
.globl {NAME}_kernel
.p2align 8
.type {NAME}_kernel,@function
{NAME}_kernel:
''' + a.text() + f'''.section .rodata,"a"
.p2align 6
.amdhsa_kernel {NAME}_kernel
  .amdhsa_next_free_vgpr 256
  .amdhsa_next_free_sgpr 102
  .amdhsa_accum_offset 256
  .amdhsa_group_segment_fixed_size 0
  .amdhsa_kernarg_size 96
  .amdhsa_user_sgpr_count 2
  .amdhsa_user_sgpr_kernarg_segment_ptr 1
  .amdhsa_system_sgpr_workgroup_id_x 1
.end_amdhsa_kernel
'''
open(OUT, 'w').write(txt)
json.dump(names, open(OUT + '.names.json', 'w'))
if '--plan' in sys.argv:
    print('start', plan.get(-1))
    for i, t in enumerate(ticks):
        print(i, tstart[i], t['name'], 'needW', t['needW'], 'needA', t['needA'], 'pub', t['pub'], 'gate', gate_at.get(i), '| after:', plan.get(i))
print('instructions', sum(1 for i in a.ins if i.kind != 'meta'), 'nops inserted', nn, 'ticks', NT, file=sys.stderr)
```

```python
import sys, struct, json
from asmlib import *

NAME = 'gated_mix__sliding_block__mixer_s_mlp__prompt'
DEBUG = '--debug' in sys.argv
TRACE = '--trace' in sys.argv
OUT = [x for x in sys.argv[1:] if not x.startswith('--')]
OUT = OUT[0] if OUT else f'cdna_kernels/{NAME}.s'
def opt(name, default):
    for x in sys.argv:
        if x.startswith(f'--{name}='): return int(x.split('=')[1])
    return default

NA, NW = 8, 11
ABASE, WBASE = 0, 65536
GATE = WBASE + NW * 8192
LDS_BYTES = 163840
FSH = 10
WS_E = 0x80000
WS_H, WS_KV, WS_X1, WS_O, WS_H3, WS_DBG = 0x100000, 0x300000, 0x700000, 0xA00000, 0xC00000, 0x1200000
X1_STRIDE = 73728
H3_STRIDE = 176 * 1024
WS_CS = 0x90000
WS_MB = 0x1400000
WS_REC = 0x1440000
VTAB = GATE + 7168
PD = opt('PD', 3)
TIMEOUT = 1 << 16
KDUP = 1
PAGES = opt('PAGES', 1)
ROT1 = opt('ROT1', 1)

def f32(x): return '0x%08x' % struct.unpack('<I', struct.pack('<f', x))[0]
LOG2E = 1.4426950408889634
C1 = 2 * 0.7978845608028654 * LOG2E
QSCALE = 0.25 * LOG2E

A_X, A_H, A_KE, A_KO, A_ST, A_X1, A_O, A_H3, A_END = 0, 8, 16, 21, 26, 27, 35, 43, 65
W_1, W_K, W_V, W_Q, W_2, W_3, W_O, W_4, W_END = 0, 8, 16, 24, 32, 40, 64, 72, 94
apos = lambda i: ABASE + (i % NA) * 8192
wpos = lambda i: (i % NW) * 8192

sX, sWQKV, sWO, sW1, sW2, sW3, sW4, sGATE, sOUT, sDBG, sWS = 4, 6, 8, 12, 14, 16, 18, 20, 22, 24, 26
sR, sC, sROT, sWV, sTAG, sTO = 28, 29, 30, 31, 32, 33
sRET = 34
sWSD = 36
sSRD = 40
sT0, sT1, sT2, sT3 = 47, 48, 49, 50
sHI = 52
sVM = 54
sGM = 56
sTT, sCH = 58, 59
sMASK = 60
sE = 92
sST = 94
sQ1, sQ2, sQ3 = 96, 98, 100
sRT1 = 46
sZM = 44

a = Asm()
ool = Asm()
ool.uid = 100000

class Lgkm:
    def __init__(self): self.n = 0; self.done = 0
    def issue(self, text):
        a(text); self.n += 1; return self.n
    def wait(self, seq):
        if seq <= self.done: return
        k = min(self.n - seq, 15)
        a(f's_waitcnt lgkmcnt({k})')
        self.done = self.n - k
    def all(self): self.wait(self.n)
lg = Lgkm()
def emit(x):
    if callable(x): x()
    elif x.startswith('ds_'): lg.issue(x)
    else: a(x)

nstamp = [0]
stamp_names = []
def stamp(name):
    if not DEBUG: return
    i = nstamp[0]; nstamp[0] += 1
    stamp_names.append(name)
    a(f's_memtime {sr(sST,2)}')
    a(f's_memrealtime s[2:3]'.replace('s[2:3]', 's[0:1]'))
    a('s_waitcnt lgkmcnt(0)')
    a(f'v_writelane_b32 v0, s{sST}, {i}')
    a(f'v_writelane_b32 v0, s0, {32+i}')
    assert i < 30
def st(name): return lambda: stamp(name)
def dbg_start():
    if not DEBUG: return
    a(f'v_mov_b32 v0, 0')
    a(f'v_writelane_b32 v0, s{sST}, 0')
    a(f'v_writelane_b32 v0, s{sE}, 62')
    nstamp[0] = 1; stamp_names.clear(); stamp_names.append('start')
def dbg_dump():
    if not DEBUG: return
    a('s_waitcnt vmcnt(0)')
    stamp('end')
    a(f'''
    s_memrealtime {sr(sST,2)}
    s_waitcnt lgkmcnt(0)
    v_writelane_b32 v0, s{sST}, 63
    s_mov_b32 s{sWSD}, s{sWS}
    s_mov_b32 s{sWSD+1}, s{sWS+1}
    v_mbcnt_lo_u32_b32 v1, -1, 0
    v_mbcnt_hi_u32_b32 v1, -1, v1
    v_lshlrev_b32 v1, 2, v1
    s_lshl_b32 s{sT0}, s2, 3
    s_add_u32 s{sT0}, s{sT0}, s{sWV}
    s_lshl_b32 s{sT0}, s{sT0}, 8
    s_add_u32 s{sT0}, s{sT0}, {WS_DBG}
    buffer_store_dword v0, v1, {sr(sWSD,4)}, s{sT0} offen
    ''')

if DEBUG or TRACE:
    a(f's_memtime {sr(sST,2)}')
    a(f's_memrealtime {sr(sE,2)}')
if opt('DIAG', 0) and opt('DAT', -1) == -2: a('s_memrealtime s[98:99]')
a(f'''
s_cmp_ge_u32 s2, 256
s_cbranch_scc1 L_end
s_load_dwordx16 s[4:19], s[0:1], 0
s_load_dwordx8 s[20:27], s[0:1], 64
v_lshrrev_b32 v1, 6, v0
v_and_b32 v0, 63, v0
v_readfirstlane_b32 s{sWV}, v1
s_cmp_eq_u32 s{sWV}, 6
s_cbranch_scc0 L_noaux
s_getpc_b64 s[56:57]
L_pc:
s_sub_u32 s56, s56, L_pc-{NAME}_kernel
s_subb_u32 s57, s57, 0
s_lshr_b32 s58, s2, 3
s_lshl_b32 s58, s58, 11
v_lshlrev_b32 v4, 4, v0
v_add_u32 v3, s58, v4
v_min_u32 v5, L_last-{NAME}_kernel-16, v3
global_load_dwordx4 v[32:35], v5, s[56:57]
v_add_u32 v3, 1024, v3
v_min_u32 v5, L_last-{NAME}_kernel-16, v3
global_load_dwordx4 v[36:39], v5, s[56:57]
L_noaux:
s_and_b32 s{sT0}, s2, 7
s_lshr_b32 s{sT1}, s2, 3
s_lshr_b32 s{sR}, s{sT0}, 1
s_lshl_b32 s{sR}, s{sR}, 3
s_lshr_b32 s{sT2}, s{sT1}, 2
s_add_u32 s{sR}, s{sR}, s{sT2}
s_and_b32 s{sC}, s{sT0}, 1
s_lshl_b32 s{sC}, s{sC}, 2
s_and_b32 s{sT2}, s{sT1}, 3
s_add_u32 s{sC}, s{sC}, s{sT2}
s_add_u32 s{sROT}, s{sR}, s{sC}
s_and_b32 s{sROT}, s{sROT}, 7
{ {0: f's_mov_b32 s{sRT1}, 0', 1: f's_mov_b32 s{sRT1}, s{sROT}', 2: f's_and_b32 s{sRT1}, s{sR}, 7',
   3: f's_lshl_b32 s{sRT1}, s{sC}, 2' + chr(10) + f's_add_u32 s{sRT1}, s{sRT1}, s{sR}' + chr(10) + f's_and_b32 s{sRT1}, s{sRT1}, 7',
   4: f's_lshl_b32 s{sRT1}, s{sC}, 1' + chr(10) + f's_add_u32 s{sRT1}, s{sRT1}, s{sR}' + chr(10) + f's_and_b32 s{sRT1}, s{sRT1}, 7'}[ROT1] }
s_mov_b32 s{sTO}, {TIMEOUT}
s_mov_b32 s{sWSD+2}, {WS_REC}
s_mov_b32 s{sWSD+3}, 0x20000
s_mov_b32 s{sSRD+3}, 0x20000
s_cmp_lt_u32 s{sWV}, 4
s_cbranch_scc1 L_comp
s_cmp_eq_u32 s{sWV}, 7
s_cbranch_scc1 L_flag
s_cmp_eq_u32 s{sWV}, 6
s_cbranch_scc1 L_aux
''')
sec_pro = a.ins; a.ins = []
if PAGES: a('.p2align 12')
a('L_comp:')
def make_tag():
    a(f'''
    s_add_u32 s{sE}, s{sE}, 0x9e3779b0
    s_and_b32 s{sTAG}, s{sE}, 0xfffffff0
    ''')

vWn0, vWn1, vWt0, vWt1, vP, vL16, vKr, vVr, vStV, vStH, vX0, vX1, vX2, vG, vX3 = range(1, 16)
vT = 16
vSel = 20
vWf = 24
vAf = 36
vA0, vA1, vAB = 48, 64, 80
vL = 96
vPan = 128
vQl = 120

a(f's_setprio {opt("PC", 0)}')
a(f'''
s_and_b32 s{sTT}, s{sWV}, 1
s_lshr_b32 s{sCH}, s{sWV}, 1
s_mov_b32 s{sHI}, 0
s_mov_b32 s{sHI+1}, -1
s_mov_b32 s{sVM}, 0xffff
s_mov_b32 s{sVM+1}, 0xffff
''')
L, TOK, H, T1, T2, T3, ROW = 'v0', 'v48', 'v49', 'v50', 'v51', 'v52', 'v53'
a(f'''
v_and_b32 {TOK}, 31, {L}
v_lshrrev_b32 {H}, 5, {L}
v_lshlrev_b32 v{vL16}, 4, {L}
''')
a(f'''
v_bfe_u32 {T1}, {L}, 3, 1
v_xor_b32 {T1}, s{sCH}, {T1}
v_lshlrev_b32 {T1}, 6, {T1}
v_bfe_u32 {T2}, {L}, 4, 1
v_lshl_add_u32 {T1}, {T2}, 5, {T1}
v_and_b32 {T2}, 3, {L}
v_lshl_add_u32 {T1}, {T2}, 3, {T1}
v_bfe_u32 {T2}, {L}, 2, 2
v_lshl_add_u32 {T1}, {T2}, 7, {T1}
v_add_u32 {T1}, {WBASE}, {T1}
v_lshl_add_u32 v{vWn0}, {H}, 10, {T1}
v_add_u32 v{vWn1}, 65536, v{vWn0}
v_lshl_add_u32 v{vWt0}, {H}, 9, {T1}
v_add_u32 v{vWt1}, 65536, v{vWt0}
''')
a(f'''
v_lshlrev_b32 {T1}, 4, {TOK}
v_lshl_add_u32 {T1}, {H}, 10, {T1}
s_lshl_b32 s{sT0}, s{sTT}, 9
v_add_u32 v{vP}, s{sT0}, {T1}
s_lshl_b32 s{sT0}, s{sTT}, 12
s_lshl_b32 s{sT1}, s{sCH}, 10
s_add_u32 s{sT0}, s{sT0}, s{sT1}
v_add_u32 v{vKr}, s{sT0}, v{vL16}
s_add_u32 s{sT0}, s{sT0}, 2048
v_and_b32 {T2}, 15, {L}
v_lshlrev_b32 {T2}, 4, {T2}
v_lshl_add_u32 {T2}, {H}, 8, {T2}
v_add_u32 v{vVr}, s{sT0}, {T2}
v_bfe_u32 {T3}, {L}, 4, 1
v_lshl_add_u32 v{vStV}, {T3}, 13, v{vVr}
s_lshl_b32 s{sT0}, s{sTT}, 4
s_add_u32 s{sT0}, s{sT0}, {VTAB}
v_mov_b32 {T1}, s{sT0}
v_cndmask_b32 v{vVr}, {T1}, v{vVr}, {sr(sVM,2)}
s_lshl_b32 s{sT0}, s{sR}, 1
v_lshlrev_b32 {T1}, 4, {TOK}
v_lshl_add_u32 {T1}, {H}, 9, {T1}
v_add_u32 {T1}, {VTAB}, {T1}
v_add_u32 {T2}, s{sT0}, {TOK}
v_cmp_le_u32 vcc, 8, {T2}
v_mov_b32 {T2}, 0x3f803f80
v_cndmask_b32 v{vL+8}, 0, {T2}, vcc
v_mov_b32 v{vL+9}, v{vL+8}
v_mov_b32 v{vL+10}, v{vL+8}
v_mov_b32 v{vL+11}, v{vL+8}
ds_write_b128 {T1}, {vr(vL+8,4)}
''')
a(f'''
s_lshr_b32 s{sT0}, s{sC}, 2
s_add_u32 s{sT0}, s{sT0}, 1
s_sub_u32 s{sT1}, 0, s{sT0}
s_bitcmp1_b32 s{sC}, 1
s_cselect_b32 s{sT0}, s{sT1}, s{sT0}
s_lshl_b32 s{sT1}, s{sR}, 6
s_add_u32 s{sT0}, s{sT0}, s{sT1}
s_lshl_b32 s{sT1}, s{sTT}, 5
s_add_u32 s{sT0}, s{sT0}, s{sT1}
v_add_u32 {T1}, s{sT0}, {TOK}
v_mov_b32 {T2}, 2047
v_cmp_gt_u32 {sr(sZM,2)}, {T1}, {T2}
v_and_b32 {T1}, {T2}, {T1}
v_lshrrev_b32 {T2}, 6, {T1}
v_and_b32 {T1}, 63, {T1}
v_lshlrev_b32 {T1}, 4, {T1}
v_lshl_add_u32 {T1}, {T2}, 16, {T1}
v_lshl_add_u32 v{vStH}, {H}, 10, {T1}
''')
a(f'''
v_bfe_u32 {T1}, {L}, 4, 1
v_bfe_u32 {T2}, {L}, 2, 1
v_cmp_eq_u32 {sr(sGM,2)}, {T1}, {T2}
v_mov_b32 {T3}, 0x3f803f80
v_cndmask_b32 v{vSel}, 0, {T3}, {sr(sGM,2)}
v_mov_b32 v{vSel+1}, v{vSel}
v_mov_b32 v{vSel+2}, v{vSel}
v_mov_b32 v{vSel+3}, v{vSel}
v_and_b32 {T1}, 3, {L}
v_cmp_eq_u32 vcc, 0, {T1}
v_cmp_eq_u32 {sr(sQ1,2)}, 1, {T1}
v_cmp_eq_u32 {sr(sQ2,2)}, 2, {T1}
v_cmp_eq_u32 {sr(sQ3,2)}, 3, {T1}
s_and_b64 vcc, vcc, {sr(sGM,2)}
s_and_b64 {sr(sGM,2)}, {sr(sGM,2)}, {sr(sQ1,2)}
v_mov_b32 v40, {GATE+2176}
v_mov_b32 {T1}, {GATE+1088}
v_cndmask_b32 v40, v40, {T1}, vcc
v_lshlrev_b32 {T1}, 4, {H}
v_add_u32 {T1}, {GATE}, {T1}
v_cndmask_b32 v40, v40, {T1}, {sr(sGM,2)}
v_add_u32 {T1}, {GATE+1088}, v{vL16}
v_mov_b32 v{vL}, {T3}
v_mov_b32 v{vL+1}, {T3}
v_mov_b32 v{vL+2}, {T3}
v_mov_b32 v{vL+3}, {T3}
v_mov_b32 v{vL+4}, 0
v_mov_b32 v{vL+5}, 0
v_mov_b32 v{vL+6}, 0
v_mov_b32 v{vL+7}, 0
ds_write_b128 {T1}, {vr(vL,4)}
ds_write_b128 {T1}, {vr(vL+4,4)} offset:1088
''')
vXa, vGa, vRa = 36, 40, 41
a(f'''
s_lshl_b32 s{sT0}, s{sTT}, 5
v_add_u32 {ROW}, s{sT0}, {TOK}
v_bfe_u32 {T1}, {ROW}, 1, 3
v_lshlrev_b32 {ROW}, 7, {ROW}
v_xor_b32 {T2}, {T1}, {H}
''')
for s in range(4):
    a(f'v_xor_b32 {T3}, {2*s}, {T2}')
    a(f'v_lshl_add_u32 v{vXa+s}, {T3}, 4, {ROW}')
a(f'''
s_sub_u32 s{sT0}, s{sC}, s{sRT1}
s_and_b32 s{sT0}, s{sT0}, 7
s_lshl_b32 s{sT0}, s{sT0}, 13
v_add_u32 {ROW}, s{sT0}, {ROW}
v_lshl_add_u32 {ROW}, {H}, 3, {ROW}
s_lshl_b32 s{sT0}, s{sCH}, 2
v_xor_b32 {T2}, s{sT0}, {T1}
''')
for j in range(4):
    a(f'v_xor_b32 {T3}, {j}, {T2}')
    a(f'v_lshl_add_u32 v{vRa+j}, {T3}, 4, {ROW}')
a(f'v_lshlrev_b32 {T1}, 2, {H}')
a(f'v_sub_u32 {T1}, {TOK}, {T1}')
for r in range(16):
    a(f'v_cmp_gt_i32 {sr(sMASK+2*r,2)}, {(r & 3) + 8 * (r >> 2)}, {T1}')
a('s_waitcnt lgkmcnt(0)')
dbg_start()
sOH, sOK0, sOK1, sOX1, sOST, sOO, sOH3, sOOUT, sJV, sNEG, sTILE = range(4, 15)
a(f'''
s_mov_b32 s{sSRD}, s{sOUT}
s_mov_b32 s{sSRD+1}, s{sOUT+1}
s_mov_b32 s{sSRD+2}, {2048*1024}
s_mov_b32 s{sWSD}, s{sWS}
s_mov_b32 s{sWSD+1}, s{sWS+1}
s_lshl_b32 s{sTILE}, s{sC}, 13
s_lshl_b32 s{sT1}, s{sCH}, 12
s_add_u32 s{sTILE}, s{sTILE}, s{sT1}
s_add_u32 s{sOH}, s{sTILE}, {WS_H}
s_lshl_b32 s{sOK0}, s{sR}, 3
s_add_u32 s{sOK0}, s{sOK0}, s{sC}
s_lshl_b32 s{sOK0}, s{sOK0}, 14
s_add_u32 s{sOK0}, s{sOK0}, {WS_KV}
s_add_u32 s{sOK1}, s{sOK0}, 8192
s_mul_i32 s{sT0}, s{sR}, {X1_STRIDE}
s_add_u32 s{sT0}, s{sT0}, {WS_X1}
s_add_u32 s{sOX1}, s{sT0}, s{sTILE}
s_lshr_b32 s{sOST}, s{sTILE}, 3
s_add_u32 s{sOST}, s{sOST}, s{sT0}
s_add_u32 s{sOST}, s{sOST}, 65536
s_lshl_b32 s{sT0}, s{sR}, 16
s_add_u32 s{sOO}, s{sT0}, s{sTILE}
s_add_u32 s{sOO}, s{sOO}, {WS_O}
s_lshl_b32 s{sT1}, s{sTT}, 15
s_add_u32 s{sOOUT}, s{sT0}, s{sT1}
s_lshr_b32 s{sT1}, s{sTILE}, 6
s_add_u32 s{sOOUT}, s{sOOUT}, s{sT1}
s_mul_i32 s{sOH3}, s{sR}, {H3_STRIDE}
s_add_u32 s{sOH3}, s{sOH3}, s{sTILE}
s_add_u32 s{sOH3}, s{sOH3}, {WS_H3}
s_lshl_b32 s{sJV}, s{sR}, 1
s_add_u32 s{sJV}, s{sJV}, s{sTT}
s_sub_i32 s{sJV}, 8, s{sJV}
s_max_i32 s{sJV}, s{sJV}, 0
s_mov_b32 s{sNEG}, {f32(-1e30)}
''')

ticks = []
last_read = {}
freed = set()
pub_next = [None]
def want_pub(stage): pub_next[0] = stage
stage_mark = {}
def nstores(): return sum(1 for i in a.ins if i.op.startswith('buffer_store'))
def mark(stage): return lambda: stage_mark.__setitem__(stage, nstores())
def tick(needW=None, needA=None, name='', dur=140):
    pub = pub_next[0]; pub_next[0] = None
    if pub: a(f's_waitcnt vmcnt({nstores() - stage_mark.get(pub, nstores())})')
    a('s_barrier')
    fr = [k for k, s in last_read.items() if s <= lg.done and k not in freed]
    freed.update(fr)
    ticks.append(dict(needW=needW, needA=needA, free=fr, pub=pub, name=name, dur=dur))

class Step:
    def __init__(self, w, s, order, acc, act, aslot=None, aread=None, swap=False, c0=None, pre=None, post=None, lastw=False, lasta=False, cs=None, cs0=False, xa=None, dur=140):
        self.__dict__.update(locals())

def run_steps(steps, fill=None):
    fill = fill or {}
    seqs = {}
    def reads(n):
        s_ = steps[n]
        if s_.s == 0: tick(s_.w, s_.aslot if s_.xa is None else s_.xa, f'W{s_.w}', s_.dur)
        if s_.pre: s_.pre()
        if s_.aread == 'x':
            lg.issue(f'ds_read_b128 {vr(s_.act,4)}, v{vXa+s_.s} offset:{apos(s_.aslot)}')
        elif s_.aread == 'p':
            lg.issue(f'ds_read_b128 {vr(s_.act,4)}, v{vP} offset:{apos(s_.aslot)+s_.s*2048}')
        off = wpos(s_.w) + s_.s * 2048
        b0, b1 = (vWn0, vWn1) if s_.order == 'n' else (vWt0, vWt1)
        base = b0
        if off >= 65536: off -= 65536; base = b1
        d = 512 if s_.order == 'n' else 1024
        f = vWf + (n % 3) * 4
        lg.issue(f'ds_read_b64_tr_b16 {vr(f,2)}, v{base} offset:{off}')
        seqs[n] = lg.issue(f'ds_read_b64_tr_b16 {vr(f+2,2)}, v{base} offset:{off+d}')
        if s_.lastw: last_read[('W', s_.w)] = seqs[n]
        if s_.lasta: last_read[('A', s_.aslot)] = seqs[n]
    for n in range(min(PD, len(steps))): reads(n)
    for n, s_ in enumerate(steps):
        fl = list(fill.get(n, []))
        lg.wait(seqs[n])
        f = vWf + (n % 3) * 4
        c = s_.c0 if s_.c0 is not None else vr(s_.acc, 16)
        A, B = (vr(f, 4), vr(s_.act, 4)) if not s_.swap else (vr(s_.act, 4), vr(f, 4))
        if s_.post: s_.post()
        if s_.cs is not None:
            a(f'v_mfma_f32_16x16x32_bf16 {vr(s_.cs,4)}, {vr(vSel,4)}, {vr(f,4)}, {"0" if s_.cs0 else vr(s_.cs,4)}')
            for _ in range(2):
                if fl and isinstance(fl[0], str) and fl[0].startswith('v_') and not fl[0].startswith('v_mfma'): emit(fl.pop(0))
        a(f'v_mfma_f32_32x32x16_bf16 {vr(s_.acc,16)}, {A}, {B}, {c}')
        if n + PD < len(steps): reads(n + PD)
        for x in fl: emit(x)

def spread(items, start, end):
    d = {}
    n = end - start
    for i, x in enumerate(items):
        d.setdefault(start + i * n // len(items), []).append(x)
    return d
def merge(*ds):
    o = {}
    for d in ds:
        for k, v in d.items(): o.setdefault(k, []).extend(v)
    return o
def pack(acc, dst): return [f'v_cvt_pk_bf16_f32 v{dst+i}, v{acc+2*i}, v{acc+2*i+1}' for i in range(8)]
def store2(pk, voff, s0, s1=None, d=2048):
    return [f'buffer_store_dwordx4 {vr(pk,4)}, v{voff}, {sr(sWSD,4)}, s{s0} offen sc1',
            f'buffer_store_dwordx4 {vr(pk+4,4)}, v{voff}, {sr(sWSD,4)}, s{s0 if s1 is None else s1} offen offset:{d} sc1']
def pubat(stage): return lambda: want_pub(stage)

def ln_consts(sum_, sq, vCA, vCB, vIR, vNM, t):
    return f'''v_mul_f32 v{t}, {f32(-1.0/512)}, v{sum_}
    v_mul_f32 v{t+1}, v{t}, v{t}
    v_mov_b32 v{t+2}, {f32(1.0/512)}
    v_fma_f32 v{t+1}, v{sq}, v{t+2}, -v{t+1}
    v_max_f32 v{t+1}, 0, v{t+1}
    v_add_f32 v{t+1}, {f32(1e-5)}, v{t+1}
    v_rsq_f32 v{t+2}, v{t+1}
    v_cvt_pk_bf16_f32 v{vNM}, v{t}, v{t}
    v_mul_f32 v{vIR}, v{t+1}, v{t+2}
    v_mul_f32 v{vCA}, {f32(-C1)}, v{t+2}
    v_mul_f32 v{t+1}, v{t+2}, v{t+2}
    v_mul_f32 v{t+1}, {f32(0.044715)}, v{t+1}
    v_mul_f32 v{vCB}, v{vCA}, v{t+1}
    v_lshlrev_b32 v{t+1}, 16, v{vNM}
    v_sub_f32 v{t+1}, v{t}, v{t+1}
    v_cvt_pk_bf16_f32 v{t+1}, v{t+1}, v{t+1}
    v_cndmask_b32 v{vNM}, v{vNM}, v{t+1}, {sr(sHI,2)}'''.replace('    ', '').split('\n')
def cs_fix(cs, vCSA, vNM, acc, t):
    return [f'v_cvt_pk_bf16_f32 v{t}, v{cs}, v{cs}',
            f'v_lshlrev_b32 v{t}, 16, v{t}',
            f'v_sub_f32 v{t}, v{cs}, v{t}',
            f'v_cvt_pk_bf16_f32 v{vCSA}, v{cs}, v{t}',
            f'v_mfma_f32_32x32x16_bf16 {vr(acc,16)}, {vr(vCSA,4)}, {vr(vNM,4)}, {vr(acc,16)}']
def gelu_pk(acc, vCA, vCB, vIR, tmp, dst):
    o = []
    for i in range(0, 16, 2): o.append(f'v_pk_mul_f32 {vr(tmp+i,2)}, {vr(acc+i,2)}, {vr(acc+i,2)}')
    for i in range(0, 16, 2): o.append(f'v_pk_fma_f32 {vr(tmp+i,2)}, {vr(tmp+i,2)}, {vr(vCB,2)}, {vr(vCA,2)} op_sel_hi:[1,0,0]')
    for i in range(0, 16, 2): o.append(f'v_pk_mul_f32 {vr(tmp+i,2)}, {vr(tmp+i,2)}, {vr(acc+i,2)}')
    for i in range(16): o.append(f'v_exp_f32 v{tmp+i}, v{tmp+i}')
    for i in range(0, 16, 2): o.append(f'v_pk_fma_f32 {vr(tmp+i,2)}, {vr(tmp+i,2)}, {vr(vIR,2)}, {vr(vIR,2)} op_sel_hi:[1,0,0]')
    for i in range(16): o.append(f'v_rcp_f32 v{tmp+i}, v{tmp+i}')
    for i in range(0, 16, 2): o.append(f'v_pk_mul_f32 {vr(tmp+i,2)}, {vr(tmp+i,2)}, {vr(acc+i,2)}')
    for i in range(0, 16, 2): o.append(f'v_cvt_pk_bf16_f32 v{dst+i//2}, v{tmp+i}, v{tmp+i+1}')
    return o
def gelu_sc(acc, vCA, vCB, vIR, tmp, dst):
    o = []
    def chain(e, t):
        return [f'v_mul_f32 v{t}, v{acc+e}, v{acc+e}', f'v_fma_f32 v{t}, v{t}, v{vCB}, v{vCA}', f'v_mul_f32 v{t}, v{t}, v{acc+e}',
                f'v_exp_f32 v{t}, v{t}', f'v_fma_f32 v{t}, v{t}, v{vIR}, v{vIR}', f'v_rcp_f32 v{t}, v{t}', f'v_mul_f32 v{t}, v{t}, v{acc+e}']
    for g in range(0, 16, 2):
        t = tmp + (g & 2)
        c0, c1 = chain(g, t), chain(g + 1, t + 1)
        for x, y in zip(c0, c1): o += [x, y]
        o.append(f'v_cvt_pk_bf16_f32 v{dst+g//2}, v{t}, v{t+1}')
    return o

vCS, vSG, vSQ = 64, 68, 72
steps = []
for n in range(32):
    j, s = divmod(n, 4)
    P = vPan + 4 * n
    G = vL + 16 + (n % 3) * 4
    def pre(n=n, G=G):
        lg.issue(f'ds_read_b128 {vr(G,4)}, v{vGa} offset:{n*32}')
    def post(n=n, s=s, P=P, G=G):
        if s == 3:
            for q in range(8):
                sq = vSQ + 4 * (q & 3)
                Pq = P - 12 + 2 * q
                a(f'v_mfma_f32_4x4x4_16b_bf16 {vr(sq,4)}, {vr(Pq,2)}, {vr(Pq,2)}, {"0" if n == 3 and q < 4 else vr(sq,4)}')
        a(f'v_mfma_f32_16x16x32_bf16 {vr(vSG,4)}, {vr(G,4)}, {vr(P,4)}, {"0" if n == 0 else vr(vSG,4)}')
    steps.append(Step(W_1 + j, s, 'n', vA0, P, aslot=A_X + j, aread='x', c0='0' if n == 0 else None, pre=pre, post=post, lastw=(s == 3), cs=vCS, cs0=(n == 0), dur=opt('DB1', 360)))
stamp('setup')
RES = vAB + 8
cA, cB, cI, cNM, cCS, cT = vL, vL + 2, vL + 4, vL + 8, vL + 12, vAf + 9
def res_reads():
    for j in range(4): q = lg.issue(f'ds_read_b64 {vr(RES+2*j,2)}, v{vRa+j}')
    for j in range(8): last_read[('A', A_X + j)] = q
zer = [f'v_mov_b32 v{r}, 0' for r in (cNM+1, cNM+2, cNM+3, cCS+1, cCS+2, cCS+3)]
def h_touch():
    a('s_mov_b32 exec_lo, 0x80000001')
    a('s_mov_b32 exec_hi, 0x80000001')
    a(f'buffer_load_dword v{vX2}, v{vStH}, {sr(sWSD,4)}, s{sOH} offen')
    a(f'buffer_load_dword v{vX3}, v{vStH}, {sr(sWSD,4)}, s{sOH} offen offset:2048')
    a('s_mov_b64 exec, -1')
run_steps(steps, merge({0: [st('s0')], 15: [st('s15')], 29: [res_reads], opt('HT', -1): [h_touch]}, spread(zer, 4, 10)))
stamp('B1 loop')
for i in range(8): a(f'v_add_f32 v{vSQ+i}, v{vSQ+i}, v{vSQ+8+i}')
for i in range(4): a(f'v_add_f32 v{vSQ+i}, v{vSQ+i}, v{vSQ+4+i}')
for i, m in ((1, sQ1), (2, sQ2), (3, sQ3)): a(f'v_cndmask_b32 v{vSQ}, v{vSQ}, v{vSQ+i}, {sr(m,2)}')
a(f'''
v_mov_b32 v{vSQ+1}, v{vSQ}
v_mul_f32 v{vG}, {f32(-LOG2E)}, v{vSG+1}
v_exp_f32 v{vG}, v{vG}
v_permlane32_swap_b32 v{vSQ}, v{vSQ+1}
v_add_f32 v{vSQ}, v{vSQ}, v{vSQ+1}
''')
lc = ln_consts(vSG, vSQ, cA, cB, cI, cNM, cT)
for x in [lc[0], lc[7]] + [y.replace(f'v{cT+1}', f'v{cT+2}') for y in lc[13:17]]: a(x)
for x in cs_fix(vCS, cCS, cNM, vA0, cT + 2): a(x)
lg.all()
tick(name='B1e', dur=600) if not opt('GI', 16) else None
for x in lc[1:7] + [f'v_add_f32 v{vG}, 1.0, v{vG}'] + lc[8:13] + [f'v_rcp_f32 v{vG}, v{vG}']: a(x)
PK = vAf
GI = opt('GI', 16)
zm = [f'v_cndmask_b32 v{PK+i}, v{PK+i}, 0, {sr(sZM,2)}' for i in range(8)]
hs2 = store2(PK, vStH, sOH)
hfill = {}
if GI:
    g = gelu_sc(vA0, cA, cB, cI, vT, PK)
    hfill = spread(g[:60] + zm[:4] + g[60:] + zm[4:] + ['\n'.join(hs2), mark(1)], 0, GI)
else:
    for x in gelu_pk(vA0, cA, cB, cI, vA1, PK) + zm + hs2: a(x)
    mark(1)()
aK, aV, aQ = (vA1, vA0, vA1) if GI else (vA0, vA1, vA0)
stamp('B1 epi')

steps = []
for p, (w0, acc, swap) in enumerate(((W_K, aK, False), (W_V, aV, True), (W_Q, aQ, False))):
    for n in range(32):
        j, s = divmod(n, 4)
        steps.append(Step(w0 + j, s, 'n', acc, vPan + 4 * n, swap=swap, c0='0' if n == 0 else None, lastw=(s == 3)))
unres = []
for j in range(8):
    unres += [f'v_lshlrev_b32 v{vAB+2*j}, 16, v{RES+j}', f'v_and_b32 v{vAB+2*j+1}, 0xffff0000, v{RES+j}']
def stream_steps(w0, a0, nsteps, acc, c0=None, phase=0):
    o = []
    for n in range(nsteps):
        j, s = divmod(n, 4)
        last = s == 3 or n == nsteps - 1
        o.append(Step(w0 + j, s, 't', acc, vAf + ((n + phase) % 3) * 4, aslot=a0 + j, aread='p', c0=c0 if n == 0 else None, lastw=last, lasta=last))
    return o
PKS = vL + 16
vK, vV = 128, 164
M8 = [20, 21, 22, 23, 252, 253, 254, 255]
vVs, vVm, vVa = vWn0, vWn1, vL16
att_pre = [f'v_mov_b32 v{vK+1}, 0xffff0000', f'v_mov_b32 v{vK+2}, 0xffff']
for i in range(8):
    att_pre += [f'v_cndmask_b32 v{M8[i]}, 0, v{vK+2}, {sr(sMASK+4*i,2)}', f'v_cndmask_b32 v{vK}, 0, v{vK+1}, {sr(sMASK+4*i+2,2)}', f'v_or_b32 v{M8[i]}, v{M8[i]}, v{vK}']
att_pre += [f'v_add_u32 v{vX2}, 61440, v{vKr}', f'v_and_b32 v{vX2}, 0xffff, v{vX2}', f'v_mov_b32 v{vK+3}, 4096',
            f'v_cndmask_b32 v{vVs}, 16, v{vK+3}, {sr(sVM,2)}', f'v_cndmask_b32 v{vVm}, -1, v{vK+2}, {sr(sVM,2)}',
            f'v_mov_b32 v{vK+3}, {apos(A_KO)}', f'v_cndmask_b32 v{vX3}, 0, v{vK+3}, {sr(sVM,2)}', f'v_add_u32 v{vX3}, v{vX3}, v{vVr}']
qfin = [f'v_mul_f32 v{aQ+i}, {f32(QSCALE)}, v{aQ+i}' for i in range(16)] + pack(aQ, vQl)
sta = [f'v_and_b32 v{vX0}, 1023, v{vP}', f'v_lshrrev_b32 v{vX0}, 1, v{vX0}', f'v_mov_b32 v{vX1}, 0x3f803f80']
steps += stream_steps(W_2, A_H, 32, vAB, phase=96)
fill = merge(hfill, spread(unres + sta, 44, 62), {31: [st('K')], 63: [st('V')], 95: [st('Q')]},
             {opt('PUB1', GI + 20): [pubat(1)]},
             spread(pack(aK, vL), 35, 39), {opt('KST', 67): store2(vL, vKr, sOK0, sOK1, 0)},
             spread(pack(aV, PKS), 66, 69), {68: store2(PKS, vStV, sOK0, None, 512)},
             {opt('PUB2', 92): [pubat(2)]},
             spread(qfin, 99, 111), spread(att_pre, 111, 128))
run_steps(steps, fill)
stamp('B2 loop')
for x in pack(vAB, PK): a(x)
for x in store2(PK, vP, sOX1): a(x)
for i in range(8):
    a(f'v_dot2_f32_bf16 v{vA0}, v{PK+i}, v{vX1}, {"0" if i==0 else "v%d"%vA0}')
    a(f'v_dot2_f32_bf16 v{vA0+1}, v{PK+i}, v{PK+i}, {"0" if i==0 else "v%d"%(vA0+1)}')
a(f'''
v_mov_b32 v{vA0+2}, v{vA0}
v_mov_b32 v{vA0+3}, v{vA0+1}
v_permlane32_swap_b32 v{vA0}, v{vA0+2}
v_permlane32_swap_b32 v{vA0+1}, v{vA0+3}
v_add_f32 v{vA0}, v{vA0}, v{vA0+2}
v_add_f32 v{vA0+1}, v{vA0+1}, v{vA0+3}
buffer_store_dwordx2 {vr(vA0,2)}, v{vX0}, {sr(sWSD,4)}, s{sOST} offen sc1
''')
tick(name='B2e', dur=600)
stamp('B2 epi')

vCB_, vM8 = 24, 40
vS0, vS1, vMG, vO = 236, 96, 64, 48
Kf = lambda j: vK + 4 * j
Vf = lambda j, b: vV + 8 * j + 4 * b
MF = lambda d, x, y, c: f'v_mfma_f32_32x32x16_bf16 {vr(d,16)}, {vr(x,4)}, {vr(y,4)}, {c if c == "0" else vr(c,16)}'
def kv_addr(a0, j, plain, wrapped):
    off = (apos(a0) + 4096 * j) % 65536
    return (wrapped, 0) if off == 61440 else (plain, off)
kseq = {}
def k_read(a0, j):
    r_, off = kv_addr(a0, j, vKr, vX2)
    kseq[j] = lg.issue(f'ds_read_b128 {vr(Kf(j),4)}, v{r_} offset:{off}')
vseq = {}
def v_ops(a0, j, last=False):
    base = vVr if a0 == A_KE else vX3
    ad = vVa if j else base
    def r0():
        if j:
            a(f'v_mad_u32_u24 v{vVa}, v{vVs}, {j}, v{base}')
            if apos(a0) + 4096 * (j + 1) >= 65536: a(f'v_and_b32 v{vVa}, v{vVm}, v{vVa}')
        lg.issue(f'ds_read_b128 {vr(Vf(j,0),4)}, v{ad}')
    def r1():
        vseq[j] = lg.issue(f'ds_read_b128 {vr(Vf(j,1),4)}, v{ad} offset:512')
        if last:
            for i in range(5): last_read[('A', a0 + i)] = vseq[j]
    return [r0, r1]
assert apos(A_KE) == 0
vMx, vMy = vT, vT + 1
sFL = [96, 98]
def o_norm(pk):
    return ([f'v_rcp_f32 v{vO+9}, v{vO+8}'] + [f'v_mul_f32 v{vO+i}, v{vO+i}, v{vO+9}' for i in range(8)] +
            [f'v_cvt_pk_bf16_f32 v{pk+i}, v{vO+2*i}, v{vO+2*i+1}' for i in range(4)])
def o_final(t):
    n = o_norm(112 + 4 * t)
    chk = [f'v_subrev_u32 v{vO+10}, {63<<23}, v{vO+8}', f'v_lshrrev_b32 v{vO+10}, 30, v{vO+10}', f'v_cmp_ne_u32 {sr(sFL[t],2)}, 0, v{vO+10}']
    fin = [f'v_add_f32_e64 v{vO+11}, |v{vO}|, |v{vO+1}|'] + [f'v_add_f32_e64 v{vO+11}, v{vO+11}, |v{vO+i}|' for i in range(2, 8)] + \
          [f'v_cmp_class_f32 vcc, v{vO+11}, v{vT+2}', f's_nop 0\ns_or_b64 {sr(sFL[t],2)}, {sr(sFL[t],2)}, vcc']
    return n[:1] + chk + n[1:] + (store2(112, vP, sOO) if t == 1 else []) + fin
rq = []
gap = [0]
mq = []
mgap = [0]
def va(x, cost=4):
    a(x)
    gap[0] += cost; mgap[0] += cost
    if mq and mgap[0] >= 24:
        mq.pop(0)(); mgap[0] = 0
    elif rq and gap[0] >= opt('RG', 16):
        rq.pop(0)(); gap[0] = 0
def flush(q):
    while q: q.pop(0)()
def QK(d, j, t):
    def f():
        lg.wait(kseq[j]); a(MF(d, Kf(j), vQl + 4 * t, '0'))
    return f
def PV(j, b, p, c):
    def f():
        lg.wait(vseq[j]); a(MF(vO, Vf(j, b), p, c))
    return f
a(f'v_mov_b32 v{vT+2}, 0x207')
tick(needA=A_KE + 4, name='KVE', dur=opt('DKVE', 500))
for j in (0, 8, 1, 2): k_read(A_KE, j)
for f in v_ops(A_KE, 0) + v_ops(A_KE, 8): f()
QK(vMG, 0, 0)(); QK(vCB_, 8, 0)(); QK(vS0, 1, 0)()
for j in range(3, 8): k_read(A_KE, j)
for j in range(1, 8): rq += v_ops(A_KE, j, j == 7)
KI = opt('KI', 5)
bufs2 = [vS0, vS1]
pend = []
for t in range(2):
    mq += pend
    if t == 1:
        mq.append(QK(vS0, 1, 1))
        mq.append(lambda: rq.extend(v_ops(A_KO, 7, True)))
    for r in range(16): va(f'v_cndmask_b32 v{vMG+r}, v{vCB_+r}, v{vMG+r}, {sr(sMASK+2*r,2)}')
    mq.append(QK(vS1, 2, t))
    for r in range(16): va(f'v_exp_f32 v{vMG+r}, v{vMG+r}', 8)
    flush(mq)
    if t == 1:
        for x in o_final(0): va(x)
    for i in range(8): va(f'v_cvt_pk_bf16_f32 v{vMG+i}, v{vMG+2*i}, v{vMG+2*i+1}')
    for i in range(8): va(f'v_and_b32 v{vMG+8+i}, v{vMG+i}, v{M8[i]}')
    mq.append(PV(0, 0, vMG + 8, '0'))
    for i in range(8): va(f'v_xor_b32 v{vMG+i}, v{vMG+i}, v{vMG+8+i}')
    flush(mq)
    pend = [PV(0, 1, vMG + 12, vO), PV(8, 0, vMG, vO), PV(8, 1, vMG + 4, vO)]
    kdone, vdone = set(), set()
    for i in range(7):
        b = bufs2[i % 2]
        if i == (1 if t == 0 else 0):
            flush(rq); lg.all()
        if t == 0 and i == opt('PUB3', 1): want_pub(3)
        if t == 0 and i == KI: tick(needA=A_KO + 4, name='KVO', dur=380)
        else: tick(name=f'T{t}{i}', dur=200 if i < 6 else 900 if t == 0 else 400)
        if t == 0 and i >= KI:
            for j in [0, 8] + list(range(1, i + 2)):
                if j not in kdone: kdone.add(j); rq.append(lambda j=j: k_read(A_KO, j))
            for j in [0, 8] + list(range(1, i)):
                if j not in vdone: vdone.add(j); rq += v_ops(A_KO, j)
        mq += pend
        if 0 < i < 6: mq.append(QK(bufs2[(i + 1) % 2], i + 2, t))
        if t == 0 and i == 6:
            mq.append(lambda: rq.extend(v_ops(A_KO, 6)))
            mq += [QK(vMG, 0, 1), QK(vCB_, 8, 1)]
        mgap[0] = 16
        for r in range(16): va(f'v_exp_f32 v{b+r}, v{b+r}', 8)
        flush(mq)
        for q in range(8): va(f'v_cvt_pk_bf16_f32 v{b+q}, v{b+2*q}, v{b+2*q+1}')
        pend = [PV(1 + i, 0, b, vO), PV(1 + i, 1, b + 4, vO)]
    flush(rq)
    mgap[0] = 24
for f in pend: f()

def emit_fallback():
    global a
    keep = a; a = Asm(); a.uid = 500000
    Qf, tk, tv = 40, 44, 45
    a('L_fb:')
    a(f's_mov_b32 s{sT3}, 0')
    a('L_fb_head:')
    a(f"""
    s_cmp_eq_u32 s{sT3}, 0
    s_cselect_b64 vcc, {sr(sFL[0],2)}, {sr(sFL[1],2)}
    s_cmp_eq_u64 vcc, 0
    s_cbranch_scc1 L_fb_next
    s_cmp_eq_u32 s{sT3}, 0
    s_cselect_b64 vcc, -1, 0
    """)
    for i in range(4): a(f'v_cndmask_b32 v{Qf+i}, v{vQl+4+i}, v{vQl+i}, vcc')
    a(f"""
    v_and_b32 v46, 4095, v{vKr}
    v_and_b32 v47, 4095, v{vStV}
    v_mov_b32 v{vT+3}, 0x3f803f80
    """)
    for j in range(9):
        a(f"""
        s_add_u32 s{sT0}, s{sTT}, {j}
        s_lshr_b32 s{sT1}, s{sT0}, 1
        s_lshl_b32 s{sT1}, s{sT1}, 17
        s_and_b32 s{sT0}, s{sT0}, 1
        s_lshl_b32 s{sT0}, s{sT0}, 12
        s_add_u32 s{sT0}, s{sT0}, s{sT1}
        s_add_u32 s{sT0}, s{sT0}, s{sOK0}
        s_sub_u32 s{sT0}, s{sT0}, {4<<17}
        s_lshl_b32 s{sT1}, s{sR}, 17
        s_sub_u32 s{sT1}, s{sOK0}, s{sT1}
        s_cmp_le_u32 s{sJV}, {j}
        s_cselect_b32 s{sT0}, s{sT0}, s{sT1}
        s_cselect_b32 s{sT1}, -1, 0xe00
        s_cselect_b32 s{sT2}, -1, 0
        s_cselect_b64 vcc, -1, 0
        s_add_u32 s{sT0}, s{sT0}, s{sT3}
        v_and_b32 v{tk}, s{sT1}, v46
        v_mov_b32 v{tv}, 0x80000000
        v_cndmask_b32 v{tv}, v{tv}, v47, vcc
        v_and_b32 v{Vf(j,0)}, s{sT2}, v{vT+3}
        """)
        for i in range(1, 8): a(f'v_mov_b32 v{Vf(j,0)+i}, v{Vf(j,0)}')
        a(f"""
        buffer_load_dwordx4 {vr(Kf(j),4)}, v{tk}, {sr(sWSD,4)}, s{sT0} offen sc1
        s_mov_b64 exec, {sr(sVM,2)}
        buffer_load_dwordx4 {vr(Vf(j,0),4)}, v{tv}, {sr(sWSD,4)}, s{sT0} offen sc1
        buffer_load_dwordx4 {vr(Vf(j,1),4)}, v{tv}, {sr(sWSD,4)}, s{sT0} offen offset:512 sc1
        s_mov_b64 exec, -1
        """)
    a('s_waitcnt vmcnt(0)')
    a(MF(vMG, Kf(0), Qf, '0')); a(MF(vS0, Kf(8), Qf, '0'))
    for r in range(16): a(f'v_cndmask_b32 v{vMG+r}, v{vS0+r}, v{vMG+r}, {sr(sMASK+2*r,2)}')
    a(f'v_max_f32 v{vMx}, v{vMG}, v{vMG+1}')
    for q in range(2, 16, 2): a(f'v_max3_f32 v{vMx}, v{vMG+q}, v{vMG+q+1}, v{vMx}')
    for j in range(1, 8):
        a(MF(vS0, Kf(j), Qf, '0'))
        for q in range(0, 16, 2): a(f'v_max3_f32 v{vMx}, v{vS0+q}, v{vS0+q+1}, v{vMx}')
    a(f'v_mov_b32 v{vMy}, v{vMx}')
    a(f'v_permlane32_swap_b32 v{vMx}, v{vMy}')
    a(f'v_min_f32_e64 v{vCB_}, -v{vMx}, -v{vMy}')
    for i in range(1, 16): a(f'v_mov_b32 v{vCB_+i}, v{vCB_}')
    for r in range(16): a(f'v_add_f32 v{vMG+r}, v{vMG+r}, v{vCB_}')
    for r in range(16): a(f'v_exp_f32 v{vMG+r}, v{vMG+r}')
    for i in range(8): a(f'v_cvt_pk_bf16_f32 v{vMG+i}, v{vMG+2*i}, v{vMG+2*i+1}')
    for i in range(8): a(f'v_and_b32 v{vMG+8+i}, v{vMG+i}, v{M8[i]}')
    for i in range(8): a(f'v_xor_b32 v{vMG+i}, v{vMG+i}, v{vMG+8+i}')
    for x in (MF(vO, Vf(0, 0), vMG + 8, '0'), MF(vO, Vf(0, 1), vMG + 12, vO), MF(vO, Vf(8, 0), vMG, vO), MF(vO, Vf(8, 1), vMG + 4, vO)): a(x)
    for j in range(1, 8):
        a(MF(vS0, Kf(j), Qf, vCB_))
        for r in range(16): a(f'v_exp_f32 v{vS0+r}, v{vS0+r}')
        for q in range(8): a(f'v_cvt_pk_bf16_f32 v{vS0+q}, v{vS0+2*q}, v{vS0+2*q+1}')
        a(MF(vO, Vf(j, 0), vS0, vO)); a(MF(vO, Vf(j, 1), vS0 + 4, vO))
    for x in o_norm(vS1): a(x)
    a(f"""
    s_lshr_b32 s{sT0}, s{sT3}, 2
    s_add_u32 s{sT0}, s{sT0}, s{sOO}
    buffer_store_dwordx4 {vr(vS1,4)}, v{vP}, {sr(sWSD,4)}, s{sT0} offen sc1
    s_waitcnt vmcnt(0)
    L_fb_next:
    s_add_u32 s{sT3}, s{sT3}, 8192
    s_cmp_eq_u32 s{sT3}, 8192
    s_cbranch_scc1 L_fb_head
    s_nop 7
    s_branch L_fb_done
    """)
    ool.ins += a.ins
    a = keep
emit_fallback()

cA, cB, cI, cNM, cCS, cT = 96, 98, 100, 104, 108, 16
csA = [120, 124]
PK3 = 112
def b3_steps(p, acc):
    o = []
    for n in range(32):
        j, s = divmod(n, 4)
        if p == 0:
            o.append(Step(W_3 + j, s, 't', acc, vPan + 4 * n, aslot=A_X1 + j, aread='p', c0='0' if n == 0 else None, lastw=(s == 3), lasta=(s == 3),
                          dur=opt('DB30', 200)))
        else:
            o.append(Step(W_3 + 8 * p + j, s, 't', acc, vPan + 4 * n, c0='0' if n == 0 else None, lastw=(s == 3), dur=opt('DB3', 230)))
    return o
CSR = 36
setup3 = [f'v_mov_b32 v{r}, 0' for r in (cNM+2, cNM+3, cCS+2, cCS+3)] + \
         [f'v_lshrrev_b32 v{vX1}, 10, v{vP}', f'v_lshl_add_u32 v{vX0}, v{vX1}, 12, v{vX0}',
          f'v_and_b32 v120, 511, v{vP}', 'v_lshrrev_b32 v120, 2, v120', f'v_lshl_add_u32 v120, v{vX1}, 10, v120',
          f's_lshl_b32 s{sT0}, s{sCH}, 7\ns_add_u32 s{sT0}, s{sT0}, {GATE}\nv_add_u32 v120, s{sT0}, v120', 'v_add_u32 v121, 2048, v120', 'v_add_u32 v122, 4096, v120']
st_seq = [0]
def stats_load():
    for i in range(8): st_seq[0] = lg.issue(f'ds_read_b64 {vr(vA1+2*i,2)}, v{vX0} offset:{apos(A_ST)+512*i}')
    last_read[('A', A_ST)] = st_seq[0]
def cs_load():
    for p in range(3):
        for k in range(2): st_seq[0] = lg.issue(f'ds_read2_b32 {vr(CSR+4*p+2*k,2)}, v{120+p} offset0:{128*k} offset1:{128*k+64}')
sfin = [lambda: lg.wait(st_seq[0])]
for i in range(1, 8):
    sfin += [f'v_add_f32 v{vA1}, v{vA1}, v{vA1+2*i}', f'v_add_f32 v{vA1+1}, v{vA1+1}, v{vA1+2*i+1}']
sfin += [f'v_mov_b32 v{vX2}, v{vA1}', f'v_mov_b32 v{vX3}, v{vA1+1}', f'v_permlane32_swap_b32 v{vA1}, v{vX2}', f'v_permlane32_swap_b32 v{vA1+1}, v{vX3}',
         f'v_add_f32 v{vX2}, v{vA1}, v{vX2}', f'v_add_f32 v{vX3}, v{vA1+1}, v{vX3}']
lc3 = ln_consts(vX2, vX3, cA, cB, cI, cNM, cT)
lc3 = lc3[:15] + [f'v_cvt_pk_bf16_f32 v{cNM+1}, v{cT+1}, v{cT+1}']
def cs3(p, acc):
    c0 = CSR + 4 * p
    o = [f'v_add_f32 v{c0}, v{c0}, v{c0+1}', f'v_add_f32 v{c0+2}, v{c0+2}, v{c0+3}', f'v_add_f32 v{c0}, v{c0}, v{c0+2}']
    f = cs_fix(c0, cCS, cNM, acc, c0 + 1)
    return o + f[:4] + [f'v_mov_b32 v{cCS+1}, v{cCS}', f[4]]
def h3_epi(p, acc, s0, s1):
    nxt = [f's_add_u32 s{sOH3}, s{sOH3}, 65536']
    if p == 1: nxt += [f's_cmp_ge_u32 s{sC}, 6', f's_cselect_b32 s{sOH3}, {WS_REC}, s{sOH3}']
    g = gelu_sc(acc, cA, cB, cI, cT, PK3)
    s2 = store2(PK3, vP, sOH3)
    return spread(g + ['\n'.join(s2), mark(5 + p), lambda: a('\n'.join(nxt))], s0, s1)
for x in setup3[4:6] + o_final(1): a(x)
a(f's_or_b64 vcc, {sr(sFL[0],2)}, {sr(sFL[1],2)}')
a('s_cbranch_scc1 L_fb')
a('L_fb_done:')
for x in setup3[6:]: a(x)
fin = [f'v_and_b32 v{vA0}, 511, v{vP}', f'v_lshlrev_b32 v{vA0}, 6, v{vA0}', f'v_lshrrev_b32 v{vA0+1}, 10, v{vP}', f'v_lshl_add_u32 v{vA0}, v{vA0+1}, 4, v{vA0}',
       f'v_sub_f32 v{vA0+2}, 1.0, v{vG}'] + [f'v_mul_f32 v{vA1+i}, v{vG}, v{vA1+i}' for i in range(16)]
G0, G1, G2 = opt('GL0', 22), opt('GL1', 24), opt('GL2', 24)
a3 = stream_steps(W_O, A_O, 32, vA1, c0='0', phase=96)
for x in a3: x.dur = opt('DA3', 250)
run_steps(b3_steps(0, vA0) + b3_steps(1, vA1) + b3_steps(2, vA0) + a3 + stream_steps(W_4, A_H3, 86, vAB, phase=128),
          merge({opt('PUB4', 20): [pubat(4)]}, {0: [stats_load], 2: [cs_load]}, spread(sfin + setup3[:4] + lc3 + cs3(0, vA0), 4, 30),
                h3_epi(0, vA0, 35, 35 + G0), spread(cs3(1, vA1), 60, 64), {opt('PUB5', 35 + G0 + 16): [pubat(5)]},
                spread(cs3(2, vA0), 64, 67), h3_epi(1, vA1, 67, 67 + G1), {opt('PUB6', 67 + G1 + 14): [pubat(6)]},
                h3_epi(2, vA0, 99, 99 + G2), {opt('PUB7', 99 + G2 + 16): [pubat(7)]}, spread(fin, 136, 164)))
stamp('A3B4')
for i in range(0, 16, 2): a(f'v_pk_fma_f32 {vr(vA1+i,2)}, {vr(vAB+i,2)}, {vr(vA0+2,2)}, {vr(vA1+i,2)} op_sel_hi:[1,0,1]')
for x in pack(vA1, PK): a(x)
a(f'''
v_permlane32_swap_b32 v{PK}, v{PK+2}
v_permlane32_swap_b32 v{PK+1}, v{PK+3}
v_permlane32_swap_b32 v{PK+4}, v{PK+6}
v_permlane32_swap_b32 v{PK+5}, v{PK+7}
buffer_store_dwordx4 {vr(PK,4)}, v{vA0}, {sr(sSRD,4)}, s{sOOUT} offen
buffer_store_dwordx4 {vr(PK+4,4)}, v{vA0}, {sr(sSRD,4)}, s{sOOUT} offen offset:32
''')
dbg_dump()
names = {'c': list(stamp_names)}
a('s_endpgm')
a.ins += ool.ins
sec_comp = a.ins; a.ins = []

NT = len(ticks)
tname = {t['name']: i for i, t in enumerate(ticks)}
def free_tick(kind, idx, ring):
    if idx < ring: return -1
    for i, t in enumerate(ticks):
        if (kind, idx - ring) in t['free']: return i
    raise Exception((kind, idx))
def use_tick(kind, idx):
    for i, t in enumerate(ticks):
        n = t['need' + kind]
        if n is not None and n >= idx: return i
    raise Exception((kind, idx))
pub_tick = {t['pub']: i for i, t in enumerate(ticks) if t['pub']}

grp_first = {A_H: 1, A_KE: 2, A_ST: 3, A_O: 4, A_H3: 5, A_H3 + 8: 6, A_H3 + 16: 7}
gate_tick = {1: use_tick('A', A_H) - opt('LA1', 6), 2: tname[{0: 'W39', 1: 'B2e', 2: 'W38'}[opt('G2', 2)]], 3: tname[f'T1{opt("G3", 0)}'],
             4: use_tick('A', A_O) - opt('LA4', 9), 5: use_tick('A', A_H3) - opt('LA5', 5),
             6: use_tick('A', A_H3 + 8) - opt('LA6', 5), 7: use_tick('A', A_H3 + 16) - opt('LA7', 5)}
for g, t in gate_tick.items(): assert t > pub_tick[g], (g, t, pub_tick[g])
def stage_of(i):
    st_ = 0
    for f, g in grp_first.items():
        if i >= f: st_ = g
    return st_
tstart = [0]
for t in ticks: tstart.append(tstart[-1] + t['dur'])
cost = lambda k, i: opt('CW3', 200) if k == 'W' and W_3 <= i < W_O else 240 if (k, i) == ('A', A_ST) else opt('CS', 140)
LEAD = opt('LEAD', 700)
plan = {}
nxt = {'W': 0, 'A': 0}
END = {'W': W_END, 'A': A_END}
RING = {'W': NW, 'A': NA}
bud = 0
for t in range(-1, NT - 1):
    bud = min(bud, opt('CARRY', 100)) + (opt('B0', 8) * 128 if t < 0 else ticks[t]['dur'] * opt('BUD', 100) // 100)
    while True:
        cands = []
        for k in 'AW':
            i = nxt[k]
            if i >= END[k] or free_tick(k, i, RING[k]) > t: continue
            if k == 'A' and stage_of(i) and gate_tick[stage_of(i)] > t: continue
            cands.append((use_tick(k, i), k, i))
        if not cands: break
        u, k, i = min(cands)
        must = u == t + 1 or (t >= 0 and tstart[u] - tstart[t + 1] < LEAD)
        if bud < cost(k, i) // 2 and not must: break
        plan.setdefault(t, []).append((k, i)); nxt[k] += 1; bud -= cost(k, i)
assert nxt == END, nxt

sOFF, sB3, sHW, sHA, sNEED = 51, 52, 53, 54, 55
sCH8 = 60
sAB = 68
sSRA = 80
a('L_load:')
a(f's_setprio {opt("PL", 3)}')
vS = {3072: 24, 1024: 28, 2752: 32}
vXo, vLin, vKVo = 10, 14, 36
a(f"""
s_sub_u32 s{sHA}, s{sWV}, 4
s_lshl_b32 s{sT0}, s{sHA}, 5
v_lshrrev_b32 v1, 3, v0
v_add_u32 v1, s{sT0}, v1
v_and_b32 v3, 7, v0
v_lshrrev_b32 v2, 4, v0
v_xor_b32 v2, v2, v3
v_lshlrev_b32 v4, 10, v1
v_lshl_add_u32 v{vXo}, v2, 4, v4
v_xor_b32 v2, 4, v2
v_lshl_add_u32 v{vXo+1}, v2, 4, v4
v_add_u32 v{vXo+1}, 7168, v{vXo+1}
v_add_u32 v{vXo+2}, 14336, v{vXo}
v_add_u32 v{vXo+3}, 14336, v{vXo+1}
v_bfe_u32 v2, v0, 4, 1
v_lshlrev_b32 v2, 2, v2
v_xor_b32 v2, v2, v3
v_lshlrev_b32 v2, 4, v2
s_lshl_b32 s{sT0}, s{sC}, 7
v_add_u32 v2, s{sT0}, v2
v_add_u32 v28, v4, v2
v_add_u32 v29, 7168, v28
v_add_u32 v30, 7168, v29
v_add_u32 v31, 7168, v30
s_lshl_b32 s{sHA}, s{sHA}, 12
s_add_u32 s{sHW}, s{sHA}, {WBASE}
s_lshl_b32 s{sAB}, s{sR}, 16
s_mov_b32 s{sSRA+2}, {2048*1024}
s_mov_b32 s{sSRA+3}, 0x20000
s_lshl_b32 s{sT0}, s{sRT1}, 7
v_lshlrev_b32 v5, 4, v0
v_add_u32 v6, s{sT0}, v5
v_and_b32 v6, 1023, v6
""")
sCH1 = 92
def chunk_table(dst, rot, q0=0, q1=8):
    for q in range(q0, q1):
        a(f's_add_u32 s{dst+q}, s{rot}, {q}')
        a(f's_and_b32 s{dst+q}, s{dst+q}, 7')
assert not DEBUG
a(f"""
s_waitcnt lgkmcnt(0)
""")
dbg_start()
stamp('karg')
a(f"""
s_mov_b32 s{sSRA}, s{sX}
s_mov_b32 s{sSRA+1}, s{sX+1}
s_mov_b32 s{sSRD}, s{sGATE}
s_mov_b32 s{sSRD+1}, s{sGATE+1}
s_mov_b32 s{sSRD+2}, 1024
s_mov_b32 m0, {GATE}
s_mov_b32 s{sWSD}, s{sWS}
s_mov_b32 s{sWSD+1}, s{sWS+1}
buffer_load_dwordx4 v6, {sr(sSRD,4)}, 0 offen lds
""")
def late_setup(part):
    st_, b = ((3072, 24), (2752, 32))[part]
    a(f'v_mul_u32_u24 v3, {st_}, v1')
    a(f'v_add_u32 v{b}, v3, v2')
    for i in range(1, 4): a(f'v_add_u32 v{b+i}, {8*st_-1024}, v{b+i-1}')
    if part == 0: return
    chunk_table(sCH8, sROT)
def late_setup2():
    a(f"""
    v_add_u32 v{vLin}, s{sHA}, v5
    s_cmp_ge_u32 s{sC}, 6
    s_cselect_b32 s{sB3}, 0x200000, 0
    s_add_u32 s{sB3}, s{sB3}, 2048
    s_add_u32 s{sAB+1}, s{sAB}, {WS_H}
    s_add_u32 s{sAB+3}, s{sAB}, {WS_O}
    s_mul_i32 s{sAB+2}, s{sR}, {X1_STRIDE}
    s_add_u32 s{sAB+2}, s{sAB+2}, {WS_X1}
    s_mul_i32 s{sAB+4}, s{sR}, {H3_STRIDE}
    s_add_u32 s{sAB+4}, s{sAB+4}, {WS_H3}
    v_and_b32 v7, 512, v5
    v_mov_b32 v8, 0x80000000
    """)
    for i in range(5):
        a(f"""
        s_add_i32 s{sT1}, s{sR}, {i-4}
        s_max_i32 s{sT1}, s{sT1}, 0
        s_lshl_b32 s{sT1}, s{sT1}, 3
        s_add_u32 s{sT1}, s{sT1}, s{sC}
        s_lshl_b32 s{sT1}, s{sT1}, 14
        s_add_u32 s{sAB+5+i}, s{sT1}, {WS_KV}
        """)
        if i < 4:
            a(f"""
            s_cmp_lt_u32 s{sR}, {4-i}
            s_cselect_b64 vcc, -1, 0
            v_cndmask_b32 v{vKVo+2*i}, v{vLin}, v{7 if KDUP else 8}, vcc
            v_cndmask_b32 v{vKVo+2*i+1}, v{vLin}, v8, vcc
            """)
wdesc = []
for (ptr, size, st_, co) in ((sW1, 512*1024, 1024, 0), (sWQKV, 512*3072, 3072, 1024), (sWQKV, 512*3072, 3072, 2048), (sWQKV, 512*3072, 3072, 0),
                             (sW2, 512*1024, 1024, 0), (sW3, 512*2752, 2752, 0), (sW3, 512*2752, 2752, 1024), (sW3, 512*2752, 2752, f's{sB3}'),
                             (sWO, 512*1024, 1024, 0), (sW4, 1376*1024, 1024, 0), (sW4, 1376*1024, 1024, 512*1024)):
    for q in range(8): wdesc.append((ptr, size, st_, co, q))
for q in range(6): wdesc.append((sW4, 1376*1024, 1024, (16 + q) * 65536, None))
cur_mat = [None]
def w_issue(idx):
    ptr, size, st_, co, q = wdesc[idx]
    if cur_mat[0] != ptr:
        cur_mat[0] = ptr
        a(f's_mov_b32 s{sSRD}, s{ptr}')
        a(f's_mov_b32 s{sSRD+1}, s{ptr+1}')
        a(f's_mov_b32 s{sSRD+2}, {size}')
    a(f's_add_u32 m0, s{sHW}, {wpos(idx)}')
    if q is None: a(f's_mov_b32 s{sOFF}, {co}')
    else:
        a(f's_mul_i32 s{sOFF}, s{(sCH1 if idx < W_2 else sCH8)+q}, {64*st_}')
        if co: a(f's_add_u32 s{sOFF}, s{sOFF}, {co}')
    for i in range(4): a(f'buffer_load_dwordx4 v{vS[st_]+i}, {sr(sSRD,4)}, s{sOFF} offen offset:{1024*i} lds')
    if idx % 8 == 7: stamp(f'w{idx}')
def a_issue(idx):
    a(f's_add_u32 m0, s{sHA}, {apos(idx)}')
    srd, vo = sWSD, [vLin] * 4
    def rot(base, q, extra=0):
        a(f's_lshl_b32 s{sOFF}, s{sCH8+q}, 13')
        a(f's_add_u32 s{sOFF}, s{sOFF}, s{base}')
        if extra: a(f's_add_u32 s{sOFF}, s{sOFF}, {extra}')
    if idx < A_H:
        chunk_table(sCH1, sRT1, idx, idx + 1)
        a(f's_lshl_b32 s{sOFF}, s{sCH1+idx}, 7')
        a(f's_add_u32 s{sOFF}, s{sOFF}, s{sAB}')
        srd, vo = sSRA, [vXo + i for i in range(4)]
    elif idx < A_KE: rot(sAB + 1, idx - A_H)
    elif idx < A_ST:
        p, i = divmod(idx - A_KE, 5)
        a(f's_add_u32 s{sOFF}, s{sAB+5+i}, {8192*p}')
        if i < 4: vo = [vKVo + 2*i] * 2 + [vKVo + 2*i + 1] * 2
    elif idx == A_ST: a(f's_add_u32 s{sOFF}, s{sAB+2}, 65536')
    elif idx < A_O: rot(sAB + 2, idx - A_X1)
    elif idx < A_H3: rot(sAB + 3, idx - A_O)
    elif idx < A_H3 + 16: rot(sAB + 4, (idx - A_H3) % 8, 65536 * ((idx - A_H3) // 8))
    else: a(f's_add_u32 s{sOFF}, s{sAB+4}, {8192*(idx-A_H3)}')
    if idx == A_END - 1:
        a(f's_cmp_lg_u32 s{sHA}, 0')
        a(f's_cselect_b32 s{sOFF}, {WS_REC}, s{sOFF}')
    for i in range(4): a(f'buffer_load_dwordx4 v{vo[i]}, {sr(srd,4)}, s{sOFF} offen offset:{1024*i} sc1 lds')
    if idx == A_ST:
        a(f's_lshr_b32 s{sT0}, s{sHA}, 2')
        a(f's_sub_u32 s{sT0}, s{sHA}, s{sT0}')
        a(f's_add_u32 m0, s{sT0}, {GATE}')
        a(f's_lshl_b32 s{sOFF}, s{sC}, 13')
        a(f's_add_u32 s{sOFF}, s{sOFF}, s{sT0}')
        a(f's_add_u32 s{sOFF}, s{sOFF}, {WS_CS}')
        for i in range(3): a(f'buffer_load_dwordx4 v5, {sr(srd,4)}, s{sOFF} offen offset:{1024*i} sc1 lds')
    if idx in (15, 20, 33, 42, 64): stamp(f'a{idx}')
sSRP, sPI = 84, 88
pdesc = {'wqkv': (sWQKV, 512*3072, 3), 'w2': (sW2, 512*1024, 1), 'w3': (sW3, 512*2752, 3), 'wo': (sWO, 512*1024, 1), 'w4': (sW4, 1376*1024, 3)}
def p_issue(nm):
    ptr, size, n = pdesc[nm]
    a(f's_mov_b32 s{sSRP}, s{ptr}')
    a(f's_mov_b32 s{sSRP+1}, s{ptr+1}')
    a(f's_mov_b32 s{sSRP+2}, {size}')
    a(f's_mul_i32 s{sOFF}, s{sPI}, {1024*n}')
    for i in range(n): a(f'buffer_load_dwordx4 v[48:51], v5, {sr(sSRP,4)}, s{sOFF} offen offset:{1024*i}')
    return n
for nm, key, dflt in (('wqkv', 'PQ', 0), ('w2', 'P2', 0), ('w3', 'P3', -2), ('wo', 'PO', tname['T15']), ('w4', 'P4', tname['T15'])):
    t = opt(key, dflt)
    if t >= 1000: t = tname['KVE'] + t - 1000
    if t >= -1: plan.setdefault(t, []).append(('P', nm))
a(f's_mov_b32 s{sSRP+3}, 0x20000')
a(f's_lshl_b32 s{sPI}, s2, 1')
a(f's_add_u32 s{sPI}, s{sPI}, s{sWV}')
a(f's_sub_u32 s{sPI}, s{sPI}, 4')
SP0 = opt('SP0', -1)
def sp_setup(share_code, d):
    return [share_code, f's_mul_i32 s{sT1}, s{sT0}, {11*64}', f's_min_u32 s{sT1}, s{sT1}, {512*1024 - 11*64}',
            f's_add_u32 s{d}, s{sWO}, s{sT1}', f's_addc_u32 s{d+1}, s{sWO+1}, 0',
            f's_mul_i32 s{sT1}, s{sT0}, {29*64}', f's_min_u32 s{sT1}, s{sT1}, {1376*1024 - 29*64}',
            f's_add_u32 s{d+2}, s{sW4}, s{sT1}', f's_addc_u32 s{d+3}, s{sW4+1}, 0']
def sp_load(k, d, dst):
    return f's_load_dword s{dst}, {sr(d,2)}, {64*k}' if k < 11 else f's_load_dword s{dst}, {sr(d+2,2)}, {64*(k-11)}'
SHARE = f's_mul_i32 s{sT0}, s2, 3\ns_add_u32 s{sT0}, s{sT0}, s{sWV}\ns_sub_u32 s{sT0}, s{sT0}, 4'
nops = 0
endpos = {}
landed = 0
for t in range(-1, NT - 1):
    for k, i in plan.get(t, []):
        if k == 'P': nops += p_issue(i)
        else:
            (w_issue if k == 'W' else a_issue)(i); nops += 7 if (k, i) == ('A', A_ST) else 4
            endpos[(k, i)] = nops
    if SP0 >= 0:
        if t == SP0:
            for x in sp_setup(SHARE, 56): a(x)
        if 0 <= t - SP0 < 40: a(sp_load(t - SP0, 56, 100))
    if t == opt('LS0', 0): late_setup(0)
    if t == opt('LS1', 6): late_setup(1)
    if t == opt('LS2', 7): late_setup2()
    if t == 7 and PAGES:
        a('s_branch L_load2')
        a('.p2align 12')
        a('L_load2:')
    pos = 0
    for k in 'AW':
        need = ticks[t + 1]['need' + k]
        if need is not None: pos = max(pos, endpos[(k, need)])
    if pos > landed:
        kk = min(nops - pos, 63)
        a(f's_waitcnt vmcnt({kk})')
        landed = nops - kk
    if t in (-1, 0, 1, 2, 3): stamp(f'rdy{t+1}')
    a('s_barrier')
dbg_dump()
names['w'] = list(stamp_names)
a('L_end:')
a('s_endpgm')

sFV, sFK = 68, 84
sMB, sPB, sCF, sVAL = 56, 58, 60, 62
WS_CF = 0xA0000
a(f"""
L_flag:
{'s_memrealtime s[98:99]' if opt('DIAG', 0) and opt('DAT', -1) == -1 else ''}
s_setprio {opt("PL", 3)}
s_lshl_b32 s{sT1}, s{sR}, 13
s_add_u32 s{sT1}, s{sT1}, {WS_MB}
s_lshl_b32 s{sT2}, s{sC}, 2
s_add_u32 s{sT2}, s{sT2}, s{sT1}
s_lshl_b32 s{sT0}, s{sC}, 10
s_add_u32 s{sT1}, s{sT1}, s{sT0}
s_add_u32 s{sT0}, s{sT0}, {WS_CF}
v_lshrrev_b32 v8, 1, v0
v_lshlrev_b32 v8, 13, v8
v_and_b32 v9, 1, v0
v_lshl_add_u32 v8, v9, 4, v8
v_add_u32 v8, {WS_MB}, v8
s_waitcnt lgkmcnt(0)
s_load_dword s{sE}, {sr(sWS,2)}, {WS_E}
s_mov_b32 s{sWSD}, s{sWS}
s_mov_b32 s{sWSD+1}, s{sWS+1}
s_add_u32 s{sMB}, s{sWS}, s{sT1}
s_addc_u32 s{sMB+1}, s{sWS+1}, 0
s_add_u32 s{sPB}, s{sWS}, s{sT2}
s_addc_u32 s{sPB+1}, s{sWS+1}, 0
s_add_u32 s{sCF}, s{sWS}, s{sT0}
s_addc_u32 s{sCF+1}, s{sWS+1}, 0
s_waitcnt lgkmcnt(0)
""")
if opt('MBW', 1):
    for k in range(3): a(f's_load_dword s{20+k}, {sr(sMB,2)}, {128*k} glc')
make_tag()
for q in range(20): a(f's_mov_b32 s{sFV+q}, s{sTAG}')
def poll(g):
    if g == 2: return [f's_load_dwordx4 {sr(sFK,4)}, {sr(sMB,2)}, 256 glc']
    return [f's_load_dwordx8 {sr(sFV+8*k,8)}, {sr(sMB,2)}, {128*k} glc' for k in range(2 if g == 1 else 1)]
def wait_flags(regs, loads, need, block=False):
    l1, l2 = a.new_label('P'), a.new_label('P')
    a(f's_add_u32 s{sNEED}, s{sTAG}, {need}')
    a(f'{l1}:')
    for k, sv in enumerate(regs):
        a(f's_sub_u32 s{sT0 + (1 if k else 0)}, s{sv}, s{sNEED}')
        if k: a(f's_max_u32 s{sT0}, s{sT0}, s{sT1}')
    a(f's_cmp_lt_u32 s{sT0}, {8-need}')
    a(f's_cbranch_scc1 {l2}')
    for x in loads: a(x)
    a(f"""
    s_sub_u32 s{sTO}, s{sTO}, 1
    s_cbranch_scc1 L_end
    {'s_waitcnt lgkmcnt(0)' if block else 's_sleep %d' % opt('PSL', 1)}
    s_branch {l1}
    {l2}:
    """)
CSP = opt('CSP', 36)
PRE = opt('PRE', 900)
PEV = opt('PEV', 2)
gate_at = {t: g for g, t in gate_tick.items()}
assert len(gate_at) == 7
cr = [4 + q for q in range(16)] + [sFV + 8 + q for q in range(8)]
cpoll = [f's_load_dwordx8 {sr(b_,8)}, {sr(sCF,2)}, {128*k} glc' for k, b_ in enumerate((4, 12, sFV + 8))]
for i, t in enumerate(ticks):
    if gate_at.get(i) == 3: wait_flags(cr, cpoll, 1, block=True)
    if i in gate_at:
        g = gate_at[i]
        wait_flags([sFK + q for q in range(4)] if g == 2 else [sFV + q for q in range(16 if g == 1 else 8)], poll(g), g)
        stamp(f'g{g}')
    if t['pub'] and t['pub'] != 2: a(f's_add_u32 s{sVAL + (t["pub"] & 1)}, s{sTAG}, {t["pub"]}')
    a('s_barrier')
    if opt('DIAG', 0) and opt('DAT', -1) == i: a('s_memrealtime s[98:99]')
    if t['pub'] and t['pub'] != 2:
        for q in range(8): a(f's_atomic_swap s{sVAL + (t["pub"] & 1)}, {sr(sPB,2)}, {1024*q}')
    if t['name'] == 'T00':
        a('s_waitcnt lgkmcnt(0)')
        for q in cr: a(f's_mov_b32 s{q}, s{sTAG}')
        for x in cpoll: a(x)
    for g, gt in gate_tick.items():
        d = gt - 1 - i
        if pub_tick[g] <= i and d > 0 and tstart[gt - 1] - tstart[i] <= PRE and d % PEV == 0:
            for x in poll(g): a(x)
a('s_waitcnt lgkmcnt(0)')
a('s_mov_b64 exec, -1')
a(f"""
s_cmp_lg_u32 s2, 0
s_cbranch_scc1 L_fend
s_add_u32 s{sT1}, s{sTAG}, 1
L_ebump:
buffer_load_dwordx4 v[32:35], v8, {sr(sWSD,4)}, 0 offen sc1
s_waitcnt vmcnt(0)
""")
for i in range(4): a(f'v_subrev_u32 v{32+i}, s{sT1}, v{32+i}')
a(f"""
v_max_u32 v32, v32, v33
v_max3_u32 v32, v32, v34, v35
v_cmp_gt_u32 vcc, 7, v32
s_cmp_eq_u64 vcc, -1
s_cbranch_scc1 L_ebump2
s_sub_u32 s{sTO}, s{sTO}, 1
s_cbranch_scc0 L_ebump
s_endpgm
L_ebump2:
v_mov_b32 v1, s{sTAG}
v_mov_b32 v2, {WS_E}
s_mov_b64 exec, 1
buffer_store_dword v1, v2, {sr(sWSD,4)}, 0 offen sc1
s_mov_b64 exec, -1
L_fend:
""")
if opt('DIAG', 0):
    a(f'''
    L_diag:
    s_memrealtime s[96:97]
    s_waitcnt lgkmcnt(0)
    s_sub_u32 s96, s96, s98
    s_cmp_lt_u32 s96, {opt('DIAG', 0)}
    s_cbranch_scc1 L_diag
    ''')
dbg_dump()
names['s'] = list(stamp_names)
a('s_endpgm')
a('L_aux:')
if opt('HS', 1):
    a(f"""
    s_lshl_b32 s62, s{sR}, 16
    s_lshl_b32 s{sT0}, s{sC}, 13
    s_add_u32 s62, s62, s{sT0}
    s_bitcmp1_b32 s{sC}, 1
    s_cselect_b32 s{sT0}, 448, 0
    s_add_u32 s62, s62, s{sT0}
    s_add_u32 s62, s62, {WS_H}
    s_waitcnt lgkmcnt(0)
    s_add_u32 s62, s62, s{sWS}
    s_addc_u32 s63, s{sWS+1}, 0
    """)
    a(f's_load_dword s90, {sr(sWS,2)}, {WS_E}')
    a('s_waitcnt lgkmcnt(0)')


a(f"""
v_lshrrev_b32 v1, 3, v0
v_mul_u32_u24 v1, 2752, v1
v_and_b32 v2, 7, v0
v_lshl_add_u32 v1, v2, 4, v1
v_lshlrev_b32 v2, 5, v2
v_lshrrev_b32 v3, 5, v0
v_lshl_add_u32 v2, v3, 4, v2
v_bfe_u32 v3, v0, 4, 1
v_lshl_add_u32 v2, v3, 3, v2
s_and_b32 s{sT0}, s{sR}, 7
s_mul_i32 s60, s{sT0}, {64*2752}
s_lshr_b32 s{sT0}, s{sR}, 3
s_lshl_b32 s{sT0}, s{sT0}, 10
s_add_u32 s60, s60, s{sT0}
s_lshl_b32 s{sT0}, s{sC}, 7
s_add_u32 s60, s60, s{sT0}
s_lshl_b32 s61, s{sC}, 13
s_lshl_b32 s{sT0}, s{sR}, 8
s_add_u32 s61, s61, s{sT0}
s_add_u32 s61, s61, {WS_CS}
s_cmp_ge_u32 s{sR}, 24
s_cselect_b32 s60, 0x200000, s60
s_cselect_b32 s61, {WS_REC}, s61
{'' if opt('HS', 1) else 's_waitcnt lgkmcnt(0)'}
s_mov_b32 s{sSRD}, s{sW3}
s_mov_b32 s{sSRD+1}, s{sW3+1}
s_mov_b32 s{sSRD+2}, {512*2752}
s_mov_b32 s{sWSD}, s{sWS}
s_mov_b32 s{sWSD+1}, s{sWS+1}
""")
if TRACE:
    a(f'v_writelane_b32 v11, s{sST}, 60')
    a(f'v_writelane_b32 v11, s{sE}, 61')
assert opt('HS', 1)
a(f"""
s_add_u32 s90, s90, 0x9e3779b0
s_and_b32 s90, s90, 0xfffffff0
s_add_u32 s91, s90, 2
s_add_u32 s90, s90, 1
s_bitcmp1_b32 s{sC}, 1
s_cselect_b32 s{sT0}, -1, 1
s_add_u32 s{sT0}, s{sT0}, s{sR}
s_and_b32 s{sT0}, s{sT0}, 31
s_lshl_b32 s{sT0}, s{sT0}, 13
s_lshl_b32 s{sT1}, s{sC}, 2
s_add_u32 s{sT0}, s{sT0}, s{sT1}
s_add_u32 s{sT0}, s{sT0}, {WS_MB + 128}
s_add_u32 s80, s{sWS}, s{sT0}
s_addc_u32 s81, s{sWS+1}, 0
s_lshl_b32 s{sT0}, s{sR}, 13
s_lshl_b32 s{sT1}, s{sC}, 10
s_add_u32 s{sT0}, s{sT0}, s{sT1}
s_add_u32 s{sT0}, s{sT0}, {WS_MB + 256}
s_add_u32 s82, s{sWS}, s{sT0}
s_addc_u32 s83, s{sWS+1}, 0
s_lshr_b32 s{sT0}, s{sR}, 3
s_lshl_b32 s{sT0}, s{sT0}, 7
s_and_b32 s{sT2}, s{sR}, 7
s_lshl_b32 s{sT2}, s{sT2}, 2
s_add_u32 s{sT0}, s{sT0}, s{sT2}
s_add_u32 s{sT0}, s{sT0}, s{sT1}
s_add_u32 s84, s{sT0}, {WS_CF}
""")
for q in range(4):
    a(f's_cmp_lt_u32 s{sR}, {4-q}')
    a(f's_cselect_b32 s{85+q}, {4*q}, 32')
msgs = {pub_tick[1]: [f's_atomic_swap s90, s[80:81], {1024*q}' for q in range(8)],
        pub_tick[2]: [f's_atomic_swap s91, s[82:83], {8192*l + 4*(4-l)}' for l in range(1, 5)] + [f's_cmp_ge_u32 s{sR}, 4', 's_cbranch_scc1 L_kvself'] +
                     [f's_atomic_swap s91, s[82:83], s{85+q}' for q in range(4)] + ['L_kvself:'],
        CSP: [f's_atomic_swap s90, {sr(sWS,2)}, s84']}
TC0, TC1 = opt('TC0', 7), opt('TC1', 16)
ld = []
for i in range(8):
    ld += [f'buffer_load_dwordx4 {vr(64+4*i,4)}, v1, {sr(sSRD,4)}, s60 offen', f's_add_u32 s60, s60, {8*2752}']
wk = ['s_waitcnt vmcnt(0)']
for i in range(8):
    for d in range(4):
        src = 64 + 4 * i + d
        if i == 0: wk += [f'v_lshlrev_b32 v{20+2*d}, 16, v{src}', f'v_and_b32 v{21+2*d}, 0xffff0000, v{src}']
        else: wk += [f'v_lshlrev_b32 v28, 16, v{src}', f'v_and_b32 v29, 0xffff0000, v{src}', f'v_add_f32 v{20+2*d}, v{20+2*d}, v28', f'v_add_f32 v{21+2*d}, v{21+2*d}, v29']
for e in (0, 1, 4, 5): wk += [f'v_permlane16_swap_b32 v{20+e}, v{22+e}']
for e in (0, 1, 4, 5): wk += [f'v_add_f32 v{20+e}, v{20+e}, v{22+e}']
for e in (0, 1): wk += [f'v_permlane32_swap_b32 v{20+e}, v{24+e}']
for e in (0, 1): wk += [f'v_add_f32 v{20+e}, v{20+e}, v{24+e}']
for e in (0, 1): wk += [f'v_add_f32_dpp v{22+e}, v{20+e}, v{20+e} row_ror:8 row_mask:0xf bank_mask:0xf']
wk += [f'buffer_store_dwordx2 v[22:23], v2, {sr(sWSD,4)}, s61 offen sc1']
auxp = merge(msgs, {opt('HS0', 0) + 3 * h_: [f's_load_dword s{64+k}, s[62:63], {512*k}' for k in range(8*h_, 8*h_ + 8)] for h_ in range(2)}, {TC0: ld}, spread(wk, TC1, TC1 + 8))
NMARK = 10
if PAGES:
    vo = opt('VO', 0)
    auxp = merge({vo + k // 2 if k < 14 else 0: ['s_mov_b64 exec, 0', f's_branch L_pg{m}', f'L_pr{m}:', 's_mov_b64 exec, -1'] for k, m in []},
                 *[{vo + k * 7 // NMARK: ['s_mov_b64 exec, 0', f's_branch L_pg{m}', f'L_pr{m}:', 's_mov_b64 exec, -1']} for k, m in enumerate((0, 4, 5, 1, 2, 3, 6, 7, 8, 9))], auxp)
AUXEND = max(CSP, pub_tick[2])
if SP0 >= 0:
    auxp = merge(auxp, {SP0: sp_setup(SHARE, 56)}, {SP0 + k: [sp_load(k, 56, 100)] for k in range(40)})
    AUXEND = max(CSP, SP0 + 40)
assert TC1 + 8 < CSP
for i in range(NT if TRACE else AUXEND + 1):
    if i == CSP: a('s_waitcnt vmcnt(0)')
    a('s_barrier')
    if TRACE:
        if i: a(f'v_writelane_b32 v{10 + (i-1) // 64}, s{sST + 2*((i-1)&1)}, {(i-1) % 64}')
        a(f's_memtime {sr(sST + 2*(i&1),2)}')
    for x in auxp.get(i, []): a(x)
if TRACE:
    a('s_waitcnt lgkmcnt(0)')
    a(f'v_writelane_b32 v{10 + (NT-1) // 64}, s{sST + 2*((NT-1)&1)}, {(NT-1) % 64}')
if not TRACE: a('s_endpgm')
if TRACE:
    a('s_barrier')
    a(f"""
    s_memtime {sr(sST,2)}
    s_memrealtime {sr(sE,2)}
    s_waitcnt lgkmcnt(0)
    v_writelane_b32 v11, s{sST}, 62
    v_writelane_b32 v11, s{sE}, 63
    s_mov_b32 s{sWSD}, s{sWS}
    s_mov_b32 s{sWSD+1}, s{sWS+1}
    s_mov_b32 s{sWSD+2}, {WS_REC}
    s_mov_b32 s{sWSD+3}, 0x20000
    v_lshlrev_b32 v1, 2, v0
    s_lshl_b32 s{sT0}, s2, 9
    s_add_u32 s{sT0}, s{sT0}, {WS_DBG + 0x80000}
    buffer_store_dword v10, v1, {sr(sWSD,4)}, s{sT0} offen
    buffer_store_dword v11, v1, {sr(sWSD,4)}, s{sT0} offen offset:256
    s_endpgm
    """)
    names['t'] = [t['name'] + (f'(g{gate_at[i]})' if i in gate_at else '') + (f'(p{t["pub"]})' if t['pub'] else '') for i, t in enumerate(ticks)]
    names['plan'] = [''.join(k.lower() for k, _ in plan.get(i, [])) for i in range(NT)]
a.ins = sec_pro + a.ins + sec_comp
a('L_last:')

nn = a.pad()
PFX = f'.amdgcn_target "amdgcn-amd-amdhsa--gfx950"\n.text\n{NAME}_kernel:\n'
print('aligned', align8(a, PFX, 'L_comp', opt('ALM', 2) if opt('AL', 1) else 999, opt('ALN', 6), NMARK if PAGES else 0), file=sys.stderr)
hdr = open(f'cdna_kernels/{NAME}.s.ref').read().split('; Override launch geometry')[0]
txt = hdr + f'''; @launch grid=(256,1,1) block=(512,1,1) lds={LDS_BYTES}
.amdgcn_target "amdgcn-amd-amdhsa--gfx950"
.text
.globl {NAME}_kernel
.p2align 8
.type {NAME}_kernel,@function
{NAME}_kernel:
''' + a.text() + f'''.section .rodata,"a"
.p2align 6
.amdhsa_kernel {NAME}_kernel
  .amdhsa_next_free_vgpr 256
  .amdhsa_next_free_sgpr 102
  .amdhsa_accum_offset 256
  .amdhsa_group_segment_fixed_size 0
  .amdhsa_kernarg_size 96
  .amdhsa_user_sgpr_count 2
  .amdhsa_user_sgpr_kernarg_segment_ptr 1
  .amdhsa_system_sgpr_workgroup_id_x 1
.end_amdhsa_kernel
'''
open(OUT, 'w').write(txt)
json.dump(names, open(OUT + '.names.json', 'w'))
if '--plan' in sys.argv:
    print('start', plan.get(-1))
    for i, t in enumerate(ticks):
        print(i, tstart[i], t['name'], 'needW', t['needW'], 'needA', t['needA'], 'pub', t['pub'], 'gate', gate_at.get(i), '| after:', plan.get(i))
print('instructions', sum(1 for i in a.ins if i.kind != 'meta'), 'nops inserted', nn, 'ticks', NT, file=sys.stderr)
```

```python
import sys, struct, json
from asmlib import *

NAME = 'gated_mix__sliding_block__mixer_s_mlp__prompt'
DEBUG = '--debug' in sys.argv
TRACE = '--trace' in sys.argv
OUT = [x for x in sys.argv[1:] if not x.startswith('--')]
OUT = OUT[0] if OUT else f'cdna_kernels/{NAME}.s'
def opt(name, default):
    for x in sys.argv:
        if x.startswith(f'--{name}='): return int(x.split('=')[1])
    return default

NPOS = 19
GATE = NPOS * 8192
POSF = OUT + '.pos.json'
PASS2 = '--pass2' in sys.argv
POS = {tuple(k.split(':')): v for k, v in json.load(open(POSF)).items()} if PASS2 else {}
LDS_BYTES = 163840
FSH = 10
WS_E = 0x80000
WS_H, WS_KV, WS_X1, WS_O, WS_H3, WS_DBG = 0x100000, 0x300000, 0x700000, 0xA00000, 0xC00000, 0x1200000
X1_STRIDE = 73728
H3_STRIDE = 176 * 1024
WS_CS = 0x90000
WS_MB = 0x1400000
WS_REC = 0x1440000
VTAB = GATE + 7168
PD = opt('PD', 3)
TIMEOUT = 1 << 16
KDUP = 1
PAGES = opt('PAGES', 1)
ROT1 = opt('ROT1', 1)

def f32(x): return '0x%08x' % struct.unpack('<I', struct.pack('<f', x))[0]
LOG2E = 1.4426950408889634
C1 = 2 * 0.7978845608028654 * LOG2E
QSCALE = 0.25 * LOG2E

A_X, A_H, A_KE, A_KO, A_ST, A_X1, A_O, A_H3, A_END = 0, 8, 16, 21, 26, 27, 35, 43, 65
W_1, W_K, W_V, W_Q, W_2, W_3, W_O, W_4, W_END = 0, 8, 16, 24, 32, 40, 64, 72, 94
FIXED = {('A', A_X + i): i for i in range(8)}
FIXED.update({('A', A_KE + i): i for i in range(10)})
apos = lambda i: FIXED.get(('A', i), POS.get(('A', str(i)), 0)) * 8192
wpos = lambda i: POS.get(('W', str(i)), 0) * 8192

sX, sWQKV, sWO, sW1, sW2, sW3, sW4, sGATE, sOUT, sDBG, sWS = 4, 6, 8, 12, 14, 16, 18, 20, 22, 24, 26
sR, sC, sROT, sWV, sTAG, sTO = 28, 29, 30, 31, 32, 33
sRET = 34
sWSD = 36
sSRD = 40
sT0, sT1, sT2, sT3 = 47, 48, 49, 50
sHI = 52
sVM = 54
sGM = 56
sTT, sCH = 58, 59
sMASK = 60
sE = 92
sST = 94
sQ1, sQ2, sQ3 = 96, 98, 100
sRT1 = 46
sZM = 44

a = Asm()
ool = Asm()
ool.uid = 100000

class Lgkm:
    def __init__(self): self.n = 0; self.done = 0
    def issue(self, text):
        a(text); self.n += 1; return self.n
    def wait(self, seq):
        if seq <= self.done: return
        k = min(self.n - seq, 14)
        a(f's_waitcnt lgkmcnt({k})')
        self.done = self.n - k
    def all(self): self.wait(self.n)
lg = Lgkm()
def emit(x):
    if callable(x): x()
    elif x.startswith('ds_'): lg.issue(x)
    else: a(x)

nstamp = [0]
stamp_names = []
def stamp(name):
    if not DEBUG: return
    i = nstamp[0]; nstamp[0] += 1
    stamp_names.append(name)
    a(f's_memtime {sr(sST,2)}')
    a(f's_memrealtime s[2:3]'.replace('s[2:3]', 's[0:1]'))
    a('s_waitcnt lgkmcnt(0)')
    a(f'v_writelane_b32 v0, s{sST}, {i}')
    a(f'v_writelane_b32 v0, s0, {32+i}')
    assert i < 30
def st(name): return lambda: stamp(name)
def dbg_start():
    if not DEBUG: return
    a(f'v_mov_b32 v0, 0')
    a(f'v_writelane_b32 v0, s{sST}, 0')
    a(f'v_writelane_b32 v0, s{sE}, 62')
    nstamp[0] = 1; stamp_names.clear(); stamp_names.append('start')
def dbg_dump():
    if not DEBUG: return
    a('s_waitcnt vmcnt(0)')
    stamp('end')
    a(f'''
    s_memrealtime {sr(sST,2)}
    s_waitcnt lgkmcnt(0)
    v_writelane_b32 v0, s{sST}, 63
    s_mov_b32 s{sWSD}, s{sWS}
    s_mov_b32 s{sWSD+1}, s{sWS+1}
    v_mbcnt_lo_u32_b32 v1, -1, 0
    v_mbcnt_hi_u32_b32 v1, -1, v1
    v_lshlrev_b32 v1, 2, v1
    s_lshl_b32 s{sT0}, s2, 3
    s_add_u32 s{sT0}, s{sT0}, s{sWV}
    s_lshl_b32 s{sT0}, s{sT0}, 8
    s_add_u32 s{sT0}, s{sT0}, {WS_DBG}
    buffer_store_dword v0, v1, {sr(sWSD,4)}, s{sT0} offen
    ''')

if DEBUG or TRACE:
    a(f's_memtime {sr(sST,2)}')
    a(f's_memrealtime {sr(sE,2)}')
if opt('DIAG', 0) and opt('DAT', -1) == -2: a('s_memrealtime s[98:99]')
a(f'''
s_cmp_ge_u32 s2, 256
s_cbranch_scc1 L_end
s_load_dwordx16 s[4:19], s[0:1], 0
s_load_dwordx8 s[20:27], s[0:1], 64
v_lshrrev_b32 v1, 6, v0
v_and_b32 v0, 63, v0
v_readfirstlane_b32 s{sWV}, v1
s_cmp_eq_u32 s{sWV}, 6
s_cbranch_scc0 L_noaux
s_getpc_b64 s[56:57]
L_pc:
s_sub_u32 s56, s56, L_pc-{NAME}_kernel
s_subb_u32 s57, s57, 0
s_lshr_b32 s58, s2, 3
s_lshl_b32 s58, s58, 11
v_lshlrev_b32 v4, 4, v0
v_add_u32 v3, s58, v4
v_min_u32 v5, L_last-{NAME}_kernel-16, v3
global_load_dwordx4 v[32:35], v5, s[56:57]
v_add_u32 v3, 1024, v3
v_min_u32 v5, L_last-{NAME}_kernel-16, v3
global_load_dwordx4 v[36:39], v5, s[56:57]
L_noaux:
s_and_b32 s{sT0}, s2, 7
s_lshr_b32 s{sT1}, s2, 3
s_lshr_b32 s{sR}, s{sT0}, 1
s_lshl_b32 s{sR}, s{sR}, 3
s_lshr_b32 s{sT2}, s{sT1}, 2
s_add_u32 s{sR}, s{sR}, s{sT2}
s_and_b32 s{sC}, s{sT0}, 1
s_lshl_b32 s{sC}, s{sC}, 2
s_and_b32 s{sT2}, s{sT1}, 3
s_add_u32 s{sC}, s{sC}, s{sT2}
s_add_u32 s{sROT}, s{sR}, s{sC}
s_and_b32 s{sROT}, s{sROT}, 7
{ {0: f's_mov_b32 s{sRT1}, 0', 1: f's_mov_b32 s{sRT1}, s{sROT}', 2: f's_and_b32 s{sRT1}, s{sR}, 7',
   3: f's_lshl_b32 s{sRT1}, s{sC}, 2' + chr(10) + f's_add_u32 s{sRT1}, s{sRT1}, s{sR}' + chr(10) + f's_and_b32 s{sRT1}, s{sRT1}, 7',
   4: f's_lshl_b32 s{sRT1}, s{sC}, 1' + chr(10) + f's_add_u32 s{sRT1}, s{sRT1}, s{sR}' + chr(10) + f's_and_b32 s{sRT1}, s{sRT1}, 7'}[ROT1] }
s_mov_b32 s{sTO}, {TIMEOUT}
s_mov_b32 s{sWSD+2}, {WS_REC}
s_mov_b32 s{sWSD+3}, 0x20000
s_mov_b32 s{sSRD+3}, 0x20000
s_cmp_lt_u32 s{sWV}, 4
s_cbranch_scc1 L_comp
s_cmp_eq_u32 s{sWV}, 7
s_cbranch_scc1 L_flag
s_cmp_eq_u32 s{sWV}, 6
s_cbranch_scc1 L_aux
''')
sec_pro = a.ins; a.ins = []
if PAGES: a('.p2align 12')
a('L_comp:')
def make_tag():
    a(f'''
    s_add_u32 s{sE}, s{sE}, 0x9e3779b0
    s_and_b32 s{sTAG}, s{sE}, 0xfffffff0
    ''')

vWn0, vWn1, vWt0, vWt1, vP, vL16, vKr, vVr, vStV, vStH, vX0, vX1, vX2, vG, vX3 = range(1, 16)
vWn2, vWt2, vP1, vP2 = 44, 0, vStH, vL16
vT = 16
vSel = 20
vWf = 24
vAf = 36
vA0, vA1, vAB = 48, 64, 80
vL = 96
vPan = 128
vQl = 120

a(f's_setprio {opt("PC", 0)}')
a(f'''
s_and_b32 s{sTT}, s{sWV}, 1
s_lshr_b32 s{sCH}, s{sWV}, 1
s_mov_b32 s{sHI}, 0
s_mov_b32 s{sHI+1}, -1
s_mov_b32 s{sVM}, 0xffff
s_mov_b32 s{sVM+1}, 0xffff
''')
L, TOK, H, T1, T2, T3, ROW = 'v0', 'v48', 'v49', 'v50', 'v51', 'v52', 'v53'
a(f'''
v_and_b32 {TOK}, 31, {L}
v_lshrrev_b32 {H}, 5, {L}
v_lshlrev_b32 v{vL16}, 4, {L}
''')
a(f'''
v_bfe_u32 {T1}, {L}, 3, 1
v_xor_b32 {T1}, s{sCH}, {T1}
v_lshlrev_b32 {T1}, 6, {T1}
v_bfe_u32 {T2}, {L}, 4, 1
v_lshl_add_u32 {T1}, {T2}, 5, {T1}
v_and_b32 {T2}, 3, {L}
v_lshl_add_u32 {T1}, {T2}, 3, {T1}
v_bfe_u32 {T2}, {L}, 2, 2
v_lshl_add_u32 {T1}, {T2}, 7, {T1}
v_lshl_add_u32 v{vWn0}, {H}, 10, {T1}
v_add_u32 v{vWn1}, 65536, v{vWn0}
v_lshl_add_u32 v{vWt0}, {H}, 9, {T1}
v_add_u32 v{vWt1}, 65536, v{vWt0}
v_add_u32 v{vWn2}, 65536, v{vWn1}
''')
a(f'''
v_lshlrev_b32 {T1}, 4, {TOK}
v_lshl_add_u32 {T1}, {H}, 10, {T1}
s_lshl_b32 s{sT0}, s{sTT}, 9
v_add_u32 v{vP}, s{sT0}, {T1}
s_lshl_b32 s{sT0}, s{sTT}, 12
s_lshl_b32 s{sT1}, s{sCH}, 10
s_add_u32 s{sT0}, s{sT0}, s{sT1}
v_add_u32 v{vKr}, s{sT0}, v{vL16}
s_add_u32 s{sT0}, s{sT0}, 2048
v_and_b32 {T2}, 15, {L}
v_lshlrev_b32 {T2}, 4, {T2}
v_lshl_add_u32 {T2}, {H}, 8, {T2}
v_add_u32 v{vVr}, s{sT0}, {T2}
v_bfe_u32 {T3}, {L}, 4, 1
v_lshl_add_u32 v{vStV}, {T3}, 13, v{vVr}
s_lshl_b32 s{sT0}, s{sTT}, 4
s_add_u32 s{sT0}, s{sT0}, {VTAB}
v_mov_b32 {T1}, s{sT0}
v_cndmask_b32 v{vVr}, {T1}, v{vVr}, {sr(sVM,2)}
s_lshl_b32 s{sT0}, s{sR}, 1
v_lshlrev_b32 {T1}, 4, {TOK}
v_lshl_add_u32 {T1}, {H}, 9, {T1}
v_add_u32 {T1}, {VTAB}, {T1}
v_add_u32 {T2}, s{sT0}, {TOK}
v_cmp_le_u32 vcc, 8, {T2}
v_mov_b32 {T2}, 0x3f803f80
v_cndmask_b32 v{vL+8}, 0, {T2}, vcc
v_mov_b32 v{vL+9}, v{vL+8}
v_mov_b32 v{vL+10}, v{vL+8}
v_mov_b32 v{vL+11}, v{vL+8}
ds_write_b128 {T1}, {vr(vL+8,4)}
''')
a(f'''
s_lshr_b32 s{sT0}, s{sC}, 2
s_add_u32 s{sT0}, s{sT0}, 1
s_sub_u32 s{sT1}, 0, s{sT0}
s_bitcmp1_b32 s{sC}, 1
s_cselect_b32 s{sT0}, s{sT1}, s{sT0}
s_lshl_b32 s{sT1}, s{sR}, 6
s_add_u32 s{sT0}, s{sT0}, s{sT1}
s_lshl_b32 s{sT1}, s{sTT}, 5
s_add_u32 s{sT0}, s{sT0}, s{sT1}
v_add_u32 {T1}, s{sT0}, {TOK}
v_mov_b32 {T2}, 2047
v_cmp_gt_u32 {sr(sZM,2)}, {T1}, {T2}
v_and_b32 {T1}, {T2}, {T1}
v_lshrrev_b32 {T2}, 6, {T1}
v_and_b32 {T1}, 63, {T1}
v_lshlrev_b32 {T1}, 4, {T1}
v_lshl_add_u32 {T1}, {T2}, 16, {T1}
v_lshl_add_u32 v{vStH}, {H}, 10, {T1}
''')
a(f'''
v_bfe_u32 {T1}, {L}, 4, 1
v_bfe_u32 {T2}, {L}, 2, 1
v_cmp_eq_u32 {sr(sGM,2)}, {T1}, {T2}
v_mov_b32 {T3}, 0x3f803f80
v_cndmask_b32 v{vSel}, 0, {T3}, {sr(sGM,2)}
v_mov_b32 v{vSel+1}, v{vSel}
v_mov_b32 v{vSel+2}, v{vSel}
v_mov_b32 v{vSel+3}, v{vSel}
v_and_b32 {T1}, 3, {L}
v_cmp_eq_u32 vcc, 0, {T1}
v_cmp_eq_u32 {sr(sQ1,2)}, 1, {T1}
v_cmp_eq_u32 {sr(sQ2,2)}, 2, {T1}
v_cmp_eq_u32 {sr(sQ3,2)}, 3, {T1}
s_and_b64 vcc, vcc, {sr(sGM,2)}
s_and_b64 {sr(sGM,2)}, {sr(sGM,2)}, {sr(sQ1,2)}
v_mov_b32 v40, {GATE+2176}
v_mov_b32 {T1}, {GATE+1088}
v_cndmask_b32 v40, v40, {T1}, vcc
v_lshlrev_b32 {T1}, 4, {H}
v_add_u32 {T1}, {GATE}, {T1}
v_cndmask_b32 v40, v40, {T1}, {sr(sGM,2)}
v_add_u32 {T1}, {GATE+1088}, v{vL16}
v_mov_b32 v{vL}, {T3}
v_mov_b32 v{vL+1}, {T3}
v_mov_b32 v{vL+2}, {T3}
v_mov_b32 v{vL+3}, {T3}
v_mov_b32 v{vL+4}, 0
v_mov_b32 v{vL+5}, 0
v_mov_b32 v{vL+6}, 0
v_mov_b32 v{vL+7}, 0
ds_write_b128 {T1}, {vr(vL,4)}
ds_write_b128 {T1}, {vr(vL+4,4)} offset:1088
''')
vXa, vGa = 36, 40
a(f'''
s_lshl_b32 s{sT0}, s{sTT}, 5
v_add_u32 {ROW}, s{sT0}, {TOK}
v_bfe_u32 {T1}, {ROW}, 1, 3
v_lshlrev_b32 {ROW}, 7, {ROW}
v_xor_b32 {T2}, {T1}, {H}
''')
for s in range(4):
    a(f'v_xor_b32 {T3}, {2*s}, {T2}')
    a(f'v_lshl_add_u32 v{vXa+s}, {T3}, 4, {ROW}')
a(f'v_lshlrev_b32 {T1}, 2, {H}')
a(f'v_sub_u32 {T1}, {TOK}, {T1}')
for r in range(16):
    a(f'v_cmp_gt_i32 {sr(sMASK+2*r,2)}, {(r & 3) + 8 * (r >> 2)}, {T1}')
a(f'v_add_u32 v{vWt2}, 65536, v{vWt1}')
a(f'v_add_u32 v{vP2}, 131072, v{vP}')
a('s_waitcnt lgkmcnt(0)')
sOH, sOK0, sOK1, sOX1, sOST, sOO, sOH3, sOOUT, sJV, sNEG, sTILE = range(4, 15)
a(f'''
s_mov_b32 s{sSRD}, s{sOUT}
s_mov_b32 s{sSRD+1}, s{sOUT+1}
s_mov_b32 s{sSRD+2}, {2048*1024}
s_mov_b32 s{sWSD}, s{sWS}
s_mov_b32 s{sWSD+1}, s{sWS+1}
s_lshl_b32 s{sTILE}, s{sC}, 13
s_lshl_b32 s{sT1}, s{sCH}, 12
s_add_u32 s{sTILE}, s{sTILE}, s{sT1}
s_add_u32 s{sOH}, s{sTILE}, {WS_H}
s_lshl_b32 s{sOK0}, s{sR}, 3
s_add_u32 s{sOK0}, s{sOK0}, s{sC}
s_lshl_b32 s{sOK0}, s{sOK0}, 14
s_add_u32 s{sOK0}, s{sOK0}, {WS_KV}
s_add_u32 s{sOK1}, s{sOK0}, 8192
s_mul_i32 s{sT0}, s{sR}, {X1_STRIDE}
s_add_u32 s{sT0}, s{sT0}, {WS_X1}
s_add_u32 s{sOX1}, s{sT0}, s{sTILE}
s_lshr_b32 s{sOST}, s{sTILE}, 3
s_add_u32 s{sOST}, s{sOST}, s{sT0}
s_add_u32 s{sOST}, s{sOST}, 65536
s_lshl_b32 s{sT0}, s{sR}, 16
s_add_u32 s{sOO}, s{sT0}, s{sTILE}
s_add_u32 s{sOO}, s{sOO}, {WS_O}
s_lshl_b32 s{sT1}, s{sTT}, 15
s_add_u32 s{sOOUT}, s{sT0}, s{sT1}
s_lshr_b32 s{sT1}, s{sTILE}, 6
s_add_u32 s{sOOUT}, s{sOOUT}, s{sT1}
s_mul_i32 s{sOH3}, s{sR}, {H3_STRIDE}
s_add_u32 s{sOH3}, s{sOH3}, s{sTILE}
s_add_u32 s{sOH3}, s{sOH3}, {WS_H3}
s_add_u32 s{sNEG}, s{sOH3}, 131072
s_cmp_ge_u32 s{sC}, 6
s_cselect_b32 s{sNEG}, {WS_REC}, s{sNEG}
s_lshl_b32 s{sT1}, s{sC}, 13
s_add_u32 s{sOH3}, s{sOH3}, s{sT1}
s_lshl_b32 s{sJV}, s{sR}, 1
s_add_u32 s{sJV}, s{sJV}, s{sTT}
s_sub_i32 s{sJV}, 8, s{sJV}
s_max_i32 s{sJV}, s{sJV}, 0
''')

ticks = []
last_read = {}
freed = set()
pub_next = [None]
def want_pub(stage): pub_next[0] = stage
stage_mark = {}
def nstores(): return sum(1 for i in a.ins if i.op.startswith('buffer_store'))
def mark(stage): return lambda: stage_mark.__setitem__(stage, nstores())
def tick(needW=None, needA=None, name='', dur=140):
    pub = pub_next[0]; pub_next[0] = None
    if pub: a(f's_waitcnt vmcnt({nstores() - stage_mark.get(pub, nstores())})')
    a('s_barrier')
    fr = [k for k, s in last_read.items() if s <= lg.done and k not in freed]
    freed.update(fr)
    ticks.append(dict(needW=needW, needA=needA, free=fr, pub=pub, name=name, dur=dur))

class Step:
    def __init__(self, w, s, order, acc, act, aslot=None, aread=None, swap=False, c0=None, pre=None, post=None, lastw=False, lasta=False, cs=None, cs0=False, xa=None, dur=140):
        self.__dict__.update(locals())

def run_steps(steps, fill=None):
    fill = fill or {}
    seqs = {}
    def reads(n, part=7):
        s_ = steps[n]
        if part & 1:
            if s_.pre and n >= PD: s_.pre()
            if s_.s == 0: tick(s_.w, s_.aslot if s_.xa is None else s_.xa, f'W{s_.w}', s_.dur)
            if s_.pre and n < PD: s_.pre()
        if not part & 2: pass
        elif s_.aread == 'x':
            lg.issue(f'ds_read_b128 {vr(s_.act,4)}, v{vXa+s_.s} offset:{apos(s_.aslot)}')
        elif s_.aread == 'p':
            o_ = apos(s_.aslot) + s_.s * 2048
            lg.issue(f'ds_read_b128 {vr(s_.act,4)}, v{(vP, vP1, vP2)[o_ >> 16]} offset:{o_ & 65535}')
        if not part & 4: return
        off = wpos(s_.w) + s_.s * 2048
        base = ((vWn0, vWn1, vWn2) if s_.order == 'n' else (vWt0, vWt1, vWt2))[off >> 16]
        off &= 65535
        d = 512 if s_.order == 'n' else 1024
        f = vWf + (n % 3) * 4
        lg.issue(f'ds_read_b64_tr_b16 {vr(f,2)}, v{base} offset:{off}')
        seqs[n] = lg.issue(f'ds_read_b64_tr_b16 {vr(f+2,2)}, v{base} offset:{off+d}')
        if s_.lastw: last_read[('W', s_.w)] = seqs[n]
        if s_.lasta: last_read[('A', s_.aslot)] = seqs[n]
    for n in range(min(PD, len(steps))): reads(n)
    for n, s_ in enumerate(steps):
        fl = list(fill.get(n, []))
        lg.wait(seqs[n])
        f = vWf + (n % 3) * 4
        c = s_.c0 if s_.c0 is not None else vr(s_.acc, 16)
        A, B = (vr(f, 4), vr(s_.act, 4)) if not s_.swap else (vr(s_.act, 4), vr(f, 4))
        more = n + PD < len(steps)
        split = s_.cs is not None and opt('B1S', 2)
        if s_.post: s_.post()
        if split and more: reads(n + PD, 1)
        if s_.cs is not None:
            a(f'v_mfma_f32_16x16x32_bf16 {vr(s_.cs,4)}, {vr(vSel,4)}, {vr(f,4)}, {"0" if s_.cs0 else vr(s_.cs,4)}')
        if split and more and opt('B1S', 2) == 2: reads(n + PD, 2)
        a(f'v_mfma_f32_32x32x16_bf16 {vr(s_.acc,16)}, {A}, {B}, {c}')
        if more: reads(n + PD, 7 if not split else 4 if opt('B1S', 2) == 2 else 6)
        for x in fl: emit(x)

def spread(items, start, end):
    d = {}
    n = end - start
    for i, x in enumerate(items):
        d.setdefault(start + i * n // len(items), []).append(x)
    return d
def merge(*ds):
    o = {}
    for d in ds:
        for k, v in d.items(): o.setdefault(k, []).extend(v)
    return o
def pack(acc, dst): return [f'v_cvt_pk_bf16_f32 v{dst+i}, v{acc+2*i}, v{acc+2*i+1}' for i in range(8)]
def store2(pk, voff, s0, s1=None, d=2048):
    return [f'buffer_store_dwordx4 {vr(pk,4)}, v{voff}, {sr(sWSD,4)}, s{s0} offen sc1',
            f'buffer_store_dwordx4 {vr(pk+4,4)}, v{voff}, {sr(sWSD,4)}, s{s0 if s1 is None else s1} offen offset:{d} sc1']
def pubat(stage): return lambda: want_pub(stage)

def ln_consts(sum_, sq, vCA, vCB, vIR, vNM, t):
    return f'''v_mul_f32 v{t}, {f32(-1.0/512)}, v{sum_}
    v_mul_f32 v{t+1}, v{t}, v{t}
    v_mov_b32 v{t+2}, {f32(1.0/512)}
    v_fma_f32 v{t+1}, v{sq}, v{t+2}, -v{t+1}
    v_max_f32 v{t+1}, 0, v{t+1}
    v_add_f32 v{t+1}, {f32(1e-5)}, v{t+1}
    v_rsq_f32 v{t+2}, v{t+1}
    v_cvt_pk_bf16_f32 v{vNM}, v{t}, v{t}
    v_mul_f32 v{vIR}, v{t+1}, v{t+2}
    v_mul_f32 v{vCA}, {f32(-C1)}, v{t+2}
    v_mul_f32 v{t+1}, v{t+2}, v{t+2}
    v_mul_f32 v{t+1}, {f32(0.044715)}, v{t+1}
    v_mul_f32 v{vCB}, v{vCA}, v{t+1}
    v_lshlrev_b32 v{t+1}, 16, v{vNM}
    v_sub_f32 v{t+1}, v{t}, v{t+1}
    v_cvt_pk_bf16_f32 v{t+1}, v{t+1}, v{t+1}
    v_cndmask_b32 v{vNM}, v{vNM}, v{t+1}, {sr(sHI,2)}'''.replace('    ', '').split('\n')
def cs_fix(cs, vCSA, vNM, acc, t):
    return [f'v_cvt_pk_bf16_f32 v{t}, v{cs}, v{cs}',
            f'v_lshlrev_b32 v{t}, 16, v{t}',
            f'v_sub_f32 v{t}, v{cs}, v{t}',
            f'v_cvt_pk_bf16_f32 v{vCSA}, v{cs}, v{t}',
            f'v_mfma_f32_32x32x16_bf16 {vr(acc,16)}, {vr(vCSA,4)}, {vr(vNM,4)}, {vr(acc,16)}']
def gelu_pk(acc, vCA, vCB, vIR, tmp, dst):
    o = []
    for i in range(0, 16, 2): o.append(f'v_pk_mul_f32 {vr(tmp+i,2)}, {vr(acc+i,2)}, {vr(acc+i,2)}')
    for i in range(0, 16, 2): o.append(f'v_pk_fma_f32 {vr(tmp+i,2)}, {vr(tmp+i,2)}, {vr(vCB,2)}, {vr(vCA,2)} op_sel_hi:[1,0,0]')
    for i in range(0, 16, 2): o.append(f'v_pk_mul_f32 {vr(tmp+i,2)}, {vr(tmp+i,2)}, {vr(acc+i,2)}')
    for i in range(16): o.append(f'v_exp_f32 v{tmp+i}, v{tmp+i}')
    for i in range(0, 16, 2): o.append(f'v_pk_fma_f32 {vr(tmp+i,2)}, {vr(tmp+i,2)}, {vr(vIR,2)}, {vr(vIR,2)} op_sel_hi:[1,0,0]')
    for i in range(16): o.append(f'v_rcp_f32 v{tmp+i}, v{tmp+i}')
    for i in range(0, 16, 2): o.append(f'v_pk_mul_f32 {vr(tmp+i,2)}, {vr(tmp+i,2)}, {vr(acc+i,2)}')
    for i in range(0, 16, 2): o.append(f'v_cvt_pk_bf16_f32 v{dst+i//2}, v{tmp+i}, v{tmp+i+1}')
    return o
def gelu_sc(acc, vCA, vCB, vIR, tmp, dst):
    o = []
    def chain(e, t):
        return [f'v_mul_f32 v{t}, v{acc+e}, v{acc+e}', f'v_fma_f32 v{t}, v{t}, v{vCB}, v{vCA}', f'v_mul_f32 v{t}, v{t}, v{acc+e}',
                f'v_exp_f32 v{t}, v{t}', f'v_fma_f32 v{t}, v{t}, v{vIR}, v{vIR}', f'v_rcp_f32 v{t}, v{t}', f'v_mul_f32 v{t}, v{t}, v{acc+e}']
    for g in range(0, 16, 2):
        t = tmp + (g & 2)
        c0, c1 = chain(g, t), chain(g + 1, t + 1)
        for x, y in zip(c0, c1): o += [x, y]
        o.append(f'v_cvt_pk_bf16_f32 v{dst+g//2}, v{t}, v{t+1}')
    return o

vCS, vSG, vSQ = 64, 68, 72
steps = []
for n in range(32):
    j, s = divmod(n, 4)
    P = vPan + 4 * n
    G = vL + 16 + (n % 3) * 4
    def pre(n=n, G=G):
        lg.issue(f'ds_read_b128 {vr(G,4)}, v{vGa} offset:{n*32}')
    def post(n=n, s=s, P=P, G=G):
        if s == 3:
            for q in range(8):
                sq = vSQ + 4 * (q & 3)
                Pq = P - 12 + 2 * q
                a(f'v_mfma_f32_4x4x4_16b_bf16 {vr(sq,4)}, {vr(Pq,2)}, {vr(Pq,2)}, {"0" if n == 3 and q < 4 else vr(sq,4)}')
        a(f'v_mfma_f32_16x16x32_bf16 {vr(vSG,4)}, {vr(G,4)}, {vr(P,4)}, {"0" if n == 0 else vr(vSG,4)}')
    steps.append(Step(W_1 + j, s, 'n', vA0, P, aslot=A_X + j, aread='x', c0='0' if n == 0 else None, pre=pre, post=post, lastw=(s == 3), lasta=(s == 3), cs=vCS, cs0=(n == 0), dur=opt('DB1', 400) if j < 7 else opt('DB17', 800)))
stamp('setup')
RES = vAB + 8
cA, cB, cI, cNM, cCS, cT = vL, vL + 2, vL + 4, vL + 8, vL + 12, vAf + 9
zer = [f'v_mov_b32 v{r}, 0' for r in (cNM+1, cNM+2, cNM+3, cCS+1, cCS+2, cCS+3)]
run_steps(steps, spread(zer, 4, 10))
stamp('B1 loop')
for i in range(8): a(f'v_add_f32 v{vSQ+i}, v{vSQ+i}, v{vSQ+8+i}')
for i in range(4): a(f'v_add_f32 v{vSQ+i}, v{vSQ+i}, v{vSQ+4+i}')
for i, m in ((1, sQ1), (2, sQ2), (3, sQ3)): a(f'v_cndmask_b32 v{vSQ}, v{vSQ}, v{vSQ+i}, {sr(m,2)}')
a(f'''
v_mov_b32 v{vSQ+1}, v{vSQ}
v_mul_f32 v{vG}, {f32(-LOG2E)}, v{vSG+1}
v_exp_f32 v{vG}, v{vG}
v_permlane32_swap_b32 v{vSQ}, v{vSQ+1}
v_add_f32 v{vSQ}, v{vSQ}, v{vSQ+1}
''')
lc = ln_consts(vSG, vSQ, cA, cB, cI, cNM, cT)
for x in [lc[0], lc[7]] + [y.replace(f'v{cT+1}', f'v{cT+2}') for y in lc[13:17]]: a(x)
for x in cs_fix(vCS, cCS, cNM, vA0, cT + 2): a(x)
lg.all()
tick(name='B1e', dur=600) if not opt('GI', 0) else None
for x in lc[1:7] + [f'v_add_f32 v{vG}, 1.0, v{vG}'] + lc[8:13] + [f'v_rcp_f32 v{vG}, v{vG}']: a(x)
PK = vAf
GI = opt('GI', 0)
zm = [f'v_cndmask_b32 v{PK+i}, v{PK+i}, 0, {sr(sZM,2)}' for i in range(8)]
hs2 = store2(PK, vStH, sOH)
hfill = {}
if GI:
    g = gelu_sc(vA0, cA, cB, cI, vT, PK)
    hfill = spread(g[:60] + zm[:4] + g[60:] + zm[4:] + ['\n'.join(hs2), mark(1)], 0, GI)
else:
    for x in gelu_pk(vA0, cA, cB, cI, vA1, PK) + zm + hs2: a(x)
    mark(1)()
aK, aV, aQ = (vA1, vA0, vA1) if GI else (vA0, vA1, vA0)
stamp('B1 epi')

steps = []
for p, (w0, acc, swap) in enumerate(((W_K, aK, False), (W_V, aV, True), (W_Q, aQ, False))):
    for n in range(32):
        j, s = divmod(n, 4)
        steps.append(Step(w0 + j, s, 'n', acc, vPan + 4 * n, swap=swap, c0='0' if n == 0 else None, lastw=(s == 3), dur=opt('DKG', 280) if p == 0 and n <= GI else 145))
unres = [f's_sub_u32 s{sT0}, s{sC}, s{sRT1}\ns_and_b32 s{sT0}, s{sT0}, 7\ns_lshl_b32 s{sT0}, s{sT0}, 1\ns_add_u32 s{sT0}, s{sT0}, s{sCH}\ns_lshl_b32 s{sT0}, s{sT0}, 3']
for q in range(2):
    unres.append(f's_set_gpr_idx_on s{sT0}, 1\n' + '\n'.join(f'v_mov_b32_e32 v{RES+4*q+i}, v{vPan+4*q+i}' for i in range(4)) + '\ns_set_gpr_idx_off')
unres += [f'v_add_u32 v{vP1}, 65536, v{vP}'] + [f'v_permlane32_swap_b32 v{RES+i}, v{RES+i+2}' for i in (0, 1, 4, 5)]
for j in range(8):
    unres += [f'v_lshlrev_b32 v{vAB+2*j}, 16, v{RES+j}', f'v_and_b32 v{vAB+2*j+1}, 0xffff0000, v{RES+j}']
def stream_steps(w0, a0, nsteps, acc, c0=None, phase=0):
    o = []
    for n in range(nsteps):
        j, s = divmod(n, 4)
        last = s == 3 or n == nsteps - 1
        o.append(Step(w0 + j, s, 't', acc, vAf + ((n + phase) % 3) * 4, aslot=a0 + j, aread='p', c0=c0 if n == 0 else None, lastw=last, lasta=last))
    return o
PKS = vL + 16
vK, vV = 128, 164
M8 = [20, 21, 22, 23, 252, 253, 254, 255]
vVs, vVa = vWn0, vWn1
vK_ = vK; vK = vT
att_pre = [f'v_mov_b32 v{vK+1}, 0xffff0000', f'v_mov_b32 v{vK+2}, 0xffff']
for i in range(8):
    att_pre += [f'v_cndmask_b32 v{M8[i]}, 0, v{vK+2}, {sr(sMASK+4*i,2)}', f'v_cndmask_b32 v{vK}, 0, v{vK+1}, {sr(sMASK+4*i+2,2)}', f'v_or_b32 v{M8[i]}, v{M8[i]}, v{vK}']
att_pre += [f'v_add_u32 v{vX2}, {apos(A_KO)}, v{vKr}', f'v_mov_b32 v{vK+3}, 4096',
            f'v_cndmask_b32 v{vVs}, 16, v{vK+3}, {sr(sVM,2)}',
            f'v_mov_b32 v{vK+3}, {apos(A_KO)}', f'v_cndmask_b32 v{vX3}, 0, v{vK+3}, {sr(sVM,2)}', f'v_add_u32 v{vX3}, v{vX3}, v{vVr}']
vK = vK_
APS = 14
qfin = [f'v_mul_f32 v{aQ+i}, {f32(QSCALE)}, v{aQ+i}' for i in range(16)] + pack(aQ, vQl)
sta = [f'v_and_b32 v{vX0}, 1023, v{vP}', f'v_lshrrev_b32 v{vX0}, 1, v{vX0}', f'v_mov_b32 v{vX1}, 0x3f803f80']
steps += stream_steps(W_2, A_H, 32, vAB, phase=96)
fill = merge(hfill, spread(unres + sta, 44, 62), {31: [st('K')], 63: [st('V')], 95: [st('Q')]},
             {opt('PUB1', GI + 20): [pubat(1)]},
             spread(pack(aK, vL), 35, 39), {opt('KST', 67): store2(vL, vKr, sOK0, sOK1, 0)},
             spread(pack(aV, PKS), 66, 69), {68: store2(PKS, vStV, sOK0, None, 512)},
             {opt('PUB2', 92): [pubat(2)]},
             spread(qfin, 99, 111), spread(att_pre[APS:], 111, 128), spread(att_pre[:APS], 72, 92))
run_steps(steps, fill)
stamp('B2 loop')
for x in pack(vAB, PK): a(x)
for x in store2(PK, vP, sOX1): a(x)
for i in range(8):
    a(f'v_dot2_f32_bf16 v{vA0}, v{PK+i}, v{vX1}, {"0" if i==0 else "v%d"%vA0}')
    a(f'v_dot2_f32_bf16 v{vA0+1}, v{PK+i}, v{PK+i}, {"0" if i==0 else "v%d"%(vA0+1)}')
a(f'''
v_mov_b32 v{vA0+2}, v{vA0}
v_mov_b32 v{vA0+3}, v{vA0+1}
v_permlane32_swap_b32 v{vA0}, v{vA0+2}
v_permlane32_swap_b32 v{vA0+1}, v{vA0+3}
v_add_f32 v{vA0}, v{vA0}, v{vA0+2}
v_add_f32 v{vA0+1}, v{vA0+1}, v{vA0+3}
buffer_store_dwordx2 {vr(vA0,2)}, v{vX0}, {sr(sWSD,4)}, s{sOST} offen sc1
''')
tick(name='B2e', dur=600)
stamp('B2 epi')

vCB_, vM8 = 24, 40
vS0, vS1, vMG, vO = 236, 96, 64, 48
Kf = lambda j: vK + 4 * j
Vf = lambda j, b: vV + 8 * j + 4 * b
MF = lambda d, x, y, c: f'v_mfma_f32_32x32x16_bf16 {vr(d,16)}, {vr(x,4)}, {vr(y,4)}, {c if c == "0" else vr(c,16)}'
kseq = {}
def k_read(a0, j):
    r_, off = (vKr if a0 == A_KE else vX2), 4096 * j
    kseq[j] = lg.issue(f'ds_read_b128 {vr(Kf(j),4)}, v{r_} offset:{off}')
vseq = {}
def v_op(a0, j, last=False):
    base = vVr if a0 == A_KE else vX3
    ad = vVa if j else base
    def pre():
        if j: a(f'v_mad_u32_u24 v{vVa}, v{vVs}, {j}, v{base}')
    def rd():
        lg.issue(f'ds_read_b128 {vr(Vf(j,0),4)}, v{ad}')
        vseq[j] = lg.issue(f'ds_read_b128 {vr(Vf(j,1),4)}, v{ad} offset:512')
        if last:
            for i in range(5): last_read[('A', a0 + i)] = vseq[j]
    return (pre, rd)
def k_op(a0, js):
    return (lambda: None, lambda: [k_read(a0, j) for j in js])
assert apos(A_KE) == 0
vMx, vMy = vT, vT + 1
sFL = [96, 98]
def o_norm(pk):
    return ([f'v_rcp_f32 v{vO+9}, v{vO+8}'] + [f'v_mul_f32 v{vO+i}, v{vO+i}, v{vO+9}' for i in range(8)] +
            [f'v_cvt_pk_bf16_f32 v{pk+i}, v{vO+2*i}, v{vO+2*i+1}' for i in range(4)])
def o_final(t):
    n = o_norm(112 + 4 * t)
    chk = [f'v_subrev_u32 v{vO+10}, {63<<23}, v{vO+8}', f'v_lshrrev_b32 v{vO+10}, 30, v{vO+10}', f'v_cmp_ne_u32 {sr(sFL[t],2)}, 0, v{vO+10}']
    fin = [f'v_add_f32_e64 v{vO+11}, |v{vO}|, |v{vO+1}|'] + [f'v_add_f32_e64 v{vO+11}, v{vO+11}, |v{vO+i}|' for i in range(2, 8)] + \
          [f'v_cmp_class_f32 vcc, v{vO+11}, v{vT+2}', f's_nop 0\ns_or_b64 {sr(sFL[t],2)}, {sr(sFL[t],2)}, vcc']
    return n[:1] + chk + n[1:] + (store2(112, vP, sOO) if t == 1 else []) + fin
rq = []
mq = []
mgap = [0]
def pop_m():
    f = mq.pop(0)
    r_ = rq.pop(0) if rq else None
    if r_: r_[0]()
    f()
    if r_: r_[1]()
    mgap[0] = 0
def va(x, cost=4):
    a(x)
    mgap[0] += cost
    if mq and mgap[0] >= 24: pop_m()
def flush_m():
    while mq: pop_m()
def flush_r():
    while rq:
        r_ = rq.pop(0); r_[0](); r_[1]()
def QK(d, j, t):
    def f():
        lg.wait(kseq[j]); a(MF(d, Kf(j), vQl + 4 * t, '0'))
    return f
def PV(j, b, p, c, then=None):
    def f():
        lg.wait(vseq[j]); a(MF(vO, Vf(j, b), p, c))
        if then: rq.append(then)
    return f
a(f'v_mov_b32 v{vT+2}, 0x207')
tick(needA=A_KE + 4, name='KVE', dur=opt('DKVE', 500))
for j in (0, 8, 1, 2): k_read(A_KE, j)
rq += [v_op(A_KE, 0), v_op(A_KE, 8), k_op(A_KE, (3, 4)), v_op(A_KE, 1), v_op(A_KE, 2), k_op(A_KE, (5, 6)), v_op(A_KE, 3), v_op(A_KE, 4), k_op(A_KE, (7,)),
       v_op(A_KE, 5), v_op(A_KE, 6), v_op(A_KE, 7, True)]
mq += [QK(vMG, 0, 0), QK(vCB_, 8, 0), QK(vS0, 1, 0)]
flush_m()
KI = opt('KI', 3)
bufs2 = [vS0, vS1]
pend = []
for t in range(2):
    mq += pend
    if t == 1: mq.append(QK(vS0, 1, 1))
    for r in range(16): va(f'v_cndmask_b32 v{vMG+r}, v{vCB_+r}, v{vMG+r}, {sr(sMASK+2*r,2)}')
    mq.append(QK(vS1, 2, t))
    for r in range(16): va(f'v_exp_f32 v{vMG+r}, v{vMG+r}', 8)
    flush_m()
    if t == 1:
        for x in o_final(0): va(x)
    for i in range(8): va(f'v_cvt_pk_bf16_f32 v{vMG+i}, v{vMG+2*i}, v{vMG+2*i+1}')
    for i in range(8): va(f'v_and_b32 v{vMG+8+i}, v{vMG+i}, v{M8[i]}')
    mq.append(PV(0, 0, vMG + 8, '0'))
    for i in range(8): va(f'v_xor_b32 v{vMG+i}, v{vMG+i}, v{vMG+8+i}')
    flush_m()
    pend = [PV(0, 1, vMG + 12, vO), PV(8, 0, vMG, vO), PV(8, 1, vMG + 4, vO)]
    for i in range(7):
        b = bufs2[i % 2]
        if (t, i) in ((0, KI), (1, 0)):
            assert not rq or t == 0 and len(rq) <= 1, (t, i, len(rq))
            flush_r(); lg.all()
        if t == 0 and i == opt('PUB3', 1): want_pub(3)
        if t == 0 and i == KI: tick(needA=A_KO + 4, name='KVO', dur=220)
        else: tick(name=f'T{t}{i}', dur=200 if i < 6 else 650 if t == 0 else 400)
        if t == 0 and i == KI:
            ks = [0, 8] + list(range(1, i + 2))
            rq += [k_op(A_KO, ks[q:q+2]) for q in range(0, len(ks), 2)] + [v_op(A_KO, j) for j in [0, 8] + list(range(1, i))]
        if t == 0 and i > KI: rq.insert(0, k_op(A_KO, (i + 1,)))
        mq += pend
        if 0 < i < 6: mq.append(QK(bufs2[(i + 1) % 2], i + 2, t))
        if t == 0 and i == 6: mq += [QK(vMG, 0, 1), QK(vCB_, 8, 1)]
        mgap[0] = 16
        for r in range(16): va(f'v_exp_f32 v{b+r}, v{b+r}', 8)
        flush_m()
        for q in range(8): va(f'v_cvt_pk_bf16_f32 v{b+q}, v{b+2*q}, v{b+2*q+1}')
        nx = v_op(A_KO, 1 + i, i == 6) if t == 0 and 1 + i >= KI else None
        pend = [PV(1 + i, 0, b, vO), PV(1 + i, 1, b + 4, vO, nx)]
    mgap[0] = 24
for f in pend: f()

def emit_fallback():
    global a
    keep = a; a = Asm(); a.uid = 500000
    Qf, tk, tv = 40, 44, 45
    a('L_fb:')
    a(f's_mov_b32 s{sT3}, 0')
    a('L_fb_head:')
    a(f"""
    s_cmp_eq_u32 s{sT3}, 0
    s_cselect_b64 vcc, {sr(sFL[0],2)}, {sr(sFL[1],2)}
    s_cmp_eq_u64 vcc, 0
    s_cbranch_scc1 L_fb_next
    s_cmp_eq_u32 s{sT3}, 0
    s_cselect_b64 vcc, -1, 0
    """)
    for i in range(4): a(f'v_cndmask_b32 v{Qf+i}, v{vQl+4+i}, v{vQl+i}, vcc')
    a(f"""
    v_and_b32 v46, 4095, v{vKr}
    v_and_b32 v47, 4095, v{vStV}
    v_mov_b32 v{vT+3}, 0x3f803f80
    """)
    for j in range(9):
        a(f"""
        s_add_u32 s{sT0}, s{sTT}, {j}
        s_lshr_b32 s{sT1}, s{sT0}, 1
        s_lshl_b32 s{sT1}, s{sT1}, 17
        s_and_b32 s{sT0}, s{sT0}, 1
        s_lshl_b32 s{sT0}, s{sT0}, 12
        s_add_u32 s{sT0}, s{sT0}, s{sT1}
        s_add_u32 s{sT0}, s{sT0}, s{sOK0}
        s_sub_u32 s{sT0}, s{sT0}, {4<<17}
        s_lshl_b32 s{sT1}, s{sR}, 17
        s_sub_u32 s{sT1}, s{sOK0}, s{sT1}
        s_cmp_le_u32 s{sJV}, {j}
        s_cselect_b32 s{sT0}, s{sT0}, s{sT1}
        s_cselect_b32 s{sT1}, -1, 0xe00
        s_cselect_b32 s{sT2}, -1, 0
        s_cselect_b64 vcc, -1, 0
        s_add_u32 s{sT0}, s{sT0}, s{sT3}
        v_and_b32 v{tk}, s{sT1}, v46
        v_mov_b32 v{tv}, 0x80000000
        v_cndmask_b32 v{tv}, v{tv}, v47, vcc
        v_and_b32 v{Vf(j,0)}, s{sT2}, v{vT+3}
        """)
        for i in range(1, 8): a(f'v_mov_b32 v{Vf(j,0)+i}, v{Vf(j,0)}')
        a(f"""
        buffer_load_dwordx4 {vr(Kf(j),4)}, v{tk}, {sr(sWSD,4)}, s{sT0} offen sc1
        s_mov_b64 exec, {sr(sVM,2)}
        buffer_load_dwordx4 {vr(Vf(j,0),4)}, v{tv}, {sr(sWSD,4)}, s{sT0} offen sc1
        buffer_load_dwordx4 {vr(Vf(j,1),4)}, v{tv}, {sr(sWSD,4)}, s{sT0} offen offset:512 sc1
        s_mov_b64 exec, -1
        """)
    a('s_waitcnt vmcnt(0)')
    a(MF(vMG, Kf(0), Qf, '0')); a(MF(vS0, Kf(8), Qf, '0'))
    for r in range(16): a(f'v_cndmask_b32 v{vMG+r}, v{vS0+r}, v{vMG+r}, {sr(sMASK+2*r,2)}')
    a(f'v_max_f32 v{vMx}, v{vMG}, v{vMG+1}')
    for q in range(2, 16, 2): a(f'v_max3_f32 v{vMx}, v{vMG+q}, v{vMG+q+1}, v{vMx}')
    for j in range(1, 8):
        a(MF(vS0, Kf(j), Qf, '0'))
        for q in range(0, 16, 2): a(f'v_max3_f32 v{vMx}, v{vS0+q}, v{vS0+q+1}, v{vMx}')
    a(f'v_mov_b32 v{vMy}, v{vMx}')
    a(f'v_permlane32_swap_b32 v{vMx}, v{vMy}')
    a(f'v_min_f32_e64 v{vCB_}, -v{vMx}, -v{vMy}')
    for i in range(1, 16): a(f'v_mov_b32 v{vCB_+i}, v{vCB_}')
    for r in range(16): a(f'v_add_f32 v{vMG+r}, v{vMG+r}, v{vCB_}')
    for r in range(16): a(f'v_exp_f32 v{vMG+r}, v{vMG+r}')
    for i in range(8): a(f'v_cvt_pk_bf16_f32 v{vMG+i}, v{vMG+2*i}, v{vMG+2*i+1}')
    for i in range(8): a(f'v_and_b32 v{vMG+8+i}, v{vMG+i}, v{M8[i]}')
    for i in range(8): a(f'v_xor_b32 v{vMG+i}, v{vMG+i}, v{vMG+8+i}')
    for x in (MF(vO, Vf(0, 0), vMG + 8, '0'), MF(vO, Vf(0, 1), vMG + 12, vO), MF(vO, Vf(8, 0), vMG, vO), MF(vO, Vf(8, 1), vMG + 4, vO)): a(x)
    for j in range(1, 8):
        a(MF(vS0, Kf(j), Qf, vCB_))
        for r in range(16): a(f'v_exp_f32 v{vS0+r}, v{vS0+r}')
        for q in range(8): a(f'v_cvt_pk_bf16_f32 v{vS0+q}, v{vS0+2*q}, v{vS0+2*q+1}')
        a(MF(vO, Vf(j, 0), vS0, vO)); a(MF(vO, Vf(j, 1), vS0 + 4, vO))
    for x in o_norm(vS1): a(x)
    a(f"""
    s_lshr_b32 s{sT0}, s{sT3}, 2
    s_add_u32 s{sT0}, s{sT0}, s{sOO}
    buffer_store_dwordx4 {vr(vS1,4)}, v{vP}, {sr(sWSD,4)}, s{sT0} offen sc1
    s_waitcnt vmcnt(0)
    L_fb_next:
    s_add_u32 s{sT3}, s{sT3}, 8192
    s_cmp_eq_u32 s{sT3}, 8192
    s_cbranch_scc1 L_fb_head
    s_nop 7
    s_branch L_fb_done
    """)
    ool.ins += a.ins
    a = keep
emit_fallback()

cA, cB, cI, cNM, cCS, cT = 96, 98, 100, 104, 108, 16
csA = [120, 124]
PK3 = 112
def b3_steps(p, acc):
    o = []
    for n in range(32):
        j, s = divmod(n, 4)
        if p == 0:
            o.append(Step(W_3 + j, s, 't', acc, vPan + 4 * n, aslot=A_X1 + j, aread='p', c0='0' if n == 0 else None, lastw=(s == 3), lasta=(s == 3),
                          dur=opt('DB30', 200)))
        else:
            o.append(Step(W_3 + 8 * p + j, s, 't', acc, vPan + 4 * n, c0='0' if n == 0 else None, lastw=(s == 3), dur=opt('DB3', 230)))
    return o
CSR = 36
setup3 = [f'v_mov_b32 v{r}, 0' for r in (cNM+2, cNM+3, cCS+2, cCS+3)] + \
         [f'v_lshrrev_b32 v{vX1}, 10, v{vP}', f'v_lshl_add_u32 v{vX0}, v{vX1}, 12, v{vX0}\nv_add_u32 v{vX0}, {apos(A_ST) or 65}, v{vX0}'.replace(', 65,', ', 0,'),
          f'v_and_b32 v120, 511, v{vP}', 'v_lshrrev_b32 v120, 2, v120', f'v_lshl_add_u32 v120, v{vX1}, 10, v120',
          f's_lshl_b32 s{sT0}, s{sCH}, 7\ns_add_u32 s{sT0}, s{sT0}, {GATE}\nv_add_u32 v120, s{sT0}, v120', 'v_add_u32 v121, 2048, v120', 'v_add_u32 v122, 4096, v120']
st_seq = [0]
def stats_load():
    for i in range(8): st_seq[0] = lg.issue(f'ds_read_b64 {vr(vA1+2*i,2)}, v{vX0} offset:{512*i}')
    last_read[('A', A_ST)] = st_seq[0]
def cs_load():
    for p in range(3):
        for k in range(2): st_seq[0] = lg.issue(f'ds_read2_b32 {vr(CSR+4*p+2*k,2)}, v{120+p} offset0:{128*k} offset1:{128*k+64}')
sfin = [lambda: lg.wait(st_seq[0])]
for i in range(1, 8):
    sfin += [f'v_add_f32 v{vA1}, v{vA1}, v{vA1+2*i}', f'v_add_f32 v{vA1+1}, v{vA1+1}, v{vA1+2*i+1}']
sfin += [f'v_mov_b32 v{vX2}, v{vA1}', f'v_mov_b32 v{vX3}, v{vA1+1}', f'v_permlane32_swap_b32 v{vA1}, v{vX2}', f'v_permlane32_swap_b32 v{vA1+1}, v{vX3}',
         f'v_add_f32 v{vX2}, v{vA1}, v{vX2}', f'v_add_f32 v{vX3}, v{vA1+1}, v{vX3}']
lc3 = ln_consts(vX2, vX3, cA, cB, cI, cNM, cT)
lc3 = lc3[:15] + [f'v_cvt_pk_bf16_f32 v{cNM+1}, v{cT+1}, v{cT+1}']
def cs3(p, acc):
    c0 = CSR + 4 * p
    o = [f'v_add_f32 v{c0}, v{c0}, v{c0+1}', f'v_add_f32 v{c0+2}, v{c0+2}, v{c0+3}', f'v_add_f32 v{c0}, v{c0}, v{c0+2}']
    f = cs_fix(c0, cCS, cNM, acc, c0 + 1)
    return o + f[:4] + [f'v_mov_b32 v{cCS+1}, v{cCS}', f[4]]
def h3_epi(p, acc, s0, s1):
    nxt = [f's_add_u32 s{sOH3}, s{sOH3}, 8192' if p == 0 else f's_mov_b32 s{sOH3}, s{sNEG}']
    g = gelu_sc(acc, cA, cB, cI, cT, PK3)
    s2 = store2(PK3, vP, sOH3)
    return spread(g + ['\n'.join(s2), mark(5 + p), lambda: a('\n'.join(nxt))], s0, s1)
for x in setup3[4:6] + o_final(1): a(x)
a(f's_or_b64 vcc, {sr(sFL[0],2)}, {sr(sFL[1],2)}')
a('s_cbranch_scc1 L_fb')
a('L_fb_done:')
for x in setup3[6:]: a(x)
fin = [f'v_and_b32 v{vA0}, 511, v{vP}', f'v_lshlrev_b32 v{vA0}, 6, v{vA0}', f'v_lshrrev_b32 v{vA0+1}, 10, v{vP}', f'v_lshl_add_u32 v{vA0}, v{vA0+1}, 4, v{vA0}',
       f'v_sub_f32 v{vA0+2}, 1.0, v{vG}'] + [f'v_mul_f32 v{vA1+i}, v{vG}, v{vA1+i}' for i in range(16)]
G0, G1, G2 = opt('GL0', 22), opt('GL1', 24), opt('GL2', 24)
a3 = stream_steps(W_O, A_O, 32, vA1, c0='0', phase=96)
for x in a3: x.dur = opt('DA3', 250)
run_steps(b3_steps(0, vA0) + b3_steps(1, vA1) + b3_steps(2, vA0) + a3 + stream_steps(W_4, A_H3, 86, vAB, phase=128),
          merge({opt('PUB4', 20): [pubat(4)]}, {0: [stats_load], 2: [cs_load]}, spread(sfin + setup3[:4] + lc3 + cs3(0, vA0), 4, 30),
                h3_epi(0, vA0, 35, 35 + G0), spread(cs3(1, vA1), 60, 64), {opt('PUB5', 35 + G0 + 16): [pubat(5)]},
                spread(cs3(2, vA0), 64, 67), h3_epi(1, vA1, 67, 67 + G1), {opt('PUB6', 67 + G1 + 14): [pubat(6)]},
                h3_epi(2, vA0, 99, 99 + G2), {opt('PUB7', 99 + G2 + 16): [pubat(7)]}, spread(fin, 136, 164)))
stamp('A3B4')
for i in range(0, 16, 2): a(f'v_pk_fma_f32 {vr(vA1+i,2)}, {vr(vAB+i,2)}, {vr(vA0+2,2)}, {vr(vA1+i,2)} op_sel_hi:[1,0,1]')
for x in pack(vA1, PK): a(x)
a(f'''
v_permlane32_swap_b32 v{PK}, v{PK+2}
v_permlane32_swap_b32 v{PK+1}, v{PK+3}
v_permlane32_swap_b32 v{PK+4}, v{PK+6}
v_permlane32_swap_b32 v{PK+5}, v{PK+7}
buffer_store_dwordx4 {vr(PK,4)}, v{vA0}, {sr(sSRD,4)}, s{sOOUT} offen {('', 'sc1', 'nt', 'sc0 sc1')[opt('OF', 0)]}
buffer_store_dwordx4 {vr(PK+4,4)}, v{vA0}, {sr(sSRD,4)}, s{sOOUT} offen offset:32 {('', 'sc1', 'nt', 'sc0 sc1')[opt('OF', 0)]}
''')
dbg_dump()
names = {'c': list(stamp_names)}
a('s_endpgm')
a.ins += ool.ins
sec_comp = a.ins; a.ins = []

NT = len(ticks)
tname = {t['name']: i for i, t in enumerate(ticks)}
rel_tick = {k: i for i, t in enumerate(ticks) for k in t['free']}
def use_tick(kind, idx):
    for i, t in enumerate(ticks):
        n = t['need' + kind]
        if n is not None and n >= idx: return i
    raise Exception((kind, idx))
pub_tick = {t['pub']: i for i, t in enumerate(ticks) if t['pub']}

grp_first = {A_H: 1, A_KE: 2, A_ST: 3, A_O: 4, A_H3: 5, A_H3 + 8: 6, A_H3 + 16: 7}
gate_tick = {1: use_tick('A', A_H) - opt('LA1', 5), 2: tname[{0: 'W39', 1: 'B2e', 2: 'W38'}[opt('G2', 2)]], 3: tname[f'T1{opt("G3", 0)}'],
             4: use_tick('A', A_O) - opt('LA4', 9), 5: use_tick('A', A_H3) - opt('LA5', 5),
             6: use_tick('A', A_H3 + 8) - opt('LA6', 5), 7: use_tick('A', A_H3 + 16) - opt('LA7', 5)}
for g, t in gate_tick.items(): assert t > pub_tick[g], (g, t, pub_tick[g])
def stage_of(i):
    st_ = 0
    for f, g in grp_first.items():
        if i >= f: st_ = g
    return st_
tstart = [0]
for t in ticks: tstart.append(tstart[-1] + t['dur'])
PAIR = opt('PAIR', 1)
worder = list(range(W_END))
if PAIR: worder[W_3:W_3+16] = [W_3 + (q >> 1) + 8 * (q & 1) for q in range(16)]
cost = lambda k, i: (opt('CW3P', 150) if PAIR and W_3 + 8 <= i < W_3 + 16 else opt('CW3', 205)) if k == 'W' and W_3 <= i < W_O else 240 if (k, i) == ('A', A_ST) else opt('CS', 140)
LEAD = opt('LEAD', 700)
plan = {}
nxt = {'W': 0, 'A': 0}
END = {'W': W_END, 'A': A_END}
avail = {p: -1 for p in range(NPOS)}
newpos = {}
want = {}
for (k, i), p in sorted(FIXED.items(), key=lambda x: x[0][1]):
    want.setdefault(p, []).append(-1 if i < A_H else gate_tick[2] + (0 if i < A_KO else opt('KOD', 2)))
RSV = opt('RSV', 0)
def pick(k, i, t):
    if (k, i) in FIXED:
        p = FIXED[(k, i)]
        return p if avail[p] <= t else None
    r_ = rel_tick.get((k, i), NT)
    ok = [p for p in range(NPOS) if avail[p] <= t and (not want.get(p) or r_ <= want[p][0])]
    ok.sort(key=lambda p: (0 if want.get(p) else 1, p))
    return ok[0] if ok else None
def room_for_A(t, u):
    need = sum(1 for i in range(nxt['A'], A_END) if use_tick('A', i) < u and ('A', i) not in FIXED)
    if not need: return True
    i0 = next(i for i in range(nxt['A'], A_END) if ('A', i) not in FIXED)
    sg = stage_of(i0)
    g = max(gate_tick[sg], t)
    free_then = sum(1 for p in range(NPOS) if avail[p] <= g + 1) - 1
    return free_then >= min(need, opt(f'AMIN{sg}', {3: 8}.get(sg, 4)))
bud = 0
pauses = [[opt('Z0', 3), opt('Z1', 6), opt('ZN', 3)], [opt('Y0', 7), opt('Y1', 10), opt('YN', 2)]]
for t in range(-1, NT - 1):
    bud = min(bud, opt('CARRY', 100)) + (opt('B0', 8) * 128 if t < 0 else ticks[t]['dur'] * opt('BUD', 100) // 100)
    while True:
        cands = []
        for k in 'AW':
            i = nxt[k]
            if i >= END[k]: continue
            if k == 'W': i = worder[i]
            if k == 'A' and stage_of(i) and gate_tick[stage_of(i)] > t: continue
            if pick(k, i, t) is None: continue
            u = use_tick(k, i)
            if k == 'W': u = min(use_tick(k, j_) for j_ in worder[nxt[k]:nxt[k]+2])
            if k == 'W' and PAIR and W_3 + 8 <= i < W_3 + 16: u = use_tick(k, i - 8)
            must = u == t + 1 or (t >= 0 and tstart[u] - tstart[t + 1] < LEAD)
            if k == 'W' and not must and not room_for_A(t, u): continue
            cands.append((u, k, i, must))
        if not cands: break
        u, k, i, must = min(cands)
        if bud < cost(k, i) // 2 and not must: break
        pz = [z for z in pauses if z[0] <= t < z[1]]
        if pz:
            if pz[0][2] <= 0 and u > t + 1 + opt('ZM', 2): break
            pz[0][2] -= 1
        p = pick(k, i, t)
        if (k, i) in FIXED: want[p].pop(0)
        avail[p] = rel_tick.get((k, i), NT)
        newpos[(k, i)] = p
        plan.setdefault(t, []).append((k, i)); nxt[k] += 1; bud -= cost(k, i)
    for k in 'AW':
        assert all(use_tick(k, j_) > t + 1 for j_ in (worder if k == 'W' else range(A_END))[nxt[k]:nxt[k]+3]), ('late', k, nxt[k], t)
assert nxt == END, nxt
if not PASS2:
    json.dump({f'{k}:{i}': p for (k, i), p in newpos.items()}, open(POSF, 'w'))
    import os
    os.execv(sys.executable, [sys.executable] + sys.argv + ['--pass2'])
assert all(POS[(k, str(i))] == p for (k, i), p in newpos.items())

sOFF, sB3, sHW, sHA, sNEED = 51, 52, 53, 54, 55
sCH8 = 60
sAB = 68
sSRA = 80
a('L_load:')
a(f's_setprio {opt("PL", 3)}')
vS = {3072: 24, 1024: 28, 2752: 32}
vXo, vLin, vKVo = 10, 14, 36
a(f"""
s_sub_u32 s{sHA}, s{sWV}, 4
s_lshl_b32 s{sT0}, s{sHA}, 5
v_lshrrev_b32 v1, 3, v0
v_add_u32 v1, s{sT0}, v1
v_and_b32 v3, 7, v0
v_lshrrev_b32 v2, 4, v0
v_xor_b32 v2, v2, v3
v_lshlrev_b32 v4, 10, v1
v_lshl_add_u32 v{vXo}, v2, 4, v4
v_xor_b32 v2, 4, v2
v_lshl_add_u32 v{vXo+1}, v2, 4, v4
v_add_u32 v{vXo+1}, 7168, v{vXo+1}
v_add_u32 v{vXo+2}, 14336, v{vXo}
v_add_u32 v{vXo+3}, 14336, v{vXo+1}
v_bfe_u32 v2, v0, 4, 1
v_lshlrev_b32 v2, 2, v2
v_xor_b32 v2, v2, v3
v_lshlrev_b32 v2, 4, v2
s_lshl_b32 s{sT0}, s{sC}, 7
v_add_u32 v2, s{sT0}, v2
v_add_u32 v28, v4, v2
v_add_u32 v29, 7168, v28
v_add_u32 v30, 7168, v29
v_add_u32 v31, 7168, v30
s_lshl_b32 s{sHA}, s{sHA}, 12
s_lshl_b32 s{sAB}, s{sR}, 16
s_mov_b32 s{sSRA+2}, {2048*1024}
s_mov_b32 s{sSRA+3}, 0x20000
s_lshl_b32 s{sT0}, s{sRT1}, 7
v_lshlrev_b32 v5, 4, v0
v_add_u32 v6, s{sT0}, v5
v_and_b32 v6, 1023, v6
""")
sCH1 = 92
def chunk_table(dst, rot, q0=0, q1=8):
    for q in range(q0, q1):
        a(f's_add_u32 s{dst+q}, s{rot}, {q}')
        a(f's_and_b32 s{dst+q}, s{dst+q}, 7')
assert not DEBUG
a(f"""
s_waitcnt lgkmcnt(0)
""")
dbg_start()
stamp('karg')
a(f"""
s_mov_b32 s{sSRA}, s{sX}
s_mov_b32 s{sSRA+1}, s{sX+1}
s_mov_b32 s{sSRD}, s{sGATE}
s_mov_b32 s{sSRD+1}, s{sGATE+1}
s_mov_b32 s{sSRD+2}, 1024
s_mov_b32 m0, {GATE}
s_mov_b32 s{sWSD}, s{sWS}
s_mov_b32 s{sWSD+1}, s{sWS+1}
buffer_load_dwordx4 v6, {sr(sSRD,4)}, 0 offen lds
""")
def late_setup(part):
    st_, b = ((3072, 24), (2752, 32))[part]
    a(f'v_mul_u32_u24 v3, {st_}, v1')
    a(f'v_add_u32 v{b}, v3, v2')
    for i in range(1, 4): a(f'v_add_u32 v{b+i}, {8*st_-1024}, v{b+i-1}')
    if part == 0: return
    chunk_table(sCH8, sROT)
def late_setup2():
    a(f"""
    v_add_u32 v{vLin}, s{sHA}, v5
    s_cmp_ge_u32 s{sC}, 6
    s_cselect_b32 s{sB3}, 0x200000, 0
    s_add_u32 s{sB3}, s{sB3}, 2048
    s_lshl_b32 s78, s{sC}, 7
    s_add_u32 s79, s78, 128
    s_add_u32 s{sAB+1}, s{sAB}, {WS_H}
    s_add_u32 s{sAB+3}, s{sAB}, {WS_O}
    s_mul_i32 s{sAB+2}, s{sR}, {X1_STRIDE}
    s_add_u32 s{sAB+2}, s{sAB+2}, {WS_X1}
    s_mul_i32 s{sAB+4}, s{sR}, {H3_STRIDE}
    s_add_u32 s{sAB+4}, s{sAB+4}, {WS_H3}
    v_and_b32 v7, 512, v5
    v_mov_b32 v8, 0x80000000
    """)
    for i in range(5):
        a(f"""
        s_add_i32 s{sT1}, s{sR}, {i-4}
        s_max_i32 s{sT1}, s{sT1}, 0
        s_lshl_b32 s{sT1}, s{sT1}, 3
        s_add_u32 s{sT1}, s{sT1}, s{sC}
        s_lshl_b32 s{sT1}, s{sT1}, 14
        s_add_u32 s{sAB+5+i}, s{sT1}, {WS_KV}
        """)
        if i < 4:
            a(f"""
            s_cmp_lt_u32 s{sR}, {4-i}
            s_cselect_b64 vcc, -1, 0
            v_cndmask_b32 v{vKVo+2*i}, v{vLin}, v{7 if KDUP else 8}, vcc
            v_cndmask_b32 v{vKVo+2*i+1}, v{vLin}, v8, vcc
            """)
wdesc = []
for (ptr, size, st_, co) in ((sW1, 512*1024, 1024, 0), (sWQKV, 512*3072, 3072, 1024), (sWQKV, 512*3072, 3072, 2048), (sWQKV, 512*3072, 3072, 0),
                             (sW2, 512*1024, 1024, 0), (sW3, 512*2752, 2752, 's78'), (sW3, 512*2752, 2752, 's79'), (sW3, 512*2752, 2752, f's{sB3}'),
                             (sWO, 512*1024, 1024, 0), (sW4, 1376*1024, 1024, 0), (sW4, 1376*1024, 1024, 65536)):
    for q in range(8): wdesc.append((ptr, size, st_, co, q))
for q in range(6): wdesc.append((sW4, 1376*1024, 1024, (16 + q) * 65536, None))
cur_mat = [None]
def w_issue(idx):
    ptr, size, st_, co, q = wdesc[idx]
    if cur_mat[0] != ptr:
        cur_mat[0] = ptr
        a(f's_mov_b32 s{sSRD}, s{ptr}')
        a(f's_mov_b32 s{sSRD+1}, s{ptr+1}')
        a(f's_mov_b32 s{sSRD+2}, {size}')
    a(f's_add_u32 m0, s{sHA}, {wpos(idx)}')
    if q is None: a(f's_mov_b32 s{sOFF}, {co}')
    else:
        a(f's_mul_i32 s{sOFF}, s{(sCH1 if idx < W_2 else sCH8)+q}, {(128 if idx >= W_4 else 64)*st_}')
        if co: a(f's_add_u32 s{sOFF}, s{sOFF}, {co}')
    for i in range(4): a(f'buffer_load_dwordx4 v{vS[st_]+i}, {sr(sSRD,4)}, s{sOFF} offen offset:{1024*i} {"nt" if idx < opt("WNT", 0) else ""} lds')
    if idx % 8 == 7: stamp(f'w{idx}')
def a_issue(idx):
    a(f's_add_u32 m0, s{sHA}, {apos(idx)}')
    srd, vo = sWSD, [vLin] * 4
    def rot(base, q, extra=0, sh=13):
        a(f's_lshl_b32 s{sOFF}, s{sCH8+q}, {sh}')
        a(f's_add_u32 s{sOFF}, s{sOFF}, s{base}')
        if extra: a(f's_add_u32 s{sOFF}, s{sOFF}, {extra}')
    if idx < A_H:
        chunk_table(sCH1, sRT1, idx, idx + 1)
        a(f's_lshl_b32 s{sOFF}, s{sCH1+idx}, 7')
        a(f's_add_u32 s{sOFF}, s{sOFF}, s{sAB}')
        srd, vo = sSRA, [vXo + i for i in range(4)]
    elif idx < A_KE: rot(sAB + 1, idx - A_H)
    elif idx < A_ST:
        p, i = divmod(idx - A_KE, 5)
        a(f's_add_u32 s{sOFF}, s{sAB+5+i}, {8192*p}')
        if i < 4: vo = [vKVo + 2*i] * 2 + [vKVo + 2*i + 1] * 2
    elif idx == A_ST: a(f's_add_u32 s{sOFF}, s{sAB+2}, 65536')
    elif idx < A_O: rot(sAB + 2, idx - A_X1)
    elif idx < A_H3: rot(sAB + 3, idx - A_O)
    elif idx < A_H3 + 16: rot(sAB + 4, (idx - A_H3) % 8, 8192 * ((idx - A_H3) // 8), 14)
    else: a(f's_add_u32 s{sOFF}, s{sAB+4}, {8192*(idx-A_H3)}')
    if idx == A_END - 1:
        a(f's_cmp_lg_u32 s{sHA}, 0')
        a(f's_cselect_b32 s{sOFF}, {WS_REC}, s{sOFF}')
    fl_ = 'sc1' if idx >= A_H else ('sc1', '', 'nt', 'sc0 sc1', 'nt sc1', 'sc0 nt sc1')[opt('XF', 2)]
    for i in range(4): a(f'buffer_load_dwordx4 v{vo[i]}, {sr(srd,4)}, s{sOFF} offen offset:{1024*i} {fl_} lds')
    if idx == A_ST:
        a(f's_lshr_b32 s{sT0}, s{sHA}, 2')
        a(f's_sub_u32 s{sT0}, s{sHA}, s{sT0}')
        a(f's_add_u32 m0, s{sT0}, {GATE}')
        a(f's_lshl_b32 s{sOFF}, s{sC}, 13')
        a(f's_add_u32 s{sOFF}, s{sOFF}, s{sT0}')
        a(f's_add_u32 s{sOFF}, s{sOFF}, {WS_CS}')
        for i in range(3): a(f'buffer_load_dwordx4 v5, {sr(srd,4)}, s{sOFF} offen offset:{1024*i} sc1 lds')
    if idx in (15, 20, 33, 42, 64): stamp(f'a{idx}')
sSRP, sPI = 84, 88
pdesc = {'wqkv': (sWQKV, 512*3072, 3), 'w2': (sW2, 512*1024, 1), 'w3': (sW3, 512*2752, 3), 'wo': (sWO, 512*1024, 1), 'w4': (sW4, 1376*1024, 3)}
def p_issue(nm):
    ptr, size, n = pdesc[nm]
    a(f's_mov_b32 s{sSRP}, s{ptr}')
    a(f's_mov_b32 s{sSRP+1}, s{ptr+1}')
    a(f's_mov_b32 s{sSRP+2}, {size}')
    a(f's_mul_i32 s{sOFF}, s{sPI}, {1024*n}')
    for i in range(n): a(f'buffer_load_dwordx4 v[48:51], v5, {sr(sSRP,4)}, s{sOFF} offen offset:{1024*i}')
    return n
for nm, key, dflt in (('wqkv', 'PQ', 2), ('w2', 'P2', 2), ('w3', 'P3', -2), ('wo', 'PO', tname['T15']), ('w4', 'P4', tname['T15'])):
    t = opt(key, dflt)
    if t >= 1000: t = tname['KVE'] + t - 1000
    if t >= -1: plan.setdefault(t, []).append(('P', nm))
a(f's_mov_b32 s{sSRP+3}, 0x20000')
a(f's_lshl_b32 s{sPI}, s2, 1')
a(f's_add_u32 s{sPI}, s{sPI}, s{sWV}')
a(f's_sub_u32 s{sPI}, s{sPI}, 4')
SP0 = opt('SP0', -1)
def sp_setup(share_code, d):
    return [share_code, f's_mul_i32 s{sT1}, s{sT0}, {11*64}', f's_min_u32 s{sT1}, s{sT1}, {512*1024 - 11*64}',
            f's_add_u32 s{d}, s{sWO}, s{sT1}', f's_addc_u32 s{d+1}, s{sWO+1}, 0',
            f's_mul_i32 s{sT1}, s{sT0}, {29*64}', f's_min_u32 s{sT1}, s{sT1}, {1376*1024 - 29*64}',
            f's_add_u32 s{d+2}, s{sW4}, s{sT1}', f's_addc_u32 s{d+3}, s{sW4+1}, 0']
def sp_load(k, d, dst):
    return f's_load_dword s{dst}, {sr(d,2)}, {64*k}' if k < 11 else f's_load_dword s{dst}, {sr(d+2,2)}, {64*(k-11)}'
SHARE = f's_mul_i32 s{sT0}, s2, 3\ns_add_u32 s{sT0}, s{sT0}, s{sWV}\ns_sub_u32 s{sT0}, s{sT0}, 4'
nops = 0
endpos = {}
landed = 0
for t in range(-1, NT - 1):
    for k, i in plan.get(t, []):
        if k == 'P': nops += p_issue(i)
        else:
            (w_issue if k == 'W' else a_issue)(i); nops += 7 if (k, i) == ('A', A_ST) else 4
            endpos[(k, i)] = nops
    if SP0 >= 0:
        if t == SP0:
            for x in sp_setup(SHARE, 56): a(x)
        if 0 <= t - SP0 < 40: a(sp_load(t - SP0, 56, 100))
    if t == opt('LS0', 0): late_setup(0)
    if t == opt('LS1', 6): late_setup(1)
    if t == opt('LS2', 7): late_setup2()
    if t == 7 and PAGES:
        a('s_branch L_load2')
        a('.p2align 12')
        a('L_load2:')
    pos = 0
    for k in 'AW':
        need = ticks[t + 1]['need' + k]
        if need is not None: pos = max(pos, endpos[(k, need)])
    if pos > landed:
        kk = min(nops - pos, 63)
        a(f's_waitcnt vmcnt({kk})')
        landed = nops - kk
    if t in (-1, 0, 1, 2, 3): stamp(f'rdy{t+1}')
    a('s_barrier')
dbg_dump()
names['w'] = list(stamp_names)
a('L_end:')
a('s_endpgm')

sFV, sFK = 68, 84
sMB, sPB, sCF, sVAL = 56, 58, 60, 62
WS_CF = 0xA0000
a(f"""
L_flag:
{'s_memrealtime s[98:99]' if opt('DIAG', 0) and opt('DAT', -1) == -1 else ''}
s_setprio {opt("PL", 3)}
s_lshl_b32 s{sT1}, s{sR}, 13
s_add_u32 s{sT1}, s{sT1}, {WS_MB}
s_lshl_b32 s{sT2}, s{sC}, 2
s_add_u32 s{sT2}, s{sT2}, s{sT1}
s_lshl_b32 s{sT0}, s{sC}, 10
s_add_u32 s{sT1}, s{sT1}, s{sT0}
s_add_u32 s{sT0}, s{sT0}, {WS_CF}
v_lshrrev_b32 v8, 1, v0
v_lshlrev_b32 v8, 13, v8
v_and_b32 v9, 1, v0
v_lshl_add_u32 v8, v9, 4, v8
v_add_u32 v8, {WS_MB}, v8
s_waitcnt lgkmcnt(0)
s_load_dword s{sE}, {sr(sWS,2)}, {WS_E}
s_mov_b32 s{sWSD}, s{sWS}
s_mov_b32 s{sWSD+1}, s{sWS+1}
s_add_u32 s{sMB}, s{sWS}, s{sT1}
s_addc_u32 s{sMB+1}, s{sWS+1}, 0
s_add_u32 s{sPB}, s{sWS}, s{sT2}
s_addc_u32 s{sPB+1}, s{sWS+1}, 0
s_add_u32 s{sCF}, s{sWS}, s{sT0}
s_addc_u32 s{sCF+1}, s{sWS+1}, 0
""")
a('s_waitcnt lgkmcnt(0)')
if opt('MBW', 1):
    for k in range(3): a(f's_load_dword s{20+k}, {sr(sMB,2)}, {128*k} glc')
make_tag()
for q in range(20): a(f's_mov_b32 s{sFV+q}, s{sTAG}')
def poll(g):
    if g == 2: return [f's_load_dwordx4 {sr(sFK,4)}, {sr(sMB,2)}, 256 glc']
    return [f's_load_dwordx8 {sr(sFV+8*k,8)}, {sr(sMB,2)}, {128*k} glc' for k in range(2 if g == 1 else 1)]
def wait_flags(regs, loads, need, block=False):
    l1, l2 = a.new_label('P'), a.new_label('P')
    a(f's_add_u32 s{sNEED}, s{sTAG}, {need}')
    a(f'{l1}:')
    for k, sv in enumerate(regs):
        a(f's_sub_u32 s{sT0 + (1 if k else 0)}, s{sv}, s{sNEED}')
        if k: a(f's_max_u32 s{sT0}, s{sT0}, s{sT1}')
    a(f's_cmp_lt_u32 s{sT0}, {8-need}')
    a(f's_cbranch_scc1 {l2}')
    for x in loads: a(x)
    a(f"""
    s_sub_u32 s{sTO}, s{sTO}, 1
    s_cbranch_scc1 L_end
    {'s_waitcnt lgkmcnt(0)' if block else 's_sleep %d' % opt('PSL', 1)}
    s_branch {l1}
    {l2}:
    """)
CSP = opt('CSP', 29)
PRE = opt('PRE', 900)
PEV = opt('PEV', 2)
gate_at = {t: g for g, t in gate_tick.items()}
assert len(gate_at) == 7
cr = [4 + q for q in range(16)] + [sFV + 8 + q for q in range(8)]
cpoll = [f's_load_dwordx8 {sr(b_,8)}, {sr(sCF,2)}, {128*k} glc' for k, b_ in enumerate((4, 12, sFV + 8))]
for i, t in enumerate(ticks):
    if gate_at.get(i) == 3: wait_flags(cr, cpoll, 1, block=True)
    if i in gate_at:
        g = gate_at[i]
        wait_flags([sFK + q for q in range(4)] if g == 2 else [sFV + q for q in range(16 if g == 1 else 8)], poll(g), g)
        stamp(f'g{g}')
    if t['pub'] and t['pub'] != 2: a(f's_add_u32 s{sVAL + (t["pub"] & 1)}, s{sTAG}, {t["pub"]}')
    a('s_barrier')
    if opt('DIAG', 0) and opt('DAT', -1) == i: a('s_memrealtime s[98:99]')
    if t['pub'] and t['pub'] != 2:
        for q in range(8): a(f's_atomic_swap s{sVAL + (t["pub"] & 1)}, {sr(sPB,2)}, {1024*q}')
    if t['name'] == 'KVE':
        a('s_waitcnt lgkmcnt(0)')
        for q in cr: a(f's_mov_b32 s{q}, s{sTAG}')
    if t['name'] == f'T0{opt("CPT", 2)}':
        for x in cpoll: a(x.replace(' glc', ''))
    for g, gt in gate_tick.items():
        d = gt - 1 - i
        if pub_tick[g] <= i and d > 0 and tstart[gt - 1] - tstart[i] <= PRE and d % PEV == 0:
            for x in poll(g): a(x)
a('s_waitcnt lgkmcnt(0)')
a('s_mov_b64 exec, -1')
a(f"""
s_cmp_lg_u32 s2, 0
s_cbranch_scc1 L_fend
s_add_u32 s{sT1}, s{sTAG}, 1
L_ebump:
buffer_load_dwordx4 v[32:35], v8, {sr(sWSD,4)}, 0 offen sc1
s_waitcnt vmcnt(0)
""")
for i in range(4): a(f'v_subrev_u32 v{32+i}, s{sT1}, v{32+i}')
a(f"""
v_max_u32 v32, v32, v33
v_max3_u32 v32, v32, v34, v35
v_cmp_gt_u32 vcc, 7, v32
s_cmp_eq_u64 vcc, -1
s_cbranch_scc1 L_ebump2
s_sub_u32 s{sTO}, s{sTO}, 1
s_cbranch_scc0 L_ebump
s_endpgm
L_ebump2:
v_mov_b32 v1, s{sTAG}
v_mov_b32 v2, {WS_E}
s_mov_b64 exec, 1
buffer_store_dword v1, v2, {sr(sWSD,4)}, 0 offen sc1
s_mov_b64 exec, -1
L_fend:
""")
if opt('DIAG', 0):
    a(f'''
    L_diag:
    s_memrealtime s[96:97]
    s_waitcnt lgkmcnt(0)
    s_sub_u32 s96, s96, s98
    s_cmp_lt_u32 s96, {opt('DIAG', 0)}
    s_cbranch_scc1 L_diag
    ''')
dbg_dump()
names['s'] = list(stamp_names)
a('s_endpgm')
a('L_aux:')
if opt('HS', 1):
    a(f"""
    s_lshl_b32 s62, s{sR}, 16
    s_lshl_b32 s{sT0}, s{sC}, 13
    s_add_u32 s62, s62, s{sT0}
    s_bitcmp1_b32 s{sC}, 1
    s_cselect_b32 s{sT0}, 448, 0
    s_add_u32 s62, s62, s{sT0}
    s_add_u32 s62, s62, {WS_H}
    s_waitcnt lgkmcnt(0)
    s_add_u32 s62, s62, s{sWS}
    s_addc_u32 s63, s{sWS+1}, 0
    """)
    a(f's_load_dword s90, {sr(sWS,2)}, {WS_E}')
    a('s_waitcnt lgkmcnt(0)')
    for k in range(12): a(f's_load_dword s{64+k}, s[62:63], {512*k}')


a(f"""
v_lshrrev_b32 v1, 3, v0
v_mul_u32_u24 v1, 2752, v1
v_and_b32 v2, 7, v0
v_lshl_add_u32 v1, v2, 4, v1
v_lshlrev_b32 v2, 5, v2
v_lshrrev_b32 v3, 5, v0
v_lshl_add_u32 v2, v3, 4, v2
v_bfe_u32 v3, v0, 4, 1
v_lshl_add_u32 v2, v3, 3, v2
s_and_b32 s{sT0}, s{sR}, 7
s_mul_i32 s60, s{sT0}, {64*2752}
s_lshr_b32 s{sT0}, s{sR}, 3
s_add_u32 s{sT1}, s{sT0}, s{sC}
s_cmp_ge_u32 s{sT0}, 2
s_cselect_b32 s{sT0}, 16, s{sT1}
s_add_u32 s{sT0}, s{sT0}, s{sC}
s_lshl_b32 s{sT0}, s{sT0}, 7
s_add_u32 s60, s60, s{sT0}
s_lshl_b32 s61, s{sC}, 13
s_lshl_b32 s{sT0}, s{sR}, 8
s_add_u32 s61, s61, s{sT0}
s_add_u32 s61, s61, {WS_CS}
s_cmp_ge_u32 s{sR}, 24
s_cselect_b32 s60, 0x200000, s60
s_cselect_b32 s61, {WS_REC}, s61
{'' if opt('HS', 1) else 's_waitcnt lgkmcnt(0)'}
s_mov_b32 s{sSRD}, s{sW3}
s_mov_b32 s{sSRD+1}, s{sW3+1}
s_mov_b32 s{sSRD+2}, {512*2752}
s_mov_b32 s{sWSD}, s{sWS}
s_mov_b32 s{sWSD+1}, s{sWS+1}
""")
if TRACE:
    a(f'v_writelane_b32 v11, s{sST}, 60')
    a(f'v_writelane_b32 v11, s{sE}, 61')
assert opt('HS', 1)
a(f"""
s_add_u32 s90, s90, 0x9e3779b0
s_and_b32 s90, s90, 0xfffffff0
s_add_u32 s91, s90, 2
s_add_u32 s90, s90, 1
s_bitcmp1_b32 s{sC}, 1
s_cselect_b32 s{sT0}, -1, 1
s_add_u32 s{sT0}, s{sT0}, s{sR}
s_and_b32 s{sT0}, s{sT0}, 31
s_lshl_b32 s{sT0}, s{sT0}, 13
s_lshl_b32 s{sT1}, s{sC}, 2
s_add_u32 s{sT0}, s{sT0}, s{sT1}
s_add_u32 s{sT0}, s{sT0}, {WS_MB + 128}
s_add_u32 s80, s{sWS}, s{sT0}
s_addc_u32 s81, s{sWS+1}, 0
s_lshl_b32 s{sT0}, s{sR}, 13
s_lshl_b32 s{sT1}, s{sC}, 10
s_add_u32 s{sT0}, s{sT0}, s{sT1}
s_add_u32 s{sT0}, s{sT0}, {WS_MB + 256}
s_add_u32 s82, s{sWS}, s{sT0}
s_addc_u32 s83, s{sWS+1}, 0
s_lshr_b32 s{sT0}, s{sR}, 3
s_lshl_b32 s{sT0}, s{sT0}, 7
s_and_b32 s{sT2}, s{sR}, 7
s_lshl_b32 s{sT2}, s{sT2}, 2
s_add_u32 s{sT0}, s{sT0}, s{sT2}
s_add_u32 s{sT0}, s{sT0}, s{sT1}
s_add_u32 s84, s{sT0}, {WS_CF}
""")
for q in range(4):
    a(f's_cmp_lt_u32 s{sR}, {4-q}')
    a(f's_cselect_b32 s{85+q}, {4*q}, 32')
msgs = {pub_tick[1]: [f's_atomic_swap s90, s[80:81], {1024*q}' for q in range(8)],
        pub_tick[2]: [f's_atomic_swap s91, s[82:83], {8192*l + 4*(4-l)}' for l in range(1, 5)] + [f's_cmp_ge_u32 s{sR}, 4', 's_cbranch_scc1 L_kvself'] +
                     [f's_atomic_swap s91, s[82:83], s{85+q}' for q in range(4)] + ['L_kvself:'],
        CSP: [f's_atomic_swap s90, {sr(sWS,2)}, s84']}
TC0, TC1 = opt('TC0', 7), opt('TC1', 13)
ld = []
for i in range(8):
    ld += [f'buffer_load_dwordx4 {vr(64+4*i,4)}, v1, {sr(sSRD,4)}, s60 offen', f's_add_u32 s60, s60, {8*2752}']
wk = ['s_waitcnt vmcnt(0)']
for i in range(8):
    for d in range(4):
        src = 64 + 4 * i + d
        if i == 0: wk += [f'v_lshlrev_b32 v{20+2*d}, 16, v{src}', f'v_and_b32 v{21+2*d}, 0xffff0000, v{src}']
        else: wk += [f'v_lshlrev_b32 v28, 16, v{src}', f'v_and_b32 v29, 0xffff0000, v{src}', f'v_add_f32 v{20+2*d}, v{20+2*d}, v28', f'v_add_f32 v{21+2*d}, v{21+2*d}, v29']
for e in (0, 1, 4, 5): wk += [f'v_permlane16_swap_b32 v{20+e}, v{22+e}']
for e in (0, 1, 4, 5): wk += [f'v_add_f32 v{20+e}, v{20+e}, v{22+e}']
for e in (0, 1): wk += [f'v_permlane32_swap_b32 v{20+e}, v{24+e}']
for e in (0, 1): wk += [f'v_add_f32 v{20+e}, v{20+e}, v{24+e}']
for e in (0, 1): wk += [f'v_add_f32_dpp v{22+e}, v{20+e}, v{20+e} row_ror:8 row_mask:0xf bank_mask:0xf']
wk += [f'buffer_store_dwordx2 v[22:23], v2, {sr(sWSD,4)}, s61 offen sc1']
auxp = merge(msgs, {0: [f's_load_dword s{64+k}, s[62:63], {512*k}' for k in range(12, 16)]}, {TC0: ld}, spread(wk, TC1, TC1 + 8))
NMARK = 10
if PAGES:
    vo = opt('VO', 2)
    auxp = merge({vo + k // 2 if k < 14 else 0: ['s_mov_b64 exec, 0', f's_branch L_pg{m}', f'L_pr{m}:', 's_mov_b64 exec, -1'] for k, m in []},
                 *[{vo + k * (8 - vo) // NMARK: ['s_mov_b64 exec, 0', f's_branch L_pg{m}', f'L_pr{m}:', 's_mov_b64 exec, -1']} for k, m in enumerate((0, 4, 5, 1, 2, 3, 6, 7, 8, 9))], auxp)
AUXEND = max(CSP, pub_tick[2])
if SP0 >= 0:
    auxp = merge(auxp, {SP0: sp_setup(SHARE, 56)}, {SP0 + k: [sp_load(k, 56, 100)] for k in range(40)})
    AUXEND = max(CSP, SP0 + 40)
assert TC1 + 8 < CSP
for i in range(NT if TRACE else AUXEND + 1):
    if i == CSP: a('s_waitcnt vmcnt(0)')
    a('s_barrier')
    if TRACE:
        if i: a(f'v_writelane_b32 v{10 + (i-1) // 64}, s{sST + 2*((i-1)&1)}, {(i-1) % 64}')
        a(f's_memtime {sr(sST + 2*(i&1),2)}')
    for x in auxp.get(i, []): a(x)
if TRACE:
    a('s_waitcnt lgkmcnt(0)')
    a(f'v_writelane_b32 v{10 + (NT-1) // 64}, s{sST + 2*((NT-1)&1)}, {(NT-1) % 64}')
if not TRACE: a('s_endpgm')
if TRACE:
    a('s_barrier')
    a(f"""
    s_memtime {sr(sST,2)}
    s_memrealtime {sr(sE,2)}
    s_waitcnt lgkmcnt(0)
    v_writelane_b32 v11, s{sST}, 62
    v_writelane_b32 v11, s{sE}, 63
    s_mov_b32 s{sWSD}, s{sWS}
    s_mov_b32 s{sWSD+1}, s{sWS+1}
    s_mov_b32 s{sWSD+2}, {WS_REC}
    s_mov_b32 s{sWSD+3}, 0x20000
    v_lshlrev_b32 v1, 2, v0
    s_lshl_b32 s{sT0}, s2, 9
    s_add_u32 s{sT0}, s{sT0}, {WS_DBG + 0x80000}
    buffer_store_dword v10, v1, {sr(sWSD,4)}, s{sT0} offen
    buffer_store_dword v11, v1, {sr(sWSD,4)}, s{sT0} offen offset:256
    s_endpgm
    """)
    names['t'] = [t['name'] + (f'(g{gate_at[i]})' if i in gate_at else '') + (f'(p{t["pub"]})' if t['pub'] else '') for i, t in enumerate(ticks)]
    names['plan'] = [''.join(k.lower() for k, _ in plan.get(i, [])) for i in range(NT)]
a.ins = sec_pro + a.ins + sec_comp
a('L_last:')

nn = a.pad()
PFX = f'.amdgcn_target "amdgcn-amd-amdhsa--gfx950"\n.text\n{NAME}_kernel:\n'
print('aligned', align8(a, PFX, 'L_comp', opt('ALM', 2) if opt('AL', 1) else 999, opt('ALN', 6), NMARK if PAGES else 0), file=sys.stderr)
hdr = open(f'cdna_kernels/{NAME}.s.ref').read().split('; Override launch geometry')[0]
txt = hdr + f'''; @launch grid=(256,1,1) block=(512,1,1) lds={LDS_BYTES}
.amdgcn_target "amdgcn-amd-amdhsa--gfx950"
.text
.globl {NAME}_kernel
.p2align 8
.type {NAME}_kernel,@function
{NAME}_kernel:
''' + a.text() + f'''.section .rodata,"a"
.p2align 6
.amdhsa_kernel {NAME}_kernel
  .amdhsa_next_free_vgpr 256
  .amdhsa_next_free_sgpr 102
  .amdhsa_accum_offset 256
  .amdhsa_group_segment_fixed_size 0
  .amdhsa_kernarg_size 96
  .amdhsa_user_sgpr_count 2
  .amdhsa_user_sgpr_kernarg_segment_ptr 1
  .amdhsa_system_sgpr_workgroup_id_x 1
.end_amdhsa_kernel
'''
open(OUT, 'w').write(txt)
json.dump(names, open(OUT + '.names.json', 'w'))
if '--plan' in sys.argv:
    print('start', plan.get(-1))
    for i, t in enumerate(ticks):
        print(i, tstart[i], t['name'], 'needW', t['needW'], 'needA', t['needA'], 'pub', t['pub'], 'gate', gate_at.get(i), '| after:', [f'{k}{j}@{newpos.get((k,j))}' for k, j in plan.get(i, [])])
print('instructions', sum(1 for i in a.ins if i.kind != 'meta'), 'nops inserted', nn, 'ticks', NT, file=sys.stderr)
```

```python
import sys, struct, json
from asmlib import *

NAME = 'gated_mix__sliding_block__mixer_s_mlp__prompt'
DEBUG = '--debug' in sys.argv
TRACE = '--trace' in sys.argv
OUT = [x for x in sys.argv[1:] if not x.startswith('--')]
OUT = OUT[0] if OUT else f'cdna_kernels/{NAME}.s'
def opt(name, default):
    for x in sys.argv:
        if x.startswith(f'--{name}='): return int(x.split('=')[1])
    return default

NPOS = 19
GATE = NPOS * 8192
POSF = OUT + '.pos.json'
PASS2 = '--pass2' in sys.argv
POS = {tuple(k.split(':')): v for k, v in json.load(open(POSF)).items()} if PASS2 else {}
LDS_BYTES = 163840
FSH = 10
WS_E = 0x80000
WS_H, WS_KV, WS_X1, WS_O, WS_H3, WS_DBG = 0x100000, 0x300000, 0x700000, 0xA00000, 0xC00000, 0x1200000
X1_STRIDE = 73728
H3_STRIDE = 176 * 1024
WS_CS = 0x90000
WS_MB = 0x1400000
WS_REC = 0x1440000
VTAB = GATE + 7168
PD = opt('PD', 3)
TIMEOUT = 1 << 16
KDUP = 1
PAGES = opt('PAGES', 1)
ROT1 = opt('ROT1', 1)

def f32(x): return '0x%08x' % struct.unpack('<I', struct.pack('<f', x))[0]
LOG2E = 1.4426950408889634
C1 = 2 * 0.7978845608028654 * LOG2E
QSCALE = 0.25 * LOG2E

A_X, A_H, A_KE, A_KO, A_ST, A_X1, A_O, A_H3, A_END = 0, 8, 16, 21, 26, 27, 35, 43, 65
W_1, W_K, W_V, W_Q, W_2, W_3, W_O, W_4, W_END = 0, 8, 16, 24, 32, 40, 64, 72, 94
FIXED = {('A', A_X + i): i for i in range(8)}
FIXED.update({('A', A_KE + i): i for i in range(10)})
apos = lambda i: FIXED.get(('A', i), POS.get(('A', str(i)), 0)) * 8192
wpos = lambda i: POS.get(('W', str(i)), 0) * 8192

sX, sWQKV, sWO, sW1, sW2, sW3, sW4, sGATE, sOUT, sDBG, sWS = 4, 6, 8, 12, 14, 16, 18, 20, 22, 24, 26
sR, sC, sROT, sWV, sTAG, sTO = 28, 29, 30, 31, 32, 33
sRET = 34
sWSD = 36
sSRD = 40
sT0, sT1, sT2, sT3 = 47, 48, 49, 50
sHI = 52
sVM = 54
sGM = 56
sTT, sCH = 58, 59
sMASK = 60
sE = 92
sST = 94
sQ1, sQ2, sQ3 = 96, 98, 100
sRT1 = 46
sZM = 44

a = Asm()
ool = Asm()
ool.uid = 100000

class Lgkm:
    def __init__(self): self.n = 0; self.done = 0
    def issue(self, text):
        a(text); self.n += 1; return self.n
    def wait(self, seq):
        if seq <= self.done: return
        k = min(self.n - seq, 14)
        a(f's_waitcnt lgkmcnt({k})')
        self.done = self.n - k
    def all(self): self.wait(self.n)
lg = Lgkm()
def emit(x):
    if callable(x): x()
    elif x.startswith('ds_'): lg.issue(x)
    else: a(x)

nstamp = [0]
stamp_names = []
def stamp(name):
    if not DEBUG: return
    i = nstamp[0]; nstamp[0] += 1
    stamp_names.append(name)
    a(f's_memtime {sr(sST,2)}')
    a(f's_memrealtime s[2:3]'.replace('s[2:3]', 's[0:1]'))
    a('s_waitcnt lgkmcnt(0)')
    a(f'v_writelane_b32 v0, s{sST}, {i}')
    a(f'v_writelane_b32 v0, s0, {32+i}')
    assert i < 30
def st(name): return lambda: stamp(name)
def dbg_start():
    if not DEBUG: return
    a(f'v_mov_b32 v0, 0')
    a(f'v_writelane_b32 v0, s{sST}, 0')
    a(f'v_writelane_b32 v0, s{sE}, 62')
    nstamp[0] = 1; stamp_names.clear(); stamp_names.append('start')
def dbg_dump():
    if not DEBUG: return
    a('s_waitcnt vmcnt(0)')
    stamp('end')
    a(f'''
    s_memrealtime {sr(sST,2)}
    s_waitcnt lgkmcnt(0)
    v_writelane_b32 v0, s{sST}, 63
    s_mov_b32 s{sWSD}, s{sWS}
    s_mov_b32 s{sWSD+1}, s{sWS+1}
    v_mbcnt_lo_u32_b32 v1, -1, 0
    v_mbcnt_hi_u32_b32 v1, -1, v1
    v_lshlrev_b32 v1, 2, v1
    s_lshl_b32 s{sT0}, s2, 3
    s_add_u32 s{sT0}, s{sT0}, s{sWV}
    s_lshl_b32 s{sT0}, s{sT0}, 8
    s_add_u32 s{sT0}, s{sT0}, {WS_DBG}
    buffer_store_dword v0, v1, {sr(sWSD,4)}, s{sT0} offen
    ''')

if DEBUG or TRACE:
    a(f's_memtime {sr(sST,2)}')
    a(f's_memrealtime {sr(sE,2)}')
if opt('DIAG', 0) and opt('DAT', -1) == -2: a('s_memrealtime s[98:99]')
a(f'''
s_cmp_ge_u32 s2, 256
s_cbranch_scc1 L_end
s_load_dwordx16 s[4:19], s[0:1], 0
s_load_dwordx8 s[20:27], s[0:1], 64
v_lshrrev_b32 v1, 6, v0
v_and_b32 v0, 63, v0
v_readfirstlane_b32 s{sWV}, v1
s_cmp_eq_u32 s{sWV}, 6
s_cbranch_scc0 L_noaux
s_getpc_b64 s[56:57]
L_pc:
s_sub_u32 s56, s56, L_pc-{NAME}_kernel
s_subb_u32 s57, s57, 0
s_lshr_b32 s58, s2, 3
s_lshl_b32 s58, s58, 11
v_lshlrev_b32 v4, 4, v0
v_add_u32 v3, s58, v4
v_min_u32 v5, L_last-{NAME}_kernel-16, v3
global_load_dwordx4 v[32:35], v5, s[56:57]
v_add_u32 v3, 1024, v3
v_min_u32 v5, L_last-{NAME}_kernel-16, v3
global_load_dwordx4 v[36:39], v5, s[56:57]
L_noaux:
s_and_b32 s{sT0}, s2, 7
s_lshr_b32 s{sT1}, s2, 3
s_lshr_b32 s{sR}, s{sT0}, 1
s_lshl_b32 s{sR}, s{sR}, 3
s_lshr_b32 s{sT2}, s{sT1}, 2
s_add_u32 s{sR}, s{sR}, s{sT2}
s_and_b32 s{sC}, s{sT0}, 1
s_lshl_b32 s{sC}, s{sC}, 2
s_and_b32 s{sT2}, s{sT1}, 3
s_add_u32 s{sC}, s{sC}, s{sT2}
s_add_u32 s{sROT}, s{sR}, s{sC}
s_and_b32 s{sROT}, s{sROT}, 7
{ {0: f's_mov_b32 s{sRT1}, 0', 1: f's_mov_b32 s{sRT1}, s{sROT}', 2: f's_and_b32 s{sRT1}, s{sR}, 7',
   3: f's_lshl_b32 s{sRT1}, s{sC}, 2' + chr(10) + f's_add_u32 s{sRT1}, s{sRT1}, s{sR}' + chr(10) + f's_and_b32 s{sRT1}, s{sRT1}, 7',
   4: f's_lshl_b32 s{sRT1}, s{sC}, 1' + chr(10) + f's_add_u32 s{sRT1}, s{sRT1}, s{sR}' + chr(10) + f's_and_b32 s{sRT1}, s{sRT1}, 7'}[ROT1] }
s_mov_b32 s{sTO}, {TIMEOUT}
s_mov_b32 s{sWSD+2}, {WS_REC}
s_mov_b32 s{sWSD+3}, 0x20000
s_mov_b32 s{sSRD+3}, 0x20000
s_cmp_lt_u32 s{sWV}, 4
s_cbranch_scc1 L_comp
s_cmp_eq_u32 s{sWV}, 7
s_cbranch_scc1 L_flag
s_cmp_eq_u32 s{sWV}, 6
s_cbranch_scc1 L_aux
''')
sec_pro = a.ins; a.ins = []
if PAGES: a('.p2align 12')
a('L_comp:')
def make_tag():
    a(f'''
    s_add_u32 s{sE}, s{sE}, 0x9e3779b0
    s_and_b32 s{sTAG}, s{sE}, 0xfffffff0
    ''')

vWn0, vWn1, vWt0, vWt1, vP, vL16, vKr, vVr, vStV, vStH, vX0, vX1, vX2, vG, vX3 = range(1, 16)
vWn2, vWt2, vP1, vP2 = 44, 0, vStH, vL16
vT = 16
vSel = 20
vWf = 24
vAf = 36
vA0, vA1, vAB = 48, 64, 80
vL = 96
vPan = 128
vQl = 120

a(f's_setprio {opt("PC", 0)}')
a(f'''
s_and_b32 s{sTT}, s{sWV}, 1
s_lshr_b32 s{sCH}, s{sWV}, 1
s_mov_b32 s{sHI}, 0
s_mov_b32 s{sHI+1}, -1
s_mov_b32 s{sVM}, 0xffff
s_mov_b32 s{sVM+1}, 0xffff
''')
L, TOK, H, T1, T2, T3, ROW = 'v0', 'v48', 'v49', 'v50', 'v51', 'v52', 'v53'
a(f'''
v_and_b32 {TOK}, 31, {L}
v_lshrrev_b32 {H}, 5, {L}
v_lshlrev_b32 v{vL16}, 4, {L}
''')
a(f'''
v_bfe_u32 {T1}, {L}, 3, 1
v_xor_b32 {T1}, s{sCH}, {T1}
v_lshlrev_b32 {T1}, 6, {T1}
v_bfe_u32 {T2}, {L}, 4, 1
v_lshl_add_u32 {T1}, {T2}, 5, {T1}
v_and_b32 {T2}, 3, {L}
v_lshl_add_u32 {T1}, {T2}, 3, {T1}
v_bfe_u32 {T2}, {L}, 2, 2
v_lshl_add_u32 {T1}, {T2}, 7, {T1}
v_lshl_add_u32 v{vWn0}, {H}, 10, {T1}
v_add_u32 v{vWn1}, 65536, v{vWn0}
v_lshl_add_u32 v{vWt0}, {H}, 9, {T1}
v_add_u32 v{vWt1}, 65536, v{vWt0}
v_add_u32 v{vWn2}, 65536, v{vWn1}
''')
a(f'''
v_lshlrev_b32 {T1}, 4, {TOK}
v_lshl_add_u32 {T1}, {H}, 10, {T1}
s_lshl_b32 s{sT0}, s{sTT}, 9
v_add_u32 v{vP}, s{sT0}, {T1}
s_lshl_b32 s{sT0}, s{sTT}, 12
s_lshl_b32 s{sT1}, s{sCH}, 10
s_add_u32 s{sT0}, s{sT0}, s{sT1}
v_add_u32 v{vKr}, s{sT0}, v{vL16}
s_add_u32 s{sT0}, s{sT0}, 2048
v_and_b32 {T2}, 15, {L}
v_lshlrev_b32 {T2}, 4, {T2}
v_lshl_add_u32 {T2}, {H}, 8, {T2}
v_add_u32 v{vVr}, s{sT0}, {T2}
v_bfe_u32 {T3}, {L}, 4, 1
v_lshl_add_u32 v{vStV}, {T3}, 13, v{vVr}
s_lshl_b32 s{sT0}, s{sTT}, 4
s_add_u32 s{sT0}, s{sT0}, {VTAB}
v_mov_b32 {T1}, s{sT0}
v_cndmask_b32 v{vVr}, {T1}, v{vVr}, {sr(sVM,2)}
s_lshl_b32 s{sT0}, s{sR}, 1
v_lshlrev_b32 {T1}, 4, {TOK}
v_lshl_add_u32 {T1}, {H}, 9, {T1}
v_add_u32 {T1}, {VTAB}, {T1}
v_add_u32 {T2}, s{sT0}, {TOK}
v_cmp_le_u32 vcc, 8, {T2}
v_mov_b32 {T2}, 0x3f803f80
v_cndmask_b32 v{vL+8}, 0, {T2}, vcc
v_mov_b32 v{vL+9}, v{vL+8}
v_mov_b32 v{vL+10}, v{vL+8}
v_mov_b32 v{vL+11}, v{vL+8}
ds_write_b128 {T1}, {vr(vL+8,4)}
''')
a(f'''
s_lshr_b32 s{sT0}, s{sC}, 2
s_add_u32 s{sT0}, s{sT0}, 1
s_sub_u32 s{sT1}, 0, s{sT0}
s_bitcmp1_b32 s{sC}, 1
s_cselect_b32 s{sT0}, s{sT1}, s{sT0}
s_lshl_b32 s{sT1}, s{sR}, 6
s_add_u32 s{sT0}, s{sT0}, s{sT1}
s_lshl_b32 s{sT1}, s{sTT}, 5
s_add_u32 s{sT0}, s{sT0}, s{sT1}
v_add_u32 {T1}, s{sT0}, {TOK}
v_mov_b32 {T2}, 2047
v_cmp_gt_u32 {sr(sZM,2)}, {T1}, {T2}
v_and_b32 {T1}, {T2}, {T1}
v_lshrrev_b32 {T2}, 6, {T1}
v_and_b32 {T1}, 63, {T1}
v_lshlrev_b32 {T1}, 4, {T1}
v_lshl_add_u32 {T1}, {T2}, 16, {T1}
v_lshl_add_u32 v{vStH}, {H}, 10, {T1}
''')
a(f'''
v_bfe_u32 {T1}, {L}, 4, 1
v_bfe_u32 {T2}, {L}, 2, 1
v_cmp_eq_u32 {sr(sGM,2)}, {T1}, {T2}
v_mov_b32 {T3}, 0x3f803f80
v_cndmask_b32 v{vSel}, 0, {T3}, {sr(sGM,2)}
v_mov_b32 v{vSel+1}, v{vSel}
v_mov_b32 v{vSel+2}, v{vSel}
v_mov_b32 v{vSel+3}, v{vSel}
v_and_b32 {T1}, 3, {L}
v_cmp_eq_u32 vcc, 0, {T1}
v_cmp_eq_u32 {sr(sQ1,2)}, 1, {T1}
v_cmp_eq_u32 {sr(sQ2,2)}, 2, {T1}
v_cmp_eq_u32 {sr(sQ3,2)}, 3, {T1}
s_and_b64 vcc, vcc, {sr(sGM,2)}
s_and_b64 {sr(sGM,2)}, {sr(sGM,2)}, {sr(sQ1,2)}
v_mov_b32 v40, {GATE+2176}
v_mov_b32 {T1}, {GATE+1088}
v_cndmask_b32 v40, v40, {T1}, vcc
v_lshlrev_b32 {T1}, 4, {H}
v_add_u32 {T1}, {GATE}, {T1}
v_cndmask_b32 v40, v40, {T1}, {sr(sGM,2)}
v_add_u32 {T1}, {GATE+1088}, v{vL16}
v_mov_b32 v{vL}, {T3}
v_mov_b32 v{vL+1}, {T3}
v_mov_b32 v{vL+2}, {T3}
v_mov_b32 v{vL+3}, {T3}
v_mov_b32 v{vL+4}, 0
v_mov_b32 v{vL+5}, 0
v_mov_b32 v{vL+6}, 0
v_mov_b32 v{vL+7}, 0
ds_write_b128 {T1}, {vr(vL,4)}
ds_write_b128 {T1}, {vr(vL+4,4)} offset:1088
''')
vXa, vGa = 36, 40
a(f'''
s_lshl_b32 s{sT0}, s{sTT}, 5
v_add_u32 {ROW}, s{sT0}, {TOK}
v_bfe_u32 {T1}, {ROW}, 1, 3
v_lshlrev_b32 {ROW}, 7, {ROW}
v_xor_b32 {T2}, {T1}, {H}
''')
for s in range(4):
    a(f'v_xor_b32 {T3}, {2*s}, {T2}')
    a(f'v_lshl_add_u32 v{vXa+s}, {T3}, 4, {ROW}')
a(f'v_lshlrev_b32 {T1}, 2, {H}')
a(f'v_sub_u32 {T1}, {TOK}, {T1}')
for r in range(16):
    a(f'v_cmp_gt_i32 {sr(sMASK+2*r,2)}, {(r & 3) + 8 * (r >> 2)}, {T1}')
a(f'v_add_u32 v{vWt2}, 65536, v{vWt1}')
a(f'v_add_u32 v{vP2}, 131072, v{vP}')
a('s_waitcnt lgkmcnt(0)')
sOH, sOK0, sOK1, sOX1, sOST, sOO, sOH3, sOOUT, sJV, sNEG, sTILE = range(4, 15)
a(f'''
s_mov_b32 s{sSRD}, s{sOUT}
s_mov_b32 s{sSRD+1}, s{sOUT+1}
s_mov_b32 s{sSRD+2}, {2048*1024}
s_mov_b32 s{sWSD}, s{sWS}
s_mov_b32 s{sWSD+1}, s{sWS+1}
s_lshl_b32 s{sTILE}, s{sC}, 13
s_lshl_b32 s{sT1}, s{sCH}, 12
s_add_u32 s{sTILE}, s{sTILE}, s{sT1}
s_add_u32 s{sOH}, s{sTILE}, {WS_H}
s_lshl_b32 s{sOK0}, s{sR}, 3
s_add_u32 s{sOK0}, s{sOK0}, s{sC}
s_lshl_b32 s{sOK0}, s{sOK0}, 14
s_add_u32 s{sOK0}, s{sOK0}, {WS_KV}
s_add_u32 s{sOK1}, s{sOK0}, 8192
s_mul_i32 s{sT0}, s{sR}, {X1_STRIDE}
s_add_u32 s{sT0}, s{sT0}, {WS_X1}
s_add_u32 s{sOX1}, s{sT0}, s{sTILE}
s_lshr_b32 s{sOST}, s{sTILE}, 3
s_add_u32 s{sOST}, s{sOST}, s{sT0}
s_add_u32 s{sOST}, s{sOST}, 65536
s_lshl_b32 s{sT0}, s{sR}, 16
s_add_u32 s{sOO}, s{sT0}, s{sTILE}
s_add_u32 s{sOO}, s{sOO}, {WS_O}
s_lshl_b32 s{sT1}, s{sTT}, 15
s_add_u32 s{sOOUT}, s{sT0}, s{sT1}
s_lshr_b32 s{sT1}, s{sTILE}, 6
s_add_u32 s{sOOUT}, s{sOOUT}, s{sT1}
s_mul_i32 s{sOH3}, s{sR}, {H3_STRIDE}
s_add_u32 s{sOH3}, s{sOH3}, s{sTILE}
s_add_u32 s{sOH3}, s{sOH3}, {WS_H3}
s_add_u32 s{sNEG}, s{sOH3}, 131072
s_cmp_ge_u32 s{sC}, 6
s_cselect_b32 s{sNEG}, {WS_REC}, s{sNEG}
s_lshl_b32 s{sT1}, s{sC}, 13
s_add_u32 s{sOH3}, s{sOH3}, s{sT1}
s_lshl_b32 s{sJV}, s{sR}, 1
s_add_u32 s{sJV}, s{sJV}, s{sTT}
s_sub_i32 s{sJV}, 8, s{sJV}
s_max_i32 s{sJV}, s{sJV}, 0
''')

ticks = []
last_read = {}
freed = set()
pub_next = [None]
def want_pub(stage): pub_next[0] = stage
stage_mark = {}
def nstores(): return sum(1 for i in a.ins if i.op.startswith('buffer_store'))
def mark(stage): return lambda: stage_mark.__setitem__(stage, nstores())
def tick(needW=None, needA=None, name='', dur=140):
    pub = pub_next[0]; pub_next[0] = None
    if pub: a(f's_waitcnt vmcnt({nstores() - stage_mark.get(pub, nstores())})')
    a('s_barrier')
    fr = [k for k, s in last_read.items() if s <= lg.done and k not in freed]
    freed.update(fr)
    ticks.append(dict(needW=needW, needA=needA, free=fr, pub=pub, name=name, dur=dur))

class Step:
    def __init__(self, w, s, order, acc, act, aslot=None, aread=None, swap=False, c0=None, pre=None, post=None, lastw=False, lasta=False, cs=None, cs0=False, xa=None, dur=140):
        self.__dict__.update(locals())

def run_steps(steps, fill=None):
    fill = fill or {}
    seqs = {}
    def reads(n, part=7):
        s_ = steps[n]
        if part & 1:
            if s_.pre and n >= PD: s_.pre()
            if s_.s == 0: tick(s_.w, s_.aslot if s_.xa is None else s_.xa, f'W{s_.w}', s_.dur)
            if s_.pre and n < PD: s_.pre()
        if not part & 2: pass
        elif s_.aread == 'x':
            lg.issue(f'ds_read_b128 {vr(s_.act,4)}, v{vXa+s_.s} offset:{apos(s_.aslot)}')
        elif s_.aread == 'p':
            o_ = apos(s_.aslot) + s_.s * 2048
            lg.issue(f'ds_read_b128 {vr(s_.act,4)}, v{(vP, vP1, vP2)[o_ >> 16]} offset:{o_ & 65535}')
        if not part & 4: return
        off = wpos(s_.w) + s_.s * 2048
        base = ((vWn0, vWn1, vWn2) if s_.order == 'n' else (vWt0, vWt1, vWt2))[off >> 16]
        off &= 65535
        d = 512 if s_.order == 'n' else 1024
        f = vWf + (n % 3) * 4
        lg.issue(f'ds_read_b64_tr_b16 {vr(f,2)}, v{base} offset:{off}')
        seqs[n] = lg.issue(f'ds_read_b64_tr_b16 {vr(f+2,2)}, v{base} offset:{off+d}')
        if s_.lastw: last_read[('W', s_.w)] = seqs[n]
        if s_.lasta: last_read[('A', s_.aslot)] = seqs[n]
    for n in range(min(PD, len(steps))): reads(n)
    for n, s_ in enumerate(steps):
        fl = list(fill.get(n, []))
        lg.wait(seqs[n])
        f = vWf + (n % 3) * 4
        c = s_.c0 if s_.c0 is not None else vr(s_.acc, 16)
        A, B = (vr(f, 4), vr(s_.act, 4)) if not s_.swap else (vr(s_.act, 4), vr(f, 4))
        more = n + PD < len(steps)
        split = s_.cs is not None and opt('B1S', 2)
        if s_.post: s_.post()
        if split and more: reads(n + PD, 1)
        if s_.cs is not None:
            a(f'v_mfma_f32_16x16x32_bf16 {vr(s_.cs,4)}, {vr(vSel,4)}, {vr(f,4)}, {"0" if s_.cs0 else vr(s_.cs,4)}')
        if split and more and opt('B1S', 2) == 2: reads(n + PD, 2)
        a(f'v_mfma_f32_32x32x16_bf16 {vr(s_.acc,16)}, {A}, {B}, {c}')
        if more: reads(n + PD, 7 if not split else 4 if opt('B1S', 2) == 2 else 6)
        for x in fl: emit(x)

def spread(items, start, end):
    d = {}
    n = end - start
    for i, x in enumerate(items):
        d.setdefault(start + i * n // len(items), []).append(x)
    return d
def merge(*ds):
    o = {}
    for d in ds:
        for k, v in d.items(): o.setdefault(k, []).extend(v)
    return o
def pack(acc, dst): return [f'v_cvt_pk_bf16_f32 v{dst+i}, v{acc+2*i}, v{acc+2*i+1}' for i in range(8)]
def store2(pk, voff, s0, s1=None, d=2048):
    return [f'buffer_store_dwordx4 {vr(pk,4)}, v{voff}, {sr(sWSD,4)}, s{s0} offen sc1',
            f'buffer_store_dwordx4 {vr(pk+4,4)}, v{voff}, {sr(sWSD,4)}, s{s0 if s1 is None else s1} offen offset:{d} sc1']
def pubat(stage): return lambda: want_pub(stage)

def ln_consts(sum_, sq, vCA, vCB, vIR, vNM, t):
    return f'''v_mul_f32 v{t}, {f32(-1.0/512)}, v{sum_}
    v_mul_f32 v{t+1}, v{t}, v{t}
    v_mov_b32 v{t+2}, {f32(1.0/512)}
    v_fma_f32 v{t+1}, v{sq}, v{t+2}, -v{t+1}
    v_max_f32 v{t+1}, 0, v{t+1}
    v_add_f32 v{t+1}, {f32(1e-5)}, v{t+1}
    v_rsq_f32 v{t+2}, v{t+1}
    v_cvt_pk_bf16_f32 v{vNM}, v{t}, v{t}
    v_mul_f32 v{vIR}, v{t+1}, v{t+2}
    v_mul_f32 v{vCA}, {f32(-C1)}, v{t+2}
    v_mul_f32 v{t+1}, v{t+2}, v{t+2}
    v_mul_f32 v{t+1}, {f32(0.044715)}, v{t+1}
    v_mul_f32 v{vCB}, v{vCA}, v{t+1}
    v_lshlrev_b32 v{t+1}, 16, v{vNM}
    v_sub_f32 v{t+1}, v{t}, v{t+1}
    v_cvt_pk_bf16_f32 v{t+1}, v{t+1}, v{t+1}
    v_cndmask_b32 v{vNM}, v{vNM}, v{t+1}, {sr(sHI,2)}'''.replace('    ', '').split('\n')
def cs_fix(cs, vCSA, vNM, acc, t):
    return [f'v_cvt_pk_bf16_f32 v{t}, v{cs}, v{cs}',
            f'v_lshlrev_b32 v{t}, 16, v{t}',
            f'v_sub_f32 v{t}, v{cs}, v{t}',
            f'v_cvt_pk_bf16_f32 v{vCSA}, v{cs}, v{t}',
            f'v_mfma_f32_32x32x16_bf16 {vr(acc,16)}, {vr(vCSA,4)}, {vr(vNM,4)}, {vr(acc,16)}']
def gelu_pk(acc, vCA, vCB, vIR, tmp, dst):
    o = []
    for i in range(0, 16, 2): o.append(f'v_pk_mul_f32 {vr(tmp+i,2)}, {vr(acc+i,2)}, {vr(acc+i,2)}')
    for i in range(0, 16, 2): o.append(f'v_pk_fma_f32 {vr(tmp+i,2)}, {vr(tmp+i,2)}, {vr(vCB,2)}, {vr(vCA,2)} op_sel_hi:[1,0,0]')
    for i in range(0, 16, 2): o.append(f'v_pk_mul_f32 {vr(tmp+i,2)}, {vr(tmp+i,2)}, {vr(acc+i,2)}')
    for i in range(16): o.append(f'v_exp_f32 v{tmp+i}, v{tmp+i}')
    for i in range(0, 16, 2): o.append(f'v_pk_fma_f32 {vr(tmp+i,2)}, {vr(tmp+i,2)}, {vr(vIR,2)}, {vr(vIR,2)} op_sel_hi:[1,0,0]')
    for i in range(16): o.append(f'v_rcp_f32 v{tmp+i}, v{tmp+i}')
    for i in range(0, 16, 2): o.append(f'v_pk_mul_f32 {vr(tmp+i,2)}, {vr(tmp+i,2)}, {vr(acc+i,2)}')
    for i in range(0, 16, 2): o.append(f'v_cvt_pk_bf16_f32 v{dst+i//2}, v{tmp+i}, v{tmp+i+1}')
    return o
def gelu_sc(acc, vCA, vCB, vIR, tmp, dst):
    o = []
    def chain(e, t):
        return [f'v_mul_f32 v{t}, v{acc+e}, v{acc+e}', f'v_fma_f32 v{t}, v{t}, v{vCB}, v{vCA}', f'v_mul_f32 v{t}, v{t}, v{acc+e}',
                f'v_exp_f32 v{t}, v{t}', f'v_fma_f32 v{t}, v{t}, v{vIR}, v{vIR}', f'v_rcp_f32 v{t}, v{t}', f'v_mul_f32 v{t}, v{t}, v{acc+e}']
    for g in range(0, 16, 2):
        t = tmp + (g & 2)
        c0, c1 = chain(g, t), chain(g + 1, t + 1)
        for x, y in zip(c0, c1): o += [x, y]
        o.append(f'v_cvt_pk_bf16_f32 v{dst+g//2}, v{t}, v{t+1}')
    return o

vCS, vSG, vSQ = 64, 68, 72
steps = []
for n in range(32):
    j, s = divmod(n, 4)
    P = vPan + 4 * n
    G = vL + 16 + (n % 3) * 4
    def pre(n=n, G=G):
        lg.issue(f'ds_read_b128 {vr(G,4)}, v{vGa} offset:{n*32}')
    def post(n=n, s=s, P=P, G=G):
        if s == 3:
            for q in range(8):
                sq = vSQ + 4 * (q & 3)
                Pq = P - 12 + 2 * q
                a(f'v_mfma_f32_4x4x4_16b_bf16 {vr(sq,4)}, {vr(Pq,2)}, {vr(Pq,2)}, {"0" if n == 3 and q < 4 else vr(sq,4)}')
        a(f'v_mfma_f32_16x16x32_bf16 {vr(vSG,4)}, {vr(G,4)}, {vr(P,4)}, {"0" if n == 0 else vr(vSG,4)}')
    steps.append(Step(W_1 + j, s, 'n', vA0, P, aslot=A_X + j, aread='x', c0='0' if n == 0 else None, pre=pre, post=post, lastw=(s == 3), lasta=(s == 3), cs=vCS, cs0=(n == 0), dur=opt('DB1', 400) if j < 7 else opt('DB17', 800)))
stamp('setup')
RES = vAB + 8
cA, cB, cI, cNM, cCS, cT = vL, vL + 2, vL + 4, vL + 8, vL + 12, vAf + 9
zer = [f'v_mov_b32 v{r}, 0' for r in (cNM+1, cNM+2, cNM+3, cCS+1, cCS+2, cCS+3)]
run_steps(steps, spread(zer, 4, 10))
stamp('B1 loop')
for i in range(8): a(f'v_add_f32 v{vSQ+i}, v{vSQ+i}, v{vSQ+8+i}')
for i in range(4): a(f'v_add_f32 v{vSQ+i}, v{vSQ+i}, v{vSQ+4+i}')
for i, m in ((1, sQ1), (2, sQ2), (3, sQ3)): a(f'v_cndmask_b32 v{vSQ}, v{vSQ}, v{vSQ+i}, {sr(m,2)}')
a(f'''
v_mov_b32 v{vSQ+1}, v{vSQ}
v_mul_f32 v{vG}, {f32(-LOG2E)}, v{vSG+1}
v_exp_f32 v{vG}, v{vG}
v_permlane32_swap_b32 v{vSQ}, v{vSQ+1}
v_add_f32 v{vSQ}, v{vSQ}, v{vSQ+1}
''')
lc = ln_consts(vSG, vSQ, cA, cB, cI, cNM, cT)
for x in [lc[0], lc[7]] + [y.replace(f'v{cT+1}', f'v{cT+2}') for y in lc[13:17]]: a(x)
for x in cs_fix(vCS, cCS, cNM, vA0, cT + 2): a(x)
lg.all()
tick(name='B1e', dur=600) if not opt('GI', 0) else None
for x in lc[1:7] + [f'v_add_f32 v{vG}, 1.0, v{vG}'] + lc[8:13] + [f'v_rcp_f32 v{vG}, v{vG}']: a(x)
PK = vAf
GI = opt('GI', 0)
zm = [f'v_cndmask_b32 v{PK+i}, v{PK+i}, 0, {sr(sZM,2)}' for i in range(8)]
hs2 = store2(PK, vStH, sOH)
hfill = {}
if GI:
    g = gelu_sc(vA0, cA, cB, cI, vT, PK)
    hfill = spread(g[:60] + zm[:4] + g[60:] + zm[4:] + ['\n'.join(hs2), mark(1)], 0, GI)
else:
    for x in gelu_pk(vA0, cA, cB, cI, vA1, PK) + zm + hs2: a(x)
    mark(1)()
aK, aV, aQ = (vA1, vA0, vA1) if GI else (vA0, vA1, vA0)
stamp('B1 epi')

steps = []
for p, (w0, acc, swap) in enumerate(((W_K, aK, False), (W_V, aV, True), (W_Q, aQ, False))):
    for n in range(32):
        j, s = divmod(n, 4)
        steps.append(Step(w0 + j, s, 'n', acc, vPan + 4 * n, swap=swap, c0='0' if n == 0 else None, lastw=(s == 3), dur=opt('DKG', 280) if p == 0 and n <= GI else 145))
unres = [f's_sub_u32 s{sT0}, s{sC}, s{sRT1}\ns_and_b32 s{sT0}, s{sT0}, 7\ns_lshl_b32 s{sT0}, s{sT0}, 1\ns_add_u32 s{sT0}, s{sT0}, s{sCH}\ns_lshl_b32 s{sT0}, s{sT0}, 3']
for q in range(2):
    unres.append(f's_set_gpr_idx_on s{sT0}, 1\n' + '\n'.join(f'v_mov_b32_e32 v{RES+4*q+i}, v{vPan+4*q+i}' for i in range(4)) + '\ns_set_gpr_idx_off')
unres += [f'v_add_u32 v{vP1}, 65536, v{vP}'] + [f'v_permlane32_swap_b32 v{RES+i}, v{RES+i+2}' for i in (0, 1, 4, 5)]
for j in range(8):
    unres += [f'v_lshlrev_b32 v{vAB+2*j}, 16, v{RES+j}', f'v_and_b32 v{vAB+2*j+1}, 0xffff0000, v{RES+j}']
def stream_steps(w0, a0, nsteps, acc, c0=None, phase=0):
    o = []
    for n in range(nsteps):
        j, s = divmod(n, 4)
        last = s == 3 or n == nsteps - 1
        o.append(Step(w0 + j, s, 't', acc, vAf + ((n + phase) % 3) * 4, aslot=a0 + j, aread='p', c0=c0 if n == 0 else None, lastw=last, lasta=last))
    return o
PKS = vL + 16
vK, vV = 128, 164
M8 = [20, 21, 22, 23, 252, 253, 254, 255]
vVs, vVa = vWn0, vWn1
vK_ = vK; vK = vT
att_pre = [f'v_mov_b32 v{vK+1}, 0xffff0000', f'v_mov_b32 v{vK+2}, 0xffff']
for i in range(8):
    att_pre += [f'v_cndmask_b32 v{M8[i]}, 0, v{vK+2}, {sr(sMASK+4*i,2)}', f'v_cndmask_b32 v{vK}, 0, v{vK+1}, {sr(sMASK+4*i+2,2)}', f'v_or_b32 v{M8[i]}, v{M8[i]}, v{vK}']
att_pre += [f'v_add_u32 v{vX2}, {apos(A_KO)}, v{vKr}', f'v_mov_b32 v{vK+3}, 4096',
            f'v_cndmask_b32 v{vVs}, 16, v{vK+3}, {sr(sVM,2)}',
            f'v_mov_b32 v{vK+3}, {apos(A_KO)}', f'v_cndmask_b32 v{vX3}, 0, v{vK+3}, {sr(sVM,2)}', f'v_add_u32 v{vX3}, v{vX3}, v{vVr}']
vK = vK_
APS = 14
qfin = [f'v_mul_f32 v{aQ+i}, {f32(QSCALE)}, v{aQ+i}' for i in range(16)] + pack(aQ, vQl)
sta = [f'v_and_b32 v{vX0}, 1023, v{vP}', f'v_lshrrev_b32 v{vX0}, 1, v{vX0}', f'v_mov_b32 v{vX1}, 0x3f803f80']
steps += stream_steps(W_2, A_H, 32, vAB, phase=96)
fill = merge(hfill, spread(unres + sta, 44, 62), {31: [st('K')], 63: [st('V')], 95: [st('Q')]},
             {opt('PUB1', GI + 20): [pubat(1)]},
             spread(pack(aK, vL), 35, 39), {opt('KST', 39): store2(vL, vKr, sOK0, sOK1, 0)},
             spread(pack(aV, PKS), 66, 69), {68: store2(PKS, vStV, sOK0, None, 512)},
             {opt('PUB2', 88): [pubat(2)]},
             spread(qfin, 99, 111), spread(att_pre[APS:], 111, 128), spread(att_pre[:APS], 72, 92))
run_steps(steps, fill)
stamp('B2 loop')
for x in pack(vAB, PK): a(x)
for x in store2(PK, vP, sOX1): a(x)
for i in range(8):
    a(f'v_dot2_f32_bf16 v{vA0}, v{PK+i}, v{vX1}, {"0" if i==0 else "v%d"%vA0}')
    a(f'v_dot2_f32_bf16 v{vA0+1}, v{PK+i}, v{PK+i}, {"0" if i==0 else "v%d"%(vA0+1)}')
a(f'''
v_mov_b32 v{vA0+2}, v{vA0}
v_mov_b32 v{vA0+3}, v{vA0+1}
v_permlane32_swap_b32 v{vA0}, v{vA0+2}
v_permlane32_swap_b32 v{vA0+1}, v{vA0+3}
v_add_f32 v{vA0}, v{vA0}, v{vA0+2}
v_add_f32 v{vA0+1}, v{vA0+1}, v{vA0+3}
buffer_store_dwordx2 {vr(vA0,2)}, v{vX0}, {sr(sWSD,4)}, s{sOST} offen sc1
''')
tick(name='B2e', dur=600)
stamp('B2 epi')

vCB_, vM8 = 24, 40
vS0, vS1, vMG, vO = 236, 96, 64, 48
Kf = lambda j: vK + 4 * j
Vf = lambda j, b: vV + 8 * j + 4 * b
MF = lambda d, x, y, c: f'v_mfma_f32_32x32x16_bf16 {vr(d,16)}, {vr(x,4)}, {vr(y,4)}, {c if c == "0" else vr(c,16)}'
kseq = {}
def k_read(a0, j):
    r_, off = (vKr if a0 == A_KE else vX2), 4096 * j
    kseq[j] = lg.issue(f'ds_read_b128 {vr(Kf(j),4)}, v{r_} offset:{off}')
vseq = {}
def v_op(a0, j, last=False):
    base = vVr if a0 == A_KE else vX3
    ad = vVa if j else base
    def pre():
        if j: a(f'v_mad_u32_u24 v{vVa}, v{vVs}, {j}, v{base}')
    def rd():
        lg.issue(f'ds_read_b128 {vr(Vf(j,0),4)}, v{ad}')
        vseq[j] = lg.issue(f'ds_read_b128 {vr(Vf(j,1),4)}, v{ad} offset:512')
        if last:
            for i in range(5): last_read[('A', a0 + i)] = vseq[j]
    return (pre, rd)
def k_op(a0, js):
    return (lambda: None, lambda: [k_read(a0, j) for j in js])
assert apos(A_KE) == 0
vMx, vMy = vT, vT + 1
sFL = [96, 98]
def o_norm(pk):
    return ([f'v_rcp_f32 v{vO+9}, v{vO+8}'] + [f'v_mul_f32 v{vO+i}, v{vO+i}, v{vO+9}' for i in range(8)] +
            [f'v_cvt_pk_bf16_f32 v{pk+i}, v{vO+2*i}, v{vO+2*i+1}' for i in range(4)])
def o_final(t):
    n = o_norm(112 + 4 * t)
    chk = [f'v_subrev_u32 v{vO+10}, {63<<23}, v{vO+8}', f'v_lshrrev_b32 v{vO+10}, 30, v{vO+10}', f'v_cmp_ne_u32 {sr(sFL[t],2)}, 0, v{vO+10}']
    fin = [f'v_add_f32_e64 v{vO+11}, |v{vO}|, |v{vO+1}|'] + [f'v_add_f32_e64 v{vO+11}, v{vO+11}, |v{vO+i}|' for i in range(2, 8)] + \
          [f'v_cmp_class_f32 vcc, v{vO+11}, v{vT+2}', f's_nop 0\ns_or_b64 {sr(sFL[t],2)}, {sr(sFL[t],2)}, vcc']
    return n[:1] + chk + n[1:] + (store2(112, vP, sOO) if t == 1 else []) + fin
rq = []
mq = []
mgap = [0]
def pop_m():
    f = mq.pop(0)
    r_ = rq.pop(0) if rq else None
    if r_: r_[0]()
    f()
    if r_: r_[1]()
    mgap[0] = 0
def va(x, cost=4):
    a(x)
    mgap[0] += cost
    if mq and mgap[0] >= 24: pop_m()
def flush_m():
    while mq: pop_m()
def flush_r():
    while rq:
        r_ = rq.pop(0); r_[0](); r_[1]()
def QK(d, j, t):
    def f():
        lg.wait(kseq[j]); a(MF(d, Kf(j), vQl + 4 * t, '0'))
    return f
def PV(j, b, p, c, then=None):
    def f():
        lg.wait(vseq[j]); a(MF(vO, Vf(j, b), p, c))
        if then: rq.append(then)
    return f
a(f'v_mov_b32 v{vT+2}, 0x207')
tick(needA=A_KE + 4, name='KVE', dur=opt('DKVE', 500))
for j in (0, 8, 1, 2): k_read(A_KE, j)
rq += [v_op(A_KE, 0), v_op(A_KE, 8), k_op(A_KE, (3, 4)), v_op(A_KE, 1), v_op(A_KE, 2), k_op(A_KE, (5, 6)), v_op(A_KE, 3), v_op(A_KE, 4), k_op(A_KE, (7,)),
       v_op(A_KE, 5), v_op(A_KE, 6), v_op(A_KE, 7, True)]
mq += [QK(vMG, 0, 0), QK(vCB_, 8, 0), QK(vS0, 1, 0)]
flush_m()
KI = opt('KI', 3)
bufs2 = [vS0, vS1]
pend = []
for t in range(2):
    mq += pend
    if t == 1: mq.append(QK(vS0, 1, 1))
    for r in range(16): va(f'v_cndmask_b32 v{vMG+r}, v{vCB_+r}, v{vMG+r}, {sr(sMASK+2*r,2)}')
    mq.append(QK(vS1, 2, t))
    for r in range(16): va(f'v_exp_f32 v{vMG+r}, v{vMG+r}', 8)
    flush_m()
    if t == 1:
        for x in o_final(0): va(x)
    for i in range(8): va(f'v_cvt_pk_bf16_f32 v{vMG+i}, v{vMG+2*i}, v{vMG+2*i+1}')
    for i in range(8): va(f'v_and_b32 v{vMG+8+i}, v{vMG+i}, v{M8[i]}')
    mq.append(PV(0, 0, vMG + 8, '0'))
    for i in range(8): va(f'v_xor_b32 v{vMG+i}, v{vMG+i}, v{vMG+8+i}')
    flush_m()
    pend = [PV(0, 1, vMG + 12, vO), PV(8, 0, vMG, vO), PV(8, 1, vMG + 4, vO)]
    for i in range(7):
        b = bufs2[i % 2]
        if (t, i) in ((0, KI), (1, 0)):
            assert not rq or t == 0 and len(rq) <= 1, (t, i, len(rq))
            flush_r(); lg.all()
        if t == 0 and i == opt('PUB3', 1): want_pub(3)
        if t == 0 and i == KI: tick(needA=A_KO + 4, name='KVO', dur=220)
        else: tick(name=f'T{t}{i}', dur=200 if i < 6 else 650 if t == 0 else 400)
        if t == 0 and i == KI:
            ks = [0, 8] + list(range(1, i + 2))
            rq += [k_op(A_KO, ks[q:q+2]) for q in range(0, len(ks), 2)] + [v_op(A_KO, j) for j in [0, 8] + list(range(1, i))]
        if t == 0 and i > KI: rq.insert(0, k_op(A_KO, (i + 1,)))
        mq += pend
        if 0 < i < 6: mq.append(QK(bufs2[(i + 1) % 2], i + 2, t))
        if t == 0 and i == 6: mq += [QK(vMG, 0, 1), QK(vCB_, 8, 1)]
        mgap[0] = 16
        for r in range(16): va(f'v_exp_f32 v{b+r}, v{b+r}', 8)
        flush_m()
        for q in range(8): va(f'v_cvt_pk_bf16_f32 v{b+q}, v{b+2*q}, v{b+2*q+1}')
        nx = v_op(A_KO, 1 + i, i == 6) if t == 0 and 1 + i >= KI else None
        pend = [PV(1 + i, 0, b, vO), PV(1 + i, 1, b + 4, vO, nx)]
    mgap[0] = 24
for f in pend: f()

def emit_fallback():
    global a
    keep = a; a = Asm(); a.uid = 500000
    Qf, tk, tv = 40, 44, 45
    a('L_fb:')
    a(f's_mov_b32 s{sT3}, 0')
    a('L_fb_head:')
    a(f"""
    s_cmp_eq_u32 s{sT3}, 0
    s_cselect_b64 vcc, {sr(sFL[0],2)}, {sr(sFL[1],2)}
    s_cmp_eq_u64 vcc, 0
    s_cbranch_scc1 L_fb_next
    s_cmp_eq_u32 s{sT3}, 0
    s_cselect_b64 vcc, -1, 0
    """)
    for i in range(4): a(f'v_cndmask_b32 v{Qf+i}, v{vQl+4+i}, v{vQl+i}, vcc')
    a(f"""
    v_and_b32 v46, 4095, v{vKr}
    v_and_b32 v47, 4095, v{vStV}
    v_mov_b32 v{vT+3}, 0x3f803f80
    """)
    for j in range(9):
        a(f"""
        s_add_u32 s{sT0}, s{sTT}, {j}
        s_lshr_b32 s{sT1}, s{sT0}, 1
        s_lshl_b32 s{sT1}, s{sT1}, 17
        s_and_b32 s{sT0}, s{sT0}, 1
        s_lshl_b32 s{sT0}, s{sT0}, 12
        s_add_u32 s{sT0}, s{sT0}, s{sT1}
        s_add_u32 s{sT0}, s{sT0}, s{sOK0}
        s_sub_u32 s{sT0}, s{sT0}, {4<<17}
        s_lshl_b32 s{sT1}, s{sR}, 17
        s_sub_u32 s{sT1}, s{sOK0}, s{sT1}
        s_cmp_le_u32 s{sJV}, {j}
        s_cselect_b32 s{sT0}, s{sT0}, s{sT1}
        s_cselect_b32 s{sT1}, -1, 0xe00
        s_cselect_b32 s{sT2}, -1, 0
        s_cselect_b64 vcc, -1, 0
        s_add_u32 s{sT0}, s{sT0}, s{sT3}
        v_and_b32 v{tk}, s{sT1}, v46
        v_mov_b32 v{tv}, 0x80000000
        v_cndmask_b32 v{tv}, v{tv}, v47, vcc
        v_and_b32 v{Vf(j,0)}, s{sT2}, v{vT+3}
        """)
        for i in range(1, 8): a(f'v_mov_b32 v{Vf(j,0)+i}, v{Vf(j,0)}')
        a(f"""
        buffer_load_dwordx4 {vr(Kf(j),4)}, v{tk}, {sr(sWSD,4)}, s{sT0} offen sc1
        s_mov_b64 exec, {sr(sVM,2)}
        buffer_load_dwordx4 {vr(Vf(j,0),4)}, v{tv}, {sr(sWSD,4)}, s{sT0} offen sc1
        buffer_load_dwordx4 {vr(Vf(j,1),4)}, v{tv}, {sr(sWSD,4)}, s{sT0} offen offset:512 sc1
        s_mov_b64 exec, -1
        """)
    a('s_waitcnt vmcnt(0)')
    a(MF(vMG, Kf(0), Qf, '0')); a(MF(vS0, Kf(8), Qf, '0'))
    for r in range(16): a(f'v_cndmask_b32 v{vMG+r}, v{vS0+r}, v{vMG+r}, {sr(sMASK+2*r,2)}')
    a(f'v_max_f32 v{vMx}, v{vMG}, v{vMG+1}')
    for q in range(2, 16, 2): a(f'v_max3_f32 v{vMx}, v{vMG+q}, v{vMG+q+1}, v{vMx}')
    for j in range(1, 8):
        a(MF(vS0, Kf(j), Qf, '0'))
        for q in range(0, 16, 2): a(f'v_max3_f32 v{vMx}, v{vS0+q}, v{vS0+q+1}, v{vMx}')
    a(f'v_mov_b32 v{vMy}, v{vMx}')
    a(f'v_permlane32_swap_b32 v{vMx}, v{vMy}')
    a(f'v_min_f32_e64 v{vCB_}, -v{vMx}, -v{vMy}')
    for i in range(1, 16): a(f'v_mov_b32 v{vCB_+i}, v{vCB_}')
    for r in range(16): a(f'v_add_f32 v{vMG+r}, v{vMG+r}, v{vCB_}')
    for r in range(16): a(f'v_exp_f32 v{vMG+r}, v{vMG+r}')
    for i in range(8): a(f'v_cvt_pk_bf16_f32 v{vMG+i}, v{vMG+2*i}, v{vMG+2*i+1}')
    for i in range(8): a(f'v_and_b32 v{vMG+8+i}, v{vMG+i}, v{M8[i]}')
    for i in range(8): a(f'v_xor_b32 v{vMG+i}, v{vMG+i}, v{vMG+8+i}')
    for x in (MF(vO, Vf(0, 0), vMG + 8, '0'), MF(vO, Vf(0, 1), vMG + 12, vO), MF(vO, Vf(8, 0), vMG, vO), MF(vO, Vf(8, 1), vMG + 4, vO)): a(x)
    for j in range(1, 8):
        a(MF(vS0, Kf(j), Qf, vCB_))
        for r in range(16): a(f'v_exp_f32 v{vS0+r}, v{vS0+r}')
        for q in range(8): a(f'v_cvt_pk_bf16_f32 v{vS0+q}, v{vS0+2*q}, v{vS0+2*q+1}')
        a(MF(vO, Vf(j, 0), vS0, vO)); a(MF(vO, Vf(j, 1), vS0 + 4, vO))
    for x in o_norm(vS1): a(x)
    a(f"""
    s_lshr_b32 s{sT0}, s{sT3}, 2
    s_add_u32 s{sT0}, s{sT0}, s{sOO}
    buffer_store_dwordx4 {vr(vS1,4)}, v{vP}, {sr(sWSD,4)}, s{sT0} offen sc1
    s_waitcnt vmcnt(0)
    L_fb_next:
    s_add_u32 s{sT3}, s{sT3}, 8192
    s_cmp_eq_u32 s{sT3}, 8192
    s_cbranch_scc1 L_fb_head
    s_nop 7
    s_branch L_fb_done
    """)
    ool.ins += a.ins
    a = keep
emit_fallback()

cA, cB, cI, cNM, cCS, cT = 96, 98, 100, 104, 108, 16
csA = [120, 124]
PK3 = 112
def b3_steps(p, acc):
    o = []
    for n in range(32):
        j, s = divmod(n, 4)
        if p == 0:
            o.append(Step(W_3 + j, s, 't', acc, vPan + 4 * n, aslot=A_X1 + j, aread='p', c0='0' if n == 0 else None, lastw=(s == 3), lasta=(s == 3),
                          dur=opt('DB30', 200)))
        else:
            o.append(Step(W_3 + 8 * p + j, s, 't', acc, vPan + 4 * n, c0='0' if n == 0 else None, lastw=(s == 3), dur=opt('DB3', 230)))
    return o
CSR = 36
setup3 = [f'v_mov_b32 v{r}, 0' for r in (cNM+2, cNM+3, cCS+2, cCS+3)] + \
         [f'v_lshrrev_b32 v{vX1}, 10, v{vP}', f'v_lshl_add_u32 v{vX0}, v{vX1}, 12, v{vX0}\nv_add_u32 v{vX0}, {apos(A_ST) or 65}, v{vX0}'.replace(', 65,', ', 0,'),
          f'v_and_b32 v120, 511, v{vP}', 'v_lshrrev_b32 v120, 2, v120', f'v_lshl_add_u32 v120, v{vX1}, 10, v120',
          f's_lshl_b32 s{sT0}, s{sCH}, 7\ns_add_u32 s{sT0}, s{sT0}, {GATE}\nv_add_u32 v120, s{sT0}, v120', 'v_add_u32 v121, 2048, v120', 'v_add_u32 v122, 4096, v120']
st_seq = [0]
def stats_load():
    for i in range(8): st_seq[0] = lg.issue(f'ds_read_b64 {vr(vA1+2*i,2)}, v{vX0} offset:{512*i}')
    last_read[('A', A_ST)] = st_seq[0]
def cs_load():
    for p in range(3):
        for k in range(2): st_seq[0] = lg.issue(f'ds_read2_b32 {vr(CSR+4*p+2*k,2)}, v{120+p} offset0:{128*k} offset1:{128*k+64}')
sfin = [lambda: lg.wait(st_seq[0])]
for i in range(1, 8):
    sfin += [f'v_add_f32 v{vA1}, v{vA1}, v{vA1+2*i}', f'v_add_f32 v{vA1+1}, v{vA1+1}, v{vA1+2*i+1}']
sfin += [f'v_mov_b32 v{vX2}, v{vA1}', f'v_mov_b32 v{vX3}, v{vA1+1}', f'v_permlane32_swap_b32 v{vA1}, v{vX2}', f'v_permlane32_swap_b32 v{vA1+1}, v{vX3}',
         f'v_add_f32 v{vX2}, v{vA1}, v{vX2}', f'v_add_f32 v{vX3}, v{vA1+1}, v{vX3}']
lc3 = ln_consts(vX2, vX3, cA, cB, cI, cNM, cT)
lc3 = lc3[:15] + [f'v_cvt_pk_bf16_f32 v{cNM+1}, v{cT+1}, v{cT+1}']
def cs3(p, acc):
    c0 = CSR + 4 * p
    o = [f'v_add_f32 v{c0}, v{c0}, v{c0+1}', f'v_add_f32 v{c0+2}, v{c0+2}, v{c0+3}', f'v_add_f32 v{c0}, v{c0}, v{c0+2}']
    f = cs_fix(c0, cCS, cNM, acc, c0 + 1)
    return o + f[:4] + [f'v_mov_b32 v{cCS+1}, v{cCS}', f[4]]
def h3_epi(p, acc, s0, s1):
    nxt = [f's_add_u32 s{sOH3}, s{sOH3}, 8192' if p == 0 else f's_mov_b32 s{sOH3}, s{sNEG}']
    g = gelu_sc(acc, cA, cB, cI, cT, PK3)
    s2 = store2(PK3, vP, sOH3)
    return spread(g + ['\n'.join(s2), mark(5 + p), lambda: a('\n'.join(nxt))], s0, s1)
for x in setup3[4:6] + o_final(1): a(x)
a(f's_or_b64 vcc, {sr(sFL[0],2)}, {sr(sFL[1],2)}')
a('s_cbranch_scc1 L_fb')
a('L_fb_done:')
for x in setup3[6:]: a(x)
fin = [f'v_and_b32 v{vA0}, 511, v{vP}', f'v_lshlrev_b32 v{vA0}, 6, v{vA0}', f'v_lshrrev_b32 v{vA0+1}, 10, v{vP}', f'v_lshl_add_u32 v{vA0}, v{vA0+1}, 4, v{vA0}',
       f'v_sub_f32 v{vA0+2}, 1.0, v{vG}'] + [f'v_mul_f32 v{vA1+i}, v{vG}, v{vA1+i}' for i in range(16)]
G0, G1, G2 = opt('GL0', 22), opt('GL1', 24), opt('GL2', 24)
a3 = stream_steps(W_O, A_O, 32, vA1, c0='0', phase=96)
for x in a3: x.dur = opt('DA3', 250)
run_steps(b3_steps(0, vA0) + b3_steps(1, vA1) + b3_steps(2, vA0) + a3 + stream_steps(W_4, A_H3, 86, vAB, phase=128),
          merge({opt('PUB4', 20): [pubat(4)]}, {0: [stats_load], 2: [cs_load]}, spread(sfin + setup3[:4] + lc3 + cs3(0, vA0), 4, 30),
                h3_epi(0, vA0, 35, 35 + G0), spread(cs3(1, vA1), 60, 64), {opt('PUB5', 35 + G0 + 16): [pubat(5)]},
                spread(cs3(2, vA0), 64, 67), h3_epi(1, vA1, 67, 67 + G1), {opt('PUB6', 67 + G1 + 14): [pubat(6)]},
                h3_epi(2, vA0, 99, 99 + G2), {opt('PUB7', 99 + G2 + 16): [pubat(7)]}, spread(fin, 136, 164)))
stamp('A3B4')
for i in range(0, 16, 2): a(f'v_pk_fma_f32 {vr(vA1+i,2)}, {vr(vAB+i,2)}, {vr(vA0+2,2)}, {vr(vA1+i,2)} op_sel_hi:[1,0,1]')
for x in pack(vA1, PK): a(x)
a(f'''
v_permlane32_swap_b32 v{PK}, v{PK+2}
v_permlane32_swap_b32 v{PK+1}, v{PK+3}
v_permlane32_swap_b32 v{PK+4}, v{PK+6}
v_permlane32_swap_b32 v{PK+5}, v{PK+7}
buffer_store_dwordx4 {vr(PK,4)}, v{vA0}, {sr(sSRD,4)}, s{sOOUT} offen {('', 'sc1', 'nt', 'sc0 sc1')[opt('OF', 0)]}
buffer_store_dwordx4 {vr(PK+4,4)}, v{vA0}, {sr(sSRD,4)}, s{sOOUT} offen offset:32 {('', 'sc1', 'nt', 'sc0 sc1')[opt('OF', 0)]}
''')
dbg_dump()
names = {'c': list(stamp_names)}
a('s_endpgm')
a.ins += ool.ins
sec_comp = a.ins; a.ins = []

NT = len(ticks)
tname = {t['name']: i for i, t in enumerate(ticks)}
rel_tick = {k: i for i, t in enumerate(ticks) for k in t['free']}
def use_tick(kind, idx):
    for i, t in enumerate(ticks):
        n = t['need' + kind]
        if n is not None and n >= idx: return i
    raise Exception((kind, idx))
pub_tick = {t['pub']: i for i, t in enumerate(ticks) if t['pub']}

grp_first = {A_H: 1, A_KE: 2, A_ST: 3, A_O: 4, A_H3: 5, A_H3 + 8: 6, A_H3 + 16: 7}
gate_tick = {1: use_tick('A', A_H) - opt('LA1', 6), 2: tname[{0: 'W39', 1: 'B2e', 2: 'W38'}[opt('G2', 2)]], 3: tname[f'T1{opt("G3", 0)}'],
             4: use_tick('A', A_O) - opt('LA4', 9), 5: use_tick('A', A_H3) - opt('LA5', 5),
             6: use_tick('A', A_H3 + 8) - opt('LA6', 5), 7: use_tick('A', A_H3 + 16) - opt('LA7', 5)}
for g, t in gate_tick.items(): assert t > pub_tick[g], (g, t, pub_tick[g])
def stage_of(i):
    st_ = 0
    for f, g in grp_first.items():
        if i >= f: st_ = g
    return st_
tstart = [0]
for t in ticks: tstart.append(tstart[-1] + t['dur'])
PAIR = opt('PAIR', 1)
worder = list(range(W_END))
if PAIR: worder[W_3:W_3+16] = [W_3 + (q >> 1) + 8 * (q & 1) for q in range(16)]
cost = lambda k, i: (opt('CW3P', 150) if PAIR and W_3 + 8 <= i < W_3 + 16 else opt('CW3', 205)) if k == 'W' and W_3 <= i < W_O else 240 if (k, i) == ('A', A_ST) else opt('CS', 140)
LEAD = opt('LEAD', 700)
plan = {}
nxt = {'W': 0, 'A': 0}
END = {'W': W_END, 'A': A_END}
avail = {p: -1 for p in range(NPOS)}
newpos = {}
want = {}
for (k, i), p in sorted(FIXED.items(), key=lambda x: x[0][1]):
    want.setdefault(p, []).append(-1 if i < A_H else gate_tick[2] + (0 if i < A_KO else opt('KOD', 2)))
RSV = opt('RSV', 0)
def pick(k, i, t):
    if (k, i) in FIXED:
        p = FIXED[(k, i)]
        return p if avail[p] <= t else None
    r_ = rel_tick.get((k, i), NT)
    ok = [p for p in range(NPOS) if avail[p] <= t and (not want.get(p) or r_ <= want[p][0])]
    ok.sort(key=lambda p: (0 if want.get(p) else 1, p))
    return ok[0] if ok else None
def room_for_A(t, u):
    need = sum(1 for i in range(nxt['A'], A_END) if use_tick('A', i) < u and ('A', i) not in FIXED)
    if not need: return True
    i0 = next(i for i in range(nxt['A'], A_END) if ('A', i) not in FIXED)
    sg = stage_of(i0)
    g = max(gate_tick[sg], t)
    free_then = sum(1 for p in range(NPOS) if avail[p] <= g + 1) - 1
    return free_then >= min(need, opt(f'AMIN{sg}', {3: 8}.get(sg, 4)))
bud = 0
pauses = [[opt('Z0', 3), opt('Z1', 6), opt('ZN', 3)], [opt('Y0', 7), opt('Y1', 10), opt('YN', 2)]]
for t in range(-1, NT - 1):
    bud = min(bud, opt('CARRY', 100)) + (opt('B0', 8) * 128 if t < 0 else ticks[t]['dur'] * opt('BUD', 100) // 100)
    while True:
        cands = []
        for k in 'AW':
            i = nxt[k]
            if i >= END[k]: continue
            if k == 'W': i = worder[i]
            if k == 'A' and stage_of(i) and gate_tick[stage_of(i)] > t: continue
            if pick(k, i, t) is None: continue
            u = use_tick(k, i)
            if k == 'W': u = min(use_tick(k, j_) for j_ in worder[nxt[k]:nxt[k]+2])
            if k == 'W' and PAIR and W_3 + 8 <= i < W_3 + 16: u = use_tick(k, i - 8)
            must = u == t + 1 or (t >= 0 and tstart[u] - tstart[t + 1] < LEAD)
            if k == 'W' and not must and not room_for_A(t, u): continue
            cands.append((u, k, i, must))
        if not cands: break
        u, k, i, must = min(cands)
        if bud < cost(k, i) // 2 and not must: break
        pz = [z for z in pauses if z[0] <= t < z[1]]
        if pz:
            if pz[0][2] <= 0 and u > t + 1 + opt('ZM', 2): break
            pz[0][2] -= 1
        p = pick(k, i, t)
        if (k, i) in FIXED: want[p].pop(0)
        avail[p] = rel_tick.get((k, i), NT)
        newpos[(k, i)] = p
        plan.setdefault(t, []).append((k, i)); nxt[k] += 1; bud -= cost(k, i)
    for k in 'AW':
        assert all(use_tick(k, j_) > t + 1 for j_ in (worder if k == 'W' else range(A_END))[nxt[k]:nxt[k]+3]), ('late', k, nxt[k], t)
assert nxt == END, nxt
if not PASS2:
    json.dump({f'{k}:{i}': p for (k, i), p in newpos.items()}, open(POSF, 'w'))
    import os
    os.execv(sys.executable, [sys.executable] + sys.argv + ['--pass2'])
assert all(POS[(k, str(i))] == p for (k, i), p in newpos.items())

sOFF, sB3, sHW, sHA, sNEED = 51, 52, 53, 54, 55
sCH8 = 60
sAB = 68
sSRA = 80
a('L_load:')
a(f's_setprio {opt("PL", 3)}')
vS = {3072: 24, 1024: 28, 2752: 32}
vXo, vLin, vKVo = 10, 14, 36
a(f"""
s_sub_u32 s{sHA}, s{sWV}, 4
s_lshl_b32 s{sT0}, s{sHA}, 5
v_lshrrev_b32 v1, 3, v0
v_add_u32 v1, s{sT0}, v1
v_and_b32 v3, 7, v0
v_lshrrev_b32 v2, 4, v0
v_xor_b32 v2, v2, v3
v_lshlrev_b32 v4, 10, v1
v_lshl_add_u32 v{vXo}, v2, 4, v4
v_xor_b32 v2, 4, v2
v_lshl_add_u32 v{vXo+1}, v2, 4, v4
v_add_u32 v{vXo+1}, 7168, v{vXo+1}
v_add_u32 v{vXo+2}, 14336, v{vXo}
v_add_u32 v{vXo+3}, 14336, v{vXo+1}
v_bfe_u32 v2, v0, 4, 1
v_lshlrev_b32 v2, 2, v2
v_xor_b32 v2, v2, v3
v_lshlrev_b32 v2, 4, v2
s_lshl_b32 s{sT0}, s{sC}, 7
v_add_u32 v2, s{sT0}, v2
v_add_u32 v28, v4, v2
v_add_u32 v29, 7168, v28
v_add_u32 v30, 7168, v29
v_add_u32 v31, 7168, v30
s_lshl_b32 s{sHA}, s{sHA}, 12
s_lshl_b32 s{sAB}, s{sR}, 16
s_mov_b32 s{sSRA+2}, {2048*1024}
s_mov_b32 s{sSRA+3}, 0x20000
s_lshl_b32 s{sT0}, s{sRT1}, 7
v_lshlrev_b32 v5, 4, v0
v_add_u32 v6, s{sT0}, v5
v_and_b32 v6, 1023, v6
""")
sCH1 = 92
def chunk_table(dst, rot, q0=0, q1=8):
    for q in range(q0, q1):
        a(f's_add_u32 s{dst+q}, s{rot}, {q}')
        a(f's_and_b32 s{dst+q}, s{dst+q}, 7')
assert not DEBUG
a(f"""
s_waitcnt lgkmcnt(0)
""")
dbg_start()
stamp('karg')
a(f"""
s_mov_b32 s{sSRA}, s{sX}
s_mov_b32 s{sSRA+1}, s{sX+1}
s_mov_b32 s{sSRD}, s{sGATE}
s_mov_b32 s{sSRD+1}, s{sGATE+1}
s_mov_b32 s{sSRD+2}, 1024
s_mov_b32 m0, {GATE}
s_mov_b32 s{sWSD}, s{sWS}
s_mov_b32 s{sWSD+1}, s{sWS+1}
buffer_load_dwordx4 v6, {sr(sSRD,4)}, 0 offen lds
""")
def late_setup(part):
    st_, b = ((3072, 24), (2752, 32))[part]
    a(f'v_mul_u32_u24 v3, {st_}, v1')
    a(f'v_add_u32 v{b}, v3, v2')
    for i in range(1, 4): a(f'v_add_u32 v{b+i}, {8*st_-1024}, v{b+i-1}')
    if part == 0: return
    chunk_table(sCH8, sROT)
def late_setup2():
    a(f"""
    v_add_u32 v{vLin}, s{sHA}, v5
    s_cmp_ge_u32 s{sC}, 6
    s_cselect_b32 s{sB3}, 0x200000, 0
    s_add_u32 s{sB3}, s{sB3}, 2048
    s_lshl_b32 s78, s{sC}, 7
    s_add_u32 s79, s78, 128
    s_add_u32 s{sAB+1}, s{sAB}, {WS_H}
    s_add_u32 s{sAB+3}, s{sAB}, {WS_O}
    s_mul_i32 s{sAB+2}, s{sR}, {X1_STRIDE}
    s_add_u32 s{sAB+2}, s{sAB+2}, {WS_X1}
    s_mul_i32 s{sAB+4}, s{sR}, {H3_STRIDE}
    s_add_u32 s{sAB+4}, s{sAB+4}, {WS_H3}
    v_and_b32 v7, 512, v5
    v_mov_b32 v8, 0x80000000
    """)
    for i in range(5):
        a(f"""
        s_add_i32 s{sT1}, s{sR}, {i-4}
        s_max_i32 s{sT1}, s{sT1}, 0
        s_lshl_b32 s{sT1}, s{sT1}, 3
        s_add_u32 s{sT1}, s{sT1}, s{sC}
        s_lshl_b32 s{sT1}, s{sT1}, 14
        s_add_u32 s{sAB+5+i}, s{sT1}, {WS_KV}
        """)
        if i < 4:
            a(f"""
            s_cmp_lt_u32 s{sR}, {4-i}
            s_cselect_b64 vcc, -1, 0
            v_cndmask_b32 v{vKVo+2*i}, v{vLin}, v{7 if KDUP else 8}, vcc
            v_cndmask_b32 v{vKVo+2*i+1}, v{vLin}, v8, vcc
            """)
wdesc = []
for (ptr, size, st_, co) in ((sW1, 512*1024, 1024, 0), (sWQKV, 512*3072, 3072, 1024), (sWQKV, 512*3072, 3072, 2048), (sWQKV, 512*3072, 3072, 0),
                             (sW2, 512*1024, 1024, 0), (sW3, 512*2752, 2752, 's78'), (sW3, 512*2752, 2752, 's79'), (sW3, 512*2752, 2752, f's{sB3}'),
                             (sWO, 512*1024, 1024, 0), (sW4, 1376*1024, 1024, 0), (sW4, 1376*1024, 1024, 65536)):
    for q in range(8): wdesc.append((ptr, size, st_, co, q))
for q in range(6): wdesc.append((sW4, 1376*1024, 1024, (16 + q) * 65536, None))
cur_mat = [None]
def w_issue(idx):
    ptr, size, st_, co, q = wdesc[idx]
    if cur_mat[0] != ptr:
        cur_mat[0] = ptr
        a(f's_mov_b32 s{sSRD}, s{ptr}')
        a(f's_mov_b32 s{sSRD+1}, s{ptr+1}')
        a(f's_mov_b32 s{sSRD+2}, {size}')
    a(f's_add_u32 m0, s{sHA}, {wpos(idx)}')
    if q is None: a(f's_mov_b32 s{sOFF}, {co}')
    else:
        a(f's_mul_i32 s{sOFF}, s{(sCH1 if idx < W_2 else sCH8)+q}, {(128 if idx >= W_4 else 64)*st_}')
        if co: a(f's_add_u32 s{sOFF}, s{sOFF}, {co}')
    for i in range(4): a(f'buffer_load_dwordx4 v{vS[st_]+i}, {sr(sSRD,4)}, s{sOFF} offen offset:{1024*i} {"nt" if idx < opt("WNT", 0) else ""} lds')
    if idx % 8 == 7: stamp(f'w{idx}')
def a_issue(idx):
    a(f's_add_u32 m0, s{sHA}, {apos(idx)}')
    srd, vo = sWSD, [vLin] * 4
    def rot(base, q, extra=0, sh=13):
        a(f's_lshl_b32 s{sOFF}, s{sCH8+q}, {sh}')
        a(f's_add_u32 s{sOFF}, s{sOFF}, s{base}')
        if extra: a(f's_add_u32 s{sOFF}, s{sOFF}, {extra}')
    if idx < A_H:
        chunk_table(sCH1, sRT1, idx, idx + 1)
        a(f's_lshl_b32 s{sOFF}, s{sCH1+idx}, 7')
        a(f's_add_u32 s{sOFF}, s{sOFF}, s{sAB}')
        srd, vo = sSRA, [vXo + i for i in range(4)]
    elif idx < A_KE: rot(sAB + 1, idx - A_H)
    elif idx < A_ST:
        p, i = divmod(idx - A_KE, 5)
        a(f's_add_u32 s{sOFF}, s{sAB+5+i}, {8192*p}')
        if i < 4: vo = [vKVo + 2*i] * 2 + [vKVo + 2*i + 1] * 2
    elif idx == A_ST: a(f's_add_u32 s{sOFF}, s{sAB+2}, 65536')
    elif idx < A_O: rot(sAB + 2, idx - A_X1)
    elif idx < A_H3: rot(sAB + 3, idx - A_O)
    elif idx < A_H3 + 16: rot(sAB + 4, (idx - A_H3) % 8, 8192 * ((idx - A_H3) // 8), 14)
    else: a(f's_add_u32 s{sOFF}, s{sAB+4}, {8192*(idx-A_H3)}')
    if idx == A_END - 1:
        a(f's_cmp_lg_u32 s{sHA}, 0')
        a(f's_cselect_b32 s{sOFF}, {WS_REC}, s{sOFF}')
    fl_ = 'sc1' if idx >= A_H else ('sc1', '', 'nt', 'sc0 sc1', 'nt sc1', 'sc0 nt sc1')[opt('XF', 0)]
    for i in range(4): a(f'buffer_load_dwordx4 v{vo[i]}, {sr(srd,4)}, s{sOFF} offen offset:{1024*i} {fl_} lds')
    if idx == A_ST:
        a(f's_lshr_b32 s{sT0}, s{sHA}, 2')
        a(f's_sub_u32 s{sT0}, s{sHA}, s{sT0}')
        a(f's_add_u32 m0, s{sT0}, {GATE}')
        a(f's_lshl_b32 s{sOFF}, s{sC}, 13')
        a(f's_add_u32 s{sOFF}, s{sOFF}, s{sT0}')
        a(f's_add_u32 s{sOFF}, s{sOFF}, {WS_CS}')
        for i in range(3): a(f'buffer_load_dwordx4 v5, {sr(srd,4)}, s{sOFF} offen offset:{1024*i} sc1 lds')
    if idx in (15, 20, 33, 42, 64): stamp(f'a{idx}')
sSRP, sPI = 84, 88
pdesc = {'wqkv': (sWQKV, 512*3072, 3), 'w2': (sW2, 512*1024, 1), 'w3': (sW3, 512*2752, 3), 'wo': (sWO, 512*1024, 1), 'w4': (sW4, 1376*1024, 3)}
def p_issue(nm):
    ptr, size, n = pdesc[nm]
    a(f's_mov_b32 s{sSRP}, s{ptr}')
    a(f's_mov_b32 s{sSRP+1}, s{ptr+1}')
    a(f's_mov_b32 s{sSRP+2}, {size}')
    a(f's_mul_i32 s{sOFF}, s{sPI}, {1024*n}')
    for i in range(n): a(f'buffer_load_dwordx4 v[48:51], v5, {sr(sSRP,4)}, s{sOFF} offen offset:{1024*i}')
    return n
for nm, key, dflt in (('wqkv', 'PQ', 2), ('w2', 'P2', 2), ('w3', 'P3', -2), ('wo', 'PO', tname['T15']), ('w4', 'P4', tname['T15'])):
    t = opt(key, dflt)
    if t >= 1000: t = tname['KVE'] + t - 1000
    if t >= -1: plan.setdefault(t, []).append(('P', nm))
a(f's_mov_b32 s{sSRP+3}, 0x20000')
a(f's_lshl_b32 s{sPI}, s2, 1')
a(f's_add_u32 s{sPI}, s{sPI}, s{sWV}')
a(f's_sub_u32 s{sPI}, s{sPI}, 4')
SP0 = opt('SP0', -1)
def sp_setup(share_code, d):
    return [share_code, f's_mul_i32 s{sT1}, s{sT0}, {11*64}', f's_min_u32 s{sT1}, s{sT1}, {512*1024 - 11*64}',
            f's_add_u32 s{d}, s{sWO}, s{sT1}', f's_addc_u32 s{d+1}, s{sWO+1}, 0',
            f's_mul_i32 s{sT1}, s{sT0}, {29*64}', f's_min_u32 s{sT1}, s{sT1}, {1376*1024 - 29*64}',
            f's_add_u32 s{d+2}, s{sW4}, s{sT1}', f's_addc_u32 s{d+3}, s{sW4+1}, 0']
def sp_load(k, d, dst):
    return f's_load_dword s{dst}, {sr(d,2)}, {64*k}' if k < 11 else f's_load_dword s{dst}, {sr(d+2,2)}, {64*(k-11)}'
SHARE = f's_mul_i32 s{sT0}, s2, 3\ns_add_u32 s{sT0}, s{sT0}, s{sWV}\ns_sub_u32 s{sT0}, s{sT0}, 4'
nops = 0
endpos = {}
landed = 0
for t in range(-1, NT - 1):
    for k, i in plan.get(t, []):
        if k == 'P': nops += p_issue(i)
        else:
            (w_issue if k == 'W' else a_issue)(i); nops += 7 if (k, i) == ('A', A_ST) else 4
            endpos[(k, i)] = nops
    if SP0 >= 0:
        if t == SP0:
            for x in sp_setup(SHARE, 56): a(x)
        if 0 <= t - SP0 < 40: a(sp_load(t - SP0, 56, 100))
    if t == opt('LS0', 0): late_setup(0)
    if t == opt('LS1', 6): late_setup(1)
    if t == opt('LS2', 7): late_setup2()
    if t == 7 and PAGES:
        a('s_branch L_load2')
        a('.p2align 12')
        a('L_load2:')
    pos = 0
    for k in 'AW':
        need = ticks[t + 1]['need' + k]
        if need is not None: pos = max(pos, endpos[(k, need)])
    if pos > landed:
        kk = min(nops - pos, 63)
        a(f's_waitcnt vmcnt({kk})')
        landed = nops - kk
    if t in (-1, 0, 1, 2, 3): stamp(f'rdy{t+1}')
    a('s_barrier')
dbg_dump()
names['w'] = list(stamp_names)
a('L_end:')
a('s_endpgm')

sFV, sFK = 68, 84
sMB, sPB, sCF, sVAL = 56, 58, 60, 62
WS_CF = 0xA0000
a(f"""
L_flag:
{'s_memrealtime s[98:99]' if opt('DIAG', 0) and opt('DAT', -1) == -1 else ''}
s_setprio {opt("PL", 3)}
s_lshl_b32 s{sT1}, s{sR}, 13
s_add_u32 s{sT1}, s{sT1}, {WS_MB}
s_lshl_b32 s{sT2}, s{sC}, 2
s_add_u32 s{sT2}, s{sT2}, s{sT1}
s_lshl_b32 s{sT0}, s{sC}, 10
s_add_u32 s{sT1}, s{sT1}, s{sT0}
s_add_u32 s{sT0}, s{sT0}, {WS_CF}
v_lshrrev_b32 v8, 1, v0
v_lshlrev_b32 v8, 13, v8
v_and_b32 v9, 1, v0
v_lshl_add_u32 v8, v9, 4, v8
v_add_u32 v8, {WS_MB}, v8
s_waitcnt lgkmcnt(0)
s_load_dword s{sE}, {sr(sWS,2)}, {WS_E}
s_mov_b32 s{sWSD}, s{sWS}
s_mov_b32 s{sWSD+1}, s{sWS+1}
s_add_u32 s{sMB}, s{sWS}, s{sT1}
s_addc_u32 s{sMB+1}, s{sWS+1}, 0
s_add_u32 s{sPB}, s{sWS}, s{sT2}
s_addc_u32 s{sPB+1}, s{sWS+1}, 0
s_add_u32 s{sCF}, s{sWS}, s{sT0}
s_addc_u32 s{sCF+1}, s{sWS+1}, 0
""")
if opt('TW', 1):
    for k, p_ in enumerate((sWQKV, sW2, sW3, sWO, sW4, sOUT)): a(f's_load_dword s{88}, {sr(p_,2)}, 0')
    a(f's_lshr_b32 s{sT0}, s2, 3')
    a(f's_and_b32 s{sT0}, s{sT0}, 15')
    a(f's_lshl_b32 s{sT0}, s{sT0}, 21')
    a(f's_load_dword s88, {sr(sWS,2)}, s{sT0}')
if opt('MBW', 1):
    for k in range(3): a(f's_load_dword s88, {sr(sMB,2)}, {128*k} glc')
def flag_tag():
    a('s_waitcnt lgkmcnt(0)')
    make_tag()
    for q in range(20): a(f's_mov_b32 s{sFV+q}, s{sTAG}')
def poll(g):
    if g == 2: return [f's_load_dwordx4 {sr(sFK,4)}, {sr(sMB,2)}, 256 glc']
    return [f's_load_dwordx8 {sr(sFV+8*k,8)}, {sr(sMB,2)}, {128*k} glc' for k in range(2 if g == 1 else 1)]
def wait_flags(regs, loads, need, block=False):
    l1, l2 = a.new_label('P'), a.new_label('P')
    a(f's_add_u32 s{sNEED}, s{sTAG}, {need}')
    a(f'{l1}:')
    for k, sv in enumerate(regs):
        a(f's_sub_u32 s{sT0 + (1 if k else 0)}, s{sv}, s{sNEED}')
        if k: a(f's_max_u32 s{sT0}, s{sT0}, s{sT1}')
    a(f's_cmp_lt_u32 s{sT0}, {8-need}')
    a(f's_cbranch_scc1 {l2}')
    for x in loads: a(x)
    a(f"""
    s_sub_u32 s{sTO}, s{sTO}, 1
    s_cbranch_scc1 L_end
    {'s_waitcnt lgkmcnt(0)' if block else 's_sleep %d' % opt('PSL', 1)}
    s_branch {l1}
    {l2}:
    """)
CSP = opt('CSP', 29)
PRE = opt('PRE', 900)
PEV = opt('PEV', 2)
gate_at = {t: g for g, t in gate_tick.items()}
assert len(gate_at) == 7
cr = [4 + q for q in range(16)] + [sFV + 8 + q for q in range(8)]
cpoll = [f's_load_dwordx8 {sr(b_,8)}, {sr(sCF,2)}, {128*k} glc' for k, b_ in enumerate((4, 12, sFV + 8))]
for i, t in enumerate(ticks):
    if gate_at.get(i) == 3: wait_flags(cr, cpoll, 1, block=True)
    if i in gate_at:
        g = gate_at[i]
        wait_flags([sFK + q for q in range(4)] if g == 2 else [sFV + q for q in range(16 if g == 1 else 8)], poll(g), g)
        stamp(f'g{g}')
    if t['pub'] and t['pub'] != 2: a(f's_add_u32 s{sVAL + (t["pub"] & 1)}, s{sTAG}, {t["pub"]}')
    a('s_barrier')
    if opt('DIAG', 0) and opt('DAT', -1) == i: a('s_memrealtime s[98:99]')
    if t['pub'] and t['pub'] != 2:
        for q in range(8): a(f's_atomic_swap s{sVAL + (t["pub"] & 1)}, {sr(sPB,2)}, {1024*q}')
    if i == 4: flag_tag()
    if t['name'] == 'KVE':
        a('s_waitcnt lgkmcnt(0)')
        for q in cr: a(f's_mov_b32 s{q}, s{sTAG}')
    if t['name'] == f'T0{opt("CPT", 2)}':
        for x in cpoll: a(x.replace(' glc', ''))
    for g, gt in gate_tick.items():
        d = gt - 1 - i
        if pub_tick[g] <= i and d > 0 and tstart[gt - 1] - tstart[i] <= PRE and d % PEV == 0:
            for x in poll(g): a(x)
a('s_waitcnt lgkmcnt(0)')
a('s_mov_b64 exec, -1')
a(f"""
s_cmp_lg_u32 s2, 0
s_cbranch_scc1 L_fend
s_add_u32 s{sT1}, s{sTAG}, 1
L_ebump:
buffer_load_dwordx4 v[32:35], v8, {sr(sWSD,4)}, 0 offen sc1
s_waitcnt vmcnt(0)
""")
for i in range(4): a(f'v_subrev_u32 v{32+i}, s{sT1}, v{32+i}')
a(f"""
v_max_u32 v32, v32, v33
v_max3_u32 v32, v32, v34, v35
v_cmp_gt_u32 vcc, 7, v32
s_cmp_eq_u64 vcc, -1
s_cbranch_scc1 L_ebump2
s_sub_u32 s{sTO}, s{sTO}, 1
s_cbranch_scc0 L_ebump
s_endpgm
L_ebump2:
v_mov_b32 v1, s{sTAG}
v_mov_b32 v2, {WS_E}
s_mov_b64 exec, 1
buffer_store_dword v1, v2, {sr(sWSD,4)}, 0 offen sc1
s_mov_b64 exec, -1
L_fend:
""")
if opt('DIAG', 0):
    a(f'''
    L_diag:
    s_memrealtime s[96:97]
    s_waitcnt lgkmcnt(0)
    s_sub_u32 s96, s96, s98
    s_cmp_lt_u32 s96, {opt('DIAG', 0)}
    s_cbranch_scc1 L_diag
    ''')
dbg_dump()
names['s'] = list(stamp_names)
a('s_endpgm')
a('L_aux:')
if opt('HS', 1):
    a(f"""
    s_lshl_b32 s62, s{sR}, 16
    s_lshl_b32 s{sT0}, s{sC}, 13
    s_add_u32 s62, s62, s{sT0}
    s_bitcmp1_b32 s{sC}, 1
    s_cselect_b32 s{sT0}, 448, 0
    s_add_u32 s62, s62, s{sT0}
    s_add_u32 s62, s62, {WS_H}
    s_waitcnt lgkmcnt(0)
    s_add_u32 s62, s62, s{sWS}
    s_addc_u32 s63, s{sWS+1}, 0
    """)
    a(f's_load_dword s90, {sr(sWS,2)}, {WS_E}')
    for k in range(12): a(f's_load_dword s{64+k}, s[62:63], {512*k}')


a(f"""
v_lshrrev_b32 v1, 3, v0
v_mul_u32_u24 v1, 2752, v1
v_and_b32 v2, 7, v0
v_lshl_add_u32 v1, v2, 4, v1
v_lshlrev_b32 v2, 5, v2
v_lshrrev_b32 v3, 5, v0
v_lshl_add_u32 v2, v3, 4, v2
v_bfe_u32 v3, v0, 4, 1
v_lshl_add_u32 v2, v3, 3, v2
s_and_b32 s{sT0}, s{sR}, 7
s_mul_i32 s60, s{sT0}, {64*2752}
s_lshr_b32 s{sT0}, s{sR}, 3
s_add_u32 s{sT1}, s{sT0}, s{sC}
s_cmp_ge_u32 s{sT0}, 2
s_cselect_b32 s{sT0}, 16, s{sT1}
s_add_u32 s{sT0}, s{sT0}, s{sC}
s_lshl_b32 s{sT0}, s{sT0}, 7
s_add_u32 s60, s60, s{sT0}
s_lshl_b32 s61, s{sC}, 13
s_lshl_b32 s{sT0}, s{sR}, 8
s_add_u32 s61, s61, s{sT0}
s_add_u32 s61, s61, {WS_CS}
s_cmp_ge_u32 s{sR}, 24
s_cselect_b32 s60, 0x200000, s60
s_cselect_b32 s61, {WS_REC}, s61
{'' if opt('HS', 1) else 's_waitcnt lgkmcnt(0)'}
s_mov_b32 s{sSRD}, s{sW3}
s_mov_b32 s{sSRD+1}, s{sW3+1}
s_mov_b32 s{sSRD+2}, {512*2752}
s_mov_b32 s{sWSD}, s{sWS}
s_mov_b32 s{sWSD+1}, s{sWS+1}
""")
if TRACE:
    a(f'v_writelane_b32 v11, s{sST}, 60')
    a(f'v_writelane_b32 v11, s{sE}, 61')
assert opt('HS', 1)
a(f"""
s_bitcmp1_b32 s{sC}, 1
s_cselect_b32 s{sT0}, -1, 1
s_add_u32 s{sT0}, s{sT0}, s{sR}
s_and_b32 s{sT0}, s{sT0}, 31
s_lshl_b32 s{sT0}, s{sT0}, 13
s_lshl_b32 s{sT1}, s{sC}, 2
s_add_u32 s{sT0}, s{sT0}, s{sT1}
s_add_u32 s{sT0}, s{sT0}, {WS_MB + 128}
s_add_u32 s80, s{sWS}, s{sT0}
s_addc_u32 s81, s{sWS+1}, 0
s_lshl_b32 s{sT0}, s{sR}, 13
s_lshl_b32 s{sT1}, s{sC}, 10
s_add_u32 s{sT0}, s{sT0}, s{sT1}
s_add_u32 s{sT0}, s{sT0}, {WS_MB + 256}
s_add_u32 s82, s{sWS}, s{sT0}
s_addc_u32 s83, s{sWS+1}, 0
s_lshr_b32 s{sT0}, s{sR}, 3
s_lshl_b32 s{sT0}, s{sT0}, 7
s_and_b32 s{sT2}, s{sR}, 7
s_lshl_b32 s{sT2}, s{sT2}, 2
s_add_u32 s{sT0}, s{sT0}, s{sT2}
s_add_u32 s{sT0}, s{sT0}, s{sT1}
s_add_u32 s84, s{sT0}, {WS_CF}
""")
for q in range(4):
    a(f's_cmp_lt_u32 s{sR}, {4-q}')
    a(f's_cselect_b32 s{85+q}, {4*q}, 32')
msgs = {pub_tick[1]: [f's_atomic_swap s90, s[80:81], {1024*q}' for q in range(8)],
        pub_tick[2]: [f's_atomic_swap s91, s[82:83], {8192*l + 4*(4-l)}' for l in range(1, 5)] + [f's_cmp_ge_u32 s{sR}, 4', 's_cbranch_scc1 L_kvself'] +
                     [f's_atomic_swap s91, s[82:83], s{85+q}' for q in range(4)] + ['L_kvself:'],
        CSP: [f's_atomic_swap s90, {sr(sWS,2)}, s84']}
TC0, TC1 = opt('TC0', 7), opt('TC1', 13)
ld = []
for i in range(8):
    ld += [f'buffer_load_dwordx4 {vr(64+4*i,4)}, v1, {sr(sSRD,4)}, s60 offen', f's_add_u32 s60, s60, {8*2752}']
wk = ['s_waitcnt vmcnt(0)']
for i in range(8):
    for d in range(4):
        src = 64 + 4 * i + d
        if i == 0: wk += [f'v_lshlrev_b32 v{20+2*d}, 16, v{src}', f'v_and_b32 v{21+2*d}, 0xffff0000, v{src}']
        else: wk += [f'v_lshlrev_b32 v28, 16, v{src}', f'v_and_b32 v29, 0xffff0000, v{src}', f'v_add_f32 v{20+2*d}, v{20+2*d}, v28', f'v_add_f32 v{21+2*d}, v{21+2*d}, v29']
for e in (0, 1, 4, 5): wk += [f'v_permlane16_swap_b32 v{20+e}, v{22+e}']
for e in (0, 1, 4, 5): wk += [f'v_add_f32 v{20+e}, v{20+e}, v{22+e}']
for e in (0, 1): wk += [f'v_permlane32_swap_b32 v{20+e}, v{24+e}']
for e in (0, 1): wk += [f'v_add_f32 v{20+e}, v{20+e}, v{24+e}']
for e in (0, 1): wk += [f'v_add_f32_dpp v{22+e}, v{20+e}, v{20+e} row_ror:8 row_mask:0xf bank_mask:0xf']
wk += [f'buffer_store_dwordx2 v[22:23], v2, {sr(sWSD,4)}, s61 offen sc1']
auxp = merge(msgs, {8: ['s_waitcnt lgkmcnt(0)', 's_add_u32 s90, s90, 0x9e3779b0', 's_and_b32 s90, s90, 0xfffffff0', 's_add_u32 s91, s90, 2', 's_add_u32 s90, s90, 1']}, {0: [f's_load_dword s{64+k}, s[62:63], {512*k}' for k in range(12, 16)]}, {TC0: ld}, spread(wk, TC1, TC1 + 8))
NMARK = 10
if PAGES:
    vo = opt('VO', 2)
    auxp = merge({vo + k // 2 if k < 14 else 0: ['s_mov_b64 exec, 0', f's_branch L_pg{m}', f'L_pr{m}:', 's_mov_b64 exec, -1'] for k, m in []},
                 *[{vo + k * (8 - vo) // NMARK: ['s_mov_b64 exec, 0', f's_branch L_pg{m}', f'L_pr{m}:', 's_mov_b64 exec, -1']} for k, m in enumerate((0, 4, 5, 1, 2, 3, 6, 7, 8, 9))], auxp)
AUXEND = max(CSP, pub_tick[2])
if SP0 >= 0:
    auxp = merge(auxp, {SP0: sp_setup(SHARE, 56)}, {SP0 + k: [sp_load(k, 56, 100)] for k in range(40)})
    AUXEND = max(CSP, SP0 + 40)
assert TC1 + 8 < CSP
for i in range(NT if TRACE else AUXEND + 1):
    if i == CSP: a('s_waitcnt vmcnt(0)')
    a('s_barrier')
    if TRACE:
        if i: a(f'v_writelane_b32 v{10 + (i-1) // 64}, s{sST + 2*((i-1)&1)}, {(i-1) % 64}')
        a(f's_memtime {sr(sST + 2*(i&1),2)}')
    for x in auxp.get(i, []): a(x)
if TRACE:
    a('s_waitcnt lgkmcnt(0)')
    a(f'v_writelane_b32 v{10 + (NT-1) // 64}, s{sST + 2*((NT-1)&1)}, {(NT-1) % 64}')
if not TRACE: a('s_endpgm')
if TRACE:
    a('s_barrier')
    a(f"""
    s_memtime {sr(sST,2)}
    s_memrealtime {sr(sE,2)}
    s_waitcnt lgkmcnt(0)
    v_writelane_b32 v11, s{sST}, 62
    v_writelane_b32 v11, s{sE}, 63
    s_mov_b32 s{sWSD}, s{sWS}
    s_mov_b32 s{sWSD+1}, s{sWS+1}
    s_mov_b32 s{sWSD+2}, {WS_REC}
    s_mov_b32 s{sWSD+3}, 0x20000
    v_lshlrev_b32 v1, 2, v0
    s_lshl_b32 s{sT0}, s2, 9
    s_add_u32 s{sT0}, s{sT0}, {WS_DBG + 0x80000}
    buffer_store_dword v10, v1, {sr(sWSD,4)}, s{sT0} offen
    buffer_store_dword v11, v1, {sr(sWSD,4)}, s{sT0} offen offset:256
    s_endpgm
    """)
    names['t'] = [t['name'] + (f'(g{gate_at[i]})' if i in gate_at else '') + (f'(p{t["pub"]})' if t['pub'] else '') for i, t in enumerate(ticks)]
    names['plan'] = [''.join(k.lower() for k, _ in plan.get(i, [])) for i in range(NT)]
a.ins = sec_pro + a.ins + sec_comp
a('L_last:')

nn = a.pad()
PFX = f'.amdgcn_target "amdgcn-amd-amdhsa--gfx950"\n.text\n{NAME}_kernel:\n'
print('aligned', align8(a, PFX, 'L_comp', opt('ALM', 2) if opt('AL', 1) else 999, opt('ALN', 6), NMARK if PAGES else 0), file=sys.stderr)
hdr = open(f'cdna_kernels/{NAME}.s.ref').read().split('; Override launch geometry')[0]
txt = hdr + f'''; @launch grid=(256,1,1) block=(512,1,1) lds={LDS_BYTES}
.amdgcn_target "amdgcn-amd-amdhsa--gfx950"
.text
.globl {NAME}_kernel
.p2align 8
.type {NAME}_kernel,@function
{NAME}_kernel:
''' + a.text() + f'''.section .rodata,"a"
.p2align 6
.amdhsa_kernel {NAME}_kernel
  .amdhsa_next_free_vgpr 256
  .amdhsa_next_free_sgpr 102
  .amdhsa_accum_offset 256
  .amdhsa_group_segment_fixed_size 0
  .amdhsa_kernarg_size 96
  .amdhsa_user_sgpr_count 2
  .amdhsa_user_sgpr_kernarg_segment_ptr 1
  .amdhsa_system_sgpr_workgroup_id_x 1
.end_amdhsa_kernel
'''
open(OUT, 'w').write(txt)
json.dump(names, open(OUT + '.names.json', 'w'))
if '--plan' in sys.argv:
    print('start', plan.get(-1))
    for i, t in enumerate(ticks):
        print(i, tstart[i], t['name'], 'needW', t['needW'], 'needA', t['needA'], 'pub', t['pub'], 'gate', gate_at.get(i), '| after:', [f'{k}{j}@{newpos.get((k,j))}' for k, j in plan.get(i, [])])
print('instructions', sum(1 for i in a.ins if i.kind != 'meta'), 'nops inserted', nn, 'ticks', NT, file=sys.stderr)
```

```python
import sys, struct, json
from asmlib import *

NAME = 'gated_mix__sliding_block__mixer_s_mlp__prompt'
DEBUG = '--debug' in sys.argv
TRACE = '--trace' in sys.argv
OUT = [x for x in sys.argv[1:] if not x.startswith('--')]
OUT = OUT[0] if OUT else f'cdna_kernels/{NAME}.s'
def opt(name, default):
    for x in sys.argv:
        if x.startswith(f'--{name}='): return int(x.split('=')[1])
    return default

NPOS = 19
GATE = NPOS * 8192
POSF = OUT + '.pos.json'
PASS2 = '--pass2' in sys.argv
POS = {tuple(k.split(':')): v for k, v in json.load(open(POSF)).items()} if PASS2 else {}
LDS_BYTES = 163840
FSH = 10
WS_E = 0x80000
WS_H, WS_KV, WS_X1, WS_O, WS_H3, WS_DBG = 0x100000, 0x300000, 0x700000, 0xA00000, 0xC00000, 0x1200000
X1_STRIDE = 73728
H3_STRIDE = 176 * 1024
WS_CS = 0x90000
WS_MB = 0x1400000
WS_REC = 0x1440000
VTAB = GATE + 7168
PD = opt('PD', 3)
TIMEOUT = 1 << 16
KDUP = 1
PAGES = opt('PAGES', 1)
ROT1 = opt('ROT1', 1)

def f32(x): return '0x%08x' % struct.unpack('<I', struct.pack('<f', x))[0]
LOG2E = 1.4426950408889634
C1 = 2 * 0.7978845608028654 * LOG2E
QSCALE = 0.25 * LOG2E

A_X, A_H, A_KE, A_KO, A_ST, A_X1, A_O, A_H3, A_END = 0, 8, 16, 21, 26, 27, 35, 43, 65
W_1, W_K, W_V, W_Q, W_2, W_3, W_O, W_4, W_END = 0, 8, 16, 24, 32, 40, 64, 72, 94
FIXED = {('A', A_X + i): i for i in range(8)}
FIXED.update({('A', A_KE + i): i for i in range(10)})
apos = lambda i: FIXED.get(('A', i), POS.get(('A', str(i)), 0)) * 8192
wpos = lambda i: POS.get(('W', str(i)), 0) * 8192

sX, sWQKV, sWO, sW1, sW2, sW3, sW4, sGATE, sOUT, sDBG, sWS = 4, 6, 8, 12, 14, 16, 18, 20, 22, 24, 26
sR, sC, sROT, sWV, sTAG, sTO = 28, 29, 30, 31, 32, 33
sRET = 34
sWSD = 36
sSRD = 40
sT0, sT1, sT2, sT3 = 47, 48, 49, 50
sHI = 52
sVM = 54
sGM = 56
sTT, sCH = 58, 59
sMASK = 60
sE = 92
sST = 94
sQ1, sQ2, sQ3 = 96, 98, 100
sRT1 = 46
sZM = 44

a = Asm()
ool = Asm()
ool.uid = 100000

class Lgkm:
    def __init__(self): self.n = 0; self.done = 0
    def issue(self, text):
        a(text); self.n += 1; return self.n
    def wait(self, seq):
        if seq <= self.done: return
        k = min(self.n - seq, 14)
        a(f's_waitcnt lgkmcnt({k})')
        self.done = self.n - k
    def all(self): self.wait(self.n)
lg = Lgkm()
def emit(x):
    if callable(x): x()
    elif x.startswith('ds_'): lg.issue(x)
    else: a(x)

nstamp = [0]
stamp_names = []
def stamp(name):
    if not DEBUG: return
    i = nstamp[0]; nstamp[0] += 1
    stamp_names.append(name)
    a(f's_memtime {sr(sST,2)}')
    a(f's_memrealtime s[2:3]'.replace('s[2:3]', 's[0:1]'))
    a('s_waitcnt lgkmcnt(0)')
    a(f'v_writelane_b32 v0, s{sST}, {i}')
    a(f'v_writelane_b32 v0, s0, {32+i}')
    assert i < 30
def st(name): return lambda: stamp(name)
def dbg_start():
    if not DEBUG: return
    a(f'v_mov_b32 v0, 0')
    a(f'v_writelane_b32 v0, s{sST}, 0')
    a(f'v_writelane_b32 v0, s{sE}, 62')
    nstamp[0] = 1; stamp_names.clear(); stamp_names.append('start')
def dbg_dump():
    if not DEBUG: return
    a('s_waitcnt vmcnt(0)')
    stamp('end')
    a(f'''
    s_memrealtime {sr(sST,2)}
    s_waitcnt lgkmcnt(0)
    v_writelane_b32 v0, s{sST}, 63
    s_mov_b32 s{sWSD}, s{sWS}
    s_mov_b32 s{sWSD+1}, s{sWS+1}
    v_mbcnt_lo_u32_b32 v1, -1, 0
    v_mbcnt_hi_u32_b32 v1, -1, v1
    v_lshlrev_b32 v1, 2, v1
    s_lshl_b32 s{sT0}, s2, 3
    s_add_u32 s{sT0}, s{sT0}, s{sWV}
    s_lshl_b32 s{sT0}, s{sT0}, 8
    s_add_u32 s{sT0}, s{sT0}, {WS_DBG}
    buffer_store_dword v0, v1, {sr(sWSD,4)}, s{sT0} offen
    ''')

if DEBUG or TRACE:
    a(f's_memtime {sr(sST,2)}')
    a(f's_memrealtime {sr(sE,2)}')
if opt('DIAG', 0) and opt('DAT', -1) == -2: a('s_memrealtime s[98:99]')
a(f'''
s_cmp_ge_u32 s2, 256
s_cbranch_scc1 L_end
s_load_dwordx16 s[4:19], s[0:1], 0
s_load_dwordx8 s[20:27], s[0:1], 64
v_lshrrev_b32 v1, 6, v0
v_and_b32 v0, 63, v0
v_readfirstlane_b32 s{sWV}, v1
s_cmp_eq_u32 s{sWV}, 6
s_cbranch_scc0 L_noaux
s_getpc_b64 s[56:57]
L_pc:
s_sub_u32 s56, s56, L_pc-{NAME}_kernel
s_subb_u32 s57, s57, 0
s_lshr_b32 s58, s2, 3
s_lshl_b32 s58, s58, 11
v_lshlrev_b32 v4, 4, v0
v_add_u32 v3, s58, v4
v_min_u32 v5, L_last-{NAME}_kernel-16, v3
global_load_dwordx4 v[32:35], v5, s[56:57]
v_add_u32 v3, 1024, v3
v_min_u32 v5, L_last-{NAME}_kernel-16, v3
global_load_dwordx4 v[36:39], v5, s[56:57]
L_noaux:
s_and_b32 s{sT0}, s2, 7
s_lshr_b32 s{sT1}, s2, 3
s_lshr_b32 s{sR}, s{sT0}, 1
s_lshl_b32 s{sR}, s{sR}, 3
s_lshr_b32 s{sT2}, s{sT1}, 2
s_add_u32 s{sR}, s{sR}, s{sT2}
s_and_b32 s{sC}, s{sT0}, 1
s_lshl_b32 s{sC}, s{sC}, 2
s_and_b32 s{sT2}, s{sT1}, 3
s_add_u32 s{sC}, s{sC}, s{sT2}
s_add_u32 s{sROT}, s{sR}, s{sC}
s_and_b32 s{sROT}, s{sROT}, 7
{ {0: f's_mov_b32 s{sRT1}, 0', 1: f's_mov_b32 s{sRT1}, s{sROT}', 2: f's_and_b32 s{sRT1}, s{sR}, 7',
   3: f's_lshl_b32 s{sRT1}, s{sC}, 2' + chr(10) + f's_add_u32 s{sRT1}, s{sRT1}, s{sR}' + chr(10) + f's_and_b32 s{sRT1}, s{sRT1}, 7',
   4: f's_lshl_b32 s{sRT1}, s{sC}, 1' + chr(10) + f's_add_u32 s{sRT1}, s{sRT1}, s{sR}' + chr(10) + f's_and_b32 s{sRT1}, s{sRT1}, 7'}[ROT1] }
s_mov_b32 s{sTO}, {TIMEOUT}
s_mov_b32 s{sWSD+2}, {WS_REC}
s_mov_b32 s{sWSD+3}, 0x20000
s_mov_b32 s{sSRD+3}, 0x20000
s_cmp_lt_u32 s{sWV}, 4
s_cbranch_scc1 L_comp
s_cmp_eq_u32 s{sWV}, 7
s_cbranch_scc1 L_flag
s_cmp_eq_u32 s{sWV}, 6
s_cbranch_scc1 L_aux
''')
sec_pro = a.ins; a.ins = []
if PAGES: a('.p2align 12')
a('L_comp:')
def make_tag():
    a(f'''
    s_add_u32 s{sE}, s{sE}, 0x9e3779b0
    s_and_b32 s{sTAG}, s{sE}, 0xfffffff0
    ''')

vWn0, vWn1, vWt0, vWt1, vP, vL16, vKr, vVr, vStV, vStH, vX0, vX1, vX2, vG, vX3 = range(1, 16)
vWn2, vWt2, vP1, vP2 = 44, 0, vStH, vL16
vT = 16
vSel = 20
vWf = 24
vAf = 36
vA0, vA1, vAB = 48, 64, 80
vL = 96
vPan = 128
vQl = 120

a(f's_setprio {opt("PC", 0)}')
a(f'''
s_and_b32 s{sTT}, s{sWV}, 1
s_lshr_b32 s{sCH}, s{sWV}, 1
s_mov_b32 s{sHI}, 0
s_mov_b32 s{sHI+1}, -1
s_mov_b32 s{sVM}, 0xffff
s_mov_b32 s{sVM+1}, 0xffff
''')
L, TOK, H, T1, T2, T3, ROW = 'v0', 'v48', 'v49', 'v50', 'v51', 'v52', 'v53'
a(f'''
v_and_b32 {TOK}, 31, {L}
v_lshrrev_b32 {H}, 5, {L}
v_lshlrev_b32 v{vL16}, 4, {L}
''')
a(f'''
v_bfe_u32 {T1}, {L}, 3, 1
v_xor_b32 {T1}, s{sCH}, {T1}
v_lshlrev_b32 {T1}, 6, {T1}
v_bfe_u32 {T2}, {L}, 4, 1
v_lshl_add_u32 {T1}, {T2}, 5, {T1}
v_and_b32 {T2}, 3, {L}
v_lshl_add_u32 {T1}, {T2}, 3, {T1}
v_bfe_u32 {T2}, {L}, 2, 2
v_lshl_add_u32 {T1}, {T2}, 7, {T1}
v_lshl_add_u32 v{vWn0}, {H}, 10, {T1}
v_add_u32 v{vWn1}, 65536, v{vWn0}
v_lshl_add_u32 v{vWt0}, {H}, 9, {T1}
v_add_u32 v{vWt1}, 65536, v{vWt0}
v_add_u32 v{vWn2}, 65536, v{vWn1}
''')
a(f'''
v_lshlrev_b32 {T1}, 4, {TOK}
v_lshl_add_u32 {T1}, {H}, 10, {T1}
s_lshl_b32 s{sT0}, s{sTT}, 9
v_add_u32 v{vP}, s{sT0}, {T1}
s_lshl_b32 s{sT0}, s{sTT}, 12
s_lshl_b32 s{sT1}, s{sCH}, 10
s_add_u32 s{sT0}, s{sT0}, s{sT1}
v_add_u32 v{vKr}, s{sT0}, v{vL16}
s_add_u32 s{sT0}, s{sT0}, 2048
v_and_b32 {T2}, 15, {L}
v_lshlrev_b32 {T2}, 4, {T2}
v_lshl_add_u32 {T2}, {H}, 8, {T2}
v_add_u32 v{vVr}, s{sT0}, {T2}
v_bfe_u32 {T3}, {L}, 4, 1
v_lshl_add_u32 v{vStV}, {T3}, 13, v{vVr}
s_lshl_b32 s{sT0}, s{sTT}, 4
s_add_u32 s{sT0}, s{sT0}, {VTAB}
v_mov_b32 {T1}, s{sT0}
v_cndmask_b32 v{vVr}, {T1}, v{vVr}, {sr(sVM,2)}
s_lshl_b32 s{sT0}, s{sR}, 1
v_lshlrev_b32 {T1}, 4, {TOK}
v_lshl_add_u32 {T1}, {H}, 9, {T1}
v_add_u32 {T1}, {VTAB}, {T1}
v_add_u32 {T2}, s{sT0}, {TOK}
v_cmp_le_u32 vcc, 8, {T2}
v_mov_b32 {T2}, 0x3f803f80
v_cndmask_b32 v{vL+8}, 0, {T2}, vcc
v_mov_b32 v{vL+9}, v{vL+8}
v_mov_b32 v{vL+10}, v{vL+8}
v_mov_b32 v{vL+11}, v{vL+8}
ds_write_b128 {T1}, {vr(vL+8,4)}
''')
a(f'''
s_lshr_b32 s{sT0}, s{sC}, 2
s_add_u32 s{sT0}, s{sT0}, 1
s_sub_u32 s{sT1}, 0, s{sT0}
s_bitcmp1_b32 s{sC}, 1
s_cselect_b32 s{sT0}, s{sT1}, s{sT0}
s_lshl_b32 s{sT1}, s{sR}, 6
s_add_u32 s{sT0}, s{sT0}, s{sT1}
s_lshl_b32 s{sT1}, s{sTT}, 5
s_add_u32 s{sT0}, s{sT0}, s{sT1}
v_add_u32 {T1}, s{sT0}, {TOK}
v_mov_b32 {T2}, 2047
v_cmp_gt_u32 {sr(sZM,2)}, {T1}, {T2}
v_and_b32 {T1}, {T2}, {T1}
v_lshrrev_b32 {T2}, 6, {T1}
v_and_b32 {T1}, 63, {T1}
v_lshlrev_b32 {T1}, 4, {T1}
v_lshl_add_u32 {T1}, {T2}, 16, {T1}
v_lshl_add_u32 v{vStH}, {H}, 10, {T1}
''')
a(f'''
v_bfe_u32 {T1}, {L}, 4, 1
v_bfe_u32 {T2}, {L}, 2, 1
v_cmp_eq_u32 {sr(sGM,2)}, {T1}, {T2}
v_mov_b32 {T3}, 0x3f803f80
v_cndmask_b32 v{vSel}, 0, {T3}, {sr(sGM,2)}
v_mov_b32 v{vSel+1}, v{vSel}
v_mov_b32 v{vSel+2}, v{vSel}
v_mov_b32 v{vSel+3}, v{vSel}
v_and_b32 {T1}, 3, {L}
v_cmp_eq_u32 vcc, 0, {T1}
v_cmp_eq_u32 {sr(sQ1,2)}, 1, {T1}
v_cmp_eq_u32 {sr(sQ2,2)}, 2, {T1}
v_cmp_eq_u32 {sr(sQ3,2)}, 3, {T1}
s_and_b64 vcc, vcc, {sr(sGM,2)}
s_and_b64 {sr(sGM,2)}, {sr(sGM,2)}, {sr(sQ1,2)}
v_mov_b32 v40, {GATE+2176}
v_mov_b32 {T1}, {GATE+1088}
v_cndmask_b32 v40, v40, {T1}, vcc
v_lshlrev_b32 {T1}, 4, {H}
v_add_u32 {T1}, {GATE}, {T1}
v_cndmask_b32 v40, v40, {T1}, {sr(sGM,2)}
v_add_u32 {T1}, {GATE+1088}, v{vL16}
v_mov_b32 v{vL}, {T3}
v_mov_b32 v{vL+1}, {T3}
v_mov_b32 v{vL+2}, {T3}
v_mov_b32 v{vL+3}, {T3}
v_mov_b32 v{vL+4}, 0
v_mov_b32 v{vL+5}, 0
v_mov_b32 v{vL+6}, 0
v_mov_b32 v{vL+7}, 0
ds_write_b128 {T1}, {vr(vL,4)}
ds_write_b128 {T1}, {vr(vL+4,4)} offset:1088
''')
vXa, vGa = 36, 40
a(f'''
s_lshl_b32 s{sT0}, s{sTT}, 5
v_add_u32 {ROW}, s{sT0}, {TOK}
v_bfe_u32 {T1}, {ROW}, 1, 3
v_lshlrev_b32 {ROW}, 7, {ROW}
v_xor_b32 {T2}, {T1}, {H}
''')
for s in range(4):
    a(f'v_xor_b32 {T3}, {2*s}, {T2}')
    a(f'v_lshl_add_u32 v{vXa+s}, {T3}, 4, {ROW}')
a(f'v_lshlrev_b32 {T1}, 2, {H}')
a(f'v_sub_u32 {T1}, {TOK}, {T1}')
for r in range(16):
    a(f'v_cmp_gt_i32 {sr(sMASK+2*r,2)}, {(r & 3) + 8 * (r >> 2)}, {T1}')
a(f'v_add_u32 v{vWt2}, 65536, v{vWt1}')
a(f'v_add_u32 v{vP2}, 131072, v{vP}')
a('s_waitcnt lgkmcnt(0)')
sOH, sOK0, sOK1, sOX1, sOST, sOO, sOH3, sOOUT, sJV, sNEG, sTILE = range(4, 15)
a(f'''
s_mov_b32 s{sSRD}, s{sOUT}
s_mov_b32 s{sSRD+1}, s{sOUT+1}
s_mov_b32 s{sSRD+2}, {2048*1024}
s_mov_b32 s{sWSD}, s{sWS}
s_mov_b32 s{sWSD+1}, s{sWS+1}
s_lshl_b32 s{sTILE}, s{sC}, 13
s_lshl_b32 s{sT1}, s{sCH}, 12
s_add_u32 s{sTILE}, s{sTILE}, s{sT1}
s_add_u32 s{sOH}, s{sTILE}, {WS_H}
s_lshl_b32 s{sOK0}, s{sR}, 3
s_add_u32 s{sOK0}, s{sOK0}, s{sC}
s_lshl_b32 s{sOK0}, s{sOK0}, 14
s_add_u32 s{sOK0}, s{sOK0}, {WS_KV}
s_add_u32 s{sOK1}, s{sOK0}, 8192
s_mul_i32 s{sT0}, s{sR}, {X1_STRIDE}
s_add_u32 s{sT0}, s{sT0}, {WS_X1}
s_add_u32 s{sOX1}, s{sT0}, s{sTILE}
s_lshr_b32 s{sOST}, s{sTILE}, 3
s_add_u32 s{sOST}, s{sOST}, s{sT0}
s_add_u32 s{sOST}, s{sOST}, 65536
s_lshl_b32 s{sT0}, s{sR}, 16
s_add_u32 s{sOO}, s{sT0}, s{sTILE}
s_add_u32 s{sOO}, s{sOO}, {WS_O}
s_lshl_b32 s{sT1}, s{sTT}, 15
s_add_u32 s{sOOUT}, s{sT0}, s{sT1}
s_lshr_b32 s{sT1}, s{sTILE}, 6
s_add_u32 s{sOOUT}, s{sOOUT}, s{sT1}
s_mul_i32 s{sOH3}, s{sR}, {H3_STRIDE}
s_add_u32 s{sOH3}, s{sOH3}, s{sTILE}
s_add_u32 s{sOH3}, s{sOH3}, {WS_H3}
s_add_u32 s{sNEG}, s{sOH3}, 131072
s_cmp_ge_u32 s{sC}, 6
s_cselect_b32 s{sNEG}, {WS_REC}, s{sNEG}
s_lshl_b32 s{sT1}, s{sC}, 13
s_add_u32 s{sOH3}, s{sOH3}, s{sT1}
s_lshl_b32 s{sJV}, s{sR}, 1
s_add_u32 s{sJV}, s{sJV}, s{sTT}
s_sub_i32 s{sJV}, 8, s{sJV}
s_max_i32 s{sJV}, s{sJV}, 0
''')

ticks = []
last_read = {}
freed = set()
pub_next = [None]
def want_pub(stage): pub_next[0] = stage
stage_mark = {}
def nstores(): return sum(1 for i in a.ins if i.op.startswith('buffer_store'))
def mark(stage): return lambda: stage_mark.__setitem__(stage, nstores())
def tick(needW=None, needA=None, name='', dur=140):
    pub = pub_next[0]; pub_next[0] = None
    if pub: a(f's_waitcnt vmcnt({nstores() - stage_mark.get(pub, nstores())})')
    a('s_barrier')
    fr = [k for k, s in last_read.items() if s <= lg.done and k not in freed]
    freed.update(fr)
    ticks.append(dict(needW=needW, needA=needA, free=fr, pub=pub, name=name, dur=dur))

class Step:
    def __init__(self, w, s, order, acc, act, aslot=None, aread=None, swap=False, c0=None, pre=None, post=None, lastw=False, lasta=False, cs=None, cs0=False, xa=None, dur=140):
        self.__dict__.update(locals())

def run_steps(steps, fill=None):
    fill = fill or {}
    seqs = {}
    def reads(n, part=7):
        s_ = steps[n]
        if part & 1:
            if s_.pre and n >= PD: s_.pre()
            if s_.s == 0: tick(s_.w, s_.aslot if s_.xa is None else s_.xa, f'W{s_.w}', s_.dur)
            if s_.pre and n < PD: s_.pre()
        if not part & 2: pass
        elif s_.aread == 'x':
            lg.issue(f'ds_read_b128 {vr(s_.act,4)}, v{vXa+s_.s} offset:{apos(s_.aslot)}')
        elif s_.aread == 'p':
            o_ = apos(s_.aslot) + s_.s * 2048
            lg.issue(f'ds_read_b128 {vr(s_.act,4)}, v{(vP, vP1, vP2)[o_ >> 16]} offset:{o_ & 65535}')
        if not part & 4: return
        off = wpos(s_.w) + s_.s * 2048
        base = ((vWn0, vWn1, vWn2) if s_.order == 'n' else (vWt0, vWt1, vWt2))[off >> 16]
        off &= 65535
        d = 512 if s_.order == 'n' else 1024
        f = vWf + (n % 3) * 4
        lg.issue(f'ds_read_b64_tr_b16 {vr(f,2)}, v{base} offset:{off}')
        seqs[n] = lg.issue(f'ds_read_b64_tr_b16 {vr(f+2,2)}, v{base} offset:{off+d}')
        if s_.lastw: last_read[('W', s_.w)] = seqs[n]
        if s_.lasta: last_read[('A', s_.aslot)] = seqs[n]
    for n in range(min(PD, len(steps))): reads(n)
    for n, s_ in enumerate(steps):
        fl = list(fill.get(n, []))
        lg.wait(seqs[n])
        f = vWf + (n % 3) * 4
        c = s_.c0 if s_.c0 is not None else vr(s_.acc, 16)
        A, B = (vr(f, 4), vr(s_.act, 4)) if not s_.swap else (vr(s_.act, 4), vr(f, 4))
        more = n + PD < len(steps)
        split = s_.cs is not None and opt('B1S', 2)
        if s_.post: s_.post()
        if split and more: reads(n + PD, 1)
        if s_.cs is not None:
            a(f'v_mfma_f32_16x16x32_bf16 {vr(s_.cs,4)}, {vr(vSel,4)}, {vr(f,4)}, {"0" if s_.cs0 else vr(s_.cs,4)}')
        if split and more and opt('B1S', 2) == 2: reads(n + PD, 2)
        a(f'v_mfma_f32_32x32x16_bf16 {vr(s_.acc,16)}, {A}, {B}, {c}')
        if more: reads(n + PD, 7 if not split else 4 if opt('B1S', 2) == 2 else 6)
        for x in fl: emit(x)

def spread(items, start, end):
    d = {}
    n = end - start
    for i, x in enumerate(items):
        d.setdefault(start + i * n // len(items), []).append(x)
    return d
def merge(*ds):
    o = {}
    for d in ds:
        for k, v in d.items(): o.setdefault(k, []).extend(v)
    return o
def pack(acc, dst): return [f'v_cvt_pk_bf16_f32 v{dst+i}, v{acc+2*i}, v{acc+2*i+1}' for i in range(8)]
def store2(pk, voff, s0, s1=None, d=2048):
    return [f'buffer_store_dwordx4 {vr(pk,4)}, v{voff}, {sr(sWSD,4)}, s{s0} offen sc1',
            f'buffer_store_dwordx4 {vr(pk+4,4)}, v{voff}, {sr(sWSD,4)}, s{s0 if s1 is None else s1} offen offset:{d} sc1']
def pubat(stage): return lambda: want_pub(stage)

def ln_consts(sum_, sq, vCA, vCB, vIR, vNM, t):
    return f'''v_mul_f32 v{t}, {f32(-1.0/512)}, v{sum_}
    v_mul_f32 v{t+1}, v{t}, v{t}
    v_mov_b32 v{t+2}, {f32(1.0/512)}
    v_fma_f32 v{t+1}, v{sq}, v{t+2}, -v{t+1}
    v_max_f32 v{t+1}, 0, v{t+1}
    v_add_f32 v{t+1}, {f32(1e-5)}, v{t+1}
    v_rsq_f32 v{t+2}, v{t+1}
    v_cvt_pk_bf16_f32 v{vNM}, v{t}, v{t}
    v_mul_f32 v{vIR}, v{t+1}, v{t+2}
    v_mul_f32 v{vCA}, {f32(-C1)}, v{t+2}
    v_mul_f32 v{t+1}, v{t+2}, v{t+2}
    v_mul_f32 v{t+1}, {f32(0.044715)}, v{t+1}
    v_mul_f32 v{vCB}, v{vCA}, v{t+1}
    v_lshlrev_b32 v{t+1}, 16, v{vNM}
    v_sub_f32 v{t+1}, v{t}, v{t+1}
    v_cvt_pk_bf16_f32 v{t+1}, v{t+1}, v{t+1}
    v_cndmask_b32 v{vNM}, v{vNM}, v{t+1}, {sr(sHI,2)}'''.replace('    ', '').split('\n')
def cs_fix(cs, vCSA, vNM, acc, t):
    return [f'v_cvt_pk_bf16_f32 v{t}, v{cs}, v{cs}',
            f'v_lshlrev_b32 v{t}, 16, v{t}',
            f'v_sub_f32 v{t}, v{cs}, v{t}',
            f'v_cvt_pk_bf16_f32 v{vCSA}, v{cs}, v{t}',
            f'v_mfma_f32_32x32x16_bf16 {vr(acc,16)}, {vr(vCSA,4)}, {vr(vNM,4)}, {vr(acc,16)}']
def gelu_pk(acc, vCA, vCB, vIR, tmp, dst):
    o = []
    for i in range(0, 16, 2): o.append(f'v_pk_mul_f32 {vr(tmp+i,2)}, {vr(acc+i,2)}, {vr(acc+i,2)}')
    for i in range(0, 16, 2): o.append(f'v_pk_fma_f32 {vr(tmp+i,2)}, {vr(tmp+i,2)}, {vr(vCB,2)}, {vr(vCA,2)} op_sel_hi:[1,0,0]')
    for i in range(0, 16, 2): o.append(f'v_pk_mul_f32 {vr(tmp+i,2)}, {vr(tmp+i,2)}, {vr(acc+i,2)}')
    for i in range(16): o.append(f'v_exp_f32 v{tmp+i}, v{tmp+i}')
    for i in range(0, 16, 2): o.append(f'v_pk_fma_f32 {vr(tmp+i,2)}, {vr(tmp+i,2)}, {vr(vIR,2)}, {vr(vIR,2)} op_sel_hi:[1,0,0]')
    for i in range(16): o.append(f'v_rcp_f32 v{tmp+i}, v{tmp+i}')
    for i in range(0, 16, 2): o.append(f'v_pk_mul_f32 {vr(tmp+i,2)}, {vr(tmp+i,2)}, {vr(acc+i,2)}')
    for i in range(0, 16, 2): o.append(f'v_cvt_pk_bf16_f32 v{dst+i//2}, v{tmp+i}, v{tmp+i+1}')
    return o
def gelu_sc(acc, vCA, vCB, vIR, tmp, dst):
    o = []
    def chain(e, t):
        return [f'v_mul_f32 v{t}, v{acc+e}, v{acc+e}', f'v_fma_f32 v{t}, v{t}, v{vCB}, v{vCA}', f'v_mul_f32 v{t}, v{t}, v{acc+e}',
                f'v_exp_f32 v{t}, v{t}', f'v_fma_f32 v{t}, v{t}, v{vIR}, v{vIR}', f'v_rcp_f32 v{t}, v{t}', f'v_mul_f32 v{t}, v{t}, v{acc+e}']
    for g in range(0, 16, 2):
        t = tmp + (g & 2)
        c0, c1 = chain(g, t), chain(g + 1, t + 1)
        for x, y in zip(c0, c1): o += [x, y]
        o.append(f'v_cvt_pk_bf16_f32 v{dst+g//2}, v{t}, v{t+1}')
    return o

vCS, vSG, vSQ = 64, 68, 72
steps = []
for n in range(32):
    j, s = divmod(n, 4)
    P = vPan + 4 * n
    G = vL + 16 + (n % 3) * 4
    def pre(n=n, G=G):
        lg.issue(f'ds_read_b128 {vr(G,4)}, v{vGa} offset:{n*32}')
    def post(n=n, s=s, P=P, G=G):
        if s == 3:
            for q in range(8):
                sq = vSQ + 4 * (q & 3)
                Pq = P - 12 + 2 * q
                a(f'v_mfma_f32_4x4x4_16b_bf16 {vr(sq,4)}, {vr(Pq,2)}, {vr(Pq,2)}, {"0" if n == 3 and q < 4 else vr(sq,4)}')
        a(f'v_mfma_f32_16x16x32_bf16 {vr(vSG,4)}, {vr(G,4)}, {vr(P,4)}, {"0" if n == 0 else vr(vSG,4)}')
    steps.append(Step(W_1 + j, s, 'n', vA0, P, aslot=A_X + j, aread='x', c0='0' if n == 0 else None, pre=pre, post=post, lastw=(s == 3), lasta=(s == 3), cs=vCS, cs0=(n == 0), dur=opt('DB1', 400) if j < 7 else opt('DB17', 800)))
stamp('setup')
RES = vAB + 8
cA, cB, cI, cNM, cCS, cT = vL, vL + 2, vL + 4, vL + 8, vL + 12, vAf + 9
zer = [f'v_mov_b32 v{r}, 0' for r in (cNM+1, cNM+2, cNM+3, cCS+1, cCS+2, cCS+3)]
run_steps(steps, spread(zer, 4, 10))
stamp('B1 loop')
for i in range(8): a(f'v_add_f32 v{vSQ+i}, v{vSQ+i}, v{vSQ+8+i}')
for i in range(4): a(f'v_add_f32 v{vSQ+i}, v{vSQ+i}, v{vSQ+4+i}')
for i, m in ((1, sQ1), (2, sQ2), (3, sQ3)): a(f'v_cndmask_b32 v{vSQ}, v{vSQ}, v{vSQ+i}, {sr(m,2)}')
a(f'''
v_mov_b32 v{vSQ+1}, v{vSQ}
v_mul_f32 v{vG}, {f32(-LOG2E)}, v{vSG+1}
v_exp_f32 v{vG}, v{vG}
v_permlane32_swap_b32 v{vSQ}, v{vSQ+1}
v_add_f32 v{vSQ}, v{vSQ}, v{vSQ+1}
''')
lc = ln_consts(vSG, vSQ, cA, cB, cI, cNM, cT)
for x in [lc[0], lc[7]] + [y.replace(f'v{cT+1}', f'v{cT+2}') for y in lc[13:17]]: a(x)
for x in cs_fix(vCS, cCS, cNM, vA0, cT + 2): a(x)
lg.all()
tick(name='B1e', dur=600) if not opt('GI', 0) else None
for x in lc[1:7] + [f'v_add_f32 v{vG}, 1.0, v{vG}'] + lc[8:13] + [f'v_rcp_f32 v{vG}, v{vG}']: a(x)
PK = vAf
GI = opt('GI', 0)
zm = [f'v_cndmask_b32 v{PK+i}, v{PK+i}, 0, {sr(sZM,2)}' for i in range(8)]
hs2 = store2(PK, vStH, sOH)
hfill = {}
if GI:
    g = gelu_sc(vA0, cA, cB, cI, vT, PK)
    hfill = spread(g[:60] + zm[:4] + g[60:] + zm[4:] + ['\n'.join(hs2), mark(1)], 0, GI)
else:
    for x in gelu_pk(vA0, cA, cB, cI, vA1, PK) + zm + hs2: a(x)
    mark(1)()
aK, aV, aQ = (vA1, vA0, vA1) if GI else (vA0, vA1, vA0)
stamp('B1 epi')

steps = []
for p, (w0, acc, swap) in enumerate(((W_K, aK, False), (W_V, aV, True), (W_Q, aQ, False))):
    for n in range(32):
        j, s = divmod(n, 4)
        steps.append(Step(w0 + j, s, 'n', acc, vPan + 4 * n, swap=swap, c0='0' if n == 0 else None, lastw=(s == 3), dur=opt('DKG', 280) if p == 0 and n <= GI else 145))
unres = [f's_sub_u32 s{sT0}, s{sC}, s{sRT1}\ns_and_b32 s{sT0}, s{sT0}, 7\ns_lshl_b32 s{sT0}, s{sT0}, 1\ns_add_u32 s{sT0}, s{sT0}, s{sCH}\ns_lshl_b32 s{sT0}, s{sT0}, 3']
for q in range(2):
    unres.append(f's_set_gpr_idx_on s{sT0}, 1\n' + '\n'.join(f'v_mov_b32_e32 v{RES+4*q+i}, v{vPan+4*q+i}' for i in range(4)) + '\ns_set_gpr_idx_off')
unres += [f'v_add_u32 v{vP1}, 65536, v{vP}'] + [f'v_permlane32_swap_b32 v{RES+i}, v{RES+i+2}' for i in (0, 1, 4, 5)]
for j in range(8):
    unres += [f'v_lshlrev_b32 v{vAB+2*j}, 16, v{RES+j}', f'v_and_b32 v{vAB+2*j+1}, 0xffff0000, v{RES+j}']
def stream_steps(w0, a0, nsteps, acc, c0=None, phase=0):
    o = []
    for n in range(nsteps):
        j, s = divmod(n, 4)
        last = s == 3 or n == nsteps - 1
        o.append(Step(w0 + j, s, 't', acc, vAf + ((n + phase) % 3) * 4, aslot=a0 + j, aread='p', c0=c0 if n == 0 else None, lastw=last, lasta=last))
    return o
PKS = vL + 16
vK, vV = 128, 164
M8 = [20, 21, 22, 23, 252, 253, 254, 255]
vVs, vVa = vWn0, vWn1
vK_ = vK; vK = vT
att_pre = [f'v_mov_b32 v{vK+1}, 0xffff0000', f'v_mov_b32 v{vK+2}, 0xffff']
for i in range(8):
    att_pre += [f'v_cndmask_b32 v{M8[i]}, 0, v{vK+2}, {sr(sMASK+4*i,2)}', f'v_cndmask_b32 v{vK}, 0, v{vK+1}, {sr(sMASK+4*i+2,2)}', f'v_or_b32 v{M8[i]}, v{M8[i]}, v{vK}']
att_pre += [f'v_add_u32 v{vX2}, {apos(A_KO)}, v{vKr}', f'v_mov_b32 v{vK+3}, 4096',
            f'v_cndmask_b32 v{vVs}, 16, v{vK+3}, {sr(sVM,2)}',
            f'v_mov_b32 v{vK+3}, {apos(A_KO)}', f'v_cndmask_b32 v{vX3}, 0, v{vK+3}, {sr(sVM,2)}', f'v_add_u32 v{vX3}, v{vX3}, v{vVr}']
vK = vK_
APS = 14
qfin = [f'v_mul_f32 v{aQ+i}, {f32(QSCALE)}, v{aQ+i}' for i in range(16)] + pack(aQ, vQl)
sta = [f'v_and_b32 v{vX0}, 1023, v{vP}', f'v_lshrrev_b32 v{vX0}, 1, v{vX0}', f'v_mov_b32 v{vX1}, 0x3f803f80']
steps += stream_steps(W_2, A_H, 32, vAB, phase=96)
fill = merge(hfill, spread(unres + sta, 44, 62), {31: [st('K')], 63: [st('V')], 95: [st('Q')]},
             {opt('PUB1', GI + 20): [pubat(1)]},
             spread(pack(aK, vL), 35, 39), {opt('KST', 39): store2(vL, vKr, sOK0, sOK1, 0)},
             spread(pack(aV, PKS), 66, 69), {68: store2(PKS, vStV, sOK0, None, 512)},
             {opt('PUB2', 88): [pubat(2)]},
             spread(qfin, 99, 111), spread(att_pre[APS:], 111, 128), spread(att_pre[:APS], 72, 92))
run_steps(steps, fill)
stamp('B2 loop')
for x in pack(vAB, PK): a(x)
for x in store2(PK, vP, sOX1): a(x)
for i in range(8):
    a(f'v_dot2_f32_bf16 v{vA0}, v{PK+i}, v{vX1}, {"0" if i==0 else "v%d"%vA0}')
    a(f'v_dot2_f32_bf16 v{vA0+1}, v{PK+i}, v{PK+i}, {"0" if i==0 else "v%d"%(vA0+1)}')
a(f'''
v_mov_b32 v{vA0+2}, v{vA0}
v_mov_b32 v{vA0+3}, v{vA0+1}
v_permlane32_swap_b32 v{vA0}, v{vA0+2}
v_permlane32_swap_b32 v{vA0+1}, v{vA0+3}
v_add_f32 v{vA0}, v{vA0}, v{vA0+2}
v_add_f32 v{vA0+1}, v{vA0+1}, v{vA0+3}
buffer_store_dwordx2 {vr(vA0,2)}, v{vX0}, {sr(sWSD,4)}, s{sOST} offen sc1
''')
tick(name='B2e', dur=600)
stamp('B2 epi')

vCB_, vM8 = 24, 40
vS0, vS1, vMG, vO = 236, 96, 64, 48
Kf = lambda j: vK + 4 * j
Vf = lambda j, b: vV + 8 * j + 4 * b
MF = lambda d, x, y, c: f'v_mfma_f32_32x32x16_bf16 {vr(d,16)}, {vr(x,4)}, {vr(y,4)}, {c if c == "0" else vr(c,16)}'
kseq = {}
def k_read(a0, j):
    r_, off = (vKr if a0 == A_KE else vX2), 4096 * j
    kseq[j] = lg.issue(f'ds_read_b128 {vr(Kf(j),4)}, v{r_} offset:{off}')
vseq = {}
def v_op(a0, j, last=False):
    base = vVr if a0 == A_KE else vX3
    ad = vVa if j else base
    def pre():
        if j: a(f'v_mad_u32_u24 v{vVa}, v{vVs}, {j}, v{base}')
    def rd():
        lg.issue(f'ds_read_b128 {vr(Vf(j,0),4)}, v{ad}')
        vseq[j] = lg.issue(f'ds_read_b128 {vr(Vf(j,1),4)}, v{ad} offset:512')
        if last:
            for i in range(5): last_read[('A', a0 + i)] = vseq[j]
    return (pre, rd)
def k_op(a0, js):
    return (lambda: None, lambda: [k_read(a0, j) for j in js])
assert apos(A_KE) == 0
vMx, vMy = vT, vT + 1
sFL = [96, 98]
def o_norm(pk):
    return ([f'v_rcp_f32 v{vO+9}, v{vO+8}'] + [f'v_mul_f32 v{vO+i}, v{vO+i}, v{vO+9}' for i in range(8)] +
            [f'v_cvt_pk_bf16_f32 v{pk+i}, v{vO+2*i}, v{vO+2*i+1}' for i in range(4)])
def o_final(t):
    n = o_norm(112 + 4 * t)
    chk = [f'v_subrev_u32 v{vO+10}, {63<<23}, v{vO+8}', f'v_lshrrev_b32 v{vO+10}, 30, v{vO+10}', f'v_cmp_ne_u32 {sr(sFL[t],2)}, 0, v{vO+10}']
    fin = [f'v_add_f32_e64 v{vO+11}, |v{vO}|, |v{vO+1}|'] + [f'v_add_f32_e64 v{vO+11}, v{vO+11}, |v{vO+i}|' for i in range(2, 8)] + \
          [f'v_cmp_class_f32 vcc, v{vO+11}, v{vT+2}', f's_nop 0\ns_or_b64 {sr(sFL[t],2)}, {sr(sFL[t],2)}, vcc']
    return n[:1] + chk + n[1:] + (store2(112, vP, sOO) if t == 1 else []) + fin
rq = []
mq = []
mgap = [0]
def pop_m():
    f = mq.pop(0)
    r_ = rq.pop(0) if rq else None
    if r_: r_[0]()
    f()
    if r_: r_[1]()
    mgap[0] = 0
def va(x, cost=4):
    a(x)
    mgap[0] += cost
    if mq and mgap[0] >= 24: pop_m()
def flush_m():
    while mq: pop_m()
def flush_r():
    while rq:
        r_ = rq.pop(0); r_[0](); r_[1]()
def QK(d, j, t):
    def f():
        lg.wait(kseq[j]); a(MF(d, Kf(j), vQl + 4 * t, '0'))
    return f
def PV(j, b, p, c, then=None):
    def f():
        lg.wait(vseq[j]); a(MF(vO, Vf(j, b), p, c))
        if then: rq.append(then)
    return f
a(f'v_mov_b32 v{vT+2}, 0x207')
tick(needA=A_KE + 4, name='KVE', dur=opt('DKVE', 500))
for j in (0, 8, 1, 2): k_read(A_KE, j)
rq += [v_op(A_KE, 0), v_op(A_KE, 8), k_op(A_KE, (3, 4)), v_op(A_KE, 1), v_op(A_KE, 2), k_op(A_KE, (5, 6)), v_op(A_KE, 3), v_op(A_KE, 4), k_op(A_KE, (7,)),
       v_op(A_KE, 5), v_op(A_KE, 6), v_op(A_KE, 7, True)]
mq += [QK(vMG, 0, 0), QK(vCB_, 8, 0), QK(vS0, 1, 0)]
flush_m()
KI = opt('KI', 3)
bufs2 = [vS0, vS1]
pend = []
for t in range(2):
    mq += pend
    if t == 1: mq.append(QK(vS0, 1, 1))
    for r in range(16): va(f'v_cndmask_b32 v{vMG+r}, v{vCB_+r}, v{vMG+r}, {sr(sMASK+2*r,2)}')
    mq.append(QK(vS1, 2, t))
    for r in range(16): va(f'v_exp_f32 v{vMG+r}, v{vMG+r}', 8)
    flush_m()
    if t == 1:
        for x in o_final(0): va(x)
    for i in range(8): va(f'v_cvt_pk_bf16_f32 v{vMG+i}, v{vMG+2*i}, v{vMG+2*i+1}')
    for i in range(8): va(f'v_and_b32 v{vMG+8+i}, v{vMG+i}, v{M8[i]}')
    mq.append(PV(0, 0, vMG + 8, '0'))
    for i in range(8): va(f'v_xor_b32 v{vMG+i}, v{vMG+i}, v{vMG+8+i}')
    flush_m()
    pend = [PV(0, 1, vMG + 12, vO), PV(8, 0, vMG, vO), PV(8, 1, vMG + 4, vO)]
    for i in range(7):
        b = bufs2[i % 2]
        if (t, i) in ((0, KI), (1, 0)):
            assert not rq or t == 0 and len(rq) <= 1, (t, i, len(rq))
            flush_r(); lg.all()
        if t == 0 and i == opt('PUB3', 1): want_pub(3)
        if t == 0 and i == KI: tick(needA=A_KO + 4, name='KVO', dur=220)
        else: tick(name=f'T{t}{i}', dur=200 if i < 6 else 650 if t == 0 else 400)
        if t == 0 and i == KI:
            ks = [0, 8] + list(range(1, i + 2))
            rq += [k_op(A_KO, ks[q:q+2]) for q in range(0, len(ks), 2)] + [v_op(A_KO, j) for j in [0, 8] + list(range(1, i))]
        if t == 0 and i > KI: rq.insert(0, k_op(A_KO, (i + 1,)))
        mq += pend
        if 0 < i < 6: mq.append(QK(bufs2[(i + 1) % 2], i + 2, t))
        if t == 0 and i == 6: mq += [QK(vMG, 0, 1), QK(vCB_, 8, 1)]
        mgap[0] = 16
        for r in range(16): va(f'v_exp_f32 v{b+r}, v{b+r}', 8)
        flush_m()
        for q in range(8): va(f'v_cvt_pk_bf16_f32 v{b+q}, v{b+2*q}, v{b+2*q+1}')
        nx = v_op(A_KO, 1 + i, i == 6) if t == 0 and 1 + i >= KI else None
        pend = [PV(1 + i, 0, b, vO), PV(1 + i, 1, b + 4, vO, nx)]
    mgap[0] = 24
for f in pend: f()

def emit_fallback():
    global a
    keep = a; a = Asm(); a.uid = 500000
    Qf, tk, tv = 40, 44, 45
    a('L_fb:')
    a(f's_mov_b32 s{sT3}, 0')
    a('L_fb_head:')
    a(f"""
    s_cmp_eq_u32 s{sT3}, 0
    s_cselect_b64 vcc, {sr(sFL[0],2)}, {sr(sFL[1],2)}
    s_cmp_eq_u64 vcc, 0
    s_cbranch_scc1 L_fb_next
    s_cmp_eq_u32 s{sT3}, 0
    s_cselect_b64 vcc, -1, 0
    """)
    for i in range(4): a(f'v_cndmask_b32 v{Qf+i}, v{vQl+4+i}, v{vQl+i}, vcc')
    a(f"""
    v_and_b32 v46, 4095, v{vKr}
    v_and_b32 v47, 4095, v{vStV}
    v_mov_b32 v{vT+3}, 0x3f803f80
    """)
    for j in range(9):
        a(f"""
        s_add_u32 s{sT0}, s{sTT}, {j}
        s_lshr_b32 s{sT1}, s{sT0}, 1
        s_lshl_b32 s{sT1}, s{sT1}, 17
        s_and_b32 s{sT0}, s{sT0}, 1
        s_lshl_b32 s{sT0}, s{sT0}, 12
        s_add_u32 s{sT0}, s{sT0}, s{sT1}
        s_add_u32 s{sT0}, s{sT0}, s{sOK0}
        s_sub_u32 s{sT0}, s{sT0}, {4<<17}
        s_lshl_b32 s{sT1}, s{sR}, 17
        s_sub_u32 s{sT1}, s{sOK0}, s{sT1}
        s_cmp_le_u32 s{sJV}, {j}
        s_cselect_b32 s{sT0}, s{sT0}, s{sT1}
        s_cselect_b32 s{sT1}, -1, 0xe00
        s_cselect_b32 s{sT2}, -1, 0
        s_cselect_b64 vcc, -1, 0
        s_add_u32 s{sT0}, s{sT0}, s{sT3}
        v_and_b32 v{tk}, s{sT1}, v46
        v_mov_b32 v{tv}, 0x80000000
        v_cndmask_b32 v{tv}, v{tv}, v47, vcc
        v_and_b32 v{Vf(j,0)}, s{sT2}, v{vT+3}
        """)
        for i in range(1, 8): a(f'v_mov_b32 v{Vf(j,0)+i}, v{Vf(j,0)}')
        a(f"""
        buffer_load_dwordx4 {vr(Kf(j),4)}, v{tk}, {sr(sWSD,4)}, s{sT0} offen sc1
        s_mov_b64 exec, {sr(sVM,2)}
        buffer_load_dwordx4 {vr(Vf(j,0),4)}, v{tv}, {sr(sWSD,4)}, s{sT0} offen sc1
        buffer_load_dwordx4 {vr(Vf(j,1),4)}, v{tv}, {sr(sWSD,4)}, s{sT0} offen offset:512 sc1
        s_mov_b64 exec, -1
        """)
    a('s_waitcnt vmcnt(0)')
    a(MF(vMG, Kf(0), Qf, '0')); a(MF(vS0, Kf(8), Qf, '0'))
    for r in range(16): a(f'v_cndmask_b32 v{vMG+r}, v{vS0+r}, v{vMG+r}, {sr(sMASK+2*r,2)}')
    a(f'v_max_f32 v{vMx}, v{vMG}, v{vMG+1}')
    for q in range(2, 16, 2): a(f'v_max3_f32 v{vMx}, v{vMG+q}, v{vMG+q+1}, v{vMx}')
    for j in range(1, 8):
        a(MF(vS0, Kf(j), Qf, '0'))
        for q in range(0, 16, 2): a(f'v_max3_f32 v{vMx}, v{vS0+q}, v{vS0+q+1}, v{vMx}')
    a(f'v_mov_b32 v{vMy}, v{vMx}')
    a(f'v_permlane32_swap_b32 v{vMx}, v{vMy}')
    a(f'v_min_f32_e64 v{vCB_}, -v{vMx}, -v{vMy}')
    for i in range(1, 16): a(f'v_mov_b32 v{vCB_+i}, v{vCB_}')
    for r in range(16): a(f'v_add_f32 v{vMG+r}, v{vMG+r}, v{vCB_}')
    for r in range(16): a(f'v_exp_f32 v{vMG+r}, v{vMG+r}')
    for i in range(8): a(f'v_cvt_pk_bf16_f32 v{vMG+i}, v{vMG+2*i}, v{vMG+2*i+1}')
    for i in range(8): a(f'v_and_b32 v{vMG+8+i}, v{vMG+i}, v{M8[i]}')
    for i in range(8): a(f'v_xor_b32 v{vMG+i}, v{vMG+i}, v{vMG+8+i}')
    for x in (MF(vO, Vf(0, 0), vMG + 8, '0'), MF(vO, Vf(0, 1), vMG + 12, vO), MF(vO, Vf(8, 0), vMG, vO), MF(vO, Vf(8, 1), vMG + 4, vO)): a(x)
    for j in range(1, 8):
        a(MF(vS0, Kf(j), Qf, vCB_))
        for r in range(16): a(f'v_exp_f32 v{vS0+r}, v{vS0+r}')
        for q in range(8): a(f'v_cvt_pk_bf16_f32 v{vS0+q}, v{vS0+2*q}, v{vS0+2*q+1}')
        a(MF(vO, Vf(j, 0), vS0, vO)); a(MF(vO, Vf(j, 1), vS0 + 4, vO))
    for x in o_norm(vS1): a(x)
    a(f"""
    s_lshr_b32 s{sT0}, s{sT3}, 2
    s_add_u32 s{sT0}, s{sT0}, s{sOO}
    buffer_store_dwordx4 {vr(vS1,4)}, v{vP}, {sr(sWSD,4)}, s{sT0} offen sc1
    s_waitcnt vmcnt(0)
    L_fb_next:
    s_add_u32 s{sT3}, s{sT3}, 8192
    s_cmp_eq_u32 s{sT3}, 8192
    s_cbranch_scc1 L_fb_head
    s_nop 7
    s_branch L_fb_done
    """)
    ool.ins += a.ins
    a = keep
emit_fallback()

cA, cB, cI, cNM, cCS, cT = 96, 98, 100, 104, 108, 16
csA = [120, 124]
PK3 = 112
def b3_steps(p, acc):
    o = []
    for n in range(32):
        j, s = divmod(n, 4)
        if p == 0:
            o.append(Step(W_3 + j, s, 't', acc, vPan + 4 * n, aslot=A_X1 + j, aread='p', c0='0' if n == 0 else None, lastw=(s == 3), lasta=(s == 3),
                          dur=opt('DB30', 200)))
        else:
            o.append(Step(W_3 + 8 * p + j, s, 't', acc, vPan + 4 * n, c0='0' if n == 0 else None, lastw=(s == 3), dur=opt('DB3', 230)))
    return o
CSR = 36
setup3 = [f'v_mov_b32 v{r}, 0' for r in (cNM+2, cNM+3, cCS+2, cCS+3)] + \
         [f'v_lshrrev_b32 v{vX1}, 10, v{vP}', f'v_lshl_add_u32 v{vX0}, v{vX1}, 12, v{vX0}\nv_add_u32 v{vX0}, {apos(A_ST) or 65}, v{vX0}'.replace(', 65,', ', 0,'),
          f'v_and_b32 v120, 511, v{vP}', 'v_lshrrev_b32 v120, 2, v120', f'v_lshl_add_u32 v120, v{vX1}, 10, v120',
          f's_lshl_b32 s{sT0}, s{sCH}, 7\ns_add_u32 s{sT0}, s{sT0}, {GATE}\nv_add_u32 v120, s{sT0}, v120', 'v_add_u32 v121, 2048, v120', 'v_add_u32 v122, 4096, v120']
st_seq = [0]
def stats_load():
    for i in range(8): st_seq[0] = lg.issue(f'ds_read_b64 {vr(vA1+2*i,2)}, v{vX0} offset:{512*i}')
    last_read[('A', A_ST)] = st_seq[0]
def cs_load():
    for p in range(3):
        for k in range(2): st_seq[0] = lg.issue(f'ds_read2_b32 {vr(CSR+4*p+2*k,2)}, v{120+p} offset0:{128*k} offset1:{128*k+64}')
sfin = [lambda: lg.wait(st_seq[0])]
for i in range(1, 8):
    sfin += [f'v_add_f32 v{vA1}, v{vA1}, v{vA1+2*i}', f'v_add_f32 v{vA1+1}, v{vA1+1}, v{vA1+2*i+1}']
sfin += [f'v_mov_b32 v{vX2}, v{vA1}', f'v_mov_b32 v{vX3}, v{vA1+1}', f'v_permlane32_swap_b32 v{vA1}, v{vX2}', f'v_permlane32_swap_b32 v{vA1+1}, v{vX3}',
         f'v_add_f32 v{vX2}, v{vA1}, v{vX2}', f'v_add_f32 v{vX3}, v{vA1+1}, v{vX3}']
lc3 = ln_consts(vX2, vX3, cA, cB, cI, cNM, cT)
lc3 = lc3[:15] + [f'v_cvt_pk_bf16_f32 v{cNM+1}, v{cT+1}, v{cT+1}']
def cs3(p, acc):
    c0 = CSR + 4 * p
    o = [f'v_add_f32 v{c0}, v{c0}, v{c0+1}', f'v_add_f32 v{c0+2}, v{c0+2}, v{c0+3}', f'v_add_f32 v{c0}, v{c0}, v{c0+2}']
    f = cs_fix(c0, cCS, cNM, acc, c0 + 1)
    return o + f[:4] + [f'v_mov_b32 v{cCS+1}, v{cCS}', f[4]]
def h3_epi(p, acc, s0, s1):
    nxt = [f's_add_u32 s{sOH3}, s{sOH3}, 8192' if p == 0 else f's_mov_b32 s{sOH3}, s{sNEG}']
    g = gelu_sc(acc, cA, cB, cI, cT, PK3)
    s2 = store2(PK3, vP, sOH3)
    return spread(g + ['\n'.join(s2), mark(5 + p), lambda: a('\n'.join(nxt))], s0, s1)
for x in setup3[4:6] + o_final(1): a(x)
a(f's_or_b64 vcc, {sr(sFL[0],2)}, {sr(sFL[1],2)}')
a('s_cbranch_scc1 L_fb')
a('L_fb_done:')
for x in setup3[6:]: a(x)
fin = [f'v_and_b32 v{vA0}, 511, v{vP}', f'v_lshlrev_b32 v{vA0}, 6, v{vA0}', f'v_lshrrev_b32 v{vA0+1}, 10, v{vP}', f'v_lshl_add_u32 v{vA0}, v{vA0+1}, 4, v{vA0}',
       f'v_sub_f32 v{vA0+2}, 1.0, v{vG}'] + [f'v_mul_f32 v{vA1+i}, v{vG}, v{vA1+i}' for i in range(16)]
G0, G1, G2 = opt('GL0', 22), opt('GL1', 24), opt('GL2', 24)
a3 = stream_steps(W_O, A_O, 32, vA1, c0='0', phase=96)
for x in a3: x.dur = opt('DA3', 250)
run_steps(b3_steps(0, vA0) + b3_steps(1, vA1) + b3_steps(2, vA0) + a3 + stream_steps(W_4, A_H3, 86, vAB, phase=128),
          merge({opt('PUB4', 20): [pubat(4)]}, {0: [stats_load], 2: [cs_load]}, spread(sfin + setup3[:4] + lc3 + cs3(0, vA0), 4, 30),
                h3_epi(0, vA0, 35, 35 + G0), spread(cs3(1, vA1), 60, 64), {opt('PUB5', 35 + G0 + 16): [pubat(5)]},
                spread(cs3(2, vA0), 64, 67), h3_epi(1, vA1, 67, 67 + G1), {opt('PUB6', 67 + G1 + 14): [pubat(6)]},
                h3_epi(2, vA0, 99, 99 + G2), {opt('PUB7', 99 + G2 + 16): [pubat(7)]}, spread(fin, 136, 164)))
stamp('A3B4')
for i in range(0, 16, 2): a(f'v_pk_fma_f32 {vr(vA1+i,2)}, {vr(vAB+i,2)}, {vr(vA0+2,2)}, {vr(vA1+i,2)} op_sel_hi:[1,0,1]')
for x in pack(vA1, PK): a(x)
a(f'''
v_permlane32_swap_b32 v{PK}, v{PK+2}
v_permlane32_swap_b32 v{PK+1}, v{PK+3}
v_permlane32_swap_b32 v{PK+4}, v{PK+6}
v_permlane32_swap_b32 v{PK+5}, v{PK+7}
buffer_store_dwordx4 {vr(PK,4)}, v{vA0}, {sr(sSRD,4)}, s{sOOUT} offen {('', 'sc1', 'nt', 'sc0 sc1')[opt('OF', 0)]}
buffer_store_dwordx4 {vr(PK+4,4)}, v{vA0}, {sr(sSRD,4)}, s{sOOUT} offen offset:32 {('', 'sc1', 'nt', 'sc0 sc1')[opt('OF', 0)]}
''')
dbg_dump()
names = {'c': list(stamp_names)}
a('s_endpgm')
a.ins += ool.ins
sec_comp = a.ins; a.ins = []

NT = len(ticks)
tname = {t['name']: i for i, t in enumerate(ticks)}
rel_tick = {k: i for i, t in enumerate(ticks) for k in t['free']}
def use_tick(kind, idx):
    for i, t in enumerate(ticks):
        n = t['need' + kind]
        if n is not None and n >= idx: return i
    raise Exception((kind, idx))
pub_tick = {t['pub']: i for i, t in enumerate(ticks) if t['pub']}

grp_first = {A_H: 1, A_KE: 2, A_ST: 3, A_O: 4, A_H3: 5, A_H3 + 8: 6, A_H3 + 16: 7}
gate_tick = {1: use_tick('A', A_H) - opt('LA1', 6), 2: tname[{0: 'W39', 1: 'B2e', 2: 'W38'}[opt('G2', 2)]], 3: tname[f'T1{opt("G3", 0)}'],
             4: use_tick('A', A_O) - opt('LA4', 9), 5: use_tick('A', A_H3) - opt('LA5', 5),
             6: use_tick('A', A_H3 + 8) - opt('LA6', 5), 7: use_tick('A', A_H3 + 16) - opt('LA7', 5)}
for g, t in gate_tick.items(): assert t > pub_tick[g], (g, t, pub_tick[g])
def stage_of(i):
    st_ = 0
    for f, g in grp_first.items():
        if i >= f: st_ = g
    return st_
tstart = [0]
for t in ticks: tstart.append(tstart[-1] + t['dur'])
PAIR = opt('PAIR', 1)
worder = list(range(W_END))
if PAIR: worder[W_3:W_3+16] = [W_3 + (q >> 1) + 8 * (q & 1) for q in range(16)]
cost = lambda k, i: (opt('CW3P', 150) if PAIR and W_3 + 8 <= i < W_3 + 16 else opt('CW3', 205)) if k == 'W' and W_3 <= i < W_O else 240 if (k, i) == ('A', A_ST) else opt('CS', 140)
LEAD = opt('LEAD', 700)
plan = {}
nxt = {'W': 0, 'A': 0}
END = {'W': W_END, 'A': A_END}
avail = {p: -1 for p in range(NPOS)}
newpos = {}
want = {}
for (k, i), p in sorted(FIXED.items(), key=lambda x: x[0][1]):
    want.setdefault(p, []).append(-1 if i < A_H else gate_tick[2] + (0 if i < A_KO else opt('KOD', 2)))
RSV = opt('RSV', 0)
def pick(k, i, t):
    if (k, i) in FIXED:
        p = FIXED[(k, i)]
        return p if avail[p] <= t else None
    r_ = rel_tick.get((k, i), NT)
    ok = [p for p in range(NPOS) if avail[p] <= t and (not want.get(p) or r_ <= want[p][0])]
    ok.sort(key=lambda p: (0 if want.get(p) else 1, p))
    return ok[0] if ok else None
def room_for_A(t, u):
    need = sum(1 for i in range(nxt['A'], A_END) if use_tick('A', i) < u and ('A', i) not in FIXED)
    if not need: return True
    i0 = next(i for i in range(nxt['A'], A_END) if ('A', i) not in FIXED)
    sg = stage_of(i0)
    g = max(gate_tick[sg], t)
    free_then = sum(1 for p in range(NPOS) if avail[p] <= g + 1) - 1
    return free_then >= min(need, opt(f'AMIN{sg}', {3: 8}.get(sg, 4)))
bud = 0
pauses = [[opt('Z0', 3), opt('Z1', 6), opt('ZN', 3)], [opt('Y0', 7), opt('Y1', 10), opt('YN', 2)]]
for t in range(-1, NT - 1):
    bud = min(bud, opt('CARRY', 100)) + (opt('B0', 8) * 128 if t < 0 else ticks[t]['dur'] * opt('BUD', 100) // 100)
    while True:
        cands = []
        for k in 'AW':
            i = nxt[k]
            if i >= END[k]: continue
            if k == 'W': i = worder[i]
            if k == 'A' and stage_of(i) and gate_tick[stage_of(i)] > t: continue
            if pick(k, i, t) is None: continue
            u = use_tick(k, i)
            if k == 'W': u = min(use_tick(k, j_) for j_ in worder[nxt[k]:nxt[k]+2])
            if k == 'W' and PAIR and W_3 + 8 <= i < W_3 + 16: u = use_tick(k, i - 8)
            must = u == t + 1 or (t >= 0 and tstart[u] - tstart[t + 1] < LEAD)
            if k == 'W' and not must and not room_for_A(t, u): continue
            cands.append((u, k, i, must))
        if not cands: break
        u, k, i, must = min(cands)
        if bud < cost(k, i) // 2 and not must: break
        pz = [z for z in pauses if z[0] <= t < z[1]]
        if pz:
            if pz[0][2] <= 0 and u > t + 1 + opt('ZM', 2): break
            pz[0][2] -= 1
        p = pick(k, i, t)
        if (k, i) in FIXED: want[p].pop(0)
        avail[p] = rel_tick.get((k, i), NT)
        newpos[(k, i)] = p
        plan.setdefault(t, []).append((k, i)); nxt[k] += 1; bud -= cost(k, i)
    for k in 'AW':
        assert all(use_tick(k, j_) > t + 1 for j_ in (worder if k == 'W' else range(A_END))[nxt[k]:nxt[k]+3]), ('late', k, nxt[k], t)
assert nxt == END, nxt
if not PASS2:
    json.dump({f'{k}:{i}': p for (k, i), p in newpos.items()}, open(POSF, 'w'))
    import os
    os.execv(sys.executable, [sys.executable] + sys.argv + ['--pass2'])
assert all(POS[(k, str(i))] == p for (k, i), p in newpos.items())

sOFF, sB3, sHW, sHA, sNEED = 51, 52, 53, 54, 55
sCH8 = 60
sAB = 68
sSRA = 80
a('L_load:')
a(f's_setprio {opt("PL", 3)}')
vS = {3072: 24, 1024: 28, 2752: 32}
vXo, vLin, vKVo = 10, 14, 36
a(f"""
s_sub_u32 s{sHA}, s{sWV}, 4
s_lshl_b32 s{sT0}, s{sHA}, 5
v_lshrrev_b32 v1, 3, v0
v_add_u32 v1, s{sT0}, v1
v_and_b32 v3, 7, v0
v_lshrrev_b32 v2, 4, v0
v_xor_b32 v2, v2, v3
v_lshlrev_b32 v4, 10, v1
v_lshl_add_u32 v{vXo}, v2, 4, v4
v_xor_b32 v2, 4, v2
v_lshl_add_u32 v{vXo+1}, v2, 4, v4
v_add_u32 v{vXo+1}, 7168, v{vXo+1}
v_add_u32 v{vXo+2}, 14336, v{vXo}
v_add_u32 v{vXo+3}, 14336, v{vXo+1}
v_bfe_u32 v2, v0, 4, 1
v_lshlrev_b32 v2, 2, v2
v_xor_b32 v2, v2, v3
v_lshlrev_b32 v2, 4, v2
s_lshl_b32 s{sT0}, s{sC}, 7
v_add_u32 v2, s{sT0}, v2
v_add_u32 v28, v4, v2
v_add_u32 v29, 7168, v28
v_add_u32 v30, 7168, v29
v_add_u32 v31, 7168, v30
s_lshl_b32 s{sHA}, s{sHA}, 12
s_lshl_b32 s{sAB}, s{sR}, 16
s_mov_b32 s{sSRA+2}, {2048*1024}
s_mov_b32 s{sSRA+3}, 0x20000
s_lshl_b32 s{sT0}, s{sRT1}, 7
v_lshlrev_b32 v5, 4, v0
v_add_u32 v6, s{sT0}, v5
v_and_b32 v6, 1023, v6
""")
sCH1 = 92
def chunk_table(dst, rot, q0=0, q1=8):
    for q in range(q0, q1):
        a(f's_add_u32 s{dst+q}, s{rot}, {q}')
        a(f's_and_b32 s{dst+q}, s{dst+q}, 7')
assert not DEBUG
a(f"""
s_waitcnt lgkmcnt(0)
""")
dbg_start()
stamp('karg')
a(f"""
s_mov_b32 s{sSRA}, s{sX}
s_mov_b32 s{sSRA+1}, s{sX+1}
s_mov_b32 s{sSRD}, s{sGATE}
s_mov_b32 s{sSRD+1}, s{sGATE+1}
s_mov_b32 s{sSRD+2}, 1024
s_mov_b32 m0, {GATE}
s_mov_b32 s{sWSD}, s{sWS}
s_mov_b32 s{sWSD+1}, s{sWS+1}
buffer_load_dwordx4 v6, {sr(sSRD,4)}, 0 offen lds
""")
def late_setup(part):
    st_, b = ((3072, 24), (2752, 32))[part]
    a(f'v_mul_u32_u24 v3, {st_}, v1')
    a(f'v_add_u32 v{b}, v3, v2')
    for i in range(1, 4): a(f'v_add_u32 v{b+i}, {8*st_-1024}, v{b+i-1}')
    if part == 0: return
    chunk_table(sCH8, sROT)
def late_setup2():
    a(f"""
    v_add_u32 v{vLin}, s{sHA}, v5
    s_cmp_ge_u32 s{sC}, 6
    s_cselect_b32 s{sB3}, 0x200000, 0
    s_add_u32 s{sB3}, s{sB3}, 2048
    s_lshl_b32 s78, s{sC}, 7
    s_add_u32 s79, s78, 128
    s_add_u32 s{sAB+1}, s{sAB}, {WS_H}
    s_add_u32 s{sAB+3}, s{sAB}, {WS_O}
    s_mul_i32 s{sAB+2}, s{sR}, {X1_STRIDE}
    s_add_u32 s{sAB+2}, s{sAB+2}, {WS_X1}
    s_mul_i32 s{sAB+4}, s{sR}, {H3_STRIDE}
    s_add_u32 s{sAB+4}, s{sAB+4}, {WS_H3}
    v_and_b32 v7, 512, v5
    v_mov_b32 v8, 0x80000000
    """)
    for i in range(5):
        a(f"""
        s_add_i32 s{sT1}, s{sR}, {i-4}
        s_max_i32 s{sT1}, s{sT1}, 0
        s_lshl_b32 s{sT1}, s{sT1}, 3
        s_add_u32 s{sT1}, s{sT1}, s{sC}
        s_lshl_b32 s{sT1}, s{sT1}, 14
        s_add_u32 s{sAB+5+i}, s{sT1}, {WS_KV}
        """)
        if i < 4:
            a(f"""
            s_cmp_lt_u32 s{sR}, {4-i}
            s_cselect_b64 vcc, -1, 0
            v_cndmask_b32 v{vKVo+2*i}, v{vLin}, v{7 if KDUP else 8}, vcc
            v_cndmask_b32 v{vKVo+2*i+1}, v{vLin}, v8, vcc
            """)
wdesc = []
for (ptr, size, st_, co) in ((sW1, 512*1024, 1024, 0), (sWQKV, 512*3072, 3072, 1024), (sWQKV, 512*3072, 3072, 2048), (sWQKV, 512*3072, 3072, 0),
                             (sW2, 512*1024, 1024, 0), (sW3, 512*2752, 2752, 's78'), (sW3, 512*2752, 2752, 's79'), (sW3, 512*2752, 2752, f's{sB3}'),
                             (sWO, 512*1024, 1024, 0), (sW4, 1376*1024, 1024, 0), (sW4, 1376*1024, 1024, 65536)):
    for q in range(8): wdesc.append((ptr, size, st_, co, q))
for q in range(6): wdesc.append((sW4, 1376*1024, 1024, (16 + q) * 65536, None))
cur_mat = [None]
def w_issue(idx):
    ptr, size, st_, co, q = wdesc[idx]
    if cur_mat[0] != ptr:
        cur_mat[0] = ptr
        a(f's_mov_b32 s{sSRD}, s{ptr}')
        a(f's_mov_b32 s{sSRD+1}, s{ptr+1}')
        a(f's_mov_b32 s{sSRD+2}, {size}')
    a(f's_add_u32 m0, s{sHA}, {wpos(idx)}')
    if q is None: a(f's_mov_b32 s{sOFF}, {co}')
    else:
        a(f's_mul_i32 s{sOFF}, s{(sCH1 if idx < W_2 else sCH8)+q}, {(128 if idx >= W_4 else 64)*st_}')
        if co: a(f's_add_u32 s{sOFF}, s{sOFF}, {co}')
    for i in range(4): a(f'buffer_load_dwordx4 v{vS[st_]+i}, {sr(sSRD,4)}, s{sOFF} offen offset:{1024*i} {"nt" if idx < opt("WNT", 0) else ""} lds')
    if idx % 8 == 7: stamp(f'w{idx}')
def a_issue(idx):
    a(f's_add_u32 m0, s{sHA}, {apos(idx)}')
    srd, vo = sWSD, [vLin] * 4
    def rot(base, q, extra=0, sh=13):
        a(f's_lshl_b32 s{sOFF}, s{sCH8+q}, {sh}')
        a(f's_add_u32 s{sOFF}, s{sOFF}, s{base}')
        if extra: a(f's_add_u32 s{sOFF}, s{sOFF}, {extra}')
    if idx < A_H:
        chunk_table(sCH1, sRT1, idx, idx + 1)
        a(f's_lshl_b32 s{sOFF}, s{sCH1+idx}, 7')
        a(f's_add_u32 s{sOFF}, s{sOFF}, s{sAB}')
        srd, vo = sSRA, [vXo + i for i in range(4)]
    elif idx < A_KE: rot(sAB + 1, idx - A_H)
    elif idx < A_ST:
        p, i = divmod(idx - A_KE, 5)
        a(f's_add_u32 s{sOFF}, s{sAB+5+i}, {8192*p}')
        if i < 4: vo = [vKVo + 2*i] * 2 + [vKVo + 2*i + 1] * 2
    elif idx == A_ST: a(f's_add_u32 s{sOFF}, s{sAB+2}, 65536')
    elif idx < A_O: rot(sAB + 2, idx - A_X1)
    elif idx < A_H3: rot(sAB + 3, idx - A_O)
    elif idx < A_H3 + 16: rot(sAB + 4, (idx - A_H3) % 8, 8192 * ((idx - A_H3) // 8), 14)
    else: a(f's_add_u32 s{sOFF}, s{sAB+4}, {8192*(idx-A_H3)}')
    if idx == A_END - 1:
        a(f's_cmp_lg_u32 s{sHA}, 0')
        a(f's_cselect_b32 s{sOFF}, {WS_REC}, s{sOFF}')
    fl_ = 'sc1' if idx >= A_H else ('sc1', '', 'nt', 'sc0 sc1', 'nt sc1', 'sc0 nt sc1')[opt('XF', 0)]
    for i in range(4): a(f'buffer_load_dwordx4 v{vo[i]}, {sr(srd,4)}, s{sOFF} offen offset:{1024*i} {fl_} lds')
    if idx == A_ST:
        a(f's_lshr_b32 s{sT0}, s{sHA}, 2')
        a(f's_sub_u32 s{sT0}, s{sHA}, s{sT0}')
        a(f's_add_u32 m0, s{sT0}, {GATE}')
        a(f's_lshl_b32 s{sOFF}, s{sC}, 13')
        a(f's_add_u32 s{sOFF}, s{sOFF}, s{sT0}')
        a(f's_add_u32 s{sOFF}, s{sOFF}, {WS_CS}')
        for i in range(3): a(f'buffer_load_dwordx4 v5, {sr(srd,4)}, s{sOFF} offen offset:{1024*i} sc1 lds')
    if idx in (15, 20, 33, 42, 64): stamp(f'a{idx}')
sSRP, sPI = 84, 88
pdesc = {'wqkv': (sWQKV, 512*3072, 3), 'w2': (sW2, 512*1024, 1), 'w3': (sW3, 512*2752, 3), 'wo': (sWO, 512*1024, 1), 'w4': (sW4, 1376*1024, 3)}
def p_issue(nm):
    ptr, size, n = pdesc[nm]
    a(f's_mov_b32 s{sSRP}, s{ptr}')
    a(f's_mov_b32 s{sSRP+1}, s{ptr+1}')
    a(f's_mov_b32 s{sSRP+2}, {size}')
    a(f's_mul_i32 s{sOFF}, s{sPI}, {1024*n}')
    for i in range(n): a(f'buffer_load_dwordx4 v[48:51], v5, {sr(sSRP,4)}, s{sOFF} offen offset:{1024*i}')
    return n
for nm, key, dflt in (('wqkv', 'PQ', 2), ('w2', 'P2', 2), ('w3', 'P3', -2), ('wo', 'PO', tname['T15']), ('w4', 'P4', tname['T15'])):
    t = opt(key, dflt)
    if t >= 1000: t = tname['KVE'] + t - 1000
    if t >= -1: plan.setdefault(t, []).append(('P', nm))
a(f's_mov_b32 s{sSRP+3}, 0x20000')
a(f's_lshl_b32 s{sPI}, s2, 1')
a(f's_add_u32 s{sPI}, s{sPI}, s{sWV}')
a(f's_sub_u32 s{sPI}, s{sPI}, 4')
SP0 = opt('SP0', -1)
def sp_setup(share_code, d):
    return [share_code, f's_mul_i32 s{sT1}, s{sT0}, {11*64}', f's_min_u32 s{sT1}, s{sT1}, {512*1024 - 11*64}',
            f's_add_u32 s{d}, s{sWO}, s{sT1}', f's_addc_u32 s{d+1}, s{sWO+1}, 0',
            f's_mul_i32 s{sT1}, s{sT0}, {29*64}', f's_min_u32 s{sT1}, s{sT1}, {1376*1024 - 29*64}',
            f's_add_u32 s{d+2}, s{sW4}, s{sT1}', f's_addc_u32 s{d+3}, s{sW4+1}, 0']
def sp_load(k, d, dst):
    return f's_load_dword s{dst}, {sr(d,2)}, {64*k}' if k < 11 else f's_load_dword s{dst}, {sr(d+2,2)}, {64*(k-11)}'
SHARE = f's_mul_i32 s{sT0}, s2, 3\ns_add_u32 s{sT0}, s{sT0}, s{sWV}\ns_sub_u32 s{sT0}, s{sT0}, 4'
nops = 0
endpos = {}
landed = 0
for t in range(-1, NT - 1):
    for k, i in plan.get(t, []):
        if k == 'P': nops += p_issue(i)
        else:
            (w_issue if k == 'W' else a_issue)(i); nops += 7 if (k, i) == ('A', A_ST) else 4
            endpos[(k, i)] = nops
    if SP0 >= 0:
        if t == SP0:
            for x in sp_setup(SHARE, 56): a(x)
        if 0 <= t - SP0 < 40: a(sp_load(t - SP0, 56, 100))
    if t == opt('LS0', 0): late_setup(0)
    if t == opt('LS1', 6): late_setup(1)
    if t == opt('LS2', 7): late_setup2()
    if t == 7 and PAGES:
        a('s_branch L_load2')
        a('.p2align 12')
        a('L_load2:')
    pos = 0
    for k in 'AW':
        need = ticks[t + 1]['need' + k]
        if need is not None: pos = max(pos, endpos[(k, need)])
    if pos > landed:
        kk = min(nops - pos, 63)
        a(f's_waitcnt vmcnt({kk})')
        landed = nops - kk
    if t in (-1, 0, 1, 2, 3): stamp(f'rdy{t+1}')
    a('s_barrier')
dbg_dump()
names['w'] = list(stamp_names)
a('L_end:')
a('s_endpgm')

sFV, sFK = 68, 84
sMB, sPB, sCF, sVAL = 56, 58, 60, 62
WS_CF = 0xA0000
a(f"""
L_flag:
{'s_memrealtime s[98:99]' if opt('DIAG', 0) and opt('DAT', -1) == -1 else ''}
s_setprio {opt("PL", 3)}
s_lshl_b32 s{sT1}, s{sR}, 13
s_add_u32 s{sT1}, s{sT1}, {WS_MB}
s_lshl_b32 s{sT2}, s{sC}, 2
s_add_u32 s{sT2}, s{sT2}, s{sT1}
s_lshl_b32 s{sT0}, s{sC}, 10
s_add_u32 s{sT1}, s{sT1}, s{sT0}
s_add_u32 s{sT0}, s{sT0}, {WS_CF}
v_lshrrev_b32 v8, 1, v0
v_lshlrev_b32 v8, 13, v8
v_and_b32 v9, 1, v0
v_lshl_add_u32 v8, v9, 4, v8
v_add_u32 v8, {WS_MB}, v8
s_waitcnt lgkmcnt(0)
s_mov_b32 s{sWSD}, s{sWS}
s_mov_b32 s{sWSD+1}, s{sWS+1}
s_add_u32 s{sMB}, s{sWS}, s{sT1}
s_addc_u32 s{sMB+1}, s{sWS+1}, 0
s_add_u32 s{sPB}, s{sWS}, s{sT2}
s_addc_u32 s{sPB+1}, s{sWS+1}, 0
s_add_u32 s{sCF}, s{sWS}, s{sT0}
s_addc_u32 s{sCF+1}, s{sWS+1}, 0
""")
def flag_touch():
    a(f's_load_dword s{sE}, {sr(sWS,2)}, {WS_E}')
    if opt('TW', 1):
        for k, p_ in enumerate((sWQKV, sW2, sW3, sWO, sW4, sOUT)): a(f's_load_dword s{88}, {sr(p_,2)}, 0')
        a(f's_lshr_b32 s{sT0}, s2, 3')
        a(f's_and_b32 s{sT0}, s{sT0}, 15')
        a(f's_lshl_b32 s{sT0}, s{sT0}, 21')
        a(f's_load_dword s88, {sr(sWS,2)}, s{sT0}')
    if opt('MBW', 1):
        for k in range(3): a(f's_load_dword s88, {sr(sMB,2)}, {128*k} glc')
FT0 = opt('FT0', -1)
if FT0 < 0:
    if opt('FSL', 0): a(f's_sleep {opt("FSL", 0)}')
    flag_touch()
def flag_tag():
    a('s_waitcnt lgkmcnt(0)')
    make_tag()
    for q in range(20): a(f's_mov_b32 s{sFV+q}, s{sTAG}')
def poll(g):
    if g == 2: return [f's_load_dwordx4 {sr(sFK,4)}, {sr(sMB,2)}, 256 glc']
    return [f's_load_dwordx8 {sr(sFV+8*k,8)}, {sr(sMB,2)}, {128*k} glc' for k in range(2 if g == 1 else 1)]
def wait_flags(regs, loads, need, block=False):
    l1, l2 = a.new_label('P'), a.new_label('P')
    a(f's_add_u32 s{sNEED}, s{sTAG}, {need}')
    a(f'{l1}:')
    for k, sv in enumerate(regs):
        a(f's_sub_u32 s{sT0 + (1 if k else 0)}, s{sv}, s{sNEED}')
        if k: a(f's_max_u32 s{sT0}, s{sT0}, s{sT1}')
    a(f's_cmp_lt_u32 s{sT0}, {8-need}')
    a(f's_cbranch_scc1 {l2}')
    for x in loads: a(x)
    a(f"""
    s_sub_u32 s{sTO}, s{sTO}, 1
    s_cbranch_scc1 L_end
    {'s_waitcnt lgkmcnt(0)' if block else 's_sleep %d' % opt('PSL', 1)}
    s_branch {l1}
    {l2}:
    """)
CSP = opt('CSP', 29)
PRE = opt('PRE', 900)
PEV = opt('PEV', 2)
gate_at = {t: g for g, t in gate_tick.items()}
assert len(gate_at) == 7
cr = [4 + q for q in range(16)] + [sFV + 8 + q for q in range(8)]
cpoll = [f's_load_dwordx8 {sr(b_,8)}, {sr(sCF,2)}, {128*k} glc' for k, b_ in enumerate((4, 12, sFV + 8))]
for i, t in enumerate(ticks):
    if gate_at.get(i) == 3: wait_flags(cr, cpoll, 1, block=True)
    if i in gate_at:
        g = gate_at[i]
        wait_flags([sFK + q for q in range(4)] if g == 2 else [sFV + q for q in range(16 if g == 1 else 8)], poll(g), g)
        stamp(f'g{g}')
    if t['pub'] and t['pub'] != 2: a(f's_add_u32 s{sVAL + (t["pub"] & 1)}, s{sTAG}, {t["pub"]}')
    a('s_barrier')
    if opt('DIAG', 0) and opt('DAT', -1) == i: a('s_memrealtime s[98:99]')
    if t['pub'] and t['pub'] != 2:
        for q in range(8): a(f's_atomic_swap s{sVAL + (t["pub"] & 1)}, {sr(sPB,2)}, {1024*q}')
    if i == FT0: flag_touch()
    if i == 7: flag_tag()
    if t['name'] == 'KVE':
        a('s_waitcnt lgkmcnt(0)')
        for q in cr: a(f's_mov_b32 s{q}, s{sTAG}')
    if t['name'] == f'T0{opt("CPT", 2)}':
        for x in cpoll: a(x.replace(' glc', ''))
    for g, gt in gate_tick.items():
        d = gt - 1 - i
        if pub_tick[g] <= i and d > 0 and tstart[gt - 1] - tstart[i] <= PRE and d % PEV == 0:
            for x in poll(g): a(x)
a('s_waitcnt lgkmcnt(0)')
a('s_mov_b64 exec, -1')
a(f"""
s_cmp_lg_u32 s2, 0
s_cbranch_scc1 L_fend
s_add_u32 s{sT1}, s{sTAG}, 1
L_ebump:
buffer_load_dwordx4 v[32:35], v8, {sr(sWSD,4)}, 0 offen sc1
s_waitcnt vmcnt(0)
""")
for i in range(4): a(f'v_subrev_u32 v{32+i}, s{sT1}, v{32+i}')
a(f"""
v_max_u32 v32, v32, v33
v_max3_u32 v32, v32, v34, v35
v_cmp_gt_u32 vcc, 7, v32
s_cmp_eq_u64 vcc, -1
s_cbranch_scc1 L_ebump2
s_sub_u32 s{sTO}, s{sTO}, 1
s_cbranch_scc0 L_ebump
s_endpgm
L_ebump2:
v_mov_b32 v1, s{sTAG}
v_mov_b32 v2, {WS_E}
s_mov_b64 exec, 1
buffer_store_dword v1, v2, {sr(sWSD,4)}, 0 offen sc1
s_mov_b64 exec, -1
L_fend:
""")
if opt('DIAG', 0):
    a(f'''
    L_diag:
    s_memrealtime s[96:97]
    s_waitcnt lgkmcnt(0)
    s_sub_u32 s96, s96, s98
    s_cmp_lt_u32 s96, {opt('DIAG', 0)}
    s_cbranch_scc1 L_diag
    ''')
dbg_dump()
names['s'] = list(stamp_names)
a('s_endpgm')
a('L_aux:')
if opt('HS', 1):
    a(f"""
    s_lshl_b32 s62, s{sR}, 16
    s_lshl_b32 s{sT0}, s{sC}, 13
    s_add_u32 s62, s62, s{sT0}
    s_bitcmp1_b32 s{sC}, 1
    s_cselect_b32 s{sT0}, 448, 0
    s_add_u32 s62, s62, s{sT0}
    s_add_u32 s62, s62, {WS_H}
    s_waitcnt lgkmcnt(0)
    s_add_u32 s62, s62, s{sWS}
    s_addc_u32 s63, s{sWS+1}, 0
    """)
HT0 = opt('HT0', -1)
ht1 = [f's_load_dword s90, {sr(sWS,2)}, {WS_E}'] + [f's_load_dword s{64+k}, s[62:63], {512*k}' for k in range(12)]
if HT0 < 0:
    for x in ht1: a(x)


a(f"""
v_lshrrev_b32 v1, 3, v0
v_mul_u32_u24 v1, 2752, v1
v_and_b32 v2, 7, v0
v_lshl_add_u32 v1, v2, 4, v1
v_lshlrev_b32 v2, 5, v2
v_lshrrev_b32 v3, 5, v0
v_lshl_add_u32 v2, v3, 4, v2
v_bfe_u32 v3, v0, 4, 1
v_lshl_add_u32 v2, v3, 3, v2
s_and_b32 s{sT0}, s{sR}, 7
s_mul_i32 s60, s{sT0}, {64*2752}
s_lshr_b32 s{sT0}, s{sR}, 3
s_add_u32 s{sT1}, s{sT0}, s{sC}
s_cmp_ge_u32 s{sT0}, 2
s_cselect_b32 s{sT0}, 16, s{sT1}
s_add_u32 s{sT0}, s{sT0}, s{sC}
s_lshl_b32 s{sT0}, s{sT0}, 7
s_add_u32 s60, s60, s{sT0}
s_lshl_b32 s61, s{sC}, 13
s_lshl_b32 s{sT0}, s{sR}, 8
s_add_u32 s61, s61, s{sT0}
s_add_u32 s61, s61, {WS_CS}
s_cmp_ge_u32 s{sR}, 24
s_cselect_b32 s60, 0x200000, s60
s_cselect_b32 s61, {WS_REC}, s61
{'' if opt('HS', 1) else 's_waitcnt lgkmcnt(0)'}
s_mov_b32 s{sSRD}, s{sW3}
s_mov_b32 s{sSRD+1}, s{sW3+1}
s_mov_b32 s{sSRD+2}, {512*2752}
s_mov_b32 s{sWSD}, s{sWS}
s_mov_b32 s{sWSD+1}, s{sWS+1}
""")
if TRACE:
    a(f'v_writelane_b32 v11, s{sST}, 60')
    a(f'v_writelane_b32 v11, s{sE}, 61')
assert opt('HS', 1)
a(f"""
s_bitcmp1_b32 s{sC}, 1
s_cselect_b32 s{sT0}, -1, 1
s_add_u32 s{sT0}, s{sT0}, s{sR}
s_and_b32 s{sT0}, s{sT0}, 31
s_lshl_b32 s{sT0}, s{sT0}, 13
s_lshl_b32 s{sT1}, s{sC}, 2
s_add_u32 s{sT0}, s{sT0}, s{sT1}
s_add_u32 s{sT0}, s{sT0}, {WS_MB + 128}
s_add_u32 s80, s{sWS}, s{sT0}
s_addc_u32 s81, s{sWS+1}, 0
s_lshl_b32 s{sT0}, s{sR}, 13
s_lshl_b32 s{sT1}, s{sC}, 10
s_add_u32 s{sT0}, s{sT0}, s{sT1}
s_add_u32 s{sT0}, s{sT0}, {WS_MB + 256}
s_add_u32 s82, s{sWS}, s{sT0}
s_addc_u32 s83, s{sWS+1}, 0
s_lshr_b32 s{sT0}, s{sR}, 3
s_lshl_b32 s{sT0}, s{sT0}, 7
s_and_b32 s{sT2}, s{sR}, 7
s_lshl_b32 s{sT2}, s{sT2}, 2
s_add_u32 s{sT0}, s{sT0}, s{sT2}
s_add_u32 s{sT0}, s{sT0}, s{sT1}
s_add_u32 s84, s{sT0}, {WS_CF}
""")
for q in range(4):
    a(f's_cmp_lt_u32 s{sR}, {4-q}')
    a(f's_cselect_b32 s{85+q}, {4*q}, 32')
msgs = {pub_tick[1]: [f's_atomic_swap s90, s[80:81], {1024*q}' for q in range(8)],
        pub_tick[2]: [f's_atomic_swap s91, s[82:83], {8192*l + 4*(4-l)}' for l in range(1, 5)] + [f's_cmp_ge_u32 s{sR}, 4', 's_cbranch_scc1 L_kvself'] +
                     [f's_atomic_swap s91, s[82:83], s{85+q}' for q in range(4)] + ['L_kvself:'],
        CSP: [f's_atomic_swap s90, {sr(sWS,2)}, s84']}
TC0, TC1 = opt('TC0', 7), opt('TC1', 13)
ld = []
for i in range(8):
    ld += [f'buffer_load_dwordx4 {vr(64+4*i,4)}, v1, {sr(sSRD,4)}, s60 offen', f's_add_u32 s60, s60, {8*2752}']
wk = ['s_waitcnt vmcnt(0)']
for i in range(8):
    for d in range(4):
        src = 64 + 4 * i + d
        if i == 0: wk += [f'v_lshlrev_b32 v{20+2*d}, 16, v{src}', f'v_and_b32 v{21+2*d}, 0xffff0000, v{src}']
        else: wk += [f'v_lshlrev_b32 v28, 16, v{src}', f'v_and_b32 v29, 0xffff0000, v{src}', f'v_add_f32 v{20+2*d}, v{20+2*d}, v28', f'v_add_f32 v{21+2*d}, v{21+2*d}, v29']
for e in (0, 1, 4, 5): wk += [f'v_permlane16_swap_b32 v{20+e}, v{22+e}']
for e in (0, 1, 4, 5): wk += [f'v_add_f32 v{20+e}, v{20+e}, v{22+e}']
for e in (0, 1): wk += [f'v_permlane32_swap_b32 v{20+e}, v{24+e}']
for e in (0, 1): wk += [f'v_add_f32 v{20+e}, v{20+e}, v{24+e}']
for e in (0, 1): wk += [f'v_add_f32_dpp v{22+e}, v{20+e}, v{20+e} row_ror:8 row_mask:0xf bank_mask:0xf']
wk += [f'buffer_store_dwordx2 v[22:23], v2, {sr(sWSD,4)}, s61 offen sc1']
auxp = merge(msgs, {8: ['s_waitcnt lgkmcnt(0)', 's_add_u32 s90, s90, 0x9e3779b0', 's_and_b32 s90, s90, 0xfffffff0', 's_add_u32 s91, s90, 2', 's_add_u32 s90, s90, 1']}, {HT0: ht1}, {opt('HT1', 0): [f's_load_dword s{64+k}, s[62:63], {512*k}' for k in range(12, 16)]}, {TC0: ld}, spread(wk, TC1, TC1 + 8))
NMARK = 10
if PAGES:
    vo = opt('VO', 2)
    auxp = merge({vo + k // 2 if k < 14 else 0: ['s_mov_b64 exec, 0', f's_branch L_pg{m}', f'L_pr{m}:', 's_mov_b64 exec, -1'] for k, m in []},
                 *[{vo + k * (8 - vo) // NMARK: ['s_mov_b64 exec, 0', f's_branch L_pg{m}', f'L_pr{m}:', 's_mov_b64 exec, -1']} for k, m in enumerate((0, 4, 5, 1, 2, 3, 6, 7, 8, 9))], auxp)
AUXEND = max(CSP, pub_tick[2])
if SP0 >= 0:
    auxp = merge(auxp, {SP0: sp_setup(SHARE, 56)}, {SP0 + k: [sp_load(k, 56, 100)] for k in range(40)})
    AUXEND = max(CSP, SP0 + 40)
assert TC1 + 8 < CSP
for i in range(NT if TRACE else AUXEND + 1):
    if i == CSP: a('s_waitcnt vmcnt(0)')
    a('s_barrier')
    if TRACE:
        if i: a(f'v_writelane_b32 v{10 + (i-1) // 64}, s{sST + 2*((i-1)&1)}, {(i-1) % 64}')
        a(f's_memtime {sr(sST + 2*(i&1),2)}')
    for x in auxp.get(i, []): a(x)
if TRACE:
    a('s_waitcnt lgkmcnt(0)')
    a(f'v_writelane_b32 v{10 + (NT-1) // 64}, s{sST + 2*((NT-1)&1)}, {(NT-1) % 64}')
if not TRACE: a('s_endpgm')
if TRACE:
    a('s_barrier')
    a(f"""
    s_memtime {sr(sST,2)}
    s_memrealtime {sr(sE,2)}
    s_waitcnt lgkmcnt(0)
    v_writelane_b32 v11, s{sST}, 62
    v_writelane_b32 v11, s{sE}, 63
    s_mov_b32 s{sWSD}, s{sWS}
    s_mov_b32 s{sWSD+1}, s{sWS+1}
    s_mov_b32 s{sWSD+2}, {WS_REC}
    s_mov_b32 s{sWSD+3}, 0x20000
    v_lshlrev_b32 v1, 2, v0
    s_lshl_b32 s{sT0}, s2, 9
    s_add_u32 s{sT0}, s{sT0}, {WS_DBG + 0x80000}
    buffer_store_dword v10, v1, {sr(sWSD,4)}, s{sT0} offen
    buffer_store_dword v11, v1, {sr(sWSD,4)}, s{sT0} offen offset:256
    s_endpgm
    """)
    names['t'] = [t['name'] + (f'(g{gate_at[i]})' if i in gate_at else '') + (f'(p{t["pub"]})' if t['pub'] else '') for i, t in enumerate(ticks)]
    names['plan'] = [''.join(k.lower() for k, _ in plan.get(i, [])) for i in range(NT)]
a.ins = sec_pro + a.ins + sec_comp
a('L_last:')

nn = a.pad()
PFX = f'.amdgcn_target "amdgcn-amd-amdhsa--gfx950"\n.text\n{NAME}_kernel:\n'
print('aligned', align8(a, PFX, 'L_comp', opt('ALM', 2) if opt('AL', 1) else 999, opt('ALN', 6), NMARK if PAGES else 0), file=sys.stderr)
hdr = open(f'cdna_kernels/{NAME}.s.ref').read().split('; Override launch geometry')[0]
txt = hdr + f'''; @launch grid=(256,1,1) block=(512,1,1) lds={LDS_BYTES}
.amdgcn_target "amdgcn-amd-amdhsa--gfx950"
.text
.globl {NAME}_kernel
.p2align 8
.type {NAME}_kernel,@function
{NAME}_kernel:
''' + a.text() + f'''.section .rodata,"a"
.p2align 6
.amdhsa_kernel {NAME}_kernel
  .amdhsa_next_free_vgpr 256
  .amdhsa_next_free_sgpr 102
  .amdhsa_accum_offset 256
  .amdhsa_group_segment_fixed_size 0
  .amdhsa_kernarg_size 96
  .amdhsa_user_sgpr_count 2
  .amdhsa_user_sgpr_kernarg_segment_ptr 1
  .amdhsa_system_sgpr_workgroup_id_x 1
.end_amdhsa_kernel
'''
open(OUT, 'w').write(txt)
json.dump(names, open(OUT + '.names.json', 'w'))
if '--plan' in sys.argv:
    print('start', plan.get(-1))
    for i, t in enumerate(ticks):
        print(i, tstart[i], t['name'], 'needW', t['needW'], 'needA', t['needA'], 'pub', t['pub'], 'gate', gate_at.get(i), '| after:', [f'{k}{j}@{newpos.get((k,j))}' for k, j in plan.get(i, [])])
print('instructions', sum(1 for i in a.ins if i.kind != 'meta'), 'nops inserted', nn, 'ticks', NT, file=sys.stderr)
```

```python
import sys, struct, json
from asmlib import *

NAME = 'gated_mix__sliding_block__mixer_s_mlp__prompt'
DEBUG = '--debug' in sys.argv
TRACE = '--trace' in sys.argv
OUT = [x for x in sys.argv[1:] if not x.startswith('--')]
OUT = OUT[0] if OUT else f'cdna_kernels/{NAME}.s'
def opt(name, default):
    for x in sys.argv:
        if x.startswith(f'--{name}='): return int(x.split('=')[1])
    return default

NPOS = 19
GATE = NPOS * 8192
POSF = OUT + '.pos.json'
PASS2 = '--pass2' in sys.argv
POS = {tuple(k.split(':')): v for k, v in json.load(open(POSF)).items()} if PASS2 else {}
LDS_BYTES = 163840
FSH = 10
WS_E = 0x80000
WS_H, WS_KV, WS_X1, WS_O, WS_H3, WS_DBG = 0x100000, 0x300000, 0x700000, 0xA00000, 0xC00000, 0x1200000
X1_STRIDE = 73728
H3_STRIDE = 176 * 1024
WS_CS = 0x90000
WS_MB = 0x1400000
WS_REC = 0x1440000
VTAB = GATE + 7168
PD = opt('PD', 3)
TIMEOUT = 1 << 22
KDUP = 1
PAGES = opt('PAGES', 1)
ROT1 = opt('ROT1', 1)

def f32(x): return '0x%08x' % struct.unpack('<I', struct.pack('<f', x))[0]
LOG2E = 1.4426950408889634
C1 = 2 * 0.7978845608028654 * LOG2E
QSCALE = 0.25 * LOG2E

A_X, A_H, A_KE, A_KO, A_ST, A_X1, A_O, A_H3, A_END = 0, 8, 16, 21, 26, 27, 35, 43, 65
W_1, W_K, W_V, W_Q, W_2, W_3, W_O, W_4, W_END = 0, 8, 16, 24, 32, 40, 64, 72, 94
FIXED = {('A', A_X + i): i for i in range(8)}
FIXED.update({('A', A_KE + i): i for i in range(10)})
apos = lambda i: FIXED.get(('A', i), POS.get(('A', str(i)), 0)) * 8192
wpos = lambda i: POS.get(('W', str(i)), 0) * 8192

sX, sWQKV, sWO, sW1, sW2, sW3, sW4, sGATE, sOUT, sDBG, sWS = 4, 6, 8, 12, 14, 16, 18, 20, 22, 24, 26
sR, sC, sROT, sWV, sTAG, sTO = 28, 29, 30, 31, 32, 33
sRET = 34
sWSD = 36
sSRD = 40
sT0, sT1, sT2, sT3 = 47, 48, 49, 50
sHI = 52
sVM = 54
sGM = 56
sTT, sCH = 58, 59
sMASK = 60
sE = 92
sST = 94
sQ1, sQ2, sQ3 = 96, 98, 100
sRT1 = 46
sZM = 44

a = Asm()
ool = Asm()
ool.uid = 100000

class Lgkm:
    def __init__(self): self.n = 0; self.done = 0
    def issue(self, text):
        a(text); self.n += 1; return self.n
    def wait(self, seq):
        if seq <= self.done: return
        k = min(self.n - seq, 14)
        a(f's_waitcnt lgkmcnt({k})')
        self.done = self.n - k
    def all(self): self.wait(self.n)
lg = Lgkm()
def emit(x):
    if callable(x): x()
    elif x.startswith('ds_'): lg.issue(x)
    else: a(x)

nstamp = [0]
stamp_names = []
def stamp(name):
    if not DEBUG: return
    i = nstamp[0]; nstamp[0] += 1
    stamp_names.append(name)
    a(f's_memtime {sr(sST,2)}')
    a(f's_memrealtime s[2:3]'.replace('s[2:3]', 's[0:1]'))
    a('s_waitcnt lgkmcnt(0)')
    a(f'v_writelane_b32 v0, s{sST}, {i}')
    a(f'v_writelane_b32 v0, s0, {32+i}')
    assert i < 30
def st(name): return lambda: stamp(name)
ARR = TRACE and opt('ARR', 0)
def arr_mark(k):
    if ARR: a(f's_memtime s[34:35]\ns_waitcnt lgkmcnt(0)\n' + (f's_mov_b32 s3, s{sST}\n' if k == 0 else '') + f's_sub_u32 s34, s34, s3\nv_writelane_b32 v127, s34, {k}')
def arr_dump():
    if ARR: a(f'''
    v_mbcnt_lo_u32_b32 v126, -1, 0
    v_lshlrev_b32 v126, 2, v126
    s_lshl_b32 s0, s2, 3
    s_add_u32 s0, s0, s{sWV}
    s_lshl_b32 s0, s0, 4
    s_add_u32 s0, s0, {WS_DBG}
    s_mov_b64 exec, 15
    buffer_store_dword v127, v126, {sr(sWSD,4)}, s0 offen
    s_mov_b64 exec, -1
    ''')
def dbg_start():
    if not DEBUG: return
    a(f'v_mov_b32 v0, 0')
    a(f'v_writelane_b32 v0, s{sST}, 0')
    a(f'v_writelane_b32 v0, s{sE}, 62')
    nstamp[0] = 1; stamp_names.clear(); stamp_names.append('start')
def dbg_dump():
    if not DEBUG: return
    a('s_waitcnt vmcnt(0)')
    stamp('end')
    a(f'''
    s_memrealtime {sr(sST,2)}
    s_waitcnt lgkmcnt(0)
    v_writelane_b32 v0, s{sST}, 63
    s_mov_b32 s{sWSD}, s{sWS}
    s_mov_b32 s{sWSD+1}, s{sWS+1}
    v_mbcnt_lo_u32_b32 v1, -1, 0
    v_mbcnt_hi_u32_b32 v1, -1, v1
    v_lshlrev_b32 v1, 2, v1
    s_lshl_b32 s{sT0}, s2, 3
    s_add_u32 s{sT0}, s{sT0}, s{sWV}
    s_lshl_b32 s{sT0}, s{sT0}, 8
    s_add_u32 s{sT0}, s{sT0}, {WS_DBG}
    buffer_store_dword v0, v1, {sr(sWSD,4)}, s{sT0} offen
    ''')

if DEBUG or TRACE:
    a(f's_memtime {sr(sST,2)}')
    a(f's_memrealtime {sr(sE,2)}')
if opt('DIAG', 0) and opt('DAT', -1) == -2: a('s_memrealtime s[98:99]')
a(f'''
s_cmp_ge_u32 s2, 256
s_cbranch_scc1 L_end
s_load_dwordx16 s[4:19], s[0:1], 0
s_load_dwordx8 s[20:27], s[0:1], 64
v_lshrrev_b32 v1, 6, v0
v_and_b32 v0, 63, v0
v_readfirstlane_b32 s{sWV}, v1
s_cmp_eq_u32 s{sWV}, 6
s_cbranch_scc0 L_noaux
s_getpc_b64 s[56:57]
L_pc:
s_sub_u32 s56, s56, L_pc-{NAME}_kernel
s_subb_u32 s57, s57, 0
s_lshr_b32 s58, s2, 3
s_lshl_b32 s58, s58, 11
v_lshlrev_b32 v4, 4, v0
v_add_u32 v3, s58, v4
v_min_u32 v5, L_last-{NAME}_kernel-16, v3
global_load_dwordx4 v[32:35], v5, s[56:57]
v_add_u32 v3, 1024, v3
v_min_u32 v5, L_last-{NAME}_kernel-16, v3
global_load_dwordx4 v[36:39], v5, s[56:57]
L_noaux:
s_and_b32 s{sT0}, s2, 7
s_lshr_b32 s{sT1}, s2, 3
s_lshr_b32 s{sR}, s{sT0}, 1
s_lshl_b32 s{sR}, s{sR}, 3
s_lshr_b32 s{sT2}, s{sT1}, 2
s_add_u32 s{sR}, s{sR}, s{sT2}
s_and_b32 s{sC}, s{sT0}, 1
s_lshl_b32 s{sC}, s{sC}, 2
s_and_b32 s{sT2}, s{sT1}, 3
s_add_u32 s{sC}, s{sC}, s{sT2}
s_add_u32 s{sROT}, s{sR}, s{sC}
s_and_b32 s{sROT}, s{sROT}, 7
{ {0: f's_mov_b32 s{sRT1}, 0', 1: f's_mov_b32 s{sRT1}, s{sROT}', 2: f's_and_b32 s{sRT1}, s{sR}, 7',
   3: f's_lshl_b32 s{sRT1}, s{sC}, 2' + chr(10) + f's_add_u32 s{sRT1}, s{sRT1}, s{sR}' + chr(10) + f's_and_b32 s{sRT1}, s{sRT1}, 7',
   4: f's_lshl_b32 s{sRT1}, s{sC}, 1' + chr(10) + f's_add_u32 s{sRT1}, s{sRT1}, s{sR}' + chr(10) + f's_and_b32 s{sRT1}, s{sRT1}, 7'}[ROT1] }
s_mov_b32 s{sTO}, {TIMEOUT}
s_mov_b32 s{sWSD+2}, {WS_REC}
s_mov_b32 s{sWSD+3}, 0x20000
s_mov_b32 s{sSRD+3}, 0x20000
s_cmp_lt_u32 s{sWV}, 4
s_cbranch_scc1 L_comp
s_cmp_eq_u32 s{sWV}, 7
s_cbranch_scc1 L_flag
s_cmp_eq_u32 s{sWV}, 6
s_cbranch_scc1 L_aux
''')
sec_pro = a.ins; a.ins = []
if PAGES: a('.p2align 12')
a('L_comp:')
arr_mark(0)
def make_tag():
    a(f'''
    s_add_u32 s{sE}, s{sE}, 0x9e3779b0
    s_and_b32 s{sTAG}, s{sE}, 0xfffffff0
    ''')

vWn0, vWn1, vWt0, vWt1, vP, vL16, vKr, vVr, vStV, vStH, vX0, vX1, vX2, vG, vX3 = range(1, 16)
vWn2, vWt2, vP1, vP2 = 44, 0, vStH, vL16
vT = 16
vSel = 20
vWf = 24
vAf = 36
vA0, vA1, vAB = 48, 64, 80
vL = 96
vPan = 128
vQl = 120

a(f's_setprio {opt("PC", 0)}')
a(f'''
s_and_b32 s{sTT}, s{sWV}, 1
s_lshr_b32 s{sCH}, s{sWV}, 1
s_mov_b32 s{sHI}, 0
s_mov_b32 s{sHI+1}, -1
s_mov_b32 s{sVM}, 0xffff
s_mov_b32 s{sVM+1}, 0xffff
''')
L, TOK, H, T1, T2, T3, ROW = 'v0', 'v48', 'v49', 'v50', 'v51', 'v52', 'v53'
a(f'''
v_and_b32 {TOK}, 31, {L}
v_lshrrev_b32 {H}, 5, {L}
v_lshlrev_b32 v{vL16}, 4, {L}
''')
a(f'''
v_bfe_u32 {T1}, {L}, 3, 1
v_xor_b32 {T1}, s{sCH}, {T1}
v_lshlrev_b32 {T1}, 6, {T1}
v_bfe_u32 {T2}, {L}, 4, 1
v_lshl_add_u32 {T1}, {T2}, 5, {T1}
v_and_b32 {T2}, 3, {L}
v_lshl_add_u32 {T1}, {T2}, 3, {T1}
v_bfe_u32 {T2}, {L}, 2, 2
v_lshl_add_u32 {T1}, {T2}, 7, {T1}
v_lshl_add_u32 v{vWn0}, {H}, 10, {T1}
v_add_u32 v{vWn1}, 65536, v{vWn0}
v_lshl_add_u32 v{vWt0}, {H}, 9, {T1}
v_add_u32 v{vWt1}, 65536, v{vWt0}
v_add_u32 v{vWn2}, 65536, v{vWn1}
''')
a(f'''
v_lshlrev_b32 {T1}, 4, {TOK}
v_lshl_add_u32 {T1}, {H}, 10, {T1}
s_lshl_b32 s{sT0}, s{sTT}, 9
v_add_u32 v{vP}, s{sT0}, {T1}
s_lshl_b32 s{sT0}, s{sTT}, 12
s_lshl_b32 s{sT1}, s{sCH}, 10
s_add_u32 s{sT0}, s{sT0}, s{sT1}
v_add_u32 v{vKr}, s{sT0}, v{vL16}
s_add_u32 s{sT0}, s{sT0}, 2048
v_and_b32 {T2}, 15, {L}
v_lshlrev_b32 {T2}, 4, {T2}
v_lshl_add_u32 {T2}, {H}, 8, {T2}
v_add_u32 v{vVr}, s{sT0}, {T2}
v_bfe_u32 {T3}, {L}, 4, 1
v_lshl_add_u32 v{vStV}, {T3}, 13, v{vVr}
s_lshl_b32 s{sT0}, s{sTT}, 4
s_add_u32 s{sT0}, s{sT0}, {VTAB}
v_mov_b32 {T1}, s{sT0}
v_cndmask_b32 v{vVr}, {T1}, v{vVr}, {sr(sVM,2)}
s_lshl_b32 s{sT0}, s{sR}, 1
v_lshlrev_b32 {T1}, 4, {TOK}
v_lshl_add_u32 {T1}, {H}, 9, {T1}
v_add_u32 {T1}, {VTAB}, {T1}
v_add_u32 {T2}, s{sT0}, {TOK}
v_cmp_le_u32 vcc, 8, {T2}
v_mov_b32 {T2}, 0x3f803f80
v_cndmask_b32 v{vL+8}, 0, {T2}, vcc
v_mov_b32 v{vL+9}, v{vL+8}
v_mov_b32 v{vL+10}, v{vL+8}
v_mov_b32 v{vL+11}, v{vL+8}
ds_write_b128 {T1}, {vr(vL+8,4)}
''')
a(f'''
s_lshr_b32 s{sT0}, s{sC}, 2
s_add_u32 s{sT0}, s{sT0}, 1
s_sub_u32 s{sT1}, 0, s{sT0}
s_bitcmp1_b32 s{sC}, 1
s_cselect_b32 s{sT0}, s{sT1}, s{sT0}
s_lshl_b32 s{sT1}, s{sR}, 6
s_add_u32 s{sT0}, s{sT0}, s{sT1}
s_lshl_b32 s{sT1}, s{sTT}, 5
s_add_u32 s{sT0}, s{sT0}, s{sT1}
v_add_u32 {T1}, s{sT0}, {TOK}
v_mov_b32 {T2}, 2047
v_cmp_gt_u32 {sr(sZM,2)}, {T1}, {T2}
v_and_b32 {T1}, {T2}, {T1}
v_lshrrev_b32 {T2}, 6, {T1}
v_and_b32 {T1}, 63, {T1}
v_lshlrev_b32 {T1}, 4, {T1}
v_lshl_add_u32 {T1}, {T2}, 16, {T1}
v_lshl_add_u32 v{vStH}, {H}, 10, {T1}
''')
a(f'''
v_bfe_u32 {T1}, {L}, 4, 1
v_bfe_u32 {T2}, {L}, 2, 1
v_cmp_eq_u32 {sr(sGM,2)}, {T1}, {T2}
v_mov_b32 {T3}, 0x3f803f80
v_cndmask_b32 v{vSel}, 0, {T3}, {sr(sGM,2)}
v_mov_b32 v{vSel+1}, v{vSel}
v_mov_b32 v{vSel+2}, v{vSel}
v_mov_b32 v{vSel+3}, v{vSel}
v_and_b32 {T1}, 3, {L}
v_cmp_eq_u32 vcc, 0, {T1}
v_cmp_eq_u32 {sr(sQ1,2)}, 1, {T1}
v_cmp_eq_u32 {sr(sQ2,2)}, 2, {T1}
v_cmp_eq_u32 {sr(sQ3,2)}, 3, {T1}
s_and_b64 vcc, vcc, {sr(sGM,2)}
s_and_b64 {sr(sGM,2)}, {sr(sGM,2)}, {sr(sQ1,2)}
v_mov_b32 v40, {GATE+2176}
v_mov_b32 {T1}, {GATE+1088}
v_cndmask_b32 v40, v40, {T1}, vcc
v_lshlrev_b32 {T1}, 4, {H}
v_add_u32 {T1}, {GATE}, {T1}
v_cndmask_b32 v40, v40, {T1}, {sr(sGM,2)}
v_add_u32 {T1}, {GATE+1088}, v{vL16}
v_mov_b32 v{vL}, {T3}
v_mov_b32 v{vL+1}, {T3}
v_mov_b32 v{vL+2}, {T3}
v_mov_b32 v{vL+3}, {T3}
v_mov_b32 v{vL+4}, 0
v_mov_b32 v{vL+5}, 0
v_mov_b32 v{vL+6}, 0
v_mov_b32 v{vL+7}, 0
ds_write_b128 {T1}, {vr(vL,4)}
ds_write_b128 {T1}, {vr(vL+4,4)} offset:1088
''')
vXa, vGa = 36, 40
a(f'''
s_lshl_b32 s{sT0}, s{sTT}, 5
v_add_u32 {ROW}, s{sT0}, {TOK}
v_bfe_u32 {T1}, {ROW}, 1, 3
v_lshlrev_b32 {ROW}, 7, {ROW}
v_xor_b32 {T2}, {T1}, {H}
''')
for s in range(4):
    a(f'v_xor_b32 {T3}, {2*s}, {T2}')
    a(f'v_lshl_add_u32 v{vXa+s}, {T3}, 4, {ROW}')
a(f'v_lshlrev_b32 {T1}, 2, {H}')
a(f'v_sub_u32 {T1}, {TOK}, {T1}')
for r in range(16):
    a(f'v_cmp_gt_i32 {sr(sMASK+2*r,2)}, {(r & 3) + 8 * (r >> 2)}, {T1}')
a(f'v_add_u32 v{vWt2}, 65536, v{vWt1}')
a(f'v_add_u32 v{vP2}, 131072, v{vP}')
a('s_waitcnt lgkmcnt(0)')
sOH, sOK0, sOK1, sOX1, sOST, sOO, sOH3, sOOUT, sJV, sNEG, sTILE = range(4, 15)
a(f'''
s_mov_b32 s{sSRD}, s{sOUT}
s_mov_b32 s{sSRD+1}, s{sOUT+1}
s_mov_b32 s{sSRD+2}, {2048*1024}
s_mov_b32 s{sWSD}, s{sWS}
s_mov_b32 s{sWSD+1}, s{sWS+1}
s_lshl_b32 s{sTILE}, s{sC}, 13
s_lshl_b32 s{sT1}, s{sCH}, 12
s_add_u32 s{sTILE}, s{sTILE}, s{sT1}
s_add_u32 s{sOH}, s{sTILE}, {WS_H}
s_lshl_b32 s{sOK0}, s{sR}, 3
s_add_u32 s{sOK0}, s{sOK0}, s{sC}
s_lshl_b32 s{sOK0}, s{sOK0}, 14
s_add_u32 s{sOK0}, s{sOK0}, {WS_KV}
s_add_u32 s{sOK1}, s{sOK0}, 8192
s_mul_i32 s{sT0}, s{sR}, {X1_STRIDE}
s_add_u32 s{sT0}, s{sT0}, {WS_X1}
s_add_u32 s{sOX1}, s{sT0}, s{sTILE}
s_lshr_b32 s{sOST}, s{sTILE}, 3
s_add_u32 s{sOST}, s{sOST}, s{sT0}
s_add_u32 s{sOST}, s{sOST}, 65536
s_lshl_b32 s{sT0}, s{sR}, 16
s_add_u32 s{sOO}, s{sT0}, s{sTILE}
s_add_u32 s{sOO}, s{sOO}, {WS_O}
s_lshl_b32 s{sT1}, s{sTT}, 15
s_add_u32 s{sOOUT}, s{sT0}, s{sT1}
s_lshr_b32 s{sT1}, s{sTILE}, 6
s_add_u32 s{sOOUT}, s{sOOUT}, s{sT1}
s_mul_i32 s{sOH3}, s{sR}, {H3_STRIDE}
s_add_u32 s{sOH3}, s{sOH3}, s{sTILE}
s_add_u32 s{sOH3}, s{sOH3}, {WS_H3}
s_add_u32 s{sNEG}, s{sOH3}, 131072
s_cmp_ge_u32 s{sC}, 6
s_cselect_b32 s{sNEG}, {WS_REC}, s{sNEG}
s_lshl_b32 s{sT1}, s{sC}, 13
s_add_u32 s{sOH3}, s{sOH3}, s{sT1}
s_lshl_b32 s{sJV}, s{sR}, 1
s_add_u32 s{sJV}, s{sJV}, s{sTT}
s_sub_i32 s{sJV}, 8, s{sJV}
s_max_i32 s{sJV}, s{sJV}, 0
''')

ticks = []
last_read = {}
freed = set()
pub_next = [None]
def want_pub(stage): pub_next[0] = stage
stage_mark = {}
def nstores(): return sum(1 for i in a.ins if i.op.startswith('buffer_store'))
def mark(stage): return lambda: stage_mark.__setitem__(stage, nstores())
def tick(needW=None, needA=None, name='', dur=140):
    pub = pub_next[0]; pub_next[0] = None
    if pub: a(f's_waitcnt vmcnt({nstores() - stage_mark.get(pub, nstores())})')
    a('s_barrier')
    fr = [k for k, s in last_read.items() if s <= lg.done and k not in freed]
    freed.update(fr)
    ticks.append(dict(needW=needW, needA=needA, free=fr, pub=pub, name=name, dur=dur))

class Step:
    def __init__(self, w, s, order, acc, act, aslot=None, aread=None, swap=False, c0=None, pre=None, post=None, lastw=False, lasta=False, cs=None, cs0=False, xa=None, dur=140):
        self.__dict__.update(locals())

def run_steps(steps, fill=None):
    fill = fill or {}
    seqs = {}
    def reads(n, part=7):
        s_ = steps[n]
        if part & 1:
            if s_.pre and n >= PD: s_.pre()
            if s_.s == 0: tick(s_.w, s_.aslot if s_.xa is None else s_.xa, f'W{s_.w}', s_.dur)
            if s_.pre and n < PD: s_.pre()
        if not part & 2: pass
        elif s_.aread == 'x':
            lg.issue(f'ds_read_b128 {vr(s_.act,4)}, v{vXa+s_.s} offset:{apos(s_.aslot)}')
        elif s_.aread == 'p':
            o_ = apos(s_.aslot) + s_.s * 2048
            lg.issue(f'ds_read_b128 {vr(s_.act,4)}, v{(vP, vP1, vP2)[o_ >> 16]} offset:{o_ & 65535}')
        if not part & 4: return
        off = wpos(s_.w) + s_.s * 2048
        base = ((vWn0, vWn1, vWn2) if s_.order == 'n' else (vWt0, vWt1, vWt2))[off >> 16]
        off &= 65535
        d = 512 if s_.order == 'n' else 1024
        f = vWf + (n % 3) * 4
        lg.issue(f'ds_read_b64_tr_b16 {vr(f,2)}, v{base} offset:{off}')
        seqs[n] = lg.issue(f'ds_read_b64_tr_b16 {vr(f+2,2)}, v{base} offset:{off+d}')
        if s_.lastw: last_read[('W', s_.w)] = seqs[n]
        if s_.lasta: last_read[('A', s_.aslot)] = seqs[n]
    for n in range(min(PD, len(steps))): reads(n)
    for n, s_ in enumerate(steps):
        fl = list(fill.get(n, []))
        lg.wait(seqs[n])
        f = vWf + (n % 3) * 4
        c = s_.c0 if s_.c0 is not None else vr(s_.acc, 16)
        A, B = (vr(f, 4), vr(s_.act, 4)) if not s_.swap else (vr(s_.act, 4), vr(f, 4))
        more = n + PD < len(steps)
        split = s_.cs is not None and opt('B1S', 2)
        if s_.post: s_.post()
        if split and more: reads(n + PD, 1)
        if s_.cs is not None:
            a(f'v_mfma_f32_16x16x32_bf16 {vr(s_.cs,4)}, {vr(vSel,4)}, {vr(f,4)}, {"0" if s_.cs0 else vr(s_.cs,4)}')
        if split and more and opt('B1S', 2) == 2: reads(n + PD, 2)
        a(f'v_mfma_f32_32x32x16_bf16 {vr(s_.acc,16)}, {A}, {B}, {c}')
        if more: reads(n + PD, 7 if not split else 4 if opt('B1S', 2) == 2 else 6)
        for x in fl: emit(x)

def spread(items, start, end):
    d = {}
    n = end - start
    for i, x in enumerate(items):
        d.setdefault(start + i * n // len(items), []).append(x)
    return d
def merge(*ds):
    o = {}
    for d in ds:
        for k, v in d.items(): o.setdefault(k, []).extend(v)
    return o
def pack(acc, dst): return [f'v_cvt_pk_bf16_f32 v{dst+i}, v{acc+2*i}, v{acc+2*i+1}' for i in range(8)]
def store2(pk, voff, s0, s1=None, d=2048):
    return [f'buffer_store_dwordx4 {vr(pk,4)}, v{voff}, {sr(sWSD,4)}, s{s0} offen sc1',
            f'buffer_store_dwordx4 {vr(pk+4,4)}, v{voff}, {sr(sWSD,4)}, s{s0 if s1 is None else s1} offen offset:{d} sc1']
def pubat(stage): return lambda: want_pub(stage)

def ln_consts(sum_, sq, vCA, vCB, vIR, vNM, t):
    return f'''v_mul_f32 v{t}, {f32(-1.0/512)}, v{sum_}
    v_mul_f32 v{t+1}, v{t}, v{t}
    v_mov_b32 v{t+2}, {f32(1.0/512)}
    v_fma_f32 v{t+1}, v{sq}, v{t+2}, -v{t+1}
    v_max_f32 v{t+1}, 0, v{t+1}
    v_add_f32 v{t+1}, {f32(1e-5)}, v{t+1}
    v_rsq_f32 v{t+2}, v{t+1}
    v_cvt_pk_bf16_f32 v{vNM}, v{t}, v{t}
    v_mul_f32 v{vIR}, v{t+1}, v{t+2}
    v_mul_f32 v{vCA}, {f32(-C1)}, v{t+2}
    v_mul_f32 v{t+1}, v{t+2}, v{t+2}
    v_mul_f32 v{t+1}, {f32(0.044715)}, v{t+1}
    v_mul_f32 v{vCB}, v{vCA}, v{t+1}
    v_lshlrev_b32 v{t+1}, 16, v{vNM}
    v_sub_f32 v{t+1}, v{t}, v{t+1}
    v_cvt_pk_bf16_f32 v{t+1}, v{t+1}, v{t+1}
    v_cndmask_b32 v{vNM}, v{vNM}, v{t+1}, {sr(sHI,2)}'''.replace('    ', '').split('\n')
def cs_fix(cs, vCSA, vNM, acc, t):
    return [f'v_cvt_pk_bf16_f32 v{t}, v{cs}, v{cs}',
            f'v_lshlrev_b32 v{t}, 16, v{t}',
            f'v_sub_f32 v{t}, v{cs}, v{t}',
            f'v_cvt_pk_bf16_f32 v{vCSA}, v{cs}, v{t}',
            f'v_mfma_f32_32x32x16_bf16 {vr(acc,16)}, {vr(vCSA,4)}, {vr(vNM,4)}, {vr(acc,16)}']
def gelu_pk(acc, vCA, vCB, vIR, tmp, dst):
    o = []
    for i in range(0, 16, 2): o.append(f'v_pk_mul_f32 {vr(tmp+i,2)}, {vr(acc+i,2)}, {vr(acc+i,2)}')
    for i in range(0, 16, 2): o.append(f'v_pk_fma_f32 {vr(tmp+i,2)}, {vr(tmp+i,2)}, {vr(vCB,2)}, {vr(vCA,2)} op_sel_hi:[1,0,0]')
    for i in range(0, 16, 2): o.append(f'v_pk_mul_f32 {vr(tmp+i,2)}, {vr(tmp+i,2)}, {vr(acc+i,2)}')
    for i in range(16): o.append(f'v_exp_f32 v{tmp+i}, v{tmp+i}')
    for i in range(0, 16, 2): o.append(f'v_pk_fma_f32 {vr(tmp+i,2)}, {vr(tmp+i,2)}, {vr(vIR,2)}, {vr(vIR,2)} op_sel_hi:[1,0,0]')
    for i in range(16): o.append(f'v_rcp_f32 v{tmp+i}, v{tmp+i}')
    for i in range(0, 16, 2): o.append(f'v_pk_mul_f32 {vr(tmp+i,2)}, {vr(tmp+i,2)}, {vr(acc+i,2)}')
    for i in range(0, 16, 2): o.append(f'v_cvt_pk_bf16_f32 v{dst+i//2}, v{tmp+i}, v{tmp+i+1}')
    return o
def gelu_sc(acc, vCA, vCB, vIR, tmp, dst):
    o = []
    def chain(e, t):
        return [f'v_mul_f32 v{t}, v{acc+e}, v{acc+e}', f'v_fma_f32 v{t}, v{t}, v{vCB}, v{vCA}', f'v_mul_f32 v{t}, v{t}, v{acc+e}',
                f'v_exp_f32 v{t}, v{t}', f'v_fma_f32 v{t}, v{t}, v{vIR}, v{vIR}', f'v_rcp_f32 v{t}, v{t}', f'v_mul_f32 v{t}, v{t}, v{acc+e}']
    for g in range(0, 16, 2):
        t = tmp + (g & 2)
        c0, c1 = chain(g, t), chain(g + 1, t + 1)
        for x, y in zip(c0, c1): o += [x, y]
        o.append(f'v_cvt_pk_bf16_f32 v{dst+g//2}, v{t}, v{t+1}')
    return o

vCS, vSG, vSQ = 64, 68, 72
steps = []
for n in range(32):
    j, s = divmod(n, 4)
    P = vPan + 4 * n
    G = vL + 16 + (n % 3) * 4
    def pre(n=n, G=G):
        lg.issue(f'ds_read_b128 {vr(G,4)}, v{vGa} offset:{n*32}')
    def post(n=n, s=s, P=P, G=G):
        if s == 3:
            for q in range(8):
                sq = vSQ + 4 * (q & 3)
                Pq = P - 12 + 2 * q
                a(f'v_mfma_f32_4x4x4_16b_bf16 {vr(sq,4)}, {vr(Pq,2)}, {vr(Pq,2)}, {"0" if n == 3 and q < 4 else vr(sq,4)}')
        a(f'v_mfma_f32_16x16x32_bf16 {vr(vSG,4)}, {vr(G,4)}, {vr(P,4)}, {"0" if n == 0 else vr(vSG,4)}')
    steps.append(Step(W_1 + j, s, 'n', vA0, P, aslot=A_X + j, aread='x', c0='0' if n == 0 else None, pre=pre, post=post, lastw=(s == 3), lasta=(s == 3), cs=vCS, cs0=(n == 0), dur=opt('DB1', 400) if j < 7 else opt('DB17', 800)))
arr_mark(1)
arr_dump()
RES = vAB + 8
cA, cB, cI, cNM, cCS, cT = vL, vL + 2, vL + 4, vL + 8, vL + 12, vAf + 9
zer = [f'v_mov_b32 v{r}, 0' for r in (cNM+1, cNM+2, cNM+3, cCS+1, cCS+2, cCS+3)]
run_steps(steps, spread(zer, 4, 10))
stamp('B1 loop')
for i in range(8): a(f'v_add_f32 v{vSQ+i}, v{vSQ+i}, v{vSQ+8+i}')
for i in range(4): a(f'v_add_f32 v{vSQ+i}, v{vSQ+i}, v{vSQ+4+i}')
for i, m in ((1, sQ1), (2, sQ2), (3, sQ3)): a(f'v_cndmask_b32 v{vSQ}, v{vSQ}, v{vSQ+i}, {sr(m,2)}')
a(f'''
v_mov_b32 v{vSQ+1}, v{vSQ}
v_mul_f32 v{vG}, {f32(-LOG2E)}, v{vSG+1}
v_exp_f32 v{vG}, v{vG}
v_permlane32_swap_b32 v{vSQ}, v{vSQ+1}
v_add_f32 v{vSQ}, v{vSQ}, v{vSQ+1}
''')
lc = ln_consts(vSG, vSQ, cA, cB, cI, cNM, cT)
for x in [lc[0], lc[7]] + [y.replace(f'v{cT+1}', f'v{cT+2}') for y in lc[13:17]]: a(x)
for x in cs_fix(vCS, cCS, cNM, vA0, cT + 2): a(x)
lg.all()
tick(name='B1e', dur=600) if not opt('GI', 0) else None
for x in lc[1:7] + [f'v_add_f32 v{vG}, 1.0, v{vG}'] + lc[8:13] + [f'v_rcp_f32 v{vG}, v{vG}']: a(x)
PK = vAf
GI = opt('GI', 0)
zm = [f'v_cndmask_b32 v{PK+i}, v{PK+i}, 0, {sr(sZM,2)}' for i in range(8)]
hs2 = store2(PK, vStH, sOH)
hfill = {}
if GI:
    g = gelu_sc(vA0, cA, cB, cI, vT, PK)
    hfill = spread(g[:60] + zm[:4] + g[60:] + zm[4:] + ['\n'.join(hs2), mark(1)], 0, GI)
else:
    for x in gelu_pk(vA0, cA, cB, cI, vA1, PK) + zm + hs2: a(x)
    mark(1)()
aK, aV, aQ = (vA1, vA0, vA1) if GI else (vA0, vA1, vA0)
stamp('B1 epi')

steps = []
for p, (w0, acc, swap) in enumerate(((W_K, aK, False), (W_V, aV, True), (W_Q, aQ, False))):
    for n in range(32):
        j, s = divmod(n, 4)
        steps.append(Step(w0 + j, s, 'n', acc, vPan + 4 * n, swap=swap, c0='0' if n == 0 else None, lastw=(s == 3), dur=opt('DKG', 280) if p == 0 and n <= GI else 145))
unres = [f's_sub_u32 s{sT0}, s{sC}, s{sRT1}\ns_and_b32 s{sT0}, s{sT0}, 7\ns_lshl_b32 s{sT0}, s{sT0}, 1\ns_add_u32 s{sT0}, s{sT0}, s{sCH}\ns_lshl_b32 s{sT0}, s{sT0}, 3']
for q in range(2):
    unres.append(f's_set_gpr_idx_on s{sT0}, 1\n' + '\n'.join(f'v_mov_b32_e32 v{RES+4*q+i}, v{vPan+4*q+i}' for i in range(4)) + '\ns_set_gpr_idx_off')
unres += [f'v_add_u32 v{vP1}, 65536, v{vP}'] + [f'v_permlane32_swap_b32 v{RES+i}, v{RES+i+2}' for i in (0, 1, 4, 5)]
for j in range(8):
    unres += [f'v_lshlrev_b32 v{vAB+2*j}, 16, v{RES+j}', f'v_and_b32 v{vAB+2*j+1}, 0xffff0000, v{RES+j}']
def stream_steps(w0, a0, nsteps, acc, c0=None, phase=0):
    o = []
    for n in range(nsteps):
        j, s = divmod(n, 4)
        last = s == 3 or n == nsteps - 1
        o.append(Step(w0 + j, s, 't', acc, vAf + ((n + phase) % 3) * 4, aslot=a0 + j, aread='p', c0=c0 if n == 0 else None, lastw=last, lasta=last))
    return o
PKS = vL + 16
vK, vV = 128, 164
M8 = [20, 21, 22, 23, 252, 253, 254, 255]
vVs, vVa = vWn0, vWn1
vK_ = vK; vK = vT
att_pre = [f'v_mov_b32 v{vK+1}, 0xffff0000', f'v_mov_b32 v{vK+2}, 0xffff']
for i in range(8):
    att_pre += [f'v_cndmask_b32 v{M8[i]}, 0, v{vK+2}, {sr(sMASK+4*i,2)}', f'v_cndmask_b32 v{vK}, 0, v{vK+1}, {sr(sMASK+4*i+2,2)}', f'v_or_b32 v{M8[i]}, v{M8[i]}, v{vK}']
att_pre += [f'v_add_u32 v{vX2}, {apos(A_KO)}, v{vKr}', f'v_mov_b32 v{vK+3}, 4096',
            f'v_cndmask_b32 v{vVs}, 16, v{vK+3}, {sr(sVM,2)}',
            f'v_mov_b32 v{vK+3}, {apos(A_KO)}', f'v_cndmask_b32 v{vX3}, 0, v{vK+3}, {sr(sVM,2)}', f'v_add_u32 v{vX3}, v{vX3}, v{vVr}']
vK = vK_
APS = 14
qfin = [f'v_mul_f32 v{aQ+i}, {f32(QSCALE)}, v{aQ+i}' for i in range(16)] + pack(aQ, vQl)
sta = [f'v_and_b32 v{vX0}, 1023, v{vP}', f'v_lshrrev_b32 v{vX0}, 1, v{vX0}', f'v_mov_b32 v{vX1}, 0x3f803f80']
b2 = stream_steps(W_2, A_H, 32, vAB, phase=96)
for x in b2: x.dur = opt('DB2', 180) if x.w < W_2 + 7 else opt('DB27', 550)
steps += b2
fill = merge(hfill, spread(unres + sta, 44, 62), {31: [st('K')], 63: [st('V')], 95: [st('Q')]},
             {opt('PUB1', GI + 20): [pubat(1)]},
             spread(pack(aK, vL), 35, 39), {opt('KST', 39): store2(vL, vKr, sOK0, sOK1, 0)},
             spread(pack(aV, PKS), 66, 69), {68: store2(PKS, vStV, sOK0, None, 512)},
             {opt('PUB2', 88): [pubat(2)]},
             spread(qfin, 99, 111), spread(att_pre[APS:], 111, 128), spread(att_pre[:APS], 72, 92))
run_steps(steps, fill)
stamp('B2 loop')
for x in pack(vAB, PK): a(x)
for x in store2(PK, vP, sOX1): a(x)
for i in range(8):
    a(f'v_dot2_f32_bf16 v{vA0}, v{PK+i}, v{vX1}, {"0" if i==0 else "v%d"%vA0}')
    a(f'v_dot2_f32_bf16 v{vA0+1}, v{PK+i}, v{PK+i}, {"0" if i==0 else "v%d"%(vA0+1)}')
a(f'''
v_mov_b32 v{vA0+2}, v{vA0}
v_mov_b32 v{vA0+3}, v{vA0+1}
v_permlane32_swap_b32 v{vA0}, v{vA0+2}
v_permlane32_swap_b32 v{vA0+1}, v{vA0+3}
v_add_f32 v{vA0}, v{vA0}, v{vA0+2}
v_add_f32 v{vA0+1}, v{vA0+1}, v{vA0+3}
buffer_store_dwordx2 {vr(vA0,2)}, v{vX0}, {sr(sWSD,4)}, s{sOST} offen sc1
''')
tick(name='B2e', dur=opt('DB2E', 100))
stamp('B2 epi')

vCB_, vM8 = 24, 40
vS0, vS1, vMG, vO = 236, 96, 64, 48
Kf = lambda j: vK + 4 * j
Vf = lambda j, b: vV + 8 * j + 4 * b
MF = lambda d, x, y, c: f'v_mfma_f32_32x32x16_bf16 {vr(d,16)}, {vr(x,4)}, {vr(y,4)}, {c if c == "0" else vr(c,16)}'
kseq = {}
def k_read(a0, j):
    r_, off = (vKr if a0 == A_KE else vX2), 4096 * j
    kseq[j] = lg.issue(f'ds_read_b128 {vr(Kf(j),4)}, v{r_} offset:{off}')
vseq = {}
def v_op(a0, j, last=False):
    base = vVr if a0 == A_KE else vX3
    ad = vVa if j else base
    def pre():
        if j: a(f'v_mad_u32_u24 v{vVa}, v{vVs}, {j}, v{base}')
    def rd():
        lg.issue(f'ds_read_b128 {vr(Vf(j,0),4)}, v{ad}')
        vseq[j] = lg.issue(f'ds_read_b128 {vr(Vf(j,1),4)}, v{ad} offset:512')
        if last:
            for i in range(5): last_read[('A', a0 + i)] = vseq[j]
    return (pre, rd)
def k_op(a0, js):
    return (lambda: None, lambda: [k_read(a0, j) for j in js])
assert apos(A_KE) == 0
vMx, vMy = vT, vT + 1
sFL = [96, 98]
def o_norm(pk):
    return ([f'v_rcp_f32 v{vO+9}, v{vO+8}'] + [f'v_mul_f32 v{vO+i}, v{vO+i}, v{vO+9}' for i in range(8)] +
            [f'v_cvt_pk_bf16_f32 v{pk+i}, v{vO+2*i}, v{vO+2*i+1}' for i in range(4)])
def o_final(t):
    n = o_norm(112 + 4 * t)
    chk = [f'v_subrev_u32 v{vO+10}, {63<<23}, v{vO+8}', f'v_lshrrev_b32 v{vO+10}, 30, v{vO+10}', f'v_cmp_ne_u32 {sr(sFL[t],2)}, 0, v{vO+10}']
    fin = [f'v_add_f32_e64 v{vO+11}, |v{vO}|, |v{vO+1}|'] + [f'v_add_f32_e64 v{vO+11}, v{vO+11}, |v{vO+i}|' for i in range(2, 8)] + \
          [f'v_cmp_class_f32 vcc, v{vO+11}, v{vT+2}', f's_nop 0\ns_or_b64 {sr(sFL[t],2)}, {sr(sFL[t],2)}, vcc']
    return n[:1] + chk + n[1:] + (store2(112, vP, sOO) if t == 1 else []) + fin
rq = []
mq = []
mgap = [0]
def pop_m():
    f = mq.pop(0)
    r_ = rq.pop(0) if rq else None
    if r_: r_[0]()
    f()
    if r_: r_[1]()
    mgap[0] = 0
def va(x, cost=4):
    a(x)
    mgap[0] += cost
    if mq and mgap[0] >= 24: pop_m()
def flush_m():
    while mq: pop_m()
def flush_r():
    while rq:
        r_ = rq.pop(0); r_[0](); r_[1]()
def QK(d, j, t):
    def f():
        lg.wait(kseq[j]); a(MF(d, Kf(j), vQl + 4 * t, '0'))
    return f
def PV(j, b, p, c, then=None):
    def f():
        lg.wait(vseq[j]); a(MF(vO, Vf(j, b), p, c))
        if then: rq.append(then)
    return f
a(f'v_mov_b32 v{vT+2}, 0x207')
tick(needA=A_KE + 4, name='KVE', dur=opt('DKVE', 500))
for j in (0, 8, 1, 2): k_read(A_KE, j)
rq += [v_op(A_KE, 0), v_op(A_KE, 8), k_op(A_KE, (3, 4)), v_op(A_KE, 1), v_op(A_KE, 2), k_op(A_KE, (5, 6)), v_op(A_KE, 3), v_op(A_KE, 4), k_op(A_KE, (7,)),
       v_op(A_KE, 5), v_op(A_KE, 6), v_op(A_KE, 7, True)]
mq += [QK(vMG, 0, 0), QK(vCB_, 8, 0), QK(vS0, 1, 0)]
flush_m()
KI = opt('KI', 3)
bufs2 = [vS0, vS1]
pend = []
for t in range(2):
    mq += pend
    if t == 1: mq.append(QK(vS0, 1, 1))
    for r in range(16): va(f'v_cndmask_b32 v{vMG+r}, v{vCB_+r}, v{vMG+r}, {sr(sMASK+2*r,2)}')
    mq.append(QK(vS1, 2, t))
    for r in range(16): va(f'v_exp_f32 v{vMG+r}, v{vMG+r}', 8)
    flush_m()
    if t == 1:
        for x in o_final(0): va(x)
    for i in range(8): va(f'v_cvt_pk_bf16_f32 v{vMG+i}, v{vMG+2*i}, v{vMG+2*i+1}')
    for i in range(8): va(f'v_and_b32 v{vMG+8+i}, v{vMG+i}, v{M8[i]}')
    mq.append(PV(0, 0, vMG + 8, '0'))
    for i in range(8): va(f'v_xor_b32 v{vMG+i}, v{vMG+i}, v{vMG+8+i}')
    flush_m()
    pend = [PV(0, 1, vMG + 12, vO), PV(8, 0, vMG, vO), PV(8, 1, vMG + 4, vO)]
    for i in range(7):
        b = bufs2[i % 2]
        if (t, i) in ((0, KI), (1, 0)):
            assert not rq or t == 0 and len(rq) <= 1, (t, i, len(rq))
            flush_r(); lg.all()
        if t == 0 and i == opt('PUB3', 1): want_pub(3)
        if t == 0 and i == KI: tick(needA=A_KO + 4, name='KVO', dur=220)
        else: tick(name=f'T{t}{i}', dur=200 if i < 6 else 650 if t == 0 else 400)
        if t == 0 and i == KI:
            ks = [0, 8] + list(range(1, i + 2))
            rq += [k_op(A_KO, ks[q:q+2]) for q in range(0, len(ks), 2)] + [v_op(A_KO, j) for j in [0, 8] + list(range(1, i))]
        if t == 0 and i > KI: rq.insert(0, k_op(A_KO, (i + 1,)))
        mq += pend
        if 0 < i < 6: mq.append(QK(bufs2[(i + 1) % 2], i + 2, t))
        if t == 0 and i == 6: mq += [QK(vMG, 0, 1), QK(vCB_, 8, 1)]
        mgap[0] = 16
        for r in range(16): va(f'v_exp_f32 v{b+r}, v{b+r}', 8)
        flush_m()
        for q in range(8): va(f'v_cvt_pk_bf16_f32 v{b+q}, v{b+2*q}, v{b+2*q+1}')
        nx = v_op(A_KO, 1 + i, i == 6) if t == 0 and 1 + i >= KI else None
        pend = [PV(1 + i, 0, b, vO), PV(1 + i, 1, b + 4, vO, nx)]
    mgap[0] = 24
for f in pend: f()

def emit_fallback():
    global a
    keep = a; a = Asm(); a.uid = 500000
    Qf, tk, tv = 40, 44, 45
    a('L_fb:')
    a(f's_mov_b32 s{sT3}, 0')
    a('L_fb_head:')
    a(f"""
    s_cmp_eq_u32 s{sT3}, 0
    s_cselect_b64 vcc, {sr(sFL[0],2)}, {sr(sFL[1],2)}
    s_cmp_eq_u64 vcc, 0
    s_cbranch_scc1 L_fb_next
    s_cmp_eq_u32 s{sT3}, 0
    s_cselect_b64 vcc, -1, 0
    """)
    for i in range(4): a(f'v_cndmask_b32 v{Qf+i}, v{vQl+4+i}, v{vQl+i}, vcc')
    a(f"""
    v_and_b32 v46, 4095, v{vKr}
    v_and_b32 v47, 4095, v{vStV}
    v_mov_b32 v{vT+3}, 0x3f803f80
    """)
    for j in range(9):
        a(f"""
        s_add_u32 s{sT0}, s{sTT}, {j}
        s_lshr_b32 s{sT1}, s{sT0}, 1
        s_lshl_b32 s{sT1}, s{sT1}, 17
        s_and_b32 s{sT0}, s{sT0}, 1
        s_lshl_b32 s{sT0}, s{sT0}, 12
        s_add_u32 s{sT0}, s{sT0}, s{sT1}
        s_add_u32 s{sT0}, s{sT0}, s{sOK0}
        s_sub_u32 s{sT0}, s{sT0}, {4<<17}
        s_lshl_b32 s{sT1}, s{sR}, 17
        s_sub_u32 s{sT1}, s{sOK0}, s{sT1}
        s_cmp_le_u32 s{sJV}, {j}
        s_cselect_b32 s{sT0}, s{sT0}, s{sT1}
        s_cselect_b32 s{sT1}, -1, 0xe00
        s_cselect_b32 s{sT2}, -1, 0
        s_cselect_b64 vcc, -1, 0
        s_add_u32 s{sT0}, s{sT0}, s{sT3}
        v_and_b32 v{tk}, s{sT1}, v46
        v_mov_b32 v{tv}, 0x80000000
        v_cndmask_b32 v{tv}, v{tv}, v47, vcc
        v_and_b32 v{Vf(j,0)}, s{sT2}, v{vT+3}
        """)
        for i in range(1, 8): a(f'v_mov_b32 v{Vf(j,0)+i}, v{Vf(j,0)}')
        a(f"""
        buffer_load_dwordx4 {vr(Kf(j),4)}, v{tk}, {sr(sWSD,4)}, s{sT0} offen sc1
        s_mov_b64 exec, {sr(sVM,2)}
        buffer_load_dwordx4 {vr(Vf(j,0),4)}, v{tv}, {sr(sWSD,4)}, s{sT0} offen sc1
        buffer_load_dwordx4 {vr(Vf(j,1),4)}, v{tv}, {sr(sWSD,4)}, s{sT0} offen offset:512 sc1
        s_mov_b64 exec, -1
        """)
    a('s_waitcnt vmcnt(0)')
    a(MF(vMG, Kf(0), Qf, '0')); a(MF(vS0, Kf(8), Qf, '0'))
    for r in range(16): a(f'v_cndmask_b32 v{vMG+r}, v{vS0+r}, v{vMG+r}, {sr(sMASK+2*r,2)}')
    a(f'v_max_f32 v{vMx}, v{vMG}, v{vMG+1}')
    for q in range(2, 16, 2): a(f'v_max3_f32 v{vMx}, v{vMG+q}, v{vMG+q+1}, v{vMx}')
    for j in range(1, 8):
        a(MF(vS0, Kf(j), Qf, '0'))
        for q in range(0, 16, 2): a(f'v_max3_f32 v{vMx}, v{vS0+q}, v{vS0+q+1}, v{vMx}')
    a(f'v_mov_b32 v{vMy}, v{vMx}')
    a(f'v_permlane32_swap_b32 v{vMx}, v{vMy}')
    a(f'v_min_f32_e64 v{vCB_}, -v{vMx}, -v{vMy}')
    for i in range(1, 16): a(f'v_mov_b32 v{vCB_+i}, v{vCB_}')
    for r in range(16): a(f'v_add_f32 v{vMG+r}, v{vMG+r}, v{vCB_}')
    for r in range(16): a(f'v_exp_f32 v{vMG+r}, v{vMG+r}')
    for i in range(8): a(f'v_cvt_pk_bf16_f32 v{vMG+i}, v{vMG+2*i}, v{vMG+2*i+1}')
    for i in range(8): a(f'v_and_b32 v{vMG+8+i}, v{vMG+i}, v{M8[i]}')
    for i in range(8): a(f'v_xor_b32 v{vMG+i}, v{vMG+i}, v{vMG+8+i}')
    for x in (MF(vO, Vf(0, 0), vMG + 8, '0'), MF(vO, Vf(0, 1), vMG + 12, vO), MF(vO, Vf(8, 0), vMG, vO), MF(vO, Vf(8, 1), vMG + 4, vO)): a(x)
    for j in range(1, 8):
        a(MF(vS0, Kf(j), Qf, vCB_))
        for r in range(16): a(f'v_exp_f32 v{vS0+r}, v{vS0+r}')
        for q in range(8): a(f'v_cvt_pk_bf16_f32 v{vS0+q}, v{vS0+2*q}, v{vS0+2*q+1}')
        a(MF(vO, Vf(j, 0), vS0, vO)); a(MF(vO, Vf(j, 1), vS0 + 4, vO))
    for x in o_norm(vS1): a(x)
    a(f"""
    s_lshr_b32 s{sT0}, s{sT3}, 2
    s_add_u32 s{sT0}, s{sT0}, s{sOO}
    buffer_store_dwordx4 {vr(vS1,4)}, v{vP}, {sr(sWSD,4)}, s{sT0} offen sc1
    s_waitcnt vmcnt(0)
    L_fb_next:
    s_add_u32 s{sT3}, s{sT3}, 8192
    s_cmp_eq_u32 s{sT3}, 8192
    s_cbranch_scc1 L_fb_head
    s_nop 7
    s_branch L_fb_done
    """)
    ool.ins += a.ins
    a = keep
emit_fallback()

cA, cB, cI, cNM, cCS, cT = 96, 98, 100, 104, 108, 16
csA = [120, 124]
PK3 = 112
def b3_steps(p, acc):
    o = []
    for n in range(32):
        j, s = divmod(n, 4)
        if p == 0:
            o.append(Step(W_3 + j, s, 't', acc, vPan + 4 * n, aslot=A_X1 + j, aread='p', c0='0' if n == 0 else None, lastw=(s == 3), lasta=(s == 3),
                          dur=opt('DB30', 200)))
        else:
            o.append(Step(W_3 + 8 * p + j, s, 't', acc, vPan + 4 * n, c0='0' if n == 0 else None, lastw=(s == 3), dur=opt('DB3', 230)))
    return o
CSR = 36
setup3 = [f'v_mov_b32 v{r}, 0' for r in (cNM+2, cNM+3, cCS+2, cCS+3)] + \
         [f'v_lshrrev_b32 v{vX1}, 10, v{vP}', f'v_lshl_add_u32 v{vX0}, v{vX1}, 12, v{vX0}\nv_add_u32 v{vX0}, {apos(A_ST) or 65}, v{vX0}'.replace(', 65,', ', 0,'),
          f'v_and_b32 v120, 511, v{vP}', 'v_lshrrev_b32 v120, 2, v120', f'v_lshl_add_u32 v120, v{vX1}, 10, v120',
          f's_lshl_b32 s{sT0}, s{sCH}, 7\ns_add_u32 s{sT0}, s{sT0}, {GATE}\nv_add_u32 v120, s{sT0}, v120', 'v_add_u32 v121, 2048, v120', 'v_add_u32 v122, 4096, v120']
st_seq = [0]
def stats_load():
    for i in range(8): st_seq[0] = lg.issue(f'ds_read_b64 {vr(vA1+2*i,2)}, v{vX0} offset:{512*i}')
    last_read[('A', A_ST)] = st_seq[0]
def cs_load():
    for p in range(3):
        for k in range(2): st_seq[0] = lg.issue(f'ds_read2_b32 {vr(CSR+4*p+2*k,2)}, v{120+p} offset0:{128*k} offset1:{128*k+64}')
sfin = [lambda: lg.wait(st_seq[0])]
for i in range(1, 8):
    sfin += [f'v_add_f32 v{vA1}, v{vA1}, v{vA1+2*i}', f'v_add_f32 v{vA1+1}, v{vA1+1}, v{vA1+2*i+1}']
sfin += [f'v_mov_b32 v{vX2}, v{vA1}', f'v_mov_b32 v{vX3}, v{vA1+1}', f'v_permlane32_swap_b32 v{vA1}, v{vX2}', f'v_permlane32_swap_b32 v{vA1+1}, v{vX3}',
         f'v_add_f32 v{vX2}, v{vA1}, v{vX2}', f'v_add_f32 v{vX3}, v{vA1+1}, v{vX3}']
lc3 = ln_consts(vX2, vX3, cA, cB, cI, cNM, cT)
lc3 = lc3[:15] + [f'v_cvt_pk_bf16_f32 v{cNM+1}, v{cT+1}, v{cT+1}']
def cs3(p, acc):
    c0 = CSR + 4 * p
    o = [f'v_add_f32 v{c0}, v{c0}, v{c0+1}', f'v_add_f32 v{c0+2}, v{c0+2}, v{c0+3}', f'v_add_f32 v{c0}, v{c0}, v{c0+2}']
    f = cs_fix(c0, cCS, cNM, acc, c0 + 1)
    return o + f[:4] + [f'v_mov_b32 v{cCS+1}, v{cCS}', f[4]]
def h3_epi(p, acc, s0, s1):
    nxt = [f's_add_u32 s{sOH3}, s{sOH3}, 8192' if p == 0 else f's_mov_b32 s{sOH3}, s{sNEG}']
    g = gelu_sc(acc, cA, cB, cI, cT, PK3)
    s2 = store2(PK3, vP, sOH3)
    return spread(g + ['\n'.join(s2), mark(5 + p), lambda: a('\n'.join(nxt))], s0, s1)
for x in setup3[4:6] + o_final(1): a(x)
a(f's_or_b64 vcc, {sr(sFL[0],2)}, {sr(sFL[1],2)}')
a('s_cbranch_scc1 L_fb')
a('L_fb_done:')
for x in setup3[6:]: a(x)
fin = [f'v_and_b32 v{vA0}, 511, v{vP}', f'v_lshlrev_b32 v{vA0}, 6, v{vA0}', f'v_lshrrev_b32 v{vA0+1}, 10, v{vP}', f'v_lshl_add_u32 v{vA0}, v{vA0+1}, 4, v{vA0}',
       f'v_sub_f32 v{vA0+2}, 1.0, v{vG}'] + [f'v_mul_f32 v{vA1+i}, v{vG}, v{vA1+i}' for i in range(16)]
if opt('FT', 1):
    t0, t1 = vA0 + 8, vA0 + 9
    fin = [f'v_and_b32 v{t0}, 1023, v{vP}', f'v_lshrrev_b32 v{t0}, 4, v{t0}', f'v_lshrrev_b32 v{t1}, 10, v{vP}',
           f's_lshl_b32 s{sT0}, s{sCH}, 2\nv_add_u32 v{t1}, s{sT0}, v{t1}', f'v_and_b32 v{vA0+10}, 7, v{t0}', f'v_xor_b32 v{t1}, v{t1}, v{vA0+10}',
           f'v_lshlrev_b32 v{t0}, 7, v{t0}', f'v_add_u32 v{t0}, {GATE}, v{t0}', f'v_lshl_add_u32 v{vA0+4}, v{t1}, 4, v{t0}', f'v_xor_b32 v{vA0+5}, 32, v{vA0+4}',
           f'v_mbcnt_lo_u32_b32 v{t0}, -1, 0', f'v_mbcnt_hi_u32_b32 v{t0}, -1, v{t0}',
           f's_lshl_b32 s{sT0}, s{sWV}, 11\ns_add_u32 s{sT0}, s{sT0}, {GATE}\nv_lshlrev_b32 v{vA0+6}, 4, v{t0}', f'v_add_u32 v{vA0+6}, s{sT0}, v{vA0+6}',
           f'v_lshrrev_b32 v{t1}, 3, v{t0}', f'v_and_b32 v{t0}, 7, v{t0}', f'v_xor_b32 v{t0}, v{t0}, v{t1}', f'v_lshlrev_b32 v{t0}, 4, v{t0}',
           f'v_lshl_add_u32 v{vA0}, v{t1}, 10, v{t0}', f'v_add_u32 v{vA0+1}, 8192, v{vA0}',
           f's_lshl_b32 s{sOOUT}, s{sR}, 16\ns_lshl_b32 s{sT0}, s{sWV}, 14\ns_add_u32 s{sOOUT}, s{sOOUT}, s{sT0}\ns_lshl_b32 s{sT0}, s{sC}, 7\ns_add_u32 s{sOOUT}, s{sOOUT}, s{sT0}'] + fin[4:]
G0, G1, G2 = opt('GL0', 22), opt('GL1', 24), opt('GL2', 24)
a3 = stream_steps(W_O, A_O, 32, vA1, c0='0', phase=96)
for x in a3: x.dur = opt('DA3', 250)
run_steps(b3_steps(0, vA0) + b3_steps(1, vA1) + b3_steps(2, vA0) + a3 + stream_steps(W_4, A_H3, 86, vAB, phase=128),
          merge({opt('PUB4', 20): [pubat(4)]}, {0: [stats_load], 2: [cs_load]}, spread(sfin + setup3[:4] + lc3 + cs3(0, vA0), 4, 30),
                h3_epi(0, vA0, 35, 35 + G0), spread(cs3(1, vA1), 60, 64), {opt('PUB5', 35 + G0 + 16): [pubat(5)]},
                spread(cs3(2, vA0), 64, 67), h3_epi(1, vA1, 67, 67 + G1), {opt('PUB6', 67 + G1 + 14): [pubat(6)]},
                h3_epi(2, vA0, 99, 99 + G2), {opt('PUB7', 99 + G2 + 16): [pubat(7)]}, spread(fin, 136, 180)))
stamp('A3B4')
for i in range(0, 16, 2): a(f'v_pk_fma_f32 {vr(vA1+i,2)}, {vr(vAB+i,2)}, {vr(vA0+2,2)}, {vr(vA1+i,2)} op_sel_hi:[1,0,1]')
for x in pack(vA1, PK): a(x)
OFL = ('', 'sc1', 'nt', 'sc0 sc1')[opt('OF', 0)]
a(f'''
v_permlane32_swap_b32 v{PK}, v{PK+2}
v_permlane32_swap_b32 v{PK+1}, v{PK+3}
v_permlane32_swap_b32 v{PK+4}, v{PK+6}
v_permlane32_swap_b32 v{PK+5}, v{PK+7}
''')
if opt('FT', 1):
    a(f'''
    ds_write_b128 v{vA0+4}, {vr(PK,4)}
    ds_write_b128 v{vA0+5}, {vr(PK+4,4)}
    s_waitcnt lgkmcnt(0)
    s_barrier
    ds_read_b128 {vr(vA0+8,4)}, v{vA0+6}
    ds_read_b128 {vr(vA0+12,4)}, v{vA0+6} offset:1024
    s_waitcnt lgkmcnt(1)
    buffer_store_dwordx4 {vr(vA0+8,4)}, v{vA0}, {sr(sSRD,4)}, s{sOOUT} offen {OFL}
    s_waitcnt lgkmcnt(0)
    buffer_store_dwordx4 {vr(vA0+12,4)}, v{vA0+1}, {sr(sSRD,4)}, s{sOOUT} offen {OFL}
    ''')
else:
    a(f'''
    buffer_store_dwordx4 {vr(PK,4)}, v{vA0}, {sr(sSRD,4)}, s{sOOUT} offen {OFL}
    buffer_store_dwordx4 {vr(PK+4,4)}, v{vA0}, {sr(sSRD,4)}, s{sOOUT} offen offset:32 {OFL}
    ''')
dbg_dump()
names = {'c': list(stamp_names)}
a('s_endpgm')
a.ins += ool.ins
sec_comp = a.ins; a.ins = []

NT = len(ticks)
tname = {t['name']: i for i, t in enumerate(ticks)}
rel_tick = {k: i for i, t in enumerate(ticks) for k in t['free']}
def use_tick(kind, idx):
    for i, t in enumerate(ticks):
        n = t['need' + kind]
        if n is not None and n >= idx: return i
    raise Exception((kind, idx))
pub_tick = {t['pub']: i for i, t in enumerate(ticks) if t['pub']}

grp_first = {A_H: 1, A_KE: 2, A_ST: 3, A_O: 4, A_H3: 5, A_H3 + 8: 6, A_H3 + 16: 7}
gate_tick = {1: use_tick('A', A_H) - opt('LA1', 6), 2: tname[{0: 'W39', 1: 'B2e', 2: 'W38', 3: 'W37', 4: 'W36'}[opt('G2', 3)]], 3: tname[f'T1{opt("G3", 0)}'],
             4: use_tick('A', A_O) - opt('LA4', 9), 5: use_tick('A', A_H3) - opt('LA5', 5),
             6: use_tick('A', A_H3 + 8) - opt('LA6', 5), 7: use_tick('A', A_H3 + 16) - opt('LA7', 5)}
for g, t in gate_tick.items(): assert t > pub_tick[g], (g, t, pub_tick[g])
def stage_of(i):
    st_ = 0
    for f, g in grp_first.items():
        if i >= f: st_ = g
    return st_
tstart = [0]
for t in ticks: tstart.append(tstart[-1] + t['dur'])
PAIR = opt('PAIR', 1)
worder = list(range(W_END))
if PAIR: worder[W_3:W_3+16] = [W_3 + (q >> 1) + 8 * (q & 1) for q in range(16)]
cost = lambda k, i: (opt('CW3P', 150) if PAIR and W_3 + 8 <= i < W_3 + 16 else opt('CW3', 205)) if k == 'W' and W_3 <= i < W_O else 240 if (k, i) == ('A', A_ST) else opt('CS', 140)
LEAD = opt('LEAD', 700)
plan = {}
nxt = {'W': 0, 'A': 0}
END = {'W': W_END, 'A': A_END}
avail = {p: -1 for p in range(NPOS)}
newpos = {}
want = {}
for (k, i), p in sorted(FIXED.items(), key=lambda x: x[0][1]):
    want.setdefault(p, []).append(-1 if i < A_H else gate_tick[2] + (0 if i < A_KO else opt('KOD', 2)))
RSV = opt('RSV', 0)
def pick(k, i, t):
    if (k, i) in FIXED:
        p = FIXED[(k, i)]
        return p if avail[p] <= t else None
    r_ = rel_tick.get((k, i), NT)
    ok = [p for p in range(NPOS) if avail[p] <= t and (not want.get(p) or r_ <= want[p][0])]
    ok.sort(key=lambda p: (0 if want.get(p) else 1, p))
    return ok[0] if ok else None
def room_for_A(t, u):
    need = sum(1 for i in range(nxt['A'], A_END) if use_tick('A', i) < u and ('A', i) not in FIXED)
    if not need: return True
    i0 = next(i for i in range(nxt['A'], A_END) if ('A', i) not in FIXED)
    sg = stage_of(i0)
    g = max(gate_tick[sg], t)
    free_then = sum(1 for p in range(NPOS) if avail[p] <= g + 1) - 1
    return free_then >= min(need, opt(f'AMIN{sg}', {3: 8}.get(sg, 4)))
bud = 0
pauses = [[opt('Z0', 3), opt('Z1', 6), opt('ZN', 3)], [opt('Y0', 7), opt('Y1', 10), opt('YN', 2)]]
for t in range(-1, NT - 1):
    bud = min(bud, opt('CARRY', 100)) + (opt('B0', 8) * 128 if t < 0 else ticks[t]['dur'] * opt('BUD', 100) // 100)
    while True:
        cands = []
        for k in 'AW':
            i = nxt[k]
            if i >= END[k]: continue
            if k == 'W': i = worder[i]
            if k == 'A' and stage_of(i) and gate_tick[stage_of(i)] > t: continue
            if pick(k, i, t) is None: continue
            u = use_tick(k, i)
            if k == 'W': u = min(use_tick(k, j_) for j_ in worder[nxt[k]:nxt[k]+2])
            if k == 'W' and PAIR and W_3 + 8 <= i < W_3 + 16: u = use_tick(k, i - 8)
            must = u == t + 1 or (t >= 0 and tstart[u] - tstart[t + 1] < LEAD)
            if k == 'W' and not must and not room_for_A(t, u): continue
            cands.append((u, k, i, must))
        if not cands: break
        u, k, i, must = min(cands)
        if bud < cost(k, i) // 2 and not must: break
        pz = [z for z in pauses if z[0] <= t < z[1]]
        if pz:
            if pz[0][2] <= 0 and u > t + 1 + opt('ZM', 2): break
            pz[0][2] -= 1
        p = pick(k, i, t)
        if (k, i) in FIXED: want[p].pop(0)
        avail[p] = rel_tick.get((k, i), NT)
        newpos[(k, i)] = p
        plan.setdefault(t, []).append((k, i)); nxt[k] += 1; bud -= cost(k, i)
    for k in 'AW':
        assert all(use_tick(k, j_) > t + 1 for j_ in (worder if k == 'W' else range(A_END))[nxt[k]:nxt[k]+3]), ('late', k, nxt[k], t)
assert nxt == END, nxt
if not PASS2:
    json.dump({f'{k}:{i}': p for (k, i), p in newpos.items()}, open(POSF, 'w'))
    import os
    os.execv(sys.executable, [sys.executable] + sys.argv + ['--pass2'])
assert all(POS[(k, str(i))] == p for (k, i), p in newpos.items())

sOFF, sB3, sHW, sHA, sNEED = 51, 52, 53, 54, 55
sCH8 = 60
sAB = 68
sSRA = 80
a('L_load:')
a(f's_setprio {opt("PL", 3)}')
vS = {3072: 24, 1024: 28, 2752: 32}
vXo, vLin, vKVo = 10, 14, 36
a(f"""
s_sub_u32 s{sHA}, s{sWV}, 4
s_lshl_b32 s{sT0}, s{sHA}, 5
v_lshrrev_b32 v1, 3, v0
v_add_u32 v1, s{sT0}, v1
v_and_b32 v3, 7, v0
v_lshrrev_b32 v2, 4, v0
v_xor_b32 v2, v2, v3
v_lshlrev_b32 v4, 10, v1
v_lshl_add_u32 v{vXo}, v2, 4, v4
v_xor_b32 v2, 4, v2
v_lshl_add_u32 v{vXo+1}, v2, 4, v4
v_add_u32 v{vXo+1}, 7168, v{vXo+1}
v_add_u32 v{vXo+2}, 14336, v{vXo}
v_add_u32 v{vXo+3}, 14336, v{vXo+1}
v_bfe_u32 v2, v0, 4, 1
v_lshlrev_b32 v2, 2, v2
v_xor_b32 v2, v2, v3
v_lshlrev_b32 v2, 4, v2
s_lshl_b32 s{sT0}, s{sC}, 7
v_add_u32 v2, s{sT0}, v2
v_add_u32 v28, v4, v2
v_add_u32 v29, 7168, v28
v_add_u32 v30, 7168, v29
v_add_u32 v31, 7168, v30
s_lshl_b32 s{sHA}, s{sHA}, 12
s_lshl_b32 s{sAB}, s{sR}, 16
s_mov_b32 s{sSRA+2}, {2048*1024}
s_mov_b32 s{sSRA+3}, 0x20000
s_lshl_b32 s{sT0}, s{sRT1}, 7
v_lshlrev_b32 v5, 4, v0
v_add_u32 v6, s{sT0}, v5
v_and_b32 v6, 1023, v6
""")
sCH1 = 92
def chunk_table(dst, rot, q0=0, q1=8):
    for q in range(q0, q1):
        a(f's_add_u32 s{dst+q}, s{rot}, {q}')
        a(f's_and_b32 s{dst+q}, s{dst+q}, 7')
assert not DEBUG
a(f"""
s_waitcnt lgkmcnt(0)
""")
arr_mark(0)
if opt('LT', 1):
    for p_ in (sX, sW1, sGATE): a(f's_load_dword s100, {sr(p_,2)}, 0')
a(f"""
s_mov_b32 s{sSRA}, s{sX}
s_mov_b32 s{sSRA+1}, s{sX+1}
s_mov_b32 s{sSRD}, s{sGATE}
s_mov_b32 s{sSRD+1}, s{sGATE+1}
s_mov_b32 s{sSRD+2}, 1024
s_mov_b32 m0, {GATE}
s_mov_b32 s{sWSD}, s{sWS}
s_mov_b32 s{sWSD+1}, s{sWS+1}
buffer_load_dwordx4 v6, {sr(sSRD,4)}, 0 offen lds
""")
def late_setup(part):
    st_, b = ((3072, 24), (2752, 32))[part]
    a(f'v_mul_u32_u24 v3, {st_}, v1')
    a(f'v_add_u32 v{b}, v3, v2')
    for i in range(1, 4): a(f'v_add_u32 v{b+i}, {8*st_-1024}, v{b+i-1}')
    if part == 0: return
    chunk_table(sCH8, sROT)
def late_setup2():
    a(f"""
    v_add_u32 v{vLin}, s{sHA}, v5
    s_cmp_ge_u32 s{sC}, 6
    s_cselect_b32 s{sB3}, 0x200000, 0
    s_add_u32 s{sB3}, s{sB3}, 2048
    s_lshl_b32 s78, s{sC}, 7
    s_add_u32 s79, s78, 128
    s_add_u32 s{sAB+1}, s{sAB}, {WS_H}
    s_add_u32 s{sAB+3}, s{sAB}, {WS_O}
    s_mul_i32 s{sAB+2}, s{sR}, {X1_STRIDE}
    s_add_u32 s{sAB+2}, s{sAB+2}, {WS_X1}
    s_mul_i32 s{sAB+4}, s{sR}, {H3_STRIDE}
    s_add_u32 s{sAB+4}, s{sAB+4}, {WS_H3}
    v_and_b32 v7, 512, v5
    v_mov_b32 v8, 0x80000000
    """)
    for i in range(5):
        a(f"""
        s_add_i32 s{sT1}, s{sR}, {i-4}
        s_max_i32 s{sT1}, s{sT1}, 0
        s_lshl_b32 s{sT1}, s{sT1}, 3
        s_add_u32 s{sT1}, s{sT1}, s{sC}
        s_lshl_b32 s{sT1}, s{sT1}, 14
        s_add_u32 s{sAB+5+i}, s{sT1}, {WS_KV}
        """)
        if i < 4:
            a(f"""
            s_cmp_lt_u32 s{sR}, {4-i}
            s_cselect_b64 vcc, -1, 0
            v_cndmask_b32 v{vKVo+2*i}, v{vLin}, v{7 if KDUP else 8}, vcc
            v_cndmask_b32 v{vKVo+2*i+1}, v{vLin}, v8, vcc
            """)
wdesc = []
for (ptr, size, st_, co) in ((sW1, 512*1024, 1024, 0), (sWQKV, 512*3072, 3072, 1024), (sWQKV, 512*3072, 3072, 2048), (sWQKV, 512*3072, 3072, 0),
                             (sW2, 512*1024, 1024, 0), (sW3, 512*2752, 2752, 's78'), (sW3, 512*2752, 2752, 's79'), (sW3, 512*2752, 2752, f's{sB3}'),
                             (sWO, 512*1024, 1024, 0), (sW4, 1376*1024, 1024, 0), (sW4, 1376*1024, 1024, 65536)):
    for q in range(8): wdesc.append((ptr, size, st_, co, q))
for q in range(6): wdesc.append((sW4, 1376*1024, 1024, (16 + q) * 65536, None))
cur_mat = [None]
def w_issue(idx):
    ptr, size, st_, co, q = wdesc[idx]
    if cur_mat[0] != ptr:
        cur_mat[0] = ptr
        a(f's_mov_b32 s{sSRD}, s{ptr}')
        a(f's_mov_b32 s{sSRD+1}, s{ptr+1}')
        a(f's_mov_b32 s{sSRD+2}, {size}')
    a(f's_add_u32 m0, s{sHA}, {wpos(idx)}')
    if q is None: a(f's_mov_b32 s{sOFF}, {co}')
    else:
        a(f's_mul_i32 s{sOFF}, s{(sCH1 if idx < W_2 else sCH8)+q}, {(128 if idx >= W_4 else 64)*st_}')
        if co: a(f's_add_u32 s{sOFF}, s{sOFF}, {co}')
    for i in range(4): a(f'buffer_load_dwordx4 v{vS[st_]+i}, {sr(sSRD,4)}, s{sOFF} offen offset:{1024*i} {"nt" if idx < opt("WNT", 0) else ""} lds')
    if idx % 8 == 7: stamp(f'w{idx}')
def a_issue(idx):
    a(f's_add_u32 m0, s{sHA}, {apos(idx)}')
    srd, vo = sWSD, [vLin] * 4
    def rot(base, q, extra=0, sh=13):
        a(f's_lshl_b32 s{sOFF}, s{sCH8+q}, {sh}')
        a(f's_add_u32 s{sOFF}, s{sOFF}, s{base}')
        if extra: a(f's_add_u32 s{sOFF}, s{sOFF}, {extra}')
    if idx < A_H:
        chunk_table(sCH1, sRT1, idx, idx + 1)
        a(f's_lshl_b32 s{sOFF}, s{sCH1+idx}, 7')
        a(f's_add_u32 s{sOFF}, s{sOFF}, s{sAB}')
        srd, vo = sSRA, [vXo + i for i in range(4)]
    elif idx < A_KE: rot(sAB + 1, idx - A_H)
    elif idx < A_ST:
        p, i = divmod(idx - A_KE, 5)
        a(f's_add_u32 s{sOFF}, s{sAB+5+i}, {8192*p}')
        if i < 4: vo = [vKVo + 2*i] * 2 + [vKVo + 2*i + 1] * 2
    elif idx == A_ST: a(f's_add_u32 s{sOFF}, s{sAB+2}, 65536')
    elif idx < A_O: rot(sAB + 2, idx - A_X1)
    elif idx < A_H3: rot(sAB + 3, idx - A_O)
    elif idx < A_H3 + 16: rot(sAB + 4, (idx - A_H3) % 8, 8192 * ((idx - A_H3) // 8), 14)
    else: a(f's_add_u32 s{sOFF}, s{sAB+4}, {8192*(idx-A_H3)}')
    if idx == A_END - 1:
        a(f's_cmp_lg_u32 s{sHA}, 0')
        a(f's_cselect_b32 s{sOFF}, {WS_REC}, s{sOFF}')
    fl_ = 'sc1' if idx >= A_H else ('sc1', '', 'nt', 'sc0 sc1', 'nt sc1', 'sc0 nt sc1')[opt('XF', 0)]
    for i in range(4): a(f'buffer_load_dwordx4 v{vo[i]}, {sr(srd,4)}, s{sOFF} offen offset:{1024*i} {fl_} lds')
    if idx == A_ST:
        a(f's_lshr_b32 s{sT0}, s{sHA}, 2')
        a(f's_sub_u32 s{sT0}, s{sHA}, s{sT0}')
        a(f's_add_u32 m0, s{sT0}, {GATE}')
        a(f's_lshl_b32 s{sOFF}, s{sC}, 13')
        a(f's_add_u32 s{sOFF}, s{sOFF}, s{sT0}')
        a(f's_add_u32 s{sOFF}, s{sOFF}, {WS_CS}')
        for i in range(3): a(f'buffer_load_dwordx4 v5, {sr(srd,4)}, s{sOFF} offen offset:{1024*i} sc1 lds')
    if idx in (15, 20, 33, 42, 64): stamp(f'a{idx}')
sSRP, sPI = 84, 88
pdesc = {'wqkv': (sWQKV, 512*3072, 3), 'w2': (sW2, 512*1024, 1), 'w3': (sW3, 512*2752, 3), 'wo': (sWO, 512*1024, 1), 'w4': (sW4, 1376*1024, 3)}
def p_issue(nm):
    ptr, size, n = pdesc[nm]
    a(f's_mov_b32 s{sSRP}, s{ptr}')
    a(f's_mov_b32 s{sSRP+1}, s{ptr+1}')
    a(f's_mov_b32 s{sSRP+2}, {size}')
    a(f's_mul_i32 s{sOFF}, s{sPI}, {1024*n}')
    for i in range(n): a(f'buffer_load_dwordx4 v[48:51], v5, {sr(sSRP,4)}, s{sOFF} offen offset:{1024*i}')
    return n
for nm, key, dflt in (('wqkv', 'PQ', 2), ('w2', 'P2', 2), ('w3', 'P3', -2), ('wo', 'PO', tname['T15']), ('w4', 'P4', tname['T15'])):
    t = opt(key, dflt)
    if t >= 1000: t = tname['KVE'] + t - 1000
    if t >= -1: plan.setdefault(t, []).append(('P', nm))
a(f's_mov_b32 s{sSRP+3}, 0x20000')
a(f's_lshl_b32 s{sPI}, s2, 1')
a(f's_add_u32 s{sPI}, s{sPI}, s{sWV}')
a(f's_sub_u32 s{sPI}, s{sPI}, 4')
SP0 = opt('SP0', -1)
def sp_setup(share_code, d):
    return [share_code, f's_mul_i32 s{sT1}, s{sT0}, {11*64}', f's_min_u32 s{sT1}, s{sT1}, {512*1024 - 11*64}',
            f's_add_u32 s{d}, s{sWO}, s{sT1}', f's_addc_u32 s{d+1}, s{sWO+1}, 0',
            f's_mul_i32 s{sT1}, s{sT0}, {29*64}', f's_min_u32 s{sT1}, s{sT1}, {1376*1024 - 29*64}',
            f's_add_u32 s{d+2}, s{sW4}, s{sT1}', f's_addc_u32 s{d+3}, s{sW4+1}, 0']
def sp_load(k, d, dst):
    return f's_load_dword s{dst}, {sr(d,2)}, {64*k}' if k < 11 else f's_load_dword s{dst}, {sr(d+2,2)}, {64*(k-11)}'
SHARE = f's_mul_i32 s{sT0}, s2, 3\ns_add_u32 s{sT0}, s{sT0}, s{sWV}\ns_sub_u32 s{sT0}, s{sT0}, 4'
nops = 0
endpos = {}
landed = 0
for t in range(-1, NT - 1):
    for k, i in plan.get(t, []):
        if k == 'P': nops += p_issue(i)
        else:
            (w_issue if k == 'W' else a_issue)(i); nops += 7 if (k, i) == ('A', A_ST) else 4
            endpos[(k, i)] = nops
    if SP0 >= 0:
        if t == SP0:
            for x in sp_setup(SHARE, 56): a(x)
        if 0 <= t - SP0 < 40: a(sp_load(t - SP0, 56, 100))
    if t == opt('LS0', 0): late_setup(0)
    if t == opt('LS1', 6): late_setup(1)
    if t == opt('LS2', 7): late_setup2()
    if t == 7 and PAGES:
        a('s_branch L_load2')
        a('.p2align 12')
        a('L_load2:')
    if t == -1: arr_mark(1)
    pos = 0
    for k in 'AW':
        need = ticks[t + 1]['need' + k]
        if need is not None: pos = max(pos, endpos[(k, need)])
    if pos > landed:
        kk = min(nops - pos, 63)
        a(f's_waitcnt vmcnt({kk})')
        landed = nops - kk
    if t == -1: arr_mark(2)
    if t == 8: arr_dump(); nops += 1 if ARR else 0
    a('s_barrier')
dbg_dump()
names['w'] = list(stamp_names)
a('L_end:')
a('s_endpgm')

sFV, sFK = 68, 84
sMB, sPB, sCF, sVAL = 56, 58, 60, 62
WS_CF = 0xA0000
a(f"""
L_flag:
{'s_memrealtime s[98:99]' if opt('DIAG', 0) and opt('DAT', -1) == -1 else ''}
s_setprio {opt("PL", 3)}
s_lshl_b32 s{sT1}, s{sR}, 13
s_add_u32 s{sT1}, s{sT1}, {WS_MB}
s_lshl_b32 s{sT2}, s{sC}, 2
s_add_u32 s{sT2}, s{sT2}, s{sT1}
s_lshl_b32 s{sT0}, s{sC}, 10
s_add_u32 s{sT1}, s{sT1}, s{sT0}
s_add_u32 s{sT0}, s{sT0}, {WS_CF}
v_lshrrev_b32 v8, 1, v0
v_lshlrev_b32 v8, 13, v8
v_and_b32 v9, 1, v0
v_lshl_add_u32 v8, v9, 4, v8
v_add_u32 v8, {WS_MB}, v8
s_waitcnt lgkmcnt(0)
s_mov_b32 s{sWSD}, s{sWS}
s_mov_b32 s{sWSD+1}, s{sWS+1}
s_add_u32 s{sMB}, s{sWS}, s{sT1}
s_addc_u32 s{sMB+1}, s{sWS+1}, 0
s_add_u32 s{sPB}, s{sWS}, s{sT2}
s_addc_u32 s{sPB+1}, s{sWS+1}, 0
s_add_u32 s{sCF}, s{sWS}, s{sT0}
s_addc_u32 s{sCF+1}, s{sWS+1}, 0
""")
def flag_touch():
    a(f's_load_dword s{sE}, {sr(sWS,2)}, {WS_E}')
    if opt('TW', 1):
        for k, p_ in enumerate((sWQKV, sW2, sW3, sWO, sW4, sOUT)): a(f's_load_dword s{88}, {sr(p_,2)}, 0')
        a(f's_lshr_b32 s{sT0}, s2, 3')
        a(f's_and_b32 s{sT0}, s{sT0}, 15')
        a(f's_lshl_b32 s{sT0}, s{sT0}, 21')
        a(f's_load_dword s88, {sr(sWS,2)}, s{sT0}')
    if opt('MBW', 1):
        for k in range(3): a(f's_load_dword s88, {sr(sMB,2)}, {128*k} glc')
FT0 = opt('FT0', -1)
if FT0 < 0:
    if opt('FW', 1):
        for p_ in (sX, sW1, sGATE): a(f's_load_dword s88, {sr(p_,2)}, 0')
        a('s_waitcnt lgkmcnt(0)')
    flag_touch()
def flag_tag():
    a('s_waitcnt lgkmcnt(0)')
    make_tag()
    for q in range(20): a(f's_mov_b32 s{sFV+q}, s{sTAG}')
def poll(g):
    if g == 2: return [f's_load_dwordx4 {sr(sFK,4)}, {sr(sMB,2)}, 256 glc']
    return [f's_load_dwordx8 {sr(sFV+8*k,8)}, {sr(sMB,2)}, {128*k} glc' for k in range(2 if g == 1 else 1)]
def wait_flags(regs, loads, need, block=False):
    l1, l2 = a.new_label('P'), a.new_label('P')
    a(f's_add_u32 s{sNEED}, s{sTAG}, {need}')
    a(f'{l1}:')
    for k, sv in enumerate(regs):
        a(f's_sub_u32 s{sT0 + (1 if k else 0)}, s{sv}, s{sNEED}')
        if k: a(f's_max_u32 s{sT0}, s{sT0}, s{sT1}')
    a(f's_cmp_lt_u32 s{sT0}, {8-need}')
    a(f's_cbranch_scc1 {l2}')
    for x in loads: a(x)
    a(f"""
    s_sub_u32 s{sTO}, s{sTO}, 1
    s_cbranch_scc1 L_end
    {'s_waitcnt lgkmcnt(0)' if block else 's_sleep %d' % opt('PSL', 1)}
    s_branch {l1}
    {l2}:
    """)
CSP = opt('CSP', 29)
def ebump_check(fail):
    a(f's_add_u32 s{sT1}, s{sTAG}, 1')
    a('s_waitcnt vmcnt(0)')
    for q in range(4): a(f'v_subrev_u32 v{32+q}, s{sT1}, v{32+q}')
    a(f'''
    v_max_u32 v32, v32, v33
    v_max3_u32 v32, v32, v34, v35
    v_cmp_gt_u32 vcc, 7, v32
    s_cmp_eq_u64 vcc, -1
    s_cbranch_scc0 {fail}
    s_atomic_swap s{sTAG}, {sr(sWS,2)}, {WS_E}
    ''')
PRE = opt('PRE', 900)
PEV = opt('PEV', 2)
gate_at = {t: g for g, t in gate_tick.items()}
assert len(gate_at) == 7
cr = [4 + q for q in range(16)] + [sFV + 8 + q for q in range(8)]
cpoll = [f's_load_dwordx8 {sr(b_,8)}, {sr(sCF,2)}, {128*k} glc' for k, b_ in enumerate((4, 12, sFV + 8))]
for i, t in enumerate(ticks):
    if gate_at.get(i) == 3: wait_flags(cr, cpoll, 1, block=True)
    if i in gate_at:
        g = gate_at[i]
        wait_flags([sFK + q for q in range(4)] if g == 2 else [sFV + q for q in range(16 if g == 1 else 8)], poll(g), g)
        stamp(f'g{g}')
    if t['pub'] and t['pub'] != 2: a(f's_add_u32 s{sVAL + (t["pub"] & 1)}, s{sTAG}, {t["pub"]}')
    a('s_barrier')
    if opt('DIAG', 0) and opt('DAT', -1) == i: a('s_memrealtime s[98:99]')
    if t['pub'] and t['pub'] != 2:
        for q in range(8): a(f's_atomic_swap s{sVAL + (t["pub"] & 1)}, {sr(sPB,2)}, {1024*q}')
    if t['name'] == 'T15':
        a(f'''
        s_mov_b32 s89, s2
        s_cmp_lg_u32 s2, 0
        s_cbranch_scc1 L_eb1
        buffer_load_dwordx4 v[32:35], v8, {sr(sWSD,4)}, 0 offen sc1
        L_eb1:
        ''')
    if t['name'] == 'W46':
        a('s_cmp_lg_u32 s2, 0')
        a('s_cbranch_scc1 L_eb2')
        ebump_check('L_eb2')
        a('s_mov_b32 s89, 1')
        a('L_eb2:')
    if i == FT0: flag_touch()
    if i == 7: flag_tag()
    if t['name'] == 'KVE':
        a('s_waitcnt lgkmcnt(0)')
        for q in cr: a(f's_mov_b32 s{q}, s{sTAG}')
    if t['name'] == f'T0{opt("CPT", 2)}':
        for x in cpoll: a(x.replace(' glc', ''))
    for g, gt in gate_tick.items():
        d = gt - 1 - i
        if pub_tick[g] <= i and d > 0 and tstart[gt - 1] - tstart[i] <= PRE and d % PEV == 0:
            for x in poll(g): a(x)
a('s_waitcnt lgkmcnt(0)')
a(f'''
s_cmp_lg_u32 s89, 0
s_cbranch_scc1 L_fend
{'s_barrier' if opt('FT', 1) else ''}
L_ebump:
s_sub_u32 s{sTO}, s{sTO}, 1
s_cbranch_scc1 L_end
buffer_load_dwordx4 v[32:35], v8, {sr(sWSD,4)}, 0 offen sc1
''')
ebump_check('L_ebump')
a('L_fend:')
if opt('DIAG', 0) and opt('FT', 1): a('s_barrier')
if opt('DIAG', 0):
    a(f'''
    L_diag:
    s_memrealtime s[96:97]
    s_waitcnt lgkmcnt(0)
    s_sub_u32 s96, s96, s98
    s_cmp_lt_u32 s96, {opt('DIAG', 0)}
    s_cbranch_scc1 L_diag
    ''')
dbg_dump()
names['s'] = list(stamp_names)
a('s_endpgm')
a('L_aux:')
if opt('HS', 1):
    a(f"""
    s_lshl_b32 s62, s{sR}, 16
    s_lshl_b32 s{sT0}, s{sC}, 13
    s_add_u32 s62, s62, s{sT0}
    s_bitcmp1_b32 s{sC}, 1
    s_cselect_b32 s{sT0}, 448, 0
    s_add_u32 s62, s62, s{sT0}
    s_add_u32 s62, s62, {WS_H}
    s_waitcnt lgkmcnt(0)
    s_add_u32 s62, s62, s{sWS}
    s_addc_u32 s63, s{sWS+1}, 0
    """)
HT0 = opt('HT0', 0)
ht1 = [f's_load_dword s90, {sr(sWS,2)}, {WS_E}'] + [f's_load_dword s{64+k}, s[62:63], {512*k}' for k in range(12)]
if HT0 < 0:
    for x in ht1: a(x)


a(f"""
v_lshrrev_b32 v1, 3, v0
v_mul_u32_u24 v1, 2752, v1
v_and_b32 v2, 7, v0
v_lshl_add_u32 v1, v2, 4, v1
v_lshlrev_b32 v2, 5, v2
v_lshrrev_b32 v3, 5, v0
v_lshl_add_u32 v2, v3, 4, v2
v_bfe_u32 v3, v0, 4, 1
v_lshl_add_u32 v2, v3, 3, v2
s_and_b32 s{sT0}, s{sR}, 7
s_mul_i32 s60, s{sT0}, {64*2752}
s_lshr_b32 s{sT0}, s{sR}, 3
s_add_u32 s{sT1}, s{sT0}, s{sC}
s_cmp_ge_u32 s{sT0}, 2
s_cselect_b32 s{sT0}, 16, s{sT1}
s_add_u32 s{sT0}, s{sT0}, s{sC}
s_lshl_b32 s{sT0}, s{sT0}, 7
s_add_u32 s60, s60, s{sT0}
s_lshl_b32 s61, s{sC}, 13
s_lshl_b32 s{sT0}, s{sR}, 8
s_add_u32 s61, s61, s{sT0}
s_add_u32 s61, s61, {WS_CS}
s_cmp_ge_u32 s{sR}, 24
s_cselect_b32 s60, 0x200000, s60
s_cselect_b32 s61, {WS_REC}, s61
{'' if opt('HS', 1) else 's_waitcnt lgkmcnt(0)'}
s_mov_b32 s{sSRD}, s{sW3}
s_mov_b32 s{sSRD+1}, s{sW3+1}
s_mov_b32 s{sSRD+2}, {512*2752}
s_mov_b32 s{sWSD}, s{sWS}
s_mov_b32 s{sWSD+1}, s{sWS+1}
""")
if TRACE:
    a(f'v_writelane_b32 v11, s{sST}, 60')
    a(f'v_writelane_b32 v11, s{sE}, 61')
assert opt('HS', 1)
a(f"""
s_bitcmp1_b32 s{sC}, 1
s_cselect_b32 s{sT0}, -1, 1
s_add_u32 s{sT0}, s{sT0}, s{sR}
s_and_b32 s{sT0}, s{sT0}, 31
s_lshl_b32 s{sT0}, s{sT0}, 13
s_lshl_b32 s{sT1}, s{sC}, 2
s_add_u32 s{sT0}, s{sT0}, s{sT1}
s_add_u32 s{sT0}, s{sT0}, {WS_MB + 128}
s_add_u32 s80, s{sWS}, s{sT0}
s_addc_u32 s81, s{sWS+1}, 0
s_lshl_b32 s{sT0}, s{sR}, 13
s_lshl_b32 s{sT1}, s{sC}, 10
s_add_u32 s{sT0}, s{sT0}, s{sT1}
s_add_u32 s{sT0}, s{sT0}, {WS_MB + 256}
s_add_u32 s82, s{sWS}, s{sT0}
s_addc_u32 s83, s{sWS+1}, 0
s_lshr_b32 s{sT0}, s{sR}, 3
s_lshl_b32 s{sT0}, s{sT0}, 7
s_and_b32 s{sT2}, s{sR}, 7
s_lshl_b32 s{sT2}, s{sT2}, 2
s_add_u32 s{sT0}, s{sT0}, s{sT2}
s_add_u32 s{sT0}, s{sT0}, s{sT1}
s_add_u32 s84, s{sT0}, {WS_CF}
""")
for q in range(4):
    a(f's_cmp_lt_u32 s{sR}, {4-q}')
    a(f's_cselect_b32 s{85+q}, {4*q}, 32')
msgs = {pub_tick[1]: [f's_atomic_swap s90, s[80:81], {1024*q}' for q in range(8)],
        pub_tick[2]: [f's_atomic_swap s91, s[82:83], {8192*l + 4*(4-l)}' for l in range(1, 5)] + [f's_cmp_ge_u32 s{sR}, 4', 's_cbranch_scc1 L_kvself'] +
                     [f's_atomic_swap s91, s[82:83], s{85+q}' for q in range(4)] + ['L_kvself:'],
        CSP: [f's_atomic_swap s90, {sr(sWS,2)}, s84']}
TC0, TC1 = opt('TC0', 7), opt('TC1', 13)
ld = []
for i in range(8):
    ld += [f'buffer_load_dwordx4 {vr(64+4*i,4)}, v1, {sr(sSRD,4)}, s60 offen', f's_add_u32 s60, s60, {8*2752}']
wk = ['s_waitcnt vmcnt(0)']
for i in range(8):
    for d in range(4):
        src = 64 + 4 * i + d
        if i == 0: wk += [f'v_lshlrev_b32 v{20+2*d}, 16, v{src}', f'v_and_b32 v{21+2*d}, 0xffff0000, v{src}']
        else: wk += [f'v_lshlrev_b32 v28, 16, v{src}', f'v_and_b32 v29, 0xffff0000, v{src}', f'v_add_f32 v{20+2*d}, v{20+2*d}, v28', f'v_add_f32 v{21+2*d}, v{21+2*d}, v29']
for e in (0, 1, 4, 5): wk += [f'v_permlane16_swap_b32 v{20+e}, v{22+e}']
for e in (0, 1, 4, 5): wk += [f'v_add_f32 v{20+e}, v{20+e}, v{22+e}']
for e in (0, 1): wk += [f'v_permlane32_swap_b32 v{20+e}, v{24+e}']
for e in (0, 1): wk += [f'v_add_f32 v{20+e}, v{20+e}, v{24+e}']
for e in (0, 1): wk += [f'v_add_f32_dpp v{22+e}, v{20+e}, v{20+e} row_ror:8 row_mask:0xf bank_mask:0xf']
wk += [f'buffer_store_dwordx2 v[22:23], v2, {sr(sWSD,4)}, s61 offen sc1']
auxp = merge(msgs, {7: ['s_waitcnt lgkmcnt(0)', 's_add_u32 s90, s90, 0x9e3779b0', 's_and_b32 s90, s90, 0xfffffff0', 's_add_u32 s91, s90, 2', 's_add_u32 s90, s90, 1']}, {HT0: ht1}, {opt('HT1', 4): [f's_load_dword s{64+k}, s[62:63], {512*k}' for k in range(12, 16)]}, {TC0: ld}, spread(wk, TC1, TC1 + 8))
NMARK = 10
if PAGES:
    cp = 4 if TRACE else 3
    vis = [0, cp + 1, 1, cp + 2, 2, cp + 3, cp + 4, cp + 5] + ([cp - 1] if TRACE else []) + ([cp] if TRACE else [cp, 9])
    vt = [int(x) for x in str(opt('VT', 3456778888))]
    auxp = merge(*[{t_: ['s_mov_b64 exec, 0', f's_branch L_pg{m}', f'L_pr{m}:', 's_mov_b64 exec, -1']} for t_, m in zip(vt, vis)], auxp)
AUXEND = max(CSP, pub_tick[2])
if SP0 >= 0:
    auxp = merge(auxp, {SP0: sp_setup(SHARE, 56)}, {SP0 + k: [sp_load(k, 56, 100)] for k in range(40)})
    AUXEND = max(CSP, SP0 + 40)
assert TC1 + 8 < CSP
for i in range(NT if TRACE else AUXEND + 1):
    if i == CSP: a('s_waitcnt vmcnt(0)')
    a('s_barrier')
    if TRACE:
        if i: a(f'v_writelane_b32 v{10 + (i-1) // 64}, s{sST + 2*((i-1)&1)}, {(i-1) % 64}')
        a(f's_memtime {sr(sST + 2*(i&1),2)}')
    for x in auxp.get(i, []): a(x)
if TRACE:
    a('s_waitcnt lgkmcnt(0)')
    a(f'v_writelane_b32 v{10 + (NT-1) // 64}, s{sST + 2*((NT-1)&1)}, {(NT-1) % 64}')
if not TRACE: a('s_endpgm')
if TRACE:
    if opt('FT', 1): a('s_barrier')
    a('s_barrier')
    a(f"""
    s_memtime {sr(sST,2)}
    s_memrealtime {sr(sE,2)}
    s_waitcnt lgkmcnt(0)
    v_writelane_b32 v11, s{sST}, 62
    v_writelane_b32 v11, s{sE}, 63
    s_mov_b32 s{sWSD}, s{sWS}
    s_mov_b32 s{sWSD+1}, s{sWS+1}
    s_mov_b32 s{sWSD+2}, {WS_REC}
    s_mov_b32 s{sWSD+3}, 0x20000
    v_lshlrev_b32 v1, 2, v0
    s_lshl_b32 s{sT0}, s2, 9
    s_add_u32 s{sT0}, s{sT0}, {WS_DBG + 0x80000}
    buffer_store_dword v10, v1, {sr(sWSD,4)}, s{sT0} offen
    buffer_store_dword v11, v1, {sr(sWSD,4)}, s{sT0} offen offset:256
    s_endpgm
    """)
    names['t'] = [t['name'] + (f'(g{gate_at[i]})' if i in gate_at else '') + (f'(p{t["pub"]})' if t['pub'] else '') for i, t in enumerate(ticks)]
    names['plan'] = [''.join(k.lower() for k, _ in plan.get(i, [])) for i in range(NT)]
a.ins = sec_pro + a.ins + sec_comp
a('L_last:')

nn = a.pad()
PFX = f'.amdgcn_target "amdgcn-amd-amdhsa--gfx950"\n.text\n{NAME}_kernel:\n'
print('aligned', align8(a, PFX, 'L_comp', opt('ALM', 2) if opt('AL', 1) else 999, opt('ALN', 6), NMARK if PAGES else 0), file=sys.stderr)
hdr = open(f'cdna_kernels/{NAME}.s.ref').read().split('; Override launch geometry')[0]
txt = hdr + f'''; @launch grid=(256,1,1) block=(512,1,1) lds={LDS_BYTES}
.amdgcn_target "amdgcn-amd-amdhsa--gfx950"
.text
.globl {NAME}_kernel
.p2align 8
.type {NAME}_kernel,@function
{NAME}_kernel:
''' + a.text() + f'''.section .rodata,"a"
.p2align 6
.amdhsa_kernel {NAME}_kernel
  .amdhsa_next_free_vgpr 256
  .amdhsa_next_free_sgpr 102
  .amdhsa_accum_offset 256
  .amdhsa_group_segment_fixed_size 0
  .amdhsa_kernarg_size 96
  .amdhsa_user_sgpr_count 2
  .amdhsa_user_sgpr_kernarg_segment_ptr 1
  .amdhsa_system_sgpr_workgroup_id_x 1
.end_amdhsa_kernel
'''
open(OUT, 'w').write(txt)
json.dump(names, open(OUT + '.names.json', 'w'))
if '--plan' in sys.argv:
    print('start', plan.get(-1))
    for i, t in enumerate(ticks):
        print(i, tstart[i], t['name'], 'needW', t['needW'], 'needA', t['needA'], 'pub', t['pub'], 'gate', gate_at.get(i), '| after:', [f'{k}{j}@{newpos.get((k,j))}' for k, j in plan.get(i, [])])
print('instructions', sum(1 for i in a.ins if i.kind != 'meta'), 'nops inserted', nn, 'ticks', NT, file=sys.stderr)
```

```python
import sys, struct, json
from asmlib import *

NAME = 'gated_mix__sliding_block__mixer_s_mlp__prompt'
DEBUG = '--debug' in sys.argv
TRACE = '--trace' in sys.argv
OUT = [x for x in sys.argv[1:] if not x.startswith('--')]
OUT = OUT[0] if OUT else f'cdna_kernels/{NAME}.s'
def opt(name, default):
    for x in sys.argv:
        if x.startswith(f'--{name}='): return int(x.split('=')[1])
    return default

NPOS = 19
GATE = NPOS * 8192
POSF = OUT + '.pos.json'
PASS2 = '--pass2' in sys.argv
POS = {tuple(k.split(':')): v for k, v in json.load(open(POSF)).items()} if PASS2 else {}
LDS_BYTES = 163840
FSH = 10
WS_E = 0x80000
WS_H, WS_KV, WS_X1, WS_O, WS_H3, WS_DBG = 0x100000, 0x300000, 0x700000, 0xA00000, 0xC00000, 0x1200000
X1_STRIDE = 73728
H3_STRIDE = 176 * 1024
WS_CS = 0x90000
WS_MB = 0x1400000
WS_REC = 0x1440000
WS_SP = 0x2000000
VTAB = GATE + 7168
PD = opt('PD', 3)
TIMEOUT = 1 << 22
MAPC = opt('MAPC', 1)
FAKEW = opt('FAKEW', 0)
WHAT = opt('WHAT', 0)
KDUP = 1
PAGES = opt('PAGES', 1)
ROT1 = opt('ROT1', 1)

def f32(x): return '0x%08x' % struct.unpack('<I', struct.pack('<f', x))[0]
LOG2E = 1.4426950408889634
C1 = 2 * 0.7978845608028654 * LOG2E
QSCALE = 0.25 * LOG2E

A_X, A_H, A_KE, A_KO, A_ST, A_X1, A_O, A_H3, A_END = 0, 8, 16, 21, 26, 27, 35, 43, 65
W_1, W_K, W_V, W_Q, W_2, W_3, W_O, W_4, W_END = 0, 8, 16, 24, 32, 40, 64, 72, 94
FIXED = {('A', A_X + i): i for i in range(8)}
FIXED.update({('A', A_KE + i): i for i in range(10)})
apos = lambda i: FIXED.get(('A', i), POS.get(('A', str(i)), 0)) * 8192
wpos = lambda i: POS.get(('W', str(i)), 0) * 8192

sX, sWQKV, sWO, sW1, sW2, sW3, sW4, sGATE, sOUT, sDBG, sWS = 4, 6, 8, 12, 14, 16, 18, 20, 22, 24, 26
sR, sC, sROT, sWV, sTAG, sTO = 28, 29, 30, 31, 32, 33
sRET = 34
sWSD = 36
sSRD = 40
sT0, sT1, sT2, sT3 = 47, 48, 49, 50
sHI = 52
sVM = 54
sGM = 56
sTT, sCH = 58, 59
sMASK = 60
sE = 92
sST = 94
sQ1, sQ2, sQ3 = 96, 98, 100
sRT1 = 46
sZM = 44

a = Asm()
ool = Asm()
ool.uid = 100000

class Lgkm:
    def __init__(self): self.n = 0; self.done = 0
    def issue(self, text):
        a(text); self.n += 1; return self.n
    def wait(self, seq):
        if seq <= self.done: return
        k = min(self.n - seq, 14)
        a(f's_waitcnt lgkmcnt({k})')
        self.done = self.n - k
    def all(self): self.wait(self.n)
lg = Lgkm()
def emit(x):
    if callable(x): x()
    elif x.startswith('ds_'): lg.issue(x)
    else: a(x)

nstamp = [0]
stamp_names = []
def stamp(name):
    if not DEBUG: return
    i = nstamp[0]; nstamp[0] += 1
    stamp_names.append(name)
    a(f's_memtime {sr(sST,2)}')
    a(f's_memrealtime s[2:3]'.replace('s[2:3]', 's[0:1]'))
    a('s_waitcnt lgkmcnt(0)')
    a(f'v_writelane_b32 v0, s{sST}, {i}')
    a(f'v_writelane_b32 v0, s0, {32+i}')
    assert i < 30
def st(name): return lambda: stamp(name)
ARR = TRACE and opt('ARR', 0)
def arr_mark(k):
    if ARR: a(f's_memtime s[34:35]\ns_waitcnt lgkmcnt(0)\n' + (f's_mov_b32 s3, s{sST}\n' if k == 0 else '') + f's_sub_u32 s34, s34, s3\nv_writelane_b32 v127, s34, {k}')
def arr_dump():
    if ARR: a(f'''
    v_mbcnt_lo_u32_b32 v126, -1, 0
    v_lshlrev_b32 v126, 2, v126
    s_lshl_b32 s0, s2, 3
    s_add_u32 s0, s0, s{sWV}
    s_lshl_b32 s0, s0, 4
    s_add_u32 s0, s0, {WS_DBG}
    s_mov_b64 exec, 15
    buffer_store_dword v127, v126, {sr(sWSD,4)}, s0 offen
    s_mov_b64 exec, -1
    ''')
def dbg_start():
    if not DEBUG: return
    a(f'v_mov_b32 v0, 0')
    a(f'v_writelane_b32 v0, s{sST}, 0')
    a(f'v_writelane_b32 v0, s{sE}, 62')
    nstamp[0] = 1; stamp_names.clear(); stamp_names.append('start')
def dbg_dump():
    if not DEBUG: return
    a('s_waitcnt vmcnt(0)')
    stamp('end')
    a(f'''
    s_memrealtime {sr(sST,2)}
    s_waitcnt lgkmcnt(0)
    v_writelane_b32 v0, s{sST}, 63
    s_mov_b32 s{sWSD}, s{sWS}
    s_mov_b32 s{sWSD+1}, s{sWS+1}
    v_mbcnt_lo_u32_b32 v1, -1, 0
    v_mbcnt_hi_u32_b32 v1, -1, v1
    v_lshlrev_b32 v1, 2, v1
    s_lshl_b32 s{sT0}, s2, 3
    s_add_u32 s{sT0}, s{sT0}, s{sWV}
    s_lshl_b32 s{sT0}, s{sT0}, 8
    s_add_u32 s{sT0}, s{sT0}, {WS_DBG}
    buffer_store_dword v0, v1, {sr(sWSD,4)}, s{sT0} offen
    ''')

if DEBUG or TRACE:
    a(f's_memtime {sr(sST,2)}')
    a(f's_memrealtime {sr(sE,2)}')
if opt('DIAG', 0) and opt('DAT', -1) == -2: a('s_memrealtime s[98:99]')
a(f'''
s_cmp_ge_u32 s2, 256
s_cbranch_scc1 L_end
s_load_dwordx16 s[4:19], s[0:1], 0
s_load_dwordx8 s[20:27], s[0:1], 64
v_lshrrev_b32 v1, 6, v0
v_and_b32 v0, 63, v0
v_readfirstlane_b32 s{sWV}, v1
s_cmp_eq_u32 s{sWV}, 6
s_cbranch_scc0 L_noaux
s_getpc_b64 s[56:57]
L_pc:
s_sub_u32 s56, s56, L_pc-{NAME}_kernel
s_subb_u32 s57, s57, 0
s_lshr_b32 s58, s2, 3
s_lshl_b32 s58, s58, 11
v_lshlrev_b32 v4, 4, v0
v_add_u32 v3, s58, v4
v_min_u32 v5, L_last-{NAME}_kernel-16, v3
global_load_dwordx4 v[32:35], v5, s[56:57]
v_add_u32 v3, 1024, v3
v_min_u32 v5, L_last-{NAME}_kernel-16, v3
global_load_dwordx4 v[36:39], v5, s[56:57]
L_noaux:
s_and_b32 s{sT0}, s2, 7
s_lshr_b32 s{sT1}, s2, 3
s_lshr_b32 s{sR}, s{sT0}, {MAPC}
s_lshl_b32 s{sR}, s{sR}, {2 + MAPC}
s_lshr_b32 s{sT2}, s{sT1}, {3 - MAPC}
s_add_u32 s{sR}, s{sR}, s{sT2}
s_and_b32 s{sC}, s{sT0}, {(1 << MAPC) - 1}
s_lshl_b32 s{sC}, s{sC}, {3 - MAPC}
s_and_b32 s{sT2}, s{sT1}, {(8 >> MAPC) - 1}
s_add_u32 s{sC}, s{sC}, s{sT2}
s_and_b32 s{sROT}, s{sR}, {opt('RM', 7)}
s_mul_i32 s{sROT}, s{sROT}, {opt('RR', 1)}
s_add_u32 s{sROT}, s{sROT}, s{sC}
s_and_b32 s{sROT}, s{sROT}, 7
s_and_b32 s{sRT1}, s{sR}, {opt('RM1', 7)}
s_mul_i32 s{sRT1}, s{sRT1}, {opt('RR1', 1)}
s_add_u32 s{sRT1}, s{sRT1}, s{sC}
s_and_b32 s{sRT1}, s{sRT1}, 7
s_mov_b32 s{sTO}, {TIMEOUT}
s_mov_b32 s{sWSD+2}, {WS_REC}
s_mov_b32 s{sWSD+3}, 0x20000
s_mov_b32 s{sSRD+3}, 0x20000
s_cmp_lt_u32 s{sWV}, 4
s_cbranch_scc1 L_comp
s_cmp_eq_u32 s{sWV}, 7
s_cbranch_scc1 L_flag
s_cmp_eq_u32 s{sWV}, 6
s_cbranch_scc1 L_aux
''')
sec_pro = a.ins; a.ins = []
if PAGES: a('.p2align 12')
a('L_comp:')
arr_mark(0)
def make_tag():
    a(f'''
    s_add_u32 s{sE}, s{sE}, 0x9e3779b0
    s_and_b32 s{sTAG}, s{sE}, 0xfffffff0
    ''')

vWn0, vWn1, vWt0, vWt1, vP, vL16, vKr, vVr, vStV, vStH, vX0, vX1, vX2, vG, vX3 = range(1, 16)
vWn2, vWt2, vP1, vP2 = 44, 0, vStH, vL16
vT = 16
vSel = 20
vWf = 24
vAf = 36
vA0, vA1, vAB = 48, 64, 80
vL = 96
vPan = 128
vQl = 120

a(f's_setprio {opt("PC", 0)}')
a(f'''
s_and_b32 s{sTT}, s{sWV}, 1
s_lshr_b32 s{sCH}, s{sWV}, 1
s_mov_b32 s{sHI}, 0
s_mov_b32 s{sHI+1}, -1
s_mov_b32 s{sVM}, 0xffff
s_mov_b32 s{sVM+1}, 0xffff
''')
L, TOK, H, T1, T2, T3, ROW = 'v0', 'v48', 'v49', 'v50', 'v51', 'v52', 'v53'
a(f'''
v_and_b32 {TOK}, 31, {L}
v_lshrrev_b32 {H}, 5, {L}
v_lshlrev_b32 v{vL16}, 4, {L}
''')
a(f'''
v_bfe_u32 {T1}, {L}, 3, 1
v_xor_b32 {T1}, s{sCH}, {T1}
v_lshlrev_b32 {T1}, 6, {T1}
v_bfe_u32 {T2}, {L}, 4, 1
v_lshl_add_u32 {T1}, {T2}, 5, {T1}
v_and_b32 {T2}, 3, {L}
v_lshl_add_u32 {T1}, {T2}, 3, {T1}
v_bfe_u32 {T2}, {L}, 2, 2
v_lshl_add_u32 {T1}, {T2}, 7, {T1}
v_lshl_add_u32 v{vWn0}, {H}, 10, {T1}
v_add_u32 v{vWn1}, 65536, v{vWn0}
v_lshl_add_u32 v{vWt0}, {H}, 9, {T1}
v_add_u32 v{vWt1}, 65536, v{vWt0}
v_add_u32 v{vWn2}, 65536, v{vWn1}
''')
a(f'''
v_lshlrev_b32 {T1}, 4, {TOK}
v_lshl_add_u32 {T1}, {H}, 10, {T1}
s_lshl_b32 s{sT0}, s{sTT}, 9
v_add_u32 v{vP}, s{sT0}, {T1}
s_lshl_b32 s{sT0}, s{sTT}, 12
s_lshl_b32 s{sT1}, s{sCH}, 10
s_add_u32 s{sT0}, s{sT0}, s{sT1}
v_add_u32 v{vKr}, s{sT0}, v{vL16}
s_add_u32 s{sT0}, s{sT0}, 2048
v_and_b32 {T2}, 15, {L}
v_lshlrev_b32 {T2}, 4, {T2}
v_lshl_add_u32 {T2}, {H}, 8, {T2}
v_add_u32 v{vVr}, s{sT0}, {T2}
v_bfe_u32 {T3}, {L}, 4, 1
v_lshl_add_u32 v{vStV}, {T3}, 13, v{vVr}
s_lshl_b32 s{sT0}, s{sTT}, 4
s_add_u32 s{sT0}, s{sT0}, {VTAB}
v_mov_b32 {T1}, s{sT0}
v_cndmask_b32 v{vVr}, {T1}, v{vVr}, {sr(sVM,2)}
s_lshl_b32 s{sT0}, s{sR}, 1
v_lshlrev_b32 {T1}, 4, {TOK}
v_lshl_add_u32 {T1}, {H}, 9, {T1}
v_add_u32 {T1}, {VTAB}, {T1}
v_add_u32 {T2}, s{sT0}, {TOK}
v_cmp_le_u32 vcc, 8, {T2}
v_mov_b32 {T2}, 0x3f803f80
v_cndmask_b32 v{vL+8}, 0, {T2}, vcc
v_mov_b32 v{vL+9}, v{vL+8}
v_mov_b32 v{vL+10}, v{vL+8}
v_mov_b32 v{vL+11}, v{vL+8}
ds_write_b128 {T1}, {vr(vL+8,4)}
''')
a(f'''
s_lshr_b32 s{sT0}, s{sC}, 2
s_add_u32 s{sT0}, s{sT0}, 1
s_sub_u32 s{sT1}, 0, s{sT0}
s_bitcmp1_b32 s{sC}, 1
s_cselect_b32 s{sT0}, s{sT1}, s{sT0}
s_lshl_b32 s{sT1}, s{sR}, 6
s_add_u32 s{sT0}, s{sT0}, s{sT1}
s_lshl_b32 s{sT1}, s{sTT}, 5
s_add_u32 s{sT0}, s{sT0}, s{sT1}
v_add_u32 {T1}, s{sT0}, {TOK}
v_mov_b32 {T2}, 2047
v_cmp_gt_u32 {sr(sZM,2)}, {T1}, {T2}
v_and_b32 {T1}, {T2}, {T1}
v_lshrrev_b32 {T2}, 6, {T1}
v_and_b32 {T1}, 63, {T1}
v_lshlrev_b32 {T1}, 4, {T1}
v_lshl_add_u32 {T1}, {T2}, 16, {T1}
v_lshl_add_u32 v{vStH}, {H}, 10, {T1}
''')
a(f'''
v_bfe_u32 {T1}, {L}, 4, 1
v_bfe_u32 {T2}, {L}, 2, 1
v_cmp_eq_u32 {sr(sGM,2)}, {T1}, {T2}
v_mov_b32 {T3}, 0x3f803f80
v_cndmask_b32 v{vSel}, 0, {T3}, {sr(sGM,2)}
v_mov_b32 v{vSel+1}, v{vSel}
v_mov_b32 v{vSel+2}, v{vSel}
v_mov_b32 v{vSel+3}, v{vSel}
v_and_b32 {T1}, 3, {L}
v_cmp_eq_u32 vcc, 0, {T1}
v_cmp_eq_u32 {sr(sQ1,2)}, 1, {T1}
v_cmp_eq_u32 {sr(sQ2,2)}, 2, {T1}
v_cmp_eq_u32 {sr(sQ3,2)}, 3, {T1}
v_mov_b32 v40, {GATE+2176}
v_mov_b32 {T1}, {GATE+1088}
v_cndmask_b32 v40, v40, {T1}, vcc
v_and_b32 {T1}, 48, {L}
v_add_u32 {T1}, {GATE}, {T1}
v_cndmask_b32 v40, v40, {T1}, {sr(sQ1,2)}
v_add_u32 {T1}, {GATE+1088}, v{vL16}
v_mov_b32 v{vL}, {T3}
v_mov_b32 v{vL+1}, {T3}
v_mov_b32 v{vL+2}, {T3}
v_mov_b32 v{vL+3}, {T3}
v_mov_b32 v{vL+4}, 0
v_mov_b32 v{vL+5}, 0
v_mov_b32 v{vL+6}, 0
v_mov_b32 v{vL+7}, 0
ds_write_b128 {T1}, {vr(vL,4)}
ds_write_b128 {T1}, {vr(vL+4,4)} offset:1088
''')
vXa, vGa = 36, 40
a(f'''
s_lshl_b32 s{sT0}, s{sTT}, 5
v_add_u32 {ROW}, s{sT0}, {TOK}
v_bfe_u32 {T1}, {ROW}, 1, 3
v_lshlrev_b32 {ROW}, 7, {ROW}
v_xor_b32 {T2}, {T1}, {H}
''')
for s in range(4):
    a(f'v_xor_b32 {T3}, {2*s}, {T2}')
    a(f'v_lshl_add_u32 v{vXa+s}, {T3}, 4, {ROW}')
vYa, vEw, vEr = 41, 43, 45
XCH = GATE + 4096
a(f'''
v_lshrrev_b32 v{vEr}, 3, {ROW}
v_add_u32 v{vEr}, {XCH}, v{vEr}
s_lshl_b32 s{sT1}, s{sCH}, 4
s_add_u32 s{sT0}, s{sT0}, s{sT1}
v_and_b32 {T3}, 15, {L}
v_add_u32 {ROW}, s{sT0}, {T3}
v_bfe_u32 {T1}, {ROW}, 1, 3
v_lshrrev_b32 {T2}, 4, {L}
v_xor_b32 {T1}, {T1}, {T2}
v_lshlrev_b32 {T1}, 4, {T1}
v_lshl_add_u32 v{vYa}, {ROW}, 7, {T1}
v_xor_b32 v{vYa+1}, 64, v{vYa}
v_lshlrev_b32 v{vEw}, 4, {ROW}
v_add_u32 v{vEw}, {XCH}, v{vEw}
v_lshrrev_b32 {T3}, 2, {T3}
v_cmp_eq_u32 {sr(sGM,2)}, {T2}, {T3}
''')
a(f'v_lshlrev_b32 {T1}, 2, {H}')
a(f'v_sub_u32 {T1}, {TOK}, {T1}')
for r in range(16):
    a(f'v_cmp_gt_i32 {sr(sMASK+2*r,2)}, {(r & 3) + 8 * (r >> 2)}, {T1}')
a(f'v_add_u32 v{vWt2}, 65536, v{vWt1}')
a(f'v_add_u32 v{vP2}, 131072, v{vP}')
a('s_waitcnt lgkmcnt(0)')
sOH, sOK0, sOK1, sOX1, sOST, sOO, sOH3, sOOUT, sJV, sNEG, sTILE = range(4, 15)
a(f'''
s_mov_b32 s{sSRD}, s{sOUT}
s_mov_b32 s{sSRD+1}, s{sOUT+1}
s_mov_b32 s{sSRD+2}, {2048*1024}
s_mov_b32 s{sWSD}, s{sWS}
s_mov_b32 s{sWSD+1}, s{sWS+1}
s_lshl_b32 s{sTILE}, s{sC}, 13
s_lshl_b32 s{sT1}, s{sCH}, 12
s_add_u32 s{sTILE}, s{sTILE}, s{sT1}
s_add_u32 s{sOH}, s{sTILE}, {WS_H}
s_lshl_b32 s{sOK0}, s{sR}, 3
s_add_u32 s{sOK0}, s{sOK0}, s{sC}
s_lshl_b32 s{sOK0}, s{sOK0}, 14
s_add_u32 s{sOK0}, s{sOK0}, {WS_KV}
s_add_u32 s{sOK1}, s{sOK0}, 8192
s_mul_i32 s{sT0}, s{sR}, {X1_STRIDE}
s_add_u32 s{sT0}, s{sT0}, {WS_X1}
s_add_u32 s{sOX1}, s{sT0}, s{sTILE}
s_lshr_b32 s{sOST}, s{sTILE}, 3
s_add_u32 s{sOST}, s{sOST}, s{sT0}
s_add_u32 s{sOST}, s{sOST}, 65536
s_lshl_b32 s{sT0}, s{sR}, 16
s_add_u32 s{sOO}, s{sT0}, s{sTILE}
s_add_u32 s{sOO}, s{sOO}, {WS_O}
s_lshl_b32 s{sT1}, s{sTT}, 15
s_add_u32 s{sOOUT}, s{sT0}, s{sT1}
s_lshr_b32 s{sT1}, s{sTILE}, 6
s_add_u32 s{sOOUT}, s{sOOUT}, s{sT1}
s_mul_i32 s{sOH3}, s{sR}, {H3_STRIDE}
s_add_u32 s{sOH3}, s{sOH3}, s{sTILE}
s_add_u32 s{sOH3}, s{sOH3}, {WS_H3}
s_add_u32 s{sNEG}, s{sOH3}, 131072
s_cmp_ge_u32 s{sC}, 6
s_cselect_b32 s{sNEG}, {WS_REC}, s{sNEG}
s_lshl_b32 s{sT1}, s{sC}, 13
s_add_u32 s{sOH3}, s{sOH3}, s{sT1}
s_lshl_b32 s{sJV}, s{sR}, 1
s_add_u32 s{sJV}, s{sJV}, s{sTT}
s_sub_i32 s{sJV}, 8, s{sJV}
s_max_i32 s{sJV}, s{sJV}, 0
''')

ticks = []
last_read = {}
freed = set()
pub_next = [None]
def want_pub(stage): pub_next[0] = stage
stage_mark = {}
def nstores(): return sum(1 for i in a.ins if i.op.startswith('buffer_store'))
def mark(stage): return lambda: stage_mark.__setitem__(stage, nstores())
def tick(needW=None, needA=None, name='', dur=140):
    pub = pub_next[0]; pub_next[0] = None
    if pub: a(f's_waitcnt vmcnt({nstores() - stage_mark.get(pub, nstores())})')
    a('s_barrier')
    fr = [k for k, s in last_read.items() if s <= lg.done and k not in freed]
    freed.update(fr)
    ticks.append(dict(needW=needW, needA=needA, free=fr, pub=pub, name=name, dur=dur))

class Step:
    def __init__(self, w, s, order, acc, act, aslot=None, aread=None, swap=False, c0=None, pre=None, post=None, lastw=False, lasta=False, cs=None, cs0=False, xa=None, dur=140):
        self.__dict__.update(locals())

def run_steps(steps, fill=None):
    fill = fill or {}
    seqs = {}
    def reads(n, part=7):
        s_ = steps[n]
        if part & 1:
            if s_.s == 0: tick(s_.w, s_.aslot if s_.xa is None else s_.xa, f'W{s_.w}', s_.dur)
            if s_.pre: s_.pre()
        if not part & 2: pass
        elif s_.aread == 'x':
            lg.issue(f'ds_read_b128 {vr(s_.act,4)}, v{vXa+s_.s} offset:{apos(s_.aslot)}')
        elif s_.aread == 'p':
            o_ = apos(s_.aslot) + s_.s * 2048
            lg.issue(f'ds_read_b128 {vr(s_.act,4)}, v{(vP, vP1, vP2)[o_ >> 16]} offset:{o_ & 65535}')
        if not part & 4: return
        off = wpos(s_.w) + s_.s * 2048
        base = ((vWn0, vWn1, vWn2) if s_.order == 'n' else (vWt0, vWt1, vWt2))[off >> 16]
        off &= 65535
        d = 512 if s_.order == 'n' else 1024
        f = vWf + (n % 3) * 4
        lg.issue(f'ds_read_b64_tr_b16 {vr(f,2)}, v{base} offset:{off}')
        seqs[n] = lg.issue(f'ds_read_b64_tr_b16 {vr(f+2,2)}, v{base} offset:{off+d}')
        if s_.lastw: last_read[('W', s_.w)] = seqs[n]
        if s_.lasta: last_read[('A', s_.aslot)] = seqs[n]
    for n in range(min(PD, len(steps))): reads(n)
    for n, s_ in enumerate(steps):
        fl = list(fill.get(n, []))
        if opt('W2', 1) and n % 2 == 0 and n + 1 in seqs and min(len(fill.get(n - 1, [])), len(fill.get(n - 2, []))) >= opt('W2N', 2): lg.wait(seqs[n + 1])
        lg.wait(seqs[n])
        f = vWf + (n % 3) * 4
        c = s_.c0 if s_.c0 is not None else vr(s_.acc, 16)
        A, B = (vr(f, 4), vr(s_.act, 4)) if not s_.swap else (vr(s_.act, 4), vr(f, 4))
        more = n + PD < len(steps)
        split = s_.cs is not None and opt('B1S', 2)
        if s_.post: s_.post()
        if split and more: reads(n + PD, 1)
        if s_.cs is not None:
            a(f'v_mfma_f32_16x16x32_bf16 {vr(s_.cs,4)}, {vr(vSel,4)}, {vr(f,4)}, {"0" if s_.cs0 else vr(s_.cs,4)}')
        if split and more and opt('B1S', 2) == 2: reads(n + PD, 2)
        a(f'v_mfma_f32_32x32x16_bf16 {vr(s_.acc,16)}, {A}, {B}, {c}')
        if more: reads(n + PD, 7 if not split else 4 if opt('B1S', 2) == 2 else 6)
        for x in fl: emit(x)

def spread(items, start, end):
    d = {}
    n = end - start
    for i, x in enumerate(items):
        d.setdefault(start + i * n // len(items), []).append(x)
    return d
def merge(*ds):
    o = {}
    for d in ds:
        for k, v in d.items(): o.setdefault(k, []).extend(v)
    return o
def pack(acc, dst): return [f'v_cvt_pk_bf16_f32 v{dst+i}, v{acc+2*i}, v{acc+2*i+1}' for i in range(8)]
def store2(pk, voff, s0, s1=None, d=2048):
    if WHAT & 2: return ['s_nop 0', 's_nop 0']
    return [f'buffer_store_dwordx4 {vr(pk,4)}, v{voff}, {sr(sWSD,4)}, s{s0} offen sc1',
            f'buffer_store_dwordx4 {vr(pk+4,4)}, v{voff}, {sr(sWSD,4)}, s{s0 if s1 is None else s1} offen offset:{d} sc1']
def pubat(stage): return lambda: want_pub(stage)

def ln_consts(sum_, sq, vCA, vCB, vIR, vNM, t):
    return f'''v_mul_f32 v{t}, {f32(-1.0/512)}, v{sum_}
    v_mul_f32 v{t+1}, v{t}, v{t}
    v_mov_b32 v{t+2}, {f32(1.0/512)}
    v_fma_f32 v{t+1}, v{sq}, v{t+2}, -v{t+1}
    v_max_f32 v{t+1}, 0, v{t+1}
    v_add_f32 v{t+1}, {f32(1e-5)}, v{t+1}
    v_rsq_f32 v{t+2}, v{t+1}
    v_cvt_pk_bf16_f32 v{vNM}, v{t}, v{t}
    v_mul_f32 v{vIR}, v{t+1}, v{t+2}
    v_mul_f32 v{vCA}, {f32(-C1)}, v{t+2}
    v_mul_f32 v{t+1}, v{t+2}, v{t+2}
    v_mul_f32 v{t+1}, {f32(0.044715)}, v{t+1}
    v_mul_f32 v{vCB}, v{vCA}, v{t+1}
    v_lshlrev_b32 v{t+1}, 16, v{vNM}
    v_sub_f32 v{t+1}, v{t}, v{t+1}
    v_cvt_pk_bf16_f32 v{t+1}, v{t+1}, v{t+1}
    v_cndmask_b32 v{vNM}, v{vNM}, v{t+1}, {sr(sHI,2)}'''.replace('    ', '').split('\n')
def cs_fix(cs, vCSA, vNM, acc, t):
    return [f'v_cvt_pk_bf16_f32 v{t}, v{cs}, v{cs}',
            f'v_lshlrev_b32 v{t}, 16, v{t}',
            f'v_sub_f32 v{t}, v{cs}, v{t}',
            f'v_cvt_pk_bf16_f32 v{vCSA}, v{cs}, v{t}',
            f'v_mfma_f32_32x32x16_bf16 {vr(acc,16)}, {vr(vCSA,4)}, {vr(vNM,4)}, {vr(acc,16)}']
def gelu_pk(acc, vCA, vCB, vIR, tmp, dst):
    o = []
    for i in range(0, 16, 2): o.append(f'v_pk_mul_f32 {vr(tmp+i,2)}, {vr(acc+i,2)}, {vr(acc+i,2)}')
    for i in range(0, 16, 2): o.append(f'v_pk_fma_f32 {vr(tmp+i,2)}, {vr(tmp+i,2)}, {vr(vCB,2)}, {vr(vCA,2)} op_sel_hi:[1,0,0]')
    for i in range(0, 16, 2): o.append(f'v_pk_mul_f32 {vr(tmp+i,2)}, {vr(tmp+i,2)}, {vr(acc+i,2)}')
    for i in range(16): o.append(f'v_exp_f32 v{tmp+i}, v{tmp+i}')
    for i in range(0, 16, 2): o.append(f'v_pk_fma_f32 {vr(tmp+i,2)}, {vr(tmp+i,2)}, {vr(vIR,2)}, {vr(vIR,2)} op_sel_hi:[1,0,0]')
    for i in range(16): o.append(f'v_rcp_f32 v{tmp+i}, v{tmp+i}')
    for i in range(0, 16, 2): o.append(f'v_pk_mul_f32 {vr(tmp+i,2)}, {vr(tmp+i,2)}, {vr(acc+i,2)}')
    for i in range(0, 16, 2): o.append(f'v_cvt_pk_bf16_f32 v{dst+i//2}, v{tmp+i}, v{tmp+i+1}')
    return o
def gelu_sc(acc, vCA, vCB, vIR, tmp, dst):
    o = []
    def chain(e, t):
        return [f'v_mul_f32 v{t}, v{acc+e}, v{acc+e}', f'v_fma_f32 v{t}, v{t}, v{vCB}, v{vCA}', f'v_mul_f32 v{t}, v{t}, v{acc+e}',
                f'v_exp_f32 v{t}, v{t}', f'v_fma_f32 v{t}, v{t}, v{vIR}, v{vIR}', f'v_rcp_f32 v{t}, v{t}', f'v_mul_f32 v{t}, v{t}, v{acc+e}']
    for g in range(0, 16, 2):
        t = tmp + (g & 2)
        c0, c1 = chain(g, t), chain(g + 1, t + 1)
        for x, y in zip(c0, c1): o += [x, y]
        o.append(f'v_cvt_pk_bf16_f32 v{dst+g//2}, v{t}, v{t+1}')
    return o

vCS, vSG, vSQ = 64, 68, 72
arr_mark(1)
arr_dump()
RES = vAB + 8
cA, cB, cI, cNM, cCS, cT = vL, vL + 2, vL + 4, vL + 8, vL + 12, 76
zer = [f'v_mov_b32 v{r}, 0' for r in (cNM+1, cNM+2, cNM+3, cCS+1, cCS+2, cCS+3)]
XB = lambda S: 80 + 4 * (S & 3)
GB = lambda S: vL + 16 + 4 * (S & 3)
xs, gs = {}, {}
def x16(S): xs[S] = lg.issue(f'ds_read_b128 {vr(XB(S),4)}, v{vYa+(S&1)} offset:{apos(A_X+(S>>1))}')
def g16(S): gs[S] = lg.issue(f'ds_read_b128 {vr(GB(S),4)}, v{vGa} offset:{64*S}')
def gram(S):
    lg.wait(xs[S]); a(f'v_mfma_f32_16x16x32_bf16 {vr(vSQ,4)}, {vr(XB(S),4)}, {vr(XB(S),4)}, {"0" if S == 0 else vr(vSQ,4)}')
def sumg(S):
    lg.wait(max(xs[S], gs[S])); a(f'v_mfma_f32_16x16x32_bf16 {vr(vSG,4)}, {vr(GB(S),4)}, {vr(XB(S),4)}, {"0" if S == 0 else vr(vSG,4)}')
aux_at = {}
for j in range(8):
    for k, op in enumerate((lambda j=j: gram(2*j), lambda j=j: sumg(2*j), lambda j=j: gram(2*j+1), lambda j=j: sumg(2*j+1))):
        n = max(4 * j - 1 + k, 0) if j < 7 else (27, 28, 28, 29)[k]
        aux_at.setdefault(n, []).append(op)
steps = []
for n in range(32):
    j, s = divmod(n, 4)
    def pre(j=j, s=s):
        if s == 0:
            x16(2 * j)
            if j == 0: g16(0)
        if s == 1:
            x16(2 * j + 1)
            if j == 0: g16(1)
        if s >= 2 and j < 7: g16(2 * j + s)
    def post(n=n):
        for f in aux_at.get(n, []): f()
    steps.append(Step(W_1 + j, s, 'n', vA0, vPan + 4 * n, aslot=A_X + j, aread='x', c0='0' if n == 0 else None, pre=pre, post=post, lastw=(s == 3), lasta=(s == 3),
                      cs=vCS, cs0=(n == 0), dur=opt('DB1', 400) if j < 7 else opt('DB17', 600)))
xw = [f'v_cndmask_b32 v{vSQ}, v{vSQ}, v{vSQ+1}, {sr(sQ1,2)}', f'v_cndmask_b32 v{vSQ}, v{vSQ}, v{vSQ+2}, {sr(sQ2,2)}', f'v_cndmask_b32 v{vSG+2}, v{vSQ}, v{vSQ+3}, {sr(sQ3,2)}',
      f's_mov_b64 exec, {sr(sGM,2)}', f'ds_write_b128 v{vEw}, {vr(vSG,4)}', 's_mov_b64 exec, -1']
run_steps(steps, merge(spread(zer, 4, 10), {30: xw}))
lg.all()
tick(name='B1e', dur=700)
q_ = lg.issue(f'ds_read_b128 {vr(vSG,4)}, v{vEr}')
cf = cs_fix(vCS, cCS, cNM, vA0, cT + 2)
for x in cf[:4]: a(x)
lg.wait(q_)
lc = ln_consts(vSG, vSG + 2, cA, cB, cI, cNM, cT)
for x in [lc[0], lc[7]] + [y.replace(f'v{cT+1}', f'v{cT+2}') for y in lc[13:17]]: a(x)
a(f'v_mul_f32 v{vG}, {f32(-LOG2E)}, v{vSG+1}')
a(cf[4])
for x in [f'v_exp_f32 v{vG}, v{vG}'] + lc[1:7] + [f'v_add_f32 v{vG}, 1.0, v{vG}'] + lc[8:13] + [f'v_rcp_f32 v{vG}, v{vG}']: a(x)
PK = vAf
GI = opt('GI', 0)
zm = [f'v_cndmask_b32 v{PK+i}, v{PK+i}, 0, {sr(sZM,2)}' for i in range(8)]
hs2 = store2(PK, vStH, sOH)
hfill = {}
if GI:
    g = gelu_sc(vA0, cA, cB, cI, vT, PK)
    hfill = spread(g[:60] + zm[:4] + g[60:] + zm[4:] + ['\n'.join(hs2), mark(1)], 0, GI)
else:
    for x in gelu_pk(vA0, cA, cB, cI, vA1, PK) + zm + hs2: a(x)
    mark(1)()
aK, aV, aQ = (vA1, vA0, vA1) if GI else (vA0, vA1, vA0)
stamp('B1 epi')

steps = []
for p, (w0, acc, swap) in enumerate(((W_K, aK, False), (W_V, aV, True), (W_Q, aQ, False))):
    for n in range(32):
        j, s = divmod(n, 4)
        steps.append(Step(w0 + j, s, 'n', acc, vPan + 4 * n, swap=swap, c0='0' if n == 0 else None, lastw=(s == 3), dur=opt('DKG', 280) if p == 0 and n <= GI else 145))
unres = [f's_sub_u32 s{sT0}, s{sC}, s{sRT1}\ns_and_b32 s{sT0}, s{sT0}, 7\ns_lshl_b32 s{sT0}, s{sT0}, 1\ns_add_u32 s{sT0}, s{sT0}, s{sCH}\ns_lshl_b32 s{sT0}, s{sT0}, 3']
for q in range(2):
    unres.append(f's_set_gpr_idx_on s{sT0}, 1\n' + '\n'.join(f'v_mov_b32_e32 v{RES+4*q+i}, v{vPan+4*q+i}' for i in range(4)) + '\ns_set_gpr_idx_off')
unres += [f'v_add_u32 v{vP1}, 65536, v{vP}'] + [f'v_permlane32_swap_b32 v{RES+i}, v{RES+i+2}' for i in (0, 1, 4, 5)]
for j in range(8):
    unres += [f'v_lshlrev_b32 v{vAB+2*j}, 16, v{RES+j}', f'v_and_b32 v{vAB+2*j+1}, 0xffff0000, v{RES+j}']
def stream_steps(w0, a0, nsteps, acc, c0=None, phase=0):
    o = []
    for n in range(nsteps):
        j, s = divmod(n, 4)
        last = s == 3 or n == nsteps - 1
        o.append(Step(w0 + j, s, 't', acc, vAf + ((n + phase) % 3) * 4, aslot=a0 + j, aread='p', c0=c0 if n == 0 else None, lastw=last, lasta=last))
    return o
PKS = vL + 16
vK, vV = 128, 164
M8 = [20, 21, 22, 23, 252, 253, 254, 255]
vVs, vVa = vWn0, vWn1
vK_ = vK; vK = vT
att_pre = [f'v_mov_b32 v{vK+1}, 0xffff0000', f'v_mov_b32 v{vK+2}, 0xffff']
for i in range(8):
    att_pre += [f'v_cndmask_b32 v{M8[i]}, 0, v{vK+2}, {sr(sMASK+4*i,2)}', f'v_cndmask_b32 v{vK}, 0, v{vK+1}, {sr(sMASK+4*i+2,2)}', f'v_or_b32 v{M8[i]}, v{M8[i]}, v{vK}']
att_pre += [f'v_add_u32 v{vX2}, {apos(A_KO)}, v{vKr}', f'v_mov_b32 v{vK+3}, 4096',
            f'v_cndmask_b32 v{vVs}, 16, v{vK+3}, {sr(sVM,2)}',
            f'v_mov_b32 v{vK+3}, {apos(A_KO)}', f'v_cndmask_b32 v{vX3}, 0, v{vK+3}, {sr(sVM,2)}', f'v_add_u32 v{vX3}, v{vX3}, v{vVr}']
vK = vK_
APS = 14
qfin = [f'v_mul_f32 v{aQ+i}, {f32(QSCALE)}, v{aQ+i}' for i in range(16)] + pack(aQ, vQl)
sta = [f'v_and_b32 v{vX0}, 1023, v{vP}', f'v_lshrrev_b32 v{vX0}, 1, v{vX0}', f'v_mov_b32 v{vX1}, 0x3f803f80']
b2 = stream_steps(W_2, A_H, 32, vAB, phase=96)
for x in b2: x.dur = opt('DB2', 180) if x.w < W_2 + 7 else opt('DB27', 550)
steps += b2
fill = merge(hfill, spread(unres + sta, 44, 62), {31: [st('K')], 63: [st('V')], 95: [st('Q')]},
             {opt('PUB1', GI + 20): [pubat(1)]},
             spread(pack(aK, vL), 35, 39), {opt('KST', 39): store2(vL, vKr, sOK0, sOK1, 0)},
             spread(pack(aV, PKS), 66, 69), {68: store2(PKS, vStV, sOK0, None, 512)},
             {opt('PUB2', 88): [pubat(2)]},
             spread(qfin, 99, 111), spread(att_pre[APS:], 111, 128), spread(att_pre[:APS], 72, 92))
run_steps(steps, fill)
stamp('B2 loop')
for x in pack(vAB, PK): a(x)
for x in store2(PK, vP, sOX1): a(x)
for i in range(8):
    a(f'v_dot2_f32_bf16 v{vA0}, v{PK+i}, v{vX1}, {"0" if i==0 else "v%d"%vA0}')
    a(f'v_dot2_f32_bf16 v{vA0+1}, v{PK+i}, v{PK+i}, {"0" if i==0 else "v%d"%(vA0+1)}')
a(f'''
v_mov_b32 v{vA0+2}, v{vA0}
v_mov_b32 v{vA0+3}, v{vA0+1}
v_permlane32_swap_b32 v{vA0}, v{vA0+2}
v_permlane32_swap_b32 v{vA0+1}, v{vA0+3}
v_add_f32 v{vA0}, v{vA0}, v{vA0+2}
v_add_f32 v{vA0+1}, v{vA0+1}, v{vA0+3}
buffer_store_dwordx2 {vr(vA0,2)}, v{vX0}, {sr(sWSD,4)}, s{sOST} offen sc1
''')
tick(name='B2e', dur=opt('DB2E', 100))
stamp('B2 epi')

vCB_, vM8 = 24, 40
vS0, vS1, vMG, vO = 236, 96, 64, 48
Kf = lambda j: vK + 4 * j
Vf = lambda j, b: vV + 8 * j + 4 * b
MF = lambda d, x, y, c: f'v_mfma_f32_32x32x16_bf16 {vr(d,16)}, {vr(x,4)}, {vr(y,4)}, {c if c == "0" else vr(c,16)}'
kseq = {}
def k_read(a0, j):
    r_, off = (vKr if a0 == A_KE else vX2), 4096 * j
    kseq[j] = lg.issue(f'ds_read_b128 {vr(Kf(j),4)}, v{r_} offset:{off}')
vseq = {}
def v_op(a0, j, last=False):
    base = vVr if a0 == A_KE else vX3
    ad = vVa if j else base
    def pre():
        if j: a(f'v_mad_u32_u24 v{vVa}, v{vVs}, {j}, v{base}')
    def rd():
        lg.issue(f'ds_read_b128 {vr(Vf(j,0),4)}, v{ad}')
        vseq[j] = lg.issue(f'ds_read_b128 {vr(Vf(j,1),4)}, v{ad} offset:512')
        if last:
            for i in range(5): last_read[('A', a0 + i)] = vseq[j]
    return (pre, rd)
def k_op(a0, js):
    return (lambda: None, lambda: [k_read(a0, j) for j in js])
assert apos(A_KE) == 0
vMx, vMy = vT, vT + 1
sFL = [96, 98]
def o_norm(pk):
    return ([f'v_rcp_f32 v{vO+9}, v{vO+8}', f'v_mul_f32 v{vO+9}, v{vG}, v{vO+9}'] + [f'v_mul_f32 v{vO+i}, v{vO+i}, v{vO+9}' for i in range(8)] +
            [f'v_cvt_pk_bf16_f32 v{pk+i}, v{vO+2*i}, v{vO+2*i+1}' for i in range(4)])
def o_final(t):
    n = o_norm(112 + 4 * t)
    chk = [f'v_subrev_u32 v{vO+10}, {63<<23}, v{vO+8}', f'v_lshrrev_b32 v{vO+10}, 30, v{vO+10}', f'v_cmp_ne_u32 {sr(sFL[t],2)}, 0, v{vO+10}']
    fin = [f'v_add_f32_e64 v{vO+11}, |v{vO}|, |v{vO+1}|'] + [f'v_add_f32_e64 v{vO+11}, v{vO+11}, |v{vO+i}|' for i in range(2, 8)] + \
          [f'v_cmp_class_f32 vcc, v{vO+11}, v{vT+2}', f's_nop 0\ns_or_b64 {sr(sFL[t],2)}, {sr(sFL[t],2)}, vcc']
    return n[:1] + chk + n[1:] + (store2(112, vP, sOO) if t == 1 else []) + fin
rq = []
mq = []
mgap = [0]
def pop_m():
    f = mq.pop(0)
    r_ = rq.pop(0) if rq else None
    if r_: r_[0]()
    f()
    if r_: r_[1]()
    mgap[0] = 0
def va(x, cost=4):
    a(x)
    mgap[0] += cost
    if mq and mgap[0] >= 24: pop_m()
def flush_m():
    while mq: pop_m()
def flush_r():
    while rq:
        r_ = rq.pop(0); r_[0](); r_[1]()
def QK(d, j, t):
    def f():
        lg.wait(kseq[j]); a(MF(d, Kf(j), vQl + 4 * t, '0'))
    return f
def PV(j, b, p, c, then=None):
    def f():
        lg.wait(vseq[j]); a(MF(vO, Vf(j, b), p, c))
        if then: rq.append(then)
    return f
a(f'v_mov_b32 v{vT+2}, 0x207')
tick(needA=A_KE + 4, name='KVE', dur=opt('DKVE', 500))
for j in (0, 8, 1, 2): k_read(A_KE, j)
rq += [v_op(A_KE, 0), v_op(A_KE, 8), k_op(A_KE, (3, 4)), v_op(A_KE, 1), v_op(A_KE, 2), k_op(A_KE, (5, 6)), v_op(A_KE, 3), v_op(A_KE, 4), k_op(A_KE, (7,)),
       v_op(A_KE, 5), v_op(A_KE, 6), v_op(A_KE, 7, True)]
mq += [QK(vMG, 0, 0), QK(vCB_, 8, 0), QK(vS0, 1, 0)]
flush_m()
KI = opt('KI', 3)
PGRP = [0, 2, 3, 1, 4, 5, 6, 7]
pan3 = lambda n: vPan + 16 * PGRP[n >> 2] + 4 * (n & 3)
PL0, NPL = opt('PL0', 4), opt('NPL', 3)
pl_seq = [0]
def x1_op(k, half):
    def rd():
        for s_ in (2 * half, 2 * half + 1):
            o_ = apos(A_X1 + k) + s_ * 2048
            pl_seq[0] = lg.issue(f'ds_read_b128 {vr(pan3(4*k+s_),4)}, v{(vP, vP1, vP2)[o_ >> 16]} offset:{o_ & 65535}')
        if half: last_read[('A', A_X1 + k)] = pl_seq[0]
    return (lambda: None, rd)
bufs2 = [vS0, vS1]
pend = []
for t in range(2):
    mq += pend
    if t == 1: mq.append(QK(vS0, 1, 1))
    for r in range(16): va(f'v_cndmask_b32 v{vMG+r}, v{vCB_+r}, v{vMG+r}, {sr(sMASK+2*r,2)}')
    mq.append(QK(vS1, 2, t))
    for r in range(16): va(f'v_exp_f32 v{vMG+r}, v{vMG+r}', 8)
    flush_m()
    if t == 1:
        for x in o_final(0): va(x)
    for i in range(8): va(f'v_cvt_pk_bf16_f32 v{vMG+i}, v{vMG+2*i}, v{vMG+2*i+1}')
    for i in range(8): va(f'v_and_b32 v{vMG+8+i}, v{vMG+i}, v{M8[i]}')
    mq.append(PV(0, 0, vMG + 8, '0'))
    for i in range(8): va(f'v_xor_b32 v{vMG+i}, v{vMG+i}, v{vMG+8+i}')
    flush_m()
    pend = [PV(0, 1, vMG + 12, vO), PV(8, 0, vMG, vO), PV(8, 1, vMG + 4, vO)]
    for i in range(7):
        b = bufs2[i % 2]
        if (t, i) in ((0, KI), (1, 0)):
            assert not rq or t == 0 and len(rq) <= 1, (t, i, len(rq))
            flush_r(); lg.all()
        if t == 0 and i == opt('PUB3', 1): want_pub(3)
        if t == 0 and i == KI: tick(needA=A_KO + 4, name='KVO', dur=220)
        elif t == 1 and 0 <= i - PL0 < NPL:
            k_ = i - PL0
            assert i >= (2, 2, 4, 6, 6)[k_]
            lg.wait(pl_seq[0])
            tick(needA=A_X1 + k_, name=f'T{t}{i}', dur=220 if i < 6 else 260)
            rq += [x1_op(k_, 0), x1_op(k_, 1)]
        else:
            if t == 1: lg.wait(pl_seq[0])
            tick(name=f'T{t}{i}', dur=200 if i < 6 else 650 if t == 0 else 260)
        if t == 0 and i == KI:
            ks = [0, 8] + list(range(1, i + 2))
            rq += [k_op(A_KO, ks[q:q+2]) for q in range(0, len(ks), 2)] + [v_op(A_KO, j) for j in [0, 8] + list(range(1, i))]
        if t == 0 and i > KI: rq.insert(0, k_op(A_KO, (i + 1,)))
        mq += pend
        if 0 < i < 6: mq.append(QK(bufs2[(i + 1) % 2], i + 2, t))
        if t == 0 and i == 6: mq += [QK(vMG, 0, 1), QK(vCB_, 8, 1)]
        mgap[0] = 16
        for r in range(16): va(f'v_exp_f32 v{b+r}, v{b+r}', 8)
        flush_m()
        for q in range(8): va(f'v_cvt_pk_bf16_f32 v{b+q}, v{b+2*q}, v{b+2*q+1}')
        nx = v_op(A_KO, 1 + i, i == 6) if t == 0 and 1 + i >= KI else None
        pend = [PV(1 + i, 0, b, vO), PV(1 + i, 1, b + 4, vO, nx)]
    mgap[0] = 24
assert not rq
lg.wait(pl_seq[0])
for f in pend: f()

def emit_fallback():
    global a
    keep = a; a = Asm(); a.uid = 500000
    Qf, tk, tv = 40, 44, 45
    saved = list(range(16, 80, 4)) + list(range(96, 120, 4)) + list(range(128, 256, 4))
    def spill(op):
        for q, r_ in enumerate(saved):
            if q % 4 == 0: a(f's_add_u32 s{sT0}, s{sRET}, {1024*q}')
            a(f'buffer_{op}_dwordx4 {vr(r_,4)}, v{vVa}, {sr(sWSD,4)}, s{sT0} offen offset:{1024*(q%4)}')
        a('s_waitcnt vmcnt(0)')
    a('L_fb:')
    a(f"""
    s_waitcnt vmcnt(0) lgkmcnt(0)
    s_nop 15
    s_lshl_b32 s{sRET}, s2, 2
    s_add_u32 s{sRET}, s{sRET}, s{sWV}
    s_lshl_b32 s{sRET}, s{sRET}, 16
    s_add_u32 s{sRET}, s{sRET}, {WS_SP}
    s_mov_b32 s{sWSD+2}, {WS_SP + (1 << 26)}
    v_and_b32 v{vVa}, 1023, v{vKr}
    """)
    spill('store')
    for x in att_pre[:26]: a(x)
    a(f's_mov_b32 s{sT3}, 0')
    a('L_fb_head:')
    a(f"""
    s_cmp_eq_u32 s{sT3}, 0
    s_cselect_b64 vcc, {sr(sFL[0],2)}, {sr(sFL[1],2)}
    s_cmp_eq_u64 vcc, 0
    s_cbranch_scc1 L_fb_next
    s_cmp_eq_u32 s{sT3}, 0
    s_cselect_b64 vcc, -1, 0
    """)
    for i in range(4): a(f'v_cndmask_b32 v{Qf+i}, v{vQl+4+i}, v{vQl+i}, vcc')
    a(f"""
    v_and_b32 v46, 4095, v{vKr}
    v_and_b32 v47, 4095, v{vStV}
    v_mov_b32 v{vT+3}, 0x3f803f80
    """)
    for j in range(9):
        a(f"""
        s_add_u32 s{sT0}, s{sTT}, {j}
        s_lshr_b32 s{sT1}, s{sT0}, 1
        s_lshl_b32 s{sT1}, s{sT1}, 17
        s_and_b32 s{sT0}, s{sT0}, 1
        s_lshl_b32 s{sT0}, s{sT0}, 12
        s_add_u32 s{sT0}, s{sT0}, s{sT1}
        s_add_u32 s{sT0}, s{sT0}, s{sOK0}
        s_sub_u32 s{sT0}, s{sT0}, {4<<17}
        s_lshl_b32 s{sT1}, s{sR}, 17
        s_sub_u32 s{sT1}, s{sOK0}, s{sT1}
        s_cmp_le_u32 s{sJV}, {j}
        s_cselect_b32 s{sT0}, s{sT0}, s{sT1}
        s_cselect_b32 s{sT1}, -1, 0xe00
        s_cselect_b32 s{sT2}, -1, 0
        s_cselect_b64 vcc, -1, 0
        s_add_u32 s{sT0}, s{sT0}, s{sT3}
        v_and_b32 v{tk}, s{sT1}, v46
        v_mov_b32 v{tv}, 0x80000000
        v_cndmask_b32 v{tv}, v{tv}, v47, vcc
        v_and_b32 v{Vf(j,0)}, s{sT2}, v{vT+3}
        """)
        for i in range(1, 8): a(f'v_mov_b32 v{Vf(j,0)+i}, v{Vf(j,0)}')
        a(f"""
        buffer_load_dwordx4 {vr(Kf(j),4)}, v{tk}, {sr(sWSD,4)}, s{sT0} offen sc1
        s_mov_b64 exec, {sr(sVM,2)}
        buffer_load_dwordx4 {vr(Vf(j,0),4)}, v{tv}, {sr(sWSD,4)}, s{sT0} offen sc1
        buffer_load_dwordx4 {vr(Vf(j,1),4)}, v{tv}, {sr(sWSD,4)}, s{sT0} offen offset:512 sc1
        s_mov_b64 exec, -1
        """)
    a('s_waitcnt vmcnt(0)')
    a(MF(vMG, Kf(0), Qf, '0')); a(MF(vS0, Kf(8), Qf, '0'))
    for r in range(16): a(f'v_cndmask_b32 v{vMG+r}, v{vS0+r}, v{vMG+r}, {sr(sMASK+2*r,2)}')
    a(f'v_max_f32 v{vMx}, v{vMG}, v{vMG+1}')
    for q in range(2, 16, 2): a(f'v_max3_f32 v{vMx}, v{vMG+q}, v{vMG+q+1}, v{vMx}')
    for j in range(1, 8):
        a(MF(vS0, Kf(j), Qf, '0'))
        for q in range(0, 16, 2): a(f'v_max3_f32 v{vMx}, v{vS0+q}, v{vS0+q+1}, v{vMx}')
    a(f'v_mov_b32 v{vMy}, v{vMx}')
    a(f'v_permlane32_swap_b32 v{vMx}, v{vMy}')
    a(f'v_min_f32_e64 v{vCB_}, -v{vMx}, -v{vMy}')
    for i in range(1, 16): a(f'v_mov_b32 v{vCB_+i}, v{vCB_}')
    for r in range(16): a(f'v_add_f32 v{vMG+r}, v{vMG+r}, v{vCB_}')
    for r in range(16): a(f'v_exp_f32 v{vMG+r}, v{vMG+r}')
    for i in range(8): a(f'v_cvt_pk_bf16_f32 v{vMG+i}, v{vMG+2*i}, v{vMG+2*i+1}')
    for i in range(8): a(f'v_and_b32 v{vMG+8+i}, v{vMG+i}, v{M8[i]}')
    for i in range(8): a(f'v_xor_b32 v{vMG+i}, v{vMG+i}, v{vMG+8+i}')
    for x in (MF(vO, Vf(0, 0), vMG + 8, '0'), MF(vO, Vf(0, 1), vMG + 12, vO), MF(vO, Vf(8, 0), vMG, vO), MF(vO, Vf(8, 1), vMG + 4, vO)): a(x)
    for j in range(1, 8):
        a(MF(vS0, Kf(j), Qf, vCB_))
        for r in range(16): a(f'v_exp_f32 v{vS0+r}, v{vS0+r}')
        for q in range(8): a(f'v_cvt_pk_bf16_f32 v{vS0+q}, v{vS0+2*q}, v{vS0+2*q+1}')
        a(MF(vO, Vf(j, 0), vS0, vO)); a(MF(vO, Vf(j, 1), vS0 + 4, vO))
    for x in o_norm(vS1): a(x)
    a(f"""
    s_lshr_b32 s{sT0}, s{sT3}, 2
    s_add_u32 s{sT0}, s{sT0}, s{sOO}
    buffer_store_dwordx4 {vr(vS1,4)}, v{vP}, {sr(sWSD,4)}, s{sT0} offen sc1
    s_waitcnt vmcnt(0)
    L_fb_next:
    s_add_u32 s{sT3}, s{sT3}, 8192
    s_cmp_eq_u32 s{sT3}, 8192
    s_cbranch_scc1 L_fb_head
    s_nop 15
    """)
    spill('load')
    a(f's_mov_b32 s{sWSD+2}, {WS_REC}')
    a('s_branch L_fb_done')
    ool.ins += a.ins
    a = keep
emit_fallback()

cA, cB, cI, cNM, cCS, cT = 96, 98, 100, 104, 108, 16
csA = [120, 124]
PK3 = 112
def b3_steps(p, acc):
    o = []
    for n in range(32):
        j, s = divmod(n, 4)
        if p == 0 and j >= NPL:
            o.append(Step(W_3 + j, s, 't', acc, pan3(n), aslot=A_X1 + j, aread='p', c0='0' if n == 0 else None, lastw=(s == 3), lasta=(s == 3),
                          dur=opt('DB30', 200)))
        else:
            o.append(Step(W_3 + 8 * p + j, s, 't', acc, pan3(n), c0='0' if n == 0 else None, lastw=(s == 3), dur=opt('DB3', 230) if p else opt('DB30', 200)))
    return o
CSR = 36
STR = 96
aP, aR = vA1, vA0
zer3 = [f'v_mov_b32 v{r}, 0' for r in (cNM+2, cNM+3, cCS+2, cCS+3)]
setup3 = [f'v_lshrrev_b32 v{vX1}, 10, v{vP}', f'v_lshl_add_u32 v{vX0}, v{vX1}, 12, v{vX0}', f'v_add_u32 v{vX0}, {apos(A_ST)}, v{vX0}',
          f'v_and_b32 v{vVs}, 511, v{vP}', f'v_lshrrev_b32 v{vVs}, 2, v{vVs}', f'v_lshl_add_u32 v{vVs}, v{vX1}, 10, v{vVs}',
          f's_lshl_b32 s{sT0}, s{sCH}, 7\ns_add_u32 s{sT0}, s{sT0}, {GATE}\nv_add_u32 v{vVs}, s{sT0}, v{vVs}']
st_seq = [0]
def stats_load(h_):
    def f():
        for i in range(2 * h_, 2 * h_ + 2): st_seq[0] = lg.issue(f'ds_read2st64_b64 {vr(STR+4*i,4)}, v{vX0} offset0:{2*i} offset1:{2*i+1}')
        if h_: last_read[('A', A_ST)] = st_seq[0]
    return f
def cs_load(p):
    def f():
        for k in range(2): st_seq[0] = lg.issue(f'ds_read2st64_b32 {vr(CSR+4*p+2*k,2)}, v{vVs} offset0:{8*p+2*k} offset1:{8*p+2*k+1}')
    return f
sfin = [lambda: lg.wait(st_seq[0])]
for i in range(1, 8):
    sfin += [f'v_add_f32 v{STR}, v{STR}, v{STR+2*i}', f'v_add_f32 v{STR+1}, v{STR+1}, v{STR+2*i+1}']
sfin += [f'v_mov_b32 v{vX2}, v{STR}', f'v_mov_b32 v{vX3}, v{STR+1}', f'v_permlane32_swap_b32 v{STR}, v{vX2}', f'v_permlane32_swap_b32 v{STR+1}, v{vX3}',
         f'v_add_f32 v{vX2}, v{STR}, v{vX2}', f'v_add_f32 v{vX3}, v{STR+1}, v{vX3}']
lc3 = ln_consts(vX2, vX3, cA, cB, cI, cNM, cT)
lc3 = lc3[:15] + [f'v_cvt_pk_bf16_f32 v{cNM+1}, v{cT+1}, v{cT+1}']
lc3 += [f'v_sub_f32 v{cT+3}, 1.0, v{vG}', f'v_rcp_f32 v{cT+2}, v{cT+3}', f'v_mul_f32 v{vAB}, v{cT+3}, v{vAB}', f'v_mul_f32 v{cI}, v{cI}, v{cT+2}', f'v_min_f32 v{cI}, {f32(3e38)}, v{cI}']
lc3 += [f'v_mul_f32 v{vAB+i}, v{cT+3}, v{vAB+i}' for i in range(1, 16)]
def cs3(p, acc):
    c0 = CSR + 4 * p
    o = [f'v_add_f32 v{c0}, v{c0}, v{c0+1}', f'v_add_f32 v{c0+2}, v{c0+2}, v{c0+3}', f'v_add_f32 v{c0}, v{c0}, v{c0+2}']
    f = cs_fix(c0, cCS, cNM, acc, c0 + 1)
    return o + f[:4] + [f'v_mov_b32 v{cCS+1}, v{cCS}', f[4]]
def h3_epi(p, acc, s0, s1):
    nxt = [f's_add_u32 s{sOH3}, s{sOH3}, 8192' if p == 0 else f's_mov_b32 s{sOH3}, s{sNEG}']
    g = gelu_sc(acc, cA, cB, cI, cT, PK3)
    s2 = store2(PK3, vP, sOH3)
    return spread(g + ['\n'.join(s2), mark(5 + p), lambda: a('\n'.join(nxt))], s0, s1)
for x in setup3[:3]: a(x)
ofin = o_final(1) + [f's_or_b64 vcc, {sr(sFL[0],2)}, {sr(sFL[1],2)}\ns_cbranch_scc1 L_fb\nL_fb_done:'.replace('s_cbranch_scc1 L_fb', 's_cbranch_execz L_fb' if WHAT else 's_cbranch_scc1 L_fb')]
vA0_, vA1_ = vA0, vA1
vA0 = aR
fin = [f'v_and_b32 v{vA0}, 511, v{vP}', f'v_lshlrev_b32 v{vA0}, 6, v{vA0}', f'v_lshrrev_b32 v{vA0+1}, 10, v{vP}', f'v_lshl_add_u32 v{vA0}, v{vA0+1}, 4, v{vA0}',
       ]
if opt('FT', 1):
    t0, t1 = vA0 + 8, vA0 + 9
    fin = [f'v_and_b32 v{t0}, 1023, v{vP}', f'v_lshrrev_b32 v{t0}, 4, v{t0}', f'v_lshrrev_b32 v{t1}, 10, v{vP}',
           f's_lshl_b32 s{sT0}, s{sCH}, 2\nv_add_u32 v{t1}, s{sT0}, v{t1}', f'v_and_b32 v{vA0+10}, 7, v{t0}', f'v_xor_b32 v{t1}, v{t1}, v{vA0+10}',
           f'v_lshlrev_b32 v{t0}, 7, v{t0}', f'v_add_u32 v{t0}, {GATE}, v{t0}', f'v_lshl_add_u32 v{vA0+4}, v{t1}, 4, v{t0}', f'v_xor_b32 v{vA0+5}, 32, v{vA0+4}',
           f'v_mbcnt_lo_u32_b32 v{t0}, -1, 0', f'v_mbcnt_hi_u32_b32 v{t0}, -1, v{t0}',
           f's_lshl_b32 s{sT0}, s{sWV}, 11\ns_add_u32 s{sT0}, s{sT0}, {GATE}\nv_lshlrev_b32 v{vA0+6}, 4, v{t0}', f'v_add_u32 v{vA0+6}, s{sT0}, v{vA0+6}',
           f'v_lshrrev_b32 v{t1}, 3, v{t0}', f'v_and_b32 v{t0}, 7, v{t0}', f'v_xor_b32 v{t0}, v{t0}, v{t1}', f'v_lshlrev_b32 v{t0}, 4, v{t0}',
           f'v_lshl_add_u32 v{vA0}, v{t1}, 10, v{t0}', f'v_add_u32 v{vA0+1}, 8192, v{vA0}',
           f's_lshl_b32 s{sOOUT}, s{sR}, 16\ns_lshl_b32 s{sT0}, s{sWV}, 14\ns_add_u32 s{sOOUT}, s{sOOUT}, s{sT0}\ns_lshl_b32 s{sT0}, s{sC}, 7\ns_add_u32 s{sOOUT}, s{sOOUT}, s{sT0}'] + fin[4:]
G0, G1, G2 = opt('GL0', 22), opt('GL1', 24), opt('GL2', 24)
a3 = stream_steps(W_O, A_O, 32, vAB)
b4 = stream_steps(W_4, A_H3, 86, vAB)
p2 = b3_steps(2, aP)
SEQ = {0: '22222222oooooooo' + 'h' * 22, 1: '2222o2o2o2o2' + 'h' * 16 + 'oooo' + 'h' * 6, 2: '2222o2o2o2o2oo' + 'h' * 16 + 'oo' + 'h' * 6,
       3: '22222o2o2ooo' + 'h' * 16 + 'oooo'[:3] + 'h' * 6, 4: '2222o2o2o2o2oooo' + 'h' * 22, 5: '222222o2o2oooo' + 'h' * 16 + 'oo' + 'h' * 6}[opt('SEQ', 0)]
src = {'2': p2, 'o': a3, 'h': b4}
tail = []
for ch_ in SEQ:
    tail += src[ch_][:4]; src[ch_] = src[ch_][4:]
assert not any(src.values())
E2 = 64 + 4 * (SEQ.rindex('2') + 1)
allst = b3_steps(0, aP) + b3_steps(1, aR) + tail
for n, x in enumerate(allst):
    if x.aread == 'p' and x.acc == vAB:
        x.act = vAf + (n % 3) * 4
        x.dur = opt('DA3', 250) if n < E2 + 3 + G2 else 140
OF1 = opt('OF1', 8)
run_steps(allst,
          merge({opt('PUB4', 24): [pubat(4)]}, {0: [stats_load(0)] + setup3[3:], 1: [stats_load(1)], 2: [cs_load(0)], 3: [cs_load(1)], 4: [cs_load(2)]},
                spread(ofin, 1, 1 + OF1), spread(sfin + zer3 + lc3[:21] + cs3(0, aP) + lc3[21:], 1 + OF1, 35),
                h3_epi(0, aP, 35, 35 + G0), spread(cs3(1, aR), 60, 64), {opt('PUB5', 35 + G0 + 16): [pubat(5)]},
                spread(cs3(2, aP), 64, 67), h3_epi(1, aR, 67, 67 + G1), {67 + G1 + opt('PD6', 14): [pubat(6)]},
                h3_epi(2, aP, E2 + 3, E2 + 3 + G2), {E2 + 3 + G2 + opt('PD7', 14): [pubat(7)]}, spread(fin, 160, 190)))
stamp('A3B4')
for x in pack(vAB, PK): a(x)
OFL = ('', 'sc1', 'nt', 'sc0 sc1')[opt('OF', 0)]
a(f'''
v_permlane32_swap_b32 v{PK}, v{PK+2}
v_permlane32_swap_b32 v{PK+1}, v{PK+3}
v_permlane32_swap_b32 v{PK+4}, v{PK+6}
v_permlane32_swap_b32 v{PK+5}, v{PK+7}
''')
if opt('FT', 1):
    a(f'''
    ds_write_b128 v{vA0+4}, {vr(PK,4)}
    ds_write_b128 v{vA0+5}, {vr(PK+4,4)}
    s_waitcnt lgkmcnt(0)
    s_barrier
    ds_read_b128 {vr(vA0+8,4)}, v{vA0+6}
    ds_read_b128 {vr(vA0+12,4)}, v{vA0+6} offset:1024
    s_waitcnt lgkmcnt(1)
    buffer_store_dwordx4 {vr(vA0+8,4)}, v{vA0}, {sr(sSRD,4)}, s{sOOUT} offen {OFL}
    s_waitcnt lgkmcnt(0)
    buffer_store_dwordx4 {vr(vA0+12,4)}, v{vA0+1}, {sr(sSRD,4)}, s{sOOUT} offen {OFL}
    ''')
else:
    a(f'''
    buffer_store_dwordx4 {vr(PK,4)}, v{vA0}, {sr(sSRD,4)}, s{sOOUT} offen {OFL}
    buffer_store_dwordx4 {vr(PK+4,4)}, v{vA0}, {sr(sSRD,4)}, s{sOOUT} offen offset:32 {OFL}
    ''')
dbg_dump()
names = {'c': list(stamp_names)}
a('s_endpgm')
a.ins += ool.ins
sec_comp = a.ins; a.ins = []

NT = len(ticks)
tname = {t['name']: i for i, t in enumerate(ticks)}
rel_tick = {k: i for i, t in enumerate(ticks) for k in t['free']}
USE = {}
for i, t in enumerate(ticks):
    for k in 'AW':
        n = t['need' + k]
        if n is None: continue
        grp = [n]
        if k == 'A' and n in (A_KE + 4, A_KO + 4): grp = range(n - 4, n + 1)
        if k == 'A' and n == A_X1: grp = [A_ST, n]
        for q in grp: USE.setdefault((k, q), i)
def use_tick(kind, idx): return USE[(kind, idx)]
pub_tick = {t['pub']: i for i, t in enumerate(ticks) if t['pub']}

grp_first = {A_H: 1, A_KE: 2, A_ST: 3, A_O: 4, A_H3: 5, A_H3 + 8: 6, A_H3 + 16: 7}
gate_tick = {1: use_tick('A', A_H) - opt('LA1', 6), 2: tname[{0: 'W39', 1: 'B2e', 2: 'W38', 3: 'W37', 4: 'W36'}[opt('G2', 3)]], 3: tname[f'T1{opt("G3", 0)}' if opt('G3', 0) >= 0 else 'T06'],
             4: use_tick('A', A_O) - opt('LA4', 9), 5: use_tick('A', A_H3) - opt('LA5', 4),
             6: use_tick('A', A_H3 + 8) - opt('LA6', 5), 7: use_tick('A', A_H3 + 16) - opt('LA7', 5)}
for g, t in gate_tick.items(): assert t > pub_tick[g], (g, t, pub_tick[g])
def stage_of(i):
    st_ = 0
    for f, g in grp_first.items():
        if i >= f: st_ = g
    return st_
tstart = [0]
for t in ticks: tstart.append(tstart[-1] + t['dur'])
PAIR = opt('PAIR', 1)
worder = sorted(range(W_END), key=lambda q: (use_tick('W', q), q))
aorder = sorted(range(A_END), key=lambda q: (use_tick('A', q), q))
if PAIR: worder[W_3:W_3+16] = [W_3 + (q >> 1) + 8 * (q & 1) for q in range(16)]
cost = lambda k, i: (opt('CW3P', 150) if PAIR and W_3 + 8 <= i < W_3 + 16 else opt('CW3', 205)) if k == 'W' and W_3 <= i < W_O else 240 if (k, i) == ('A', A_ST) else opt('CS', 140)
LEAD = opt('LEAD', 700)
plan = {}
nxt = {'W': 0, 'A': 0}
END = {'W': W_END, 'A': A_END}
avail = {p: -1 for p in range(NPOS)}
newpos = {}
want = {}
for (k, i), p in sorted(FIXED.items(), key=lambda x: x[0][1]):
    want.setdefault(p, []).append(-1 if i < A_H else gate_tick[2] + (0 if i < A_KO else opt('KOD', 2)))
RSV = opt('RSV', 0)
def pick(k, i, t):
    if (k, i) in FIXED:
        p = FIXED[(k, i)]
        return p if avail[p] <= t else None
    r_ = rel_tick.get((k, i), NT)
    ok = [p for p in range(NPOS) if avail[p] <= t and (not want.get(p) or r_ <= want[p][0])]
    ok.sort(key=lambda p: (0 if want.get(p) else 1, p))
    return ok[0] if ok else None
def room_for_A(t, u):
    need = sum(1 for i in aorder[nxt['A']:] if use_tick('A', i) < u and ('A', i) not in FIXED)
    if not need: return True
    i0 = next(i for i in aorder[nxt['A']:] if ('A', i) not in FIXED)
    sg = stage_of(i0)
    g = max(gate_tick[sg], t)
    free_then = sum(1 for p in range(NPOS) if avail[p] <= g + 1) - 1
    return free_then >= min(need, opt(f'AMIN{sg}', {3: 8, 5: 2}.get(sg, 4)))
bud = 0
pauses = [[opt('Z0', 3), opt('Z1', 6), opt('ZN', 3)], [opt('Y0', 7), opt('Y1', 10), opt('YN', 2)]]
for t in range(-1, NT - 1):
    bud = min(bud, opt('CARRY', 100)) + (opt('B0', 8) * 128 if t < 0 else ticks[t]['dur'] * opt('BUD', 100) // 100)
    while True:
        cands = []
        for k in 'AW':
            i = nxt[k]
            if i >= END[k]: continue
            i = (worder if k == 'W' else aorder)[i]
            if k == 'A' and stage_of(i) and gate_tick[stage_of(i)] > t: continue
            if pick(k, i, t) is None: continue
            u = use_tick(k, i)
            if k == 'W': u = min(use_tick(k, j_) for j_ in worder[nxt[k]:nxt[k]+2])
            if k == 'W' and PAIR and W_3 + 8 <= i < W_3 + 16: u = use_tick(k, i - 8)
            must = u == t + 1 or (t >= 0 and tstart[u] - tstart[t + 1] < LEAD)
            if k == 'W' and not must and not room_for_A(t, u): continue
            cands.append((u, k, i, must))
        if not cands: break
        u, k, i, must = min(cands)
        if bud < cost(k, i) // 2 and not must: break
        pz = [z for z in pauses if z[0] <= t < z[1]]
        if pz:
            if pz[0][2] <= 0 and u > t + 1 + opt('ZM', 2): break
            pz[0][2] -= 1
        p = pick(k, i, t)
        if (k, i) in FIXED: want[p].pop(0)
        avail[p] = rel_tick.get((k, i), NT)
        newpos[(k, i)] = p
        plan.setdefault(t, []).append((k, i)); nxt[k] += 1; bud -= cost(k, i)
    for k in 'AW':
        assert all(use_tick(k, j_) > t + 1 for j_ in (worder if k == 'W' else aorder)[nxt[k]:nxt[k]+3]), ('late', k, nxt[k], t)
assert nxt == END, nxt
if not PASS2:
    json.dump({f'{k}:{i}': p for (k, i), p in newpos.items()}, open(POSF, 'w'))
    import os
    os.execv(sys.executable, [sys.executable] + sys.argv + ['--pass2'])
assert all(POS[(k, str(i))] == p for (k, i), p in newpos.items())

sOFF, sB3, sHW, sHA, sNEED = 51, 52, 53, 54, 55
sCH8 = 60
sAB = 68
sSRA = 80
a('L_load:')
a(f's_setprio {opt("PL", 3)}')
vS = {3072: 24, 1024: 28, 2752: 32}
vXo, vLin, vKVo = 10, 14, 36
a(f"""
s_sub_u32 s{sHA}, s{sWV}, 4
s_lshl_b32 s{sT0}, s{sHA}, 5
v_lshrrev_b32 v1, 3, v0
v_add_u32 v1, s{sT0}, v1
v_and_b32 v3, 7, v0
v_lshrrev_b32 v2, 4, v0
v_xor_b32 v2, v2, v3
v_lshlrev_b32 v4, 10, v1
v_lshl_add_u32 v{vXo}, v2, 4, v4
v_xor_b32 v2, 4, v2
v_lshl_add_u32 v{vXo+1}, v2, 4, v4
v_add_u32 v{vXo+1}, 7168, v{vXo+1}
v_add_u32 v{vXo+2}, 14336, v{vXo}
v_add_u32 v{vXo+3}, 14336, v{vXo+1}
v_bfe_u32 v2, v0, 4, 1
v_lshlrev_b32 v2, 2, v2
v_xor_b32 v2, v2, v3
v_lshlrev_b32 v2, 4, v2
s_lshl_b32 s{sT0}, s{sC}, 7
v_add_u32 v2, s{sT0}, v2
v_add_u32 v28, v4, v2
v_add_u32 v29, 7168, v28
v_add_u32 v30, 7168, v29
v_add_u32 v31, 7168, v30
s_lshl_b32 s{sHA}, s{sHA}, 12
s_lshl_b32 s{sAB}, s{sR}, 16
s_mov_b32 s{sSRA+2}, {2048*1024}
s_mov_b32 s{sSRA+3}, 0x20000
s_lshl_b32 s{sT0}, s{sRT1}, 7
v_lshlrev_b32 v5, 4, v0
v_add_u32 v6, s{sT0}, v5
v_and_b32 v6, 1023, v6
""")
sCH1 = 92
def chunk_table(dst, rot, q0=0, q1=8):
    for q in range(q0, q1):
        a(f's_add_u32 s{dst+q}, s{rot}, {q}')
        a(f's_and_b32 s{dst+q}, s{dst+q}, 7')
assert not DEBUG
a(f"""
s_waitcnt lgkmcnt(0)
""")
arr_mark(0)
if opt('LT', 1):
    for p_ in (sX, sW1, sGATE): a(f's_load_dword s100, {sr(p_,2)}, 0')
a(f"""
s_mov_b32 s{sSRA}, s{sX}
s_mov_b32 s{sSRA+1}, s{sX+1}
s_mov_b32 s{sSRD}, s{sGATE}
s_mov_b32 s{sSRD+1}, s{sGATE+1}
s_mov_b32 s{sSRD+2}, 1024
s_mov_b32 m0, {GATE}
s_mov_b32 s{sWSD}, s{sWS}
s_mov_b32 s{sWSD+1}, s{sWS+1}
buffer_load_dwordx4 v6, {sr(sSRD,4)}, 0 offen lds
""")
def late_setup(part):
    st_, b = ((3072, 24), (2752, 32))[part]
    a(f'v_mul_u32_u24 v3, {st_}, v1')
    a(f'v_add_u32 v{b}, v3, v2')
    for i in range(1, 4): a(f'v_add_u32 v{b+i}, {8*st_-1024}, v{b+i-1}')
    if part == 0: return
    chunk_table(sCH8, sROT)
def late_setup2():
    a(f"""
    v_add_u32 v{vLin}, s{sHA}, v5
    s_cmp_ge_u32 s{sC}, 6
    s_cselect_b32 s{sB3}, 0x200000, 0
    s_add_u32 s{sB3}, s{sB3}, 2048
    s_lshl_b32 s78, s{sC}, 7
    s_add_u32 s79, s78, 128
    s_add_u32 s{sAB+1}, s{sAB}, {WS_H}
    s_add_u32 s{sAB+3}, s{sAB}, {WS_O}
    s_mul_i32 s{sAB+2}, s{sR}, {X1_STRIDE}
    s_add_u32 s{sAB+2}, s{sAB+2}, {WS_X1}
    s_mul_i32 s{sAB+4}, s{sR}, {H3_STRIDE}
    s_add_u32 s{sAB+4}, s{sAB+4}, {WS_H3}
    v_and_b32 v7, 512, v5
    v_mov_b32 v8, 0x80000000
    """)
    for i in range(5):
        a(f"""
        s_add_i32 s{sT1}, s{sR}, {i-4}
        s_max_i32 s{sT1}, s{sT1}, 0
        s_lshl_b32 s{sT1}, s{sT1}, 3
        s_add_u32 s{sT1}, s{sT1}, s{sC}
        s_lshl_b32 s{sT1}, s{sT1}, 14
        s_add_u32 s{sAB+5+i}, s{sT1}, {WS_KV}
        """)
        if i < 4:
            a(f"""
            s_cmp_lt_u32 s{sR}, {4-i}
            s_cselect_b64 vcc, -1, 0
            v_cndmask_b32 v{vKVo+2*i}, v{vLin}, v{7 if KDUP else 8}, vcc
            v_cndmask_b32 v{vKVo+2*i+1}, v{vLin}, v8, vcc
            """)
wdesc = []
for (ptr, size, st_, co) in ((sW1, 512*1024, 1024, 0), (sWQKV, 512*3072, 3072, 1024), (sWQKV, 512*3072, 3072, 2048), (sWQKV, 512*3072, 3072, 0),
                             (sW2, 512*1024, 1024, 0), (sW3, 512*2752, 2752, 's78'), (sW3, 512*2752, 2752, 's79'), (sW3, 512*2752, 2752, f's{sB3}'),
                             (sWO, 512*1024, 1024, 0), (sW4, 1376*1024, 1024, 0), (sW4, 1376*1024, 1024, 65536)):
    for q in range(8): wdesc.append((ptr, size, st_, co, q))
for q in range(6): wdesc.append((sW4, 1376*1024, 1024, (16 + q) * 65536, None))
if opt('FAKEW', 0):
    wdesc = [(sW1, 512*1024, 1024, 0, i % 8) if d[2] != 2752 else (sW3, 512*2752, 2752, 's78' if i < W_3 + 8 or i >= W_3 + 16 else 's79', d[4]) for i, d in enumerate(wdesc)]
cur_mat = [None]
def w_issue(idx):
    ptr, size, st_, co, q = wdesc[idx]
    if cur_mat[0] != ptr:
        cur_mat[0] = ptr
        a(f's_mov_b32 s{sSRD}, s{ptr}')
        a(f's_mov_b32 s{sSRD+1}, s{ptr+1}')
        a(f's_mov_b32 s{sSRD+2}, {size}')
    a(f's_add_u32 m0, s{sHA}, {wpos(idx)}')
    if q is None: a(f's_mov_b32 s{sOFF}, {co}')
    else:
        a(f's_mul_i32 s{sOFF}, s{(sCH1 if idx < W_2 else sCH8)+q}, {(128 if idx >= W_4 and not FAKEW else 64)*st_}')
        if co: a(f's_add_u32 s{sOFF}, s{sOFF}, {co}')
    for i in range(4): a(f'buffer_load_dwordx4 v{vS[st_]+i}, {sr(sSRD,4)}, s{sOFF} offen offset:{1024*i} {"nt" if idx < opt("WNT", 0) else ""} lds')
    if idx % 8 == 7: stamp(f'w{idx}')
def a_issue(idx):
    a(f's_add_u32 m0, s{sHA}, {apos(idx)}')
    srd, vo = sWSD, [vLin] * 4
    def rot(base, q, extra=0, sh=13):
        a(f's_lshl_b32 s{sOFF}, s{sCH8+q}, {sh}')
        a(f's_add_u32 s{sOFF}, s{sOFF}, s{base}')
        if extra: a(f's_add_u32 s{sOFF}, s{sOFF}, {extra}')
    if idx < A_H:
        chunk_table(sCH1, sRT1, idx, idx + 1)
        a(f's_lshl_b32 s{sOFF}, s{sCH1+idx}, 7')
        a(f's_add_u32 s{sOFF}, s{sOFF}, s{sAB}')
        srd, vo = sSRA, [vXo + i for i in range(4)]
    elif idx < A_KE: rot(sAB + 1, idx - A_H)
    elif idx < A_ST:
        p, i = divmod(idx - A_KE, 5)
        a(f's_add_u32 s{sOFF}, s{sAB+5+i}, {8192*p}')
        if i < 4: vo = [vKVo + 2*i] * 2 + [vKVo + 2*i + 1] * 2
    elif idx == A_ST: a(f's_add_u32 s{sOFF}, s{sAB+2}, 65536')
    elif idx < A_O: rot(sAB + 2, idx - A_X1)
    elif idx < A_H3: rot(sAB + 3, idx - A_O)
    elif idx < A_H3 + 16: rot(sAB + 4, (idx - A_H3) % 8, 8192 * ((idx - A_H3) // 8), 14)
    else: a(f's_add_u32 s{sOFF}, s{sAB+4}, {8192*(idx-A_H3)}')
    if idx == A_END - 1:
        a(f's_cmp_lg_u32 s{sHA}, 0')
        a(f's_cselect_b32 s{sOFF}, {WS_REC}, s{sOFF}')
    fl_ = 'sc1' if idx >= A_H else ('sc1', '', 'nt', 'sc0 sc1', 'nt sc1', 'sc0 nt sc1')[opt('XF', 0)]
    for i in range(4): a(f'buffer_load_dwordx4 v{vo[i]}, {sr(srd,4)}, s{sOFF} offen offset:{1024*i} {fl_} lds')
    if idx == A_ST:
        a(f's_lshr_b32 s{sT0}, s{sHA}, 2')
        a(f's_sub_u32 s{sT0}, s{sHA}, s{sT0}')
        a(f's_add_u32 m0, s{sT0}, {GATE}')
        a(f's_lshl_b32 s{sOFF}, s{sC}, 13')
        a(f's_add_u32 s{sOFF}, s{sOFF}, s{sT0}')
        a(f's_add_u32 s{sOFF}, s{sOFF}, {WS_CS}')
        for i in range(3): a(f'buffer_load_dwordx4 v5, {sr(srd,4)}, s{sOFF} offen offset:{1024*i} sc1 lds')
    if idx in (15, 20, 33, 42, 64): stamp(f'a{idx}')
sSRP, sPI = 84, 88
pdesc = {'wqkv': (sWQKV, 512*3072, 3), 'w2': (sW2, 512*1024, 1), 'w3': (sW3, 512*2752, 3), 'wo': (sWO, 512*1024, 1), 'w4': (sW4, 1376*1024, 3)}
def p_issue(nm):
    ptr, size, n = pdesc[nm]
    a(f's_mov_b32 s{sSRP}, s{ptr}')
    a(f's_mov_b32 s{sSRP+1}, s{ptr+1}')
    a(f's_mov_b32 s{sSRP+2}, {size}')
    a(f's_mul_i32 s{sOFF}, s{sPI}, {1024*n}')
    for i in range(n): a(f'buffer_load_dwordx4 v[48:51], v5, {sr(sSRP,4)}, s{sOFF} offen offset:{1024*i}')
    return n
for nm, key, dflt in (('wqkv', 'PQ', 2), ('w2', 'P2', 2), ('w3', 'P3', -2), ('wo', 'PO', 7), ('w4', 'P4', 7)):
    t = opt(key, dflt)
    if t >= 1000: t = tname['KVE'] + t - 1000
    if t >= -1: plan.setdefault(t, []).append(('P', nm))
a(f's_mov_b32 s{sSRP+3}, 0x20000')
a(f's_lshl_b32 s{sPI}, s2, 1')
a(f's_add_u32 s{sPI}, s{sPI}, s{sWV}')
a(f's_sub_u32 s{sPI}, s{sPI}, 4')
SP0 = opt('SP0', -1)
def sp_setup(share_code, d):
    return [share_code, f's_mul_i32 s{sT1}, s{sT0}, {11*64}', f's_min_u32 s{sT1}, s{sT1}, {512*1024 - 11*64}',
            f's_add_u32 s{d}, s{sWO}, s{sT1}', f's_addc_u32 s{d+1}, s{sWO+1}, 0',
            f's_mul_i32 s{sT1}, s{sT0}, {29*64}', f's_min_u32 s{sT1}, s{sT1}, {1376*1024 - 29*64}',
            f's_add_u32 s{d+2}, s{sW4}, s{sT1}', f's_addc_u32 s{d+3}, s{sW4+1}, 0']
def sp_load(k, d, dst):
    return f's_load_dword s{dst}, {sr(d,2)}, {64*k}' if k < 11 else f's_load_dword s{dst}, {sr(d+2,2)}, {64*(k-11)}'
SHARE = f's_mul_i32 s{sT0}, s2, 3\ns_add_u32 s{sT0}, s{sT0}, s{sWV}\ns_sub_u32 s{sT0}, s{sT0}, 4'
nops = 0
endpos = {}
landed = 0
for t in range(-1, NT - 1):
    for k, i in plan.get(t, []):
        if k == 'P': nops += p_issue(i)
        else:
            if i >= 8 and WHAT & (4 if k == 'W' else 16): pass
            else: (w_issue if k == 'W' else a_issue)(i); nops += 7 if (k, i) == ('A', A_ST) else 4
            endpos[(k, i)] = nops
    if SP0 >= 0:
        if t == SP0:
            for x in sp_setup(SHARE, 56): a(x)
        if 0 <= t - SP0 < 40: a(sp_load(t - SP0, 56, 100))
    if t == opt('LS0', 0): late_setup(0)
    if t == opt('LS1', 6): late_setup(1)
    if t == opt('LS2', 7): late_setup2()
    if t == 7 and PAGES:
        a('s_branch L_load2')
        a('.p2align 12')
        a('L_load2:')
    if t == -1: arr_mark(1)
    pos = 0
    for k in 'AW':
        need = ticks[t + 1]['need' + k]
        if need is not None: pos = max(pos, endpos[(k, need)])
    if pos > landed:
        kk = min(nops - pos, 63)
        a(f's_waitcnt vmcnt({kk})')
        landed = nops - kk
    if t == -1: arr_mark(2)
    if t == 8: arr_dump(); nops += 1 if ARR else 0
    a('s_barrier')
dbg_dump()
names['w'] = list(stamp_names)
a('L_end:')
a('s_endpgm')

sFV, sFK = 68, 84
sMB, sPB, sCF, sVAL = 56, 58, 60, 62
WS_CF = 0xA0000
a(f"""
L_flag:
{'s_memrealtime s[98:99]' if opt('DIAG', 0) and opt('DAT', -1) == -1 else ''}
s_setprio {opt("PL", 3)}
s_lshl_b32 s{sT1}, s{sR}, 13
s_add_u32 s{sT1}, s{sT1}, {WS_MB}
s_lshl_b32 s{sT2}, s{sC}, 2
s_add_u32 s{sT2}, s{sT2}, s{sT1}
s_lshl_b32 s{sT0}, s{sC}, 10
s_add_u32 s{sT1}, s{sT1}, s{sT0}
s_add_u32 s{sT0}, s{sT0}, {WS_CF}
v_lshrrev_b32 v8, 1, v0
v_lshlrev_b32 v8, 13, v8
v_and_b32 v9, 1, v0
v_lshl_add_u32 v8, v9, 4, v8
v_add_u32 v8, {WS_MB}, v8
s_waitcnt lgkmcnt(0)
s_mov_b32 s{sWSD}, s{sWS}
s_mov_b32 s{sWSD+1}, s{sWS+1}
s_add_u32 s{sMB}, s{sWS}, s{sT1}
s_addc_u32 s{sMB+1}, s{sWS+1}, 0
s_add_u32 s{sPB}, s{sWS}, s{sT2}
s_addc_u32 s{sPB+1}, s{sWS+1}, 0
s_add_u32 s{sCF}, s{sWS}, s{sT0}
s_addc_u32 s{sCF+1}, s{sWS+1}, 0
""")
def flag_touch():
    a(f's_load_dword s{sE}, {sr(sWS,2)}, {WS_E}')
    if opt('TW', 1):
        for k, p_ in enumerate((sWQKV, sW2, sW3, sWO, sW4, sOUT)): a(f's_load_dword s{88}, {sr(p_,2)}, 0')
        a(f's_lshr_b32 s{sT0}, s2, 3')
        a(f's_and_b32 s{sT0}, s{sT0}, 15')
        a(f's_lshl_b32 s{sT0}, s{sT0}, 21')
        a(f's_load_dword s88, {sr(sWS,2)}, s{sT0}')
    if opt('MBW', 1):
        for k in range(3): a(f's_load_dword s88, {sr(sMB,2)}, {128*k} glc')
FT0 = opt('FT0', -1)
if FT0 < 0:
    if opt('FW', 1):
        for p_ in (sX, sW1, sGATE): a(f's_load_dword s88, {sr(p_,2)}, 0')
        a('s_waitcnt lgkmcnt(0)')
    flag_touch()
def flag_tag():
    a('s_waitcnt lgkmcnt(0)')
    make_tag()
    for q in range(20): a(f's_mov_b32 s{sFV+q}, s{sTAG}')
def poll(g):
    if g == 2: return [f's_load_dwordx4 {sr(sFK,4)}, {sr(sMB,2)}, 256 glc']
    return [f's_load_dwordx8 {sr(sFV+8*k,8)}, {sr(sMB,2)}, {128*k} glc' for k in range(2 if g == 1 else 1)]
def wait_flags(regs, loads, need, block=False):
    if WHAT & 1: return
    l1, l2 = a.new_label('P'), a.new_label('P')
    a(f's_add_u32 s{sNEED}, s{sTAG}, {need}')
    a(f'{l1}:')
    for k, sv in enumerate(regs):
        a(f's_sub_u32 s{sT0 + (1 if k else 0)}, s{sv}, s{sNEED}')
        if k: a(f's_max_u32 s{sT0}, s{sT0}, s{sT1}')
    a(f's_cmp_lt_u32 s{sT0}, {8-need}')
    a(f's_cbranch_scc1 {l2}')
    for x in loads: a(x)
    a(f"""
    s_sub_u32 s{sTO}, s{sTO}, 1
    s_cbranch_scc1 L_end
    {'s_waitcnt lgkmcnt(0)' if block else 's_sleep %d' % opt('PSL', 1)}
    s_branch {l1}
    {l2}:
    """)
CSP = opt('CSP', 29)
NMARK = 10
cp = 4 if TRACE else 3
visit = lambda m: ['s_mov_b64 exec, 0', f's_branch L_pg{m}', f'L_pr{m}:', 's_mov_b64 exec, -1']
fvis = {7: [cp + 1], 8: [cp + 2, 1], tname['W39']: [cp + 4], tname['T06']: [cp + 5], NT - 2: [m for m in range(NMARK) if m in (0, cp) or m > cp + 5]} if PAGES else {}
avis = {8: [2, cp + 3] + ([3] if TRACE else [])} if PAGES else {}
def ebump_check(fail):
    a(f's_add_u32 s{sT1}, s{sTAG}, 1')
    a('s_waitcnt vmcnt(0)')
    for q in range(4): a(f'v_subrev_u32 v{32+q}, s{sT1}, v{32+q}')
    a(f'''
    v_max_u32 v32, v32, v33
    v_max3_u32 v32, v32, v34, v35
    v_cmp_gt_u32 vcc, 7, v32
    s_cmp_eq_u64 vcc, -1
    s_cbranch_scc0 {fail}
    s_atomic_swap s{sTAG}, {sr(sWS,2)}, {WS_E}
    ''')
PRE = opt('PRE', 900)
PEV = opt('PEV', 2)
gate_at = {t: g for g, t in gate_tick.items()}
assert len(gate_at) == 7
cr = [4 + q for q in range(16)] + [sFV + 8 + q for q in range(8)]
cpoll = [f's_load_dwordx8 {sr(b_,8)}, {sr(sCF,2)}, {128*k} glc' for k, b_ in enumerate((4, 12, sFV + 8))]
for i, t in enumerate(ticks):
    if gate_at.get(i) == 3: wait_flags(cr, cpoll, 1, block=True)
    if i in gate_at:
        g = gate_at[i]
        wait_flags([sFK + q for q in range(4)] if g == 2 else [sFV + q for q in range(16 if g == 1 else 8)], poll(g), g)
        stamp(f'g{g}')
    if t['pub'] and t['pub'] != 2: a(f's_add_u32 s{sVAL + (t["pub"] & 1)}, s{sTAG}, {t["pub"]}')
    a('s_barrier')
    if opt('DIAG', 0) and opt('DAT', -1) == i: a('s_memrealtime s[98:99]')
    if t['pub'] and t['pub'] != 2:
        for q in range(8): a(f's_atomic_swap s{sVAL + (t["pub"] & 1)}, {sr(sPB,2)}, {1024*q}')
    if t['name'] == 'T15':
        a(f'''
        s_mov_b32 s89, s2
        s_cmp_lg_u32 s2, 0
        s_cbranch_scc1 L_eb1
        buffer_load_dwordx4 v[32:35], v8, {sr(sWSD,4)}, 0 offen sc1
        L_eb1:
        ''')
    if t['name'] == 'W46':
        a('s_cmp_lg_u32 s2, 0')
        a('s_cbranch_scc1 L_eb2')
        ebump_check('L_eb2')
        a('s_mov_b32 s89, 1')
        a('L_eb2:')
    for m in fvis.get(i, []):
        for x in visit(m): a(x)
    if i == FT0: flag_touch()
    if i == 6: flag_tag()
    if t['name'] == 'KVE':
        a('s_waitcnt lgkmcnt(0)')
        for q in cr: a(f's_mov_b32 s{q}, s{sTAG}')
    if t['name'] == f'T0{opt("CPT", 2)}':
        for x in cpoll: a(x.replace(' glc', ''))
    for g, gt in gate_tick.items():
        d = gt - 1 - i
        if pub_tick[g] <= i and d > 0 and tstart[gt - 1] - tstart[i] <= PRE and d % PEV == 0:
            for x in poll(g): a(x)
a('s_waitcnt lgkmcnt(0)')
a(f'''
s_cmp_lg_u32 s89, 0
s_cbranch_scc1 L_fend
{'s_barrier' if opt('FT', 1) else ''}
L_ebump:
s_sub_u32 s{sTO}, s{sTO}, 1
s_cbranch_scc1 L_end
buffer_load_dwordx4 v[32:35], v8, {sr(sWSD,4)}, 0 offen sc1
''')
ebump_check('L_ebump')
a('L_fend:')
if opt('DIAG', 0) and opt('FT', 1): a('s_barrier')
if opt('DIAG', 0):
    a(f'''
    L_diag:
    s_memrealtime s[96:97]
    s_waitcnt lgkmcnt(0)
    s_sub_u32 s96, s96, s98
    s_cmp_lt_u32 s96, {opt('DIAG', 0)}
    s_cbranch_scc1 L_diag
    ''')
dbg_dump()
names['s'] = list(stamp_names)
a('s_endpgm')
a('L_aux:')
if opt('HS', 1):
    a(f"""
    s_lshl_b32 s62, s{sR}, 16
    s_lshl_b32 s{sT0}, s{sC}, 13
    s_add_u32 s62, s62, s{sT0}
    s_bitcmp1_b32 s{sC}, 1
    s_cselect_b32 s{sT0}, 448, 0
    s_add_u32 s62, s62, s{sT0}
    s_add_u32 s62, s62, {WS_H}
    s_waitcnt lgkmcnt(0)
    s_add_u32 s62, s62, s{sWS}
    s_addc_u32 s63, s{sWS+1}, 0
    """)
HT0 = opt('HT0', 0)
ht1 = [f's_load_dword s90, {sr(sWS,2)}, {WS_E}'] + [f's_load_dword s{64+k}, s[62:63], {512*k}' for k in range(12)]
if HT0 < 0:
    for x in ht1: a(x)


a(f"""
v_lshrrev_b32 v1, 3, v0
v_mul_u32_u24 v1, 2752, v1
v_and_b32 v2, 7, v0
v_lshl_add_u32 v1, v2, 4, v1
v_lshlrev_b32 v2, 5, v2
v_lshrrev_b32 v3, 5, v0
v_lshl_add_u32 v2, v3, 4, v2
v_bfe_u32 v3, v0, 4, 1
v_lshl_add_u32 v2, v3, 3, v2
s_and_b32 s{sT0}, s{sR}, 7
s_mul_i32 s60, s{sT0}, {64*2752}
s_lshr_b32 s{sT0}, s{sR}, 3
s_add_u32 s{sT1}, s{sT0}, s{sC}
s_cmp_ge_u32 s{sT0}, 2
s_cselect_b32 s{sT0}, 16, s{sT1}
s_add_u32 s{sT0}, s{sT0}, s{sC}
s_lshl_b32 s{sT0}, s{sT0}, 7
s_add_u32 s60, s60, s{sT0}
s_lshl_b32 s61, s{sC}, 13
s_lshl_b32 s{sT0}, s{sR}, 8
s_add_u32 s61, s61, s{sT0}
s_add_u32 s61, s61, {WS_CS}
s_cmp_ge_u32 s{sR}, 24
s_cselect_b32 s60, 0x200000, s60
s_cselect_b32 s61, {WS_REC}, s61
{'' if opt('HS', 1) else 's_waitcnt lgkmcnt(0)'}
s_mov_b32 s{sSRD}, s{sW3}
s_mov_b32 s{sSRD+1}, s{sW3+1}
s_mov_b32 s{sSRD+2}, {512*2752}
s_mov_b32 s{sWSD}, s{sWS}
s_mov_b32 s{sWSD+1}, s{sWS+1}
""")
if TRACE:
    a(f'v_writelane_b32 v11, s{sST}, 60')
    a(f'v_writelane_b32 v11, s{sE}, 61')
    a(f's_getreg_b32 s{sE}, hwreg(HW_REG_XCC_ID)')
    a(f'v_writelane_b32 v11, s{sE}, 59')
assert opt('HS', 1)
a(f"""
s_bitcmp1_b32 s{sC}, 1
s_cselect_b32 s{sT0}, -1, 1
s_add_u32 s{sT0}, s{sT0}, s{sR}
s_and_b32 s{sT0}, s{sT0}, 31
s_lshl_b32 s{sT0}, s{sT0}, 13
s_lshl_b32 s{sT1}, s{sC}, 2
s_add_u32 s{sT0}, s{sT0}, s{sT1}
s_add_u32 s{sT0}, s{sT0}, {WS_MB + 128}
s_add_u32 s80, s{sWS}, s{sT0}
s_addc_u32 s81, s{sWS+1}, 0
s_lshl_b32 s{sT0}, s{sR}, 13
s_lshl_b32 s{sT1}, s{sC}, 10
s_add_u32 s{sT0}, s{sT0}, s{sT1}
s_add_u32 s{sT0}, s{sT0}, {WS_MB + 256}
s_add_u32 s82, s{sWS}, s{sT0}
s_addc_u32 s83, s{sWS+1}, 0
s_lshr_b32 s{sT0}, s{sR}, 3
s_lshl_b32 s{sT0}, s{sT0}, 7
s_and_b32 s{sT2}, s{sR}, 7
s_lshl_b32 s{sT2}, s{sT2}, 2
s_add_u32 s{sT0}, s{sT0}, s{sT2}
s_add_u32 s{sT0}, s{sT0}, s{sT1}
s_add_u32 s84, s{sT0}, {WS_CF}
""")
for q in range(4):
    a(f's_cmp_lt_u32 s{sR}, {4-q}')
    a(f's_cselect_b32 s{85+q}, {4*q}, 32')
msgs = {pub_tick[1]: [f's_atomic_swap s90, s[80:81], {1024*q}' for q in range(8)],
        pub_tick[2]: [f's_atomic_swap s91, s[82:83], {8192*l + 4*(4-l)}' for l in range(1, 5)] + [f's_cmp_ge_u32 s{sR}, 4', 's_cbranch_scc1 L_kvself'] +
                     [f's_atomic_swap s91, s[82:83], s{85+q}' for q in range(4)] + ['L_kvself:'],
        CSP: [f's_atomic_swap s90, {sr(sWS,2)}, s84']}
TC0, TC1 = opt('TC0', 7), opt('TC1', 13)
ld = []
for i in range(8):
    ld += [f'buffer_load_dwordx4 {vr(64+4*i,4)}, v1, {sr(sSRD,4)}, s60 offen', f's_add_u32 s60, s60, {8*2752}']
wk = ['s_waitcnt vmcnt(0)']
for i in range(8):
    for d in range(4):
        src = 64 + 4 * i + d
        if i == 0: wk += [f'v_lshlrev_b32 v{20+2*d}, 16, v{src}', f'v_and_b32 v{21+2*d}, 0xffff0000, v{src}']
        else: wk += [f'v_lshlrev_b32 v28, 16, v{src}', f'v_and_b32 v29, 0xffff0000, v{src}', f'v_add_f32 v{20+2*d}, v{20+2*d}, v28', f'v_add_f32 v{21+2*d}, v{21+2*d}, v29']
for e in (0, 1, 4, 5): wk += [f'v_permlane16_swap_b32 v{20+e}, v{22+e}']
for e in (0, 1, 4, 5): wk += [f'v_add_f32 v{20+e}, v{20+e}, v{22+e}']
for e in (0, 1): wk += [f'v_permlane32_swap_b32 v{20+e}, v{24+e}']
for e in (0, 1): wk += [f'v_add_f32 v{20+e}, v{20+e}, v{24+e}']
for e in (0, 1): wk += [f'v_add_f32_dpp v{22+e}, v{20+e}, v{20+e} row_ror:8 row_mask:0xf bank_mask:0xf']
wk += [f'buffer_store_dwordx2 v[22:23], v2, {sr(sWSD,4)}, s61 offen sc1']
auxp = merge(msgs, {7: ['s_waitcnt lgkmcnt(0)', 's_add_u32 s90, s90, 0x9e3779b0', 's_and_b32 s90, s90, 0xfffffff0', 's_add_u32 s91, s90, 2', 's_add_u32 s90, s90, 1']}, {HT0: ht1}, {opt('HT1', 4): [f's_load_dword s{64+k}, s[62:63], {512*k}' for k in range(12, 16)]}, {TC0: ld}, spread(wk, TC1, TC1 + 8))
auxp = merge(auxp, {t_: sum((visit(m) for m in ms), []) for t_, ms in avis.items()})
AUXEND = max(CSP, pub_tick[2])
if SP0 >= 0:
    auxp = merge(auxp, {SP0: sp_setup(SHARE, 56)}, {SP0 + k: [sp_load(k, 56, 100)] for k in range(40)})
    AUXEND = max(CSP, SP0 + 40)
assert TC1 + 8 < CSP
for i in range(NT if TRACE else AUXEND + 1):
    if i == CSP: a('s_waitcnt vmcnt(0)')
    a('s_barrier')
    if TRACE:
        if i: a(f'v_writelane_b32 v{10 + (i-1) // 64}, s{sST + 2*((i-1)&1)}, {(i-1) % 64}')
        a(f's_memtime {sr(sST + 2*(i&1),2)}')
    for x in auxp.get(i, []): a(x)
if TRACE:
    a('s_waitcnt lgkmcnt(0)')
    a(f'v_writelane_b32 v{10 + (NT-1) // 64}, s{sST + 2*((NT-1)&1)}, {(NT-1) % 64}')
if not TRACE: a('s_endpgm')
if TRACE:
    if opt('FT', 1): a('s_barrier')
    a('s_barrier')
    a(f"""
    s_memtime {sr(sST,2)}
    s_memrealtime {sr(sE,2)}
    s_waitcnt lgkmcnt(0)
    v_writelane_b32 v11, s{sST}, 62
    v_writelane_b32 v11, s{sE}, 63
    s_mov_b32 s{sWSD}, s{sWS}
    s_mov_b32 s{sWSD+1}, s{sWS+1}
    s_mov_b32 s{sWSD+2}, {WS_REC}
    s_mov_b32 s{sWSD+3}, 0x20000
    v_lshlrev_b32 v1, 2, v0
    s_lshl_b32 s{sT0}, s2, 9
    s_add_u32 s{sT0}, s{sT0}, {WS_DBG + 0x80000}
    buffer_store_dword v10, v1, {sr(sWSD,4)}, s{sT0} offen
    buffer_store_dword v11, v1, {sr(sWSD,4)}, s{sT0} offen offset:256
    s_endpgm
    """)
    names['t'] = [t['name'] + (f'(g{gate_at[i]})' if i in gate_at else '') + (f'(p{t["pub"]})' if t['pub'] else '') for i, t in enumerate(ticks)]
    names['plan'] = [''.join(k.lower() for k, _ in plan.get(i, [])) for i in range(NT)]
a.ins = sec_pro + a.ins + sec_comp
a('L_last:')

nn = a.pad()
PFX = f'.amdgcn_target "amdgcn-amd-amdhsa--gfx950"\n.text\n{NAME}_kernel:\n'
print('aligned', align8(a, PFX, 'L_comp', opt('ALM', 2) if opt('AL', 1) else 999, opt('ALN', 6), NMARK if PAGES else 0), file=sys.stderr)
hdr = open(f'cdna_kernels/{NAME}.s.ref').read().split('; Override launch geometry')[0]
txt = hdr + f'''; @launch grid=(256,1,1) block=(512,1,1) lds={LDS_BYTES}
.amdgcn_target "amdgcn-amd-amdhsa--gfx950"
.text
.globl {NAME}_kernel
.p2align 8
.type {NAME}_kernel,@function
{NAME}_kernel:
''' + a.text() + f'''.section .rodata,"a"
.p2align 6
.amdhsa_kernel {NAME}_kernel
  .amdhsa_next_free_vgpr 256
  .amdhsa_next_free_sgpr 102
  .amdhsa_accum_offset 256
  .amdhsa_group_segment_fixed_size 0
  .amdhsa_kernarg_size 96
  .amdhsa_user_sgpr_count 2
  .amdhsa_user_sgpr_kernarg_segment_ptr 1
  .amdhsa_system_sgpr_workgroup_id_x 1
.end_amdhsa_kernel
'''
open(OUT, 'w').write(txt)
json.dump(names, open(OUT + '.names.json', 'w'))
if '--plan' in sys.argv:
    print('start', plan.get(-1))
    for i, t in enumerate(ticks):
        print(i, tstart[i], t['name'], 'needW', t['needW'], 'needA', t['needA'], 'pub', t['pub'], 'gate', gate_at.get(i), '| after:', [f'{k}{j}@{newpos.get((k,j))}' for k, j in plan.get(i, [])])
print('instructions', sum(1 for i in a.ins if i.kind != 'meta'), 'nops inserted', nn, 'ticks', NT, file=sys.stderr)
```
